```python
import torch

def _softmax(x, axis=-1):
    return torch.softmax(x, dim=axis)

def _gelu(x):
    return torch.nn.functional.gelu(x, approximate='tanh')

def _silu(x):
    return torch.nn.functional.silu(x)

def _sigmoid(x):
    return torch.sigmoid(x)

def _layernorm(x, axis=-1, eps=1e-05):
    m = x.mean(dim=axis, keepdim=True)
    v = x.var(dim=axis, keepdim=True, unbiased=False)
    return (x - m) / torch.sqrt(v + eps)

def _scatter_add(tgt, idx, src, axis=0):
    return tgt.clone().index_add_(axis, idx, src)

def _segment_sum(src, seg, n):
    out = torch.zeros((n,) + src.shape[1:], dtype=src.dtype)
    return out.index_add_(0, seg, src)

def _pad(x, pw):
    flat = tuple((v for pair in reversed(pw) for v in pair))
    return torch.nn.functional.pad(x, flat)
kernel_name = 'concat_heads__sliding_local_dilated__memory_aug_recurrent_mem_tr__prompt'

def setup_inputs():

    _w = lambda a: (lambda t: t.to(torch.bfloat16) if t.is_floating_point() else t)(torch.as_tensor(a))

    def _A_setup():
        B, S, D = (1, 2048, 640)
        return {'x': _w((lambda *s: torch.randn(*s, dtype=torch.bfloat16) * 0.2)(B, S, D)), 'wqkv': _w((lambda *s: torch.randn(*s, dtype=torch.bfloat16) * 0.2)(D, 3 * D)), 'wo': _w((lambda *s: torch.randn(*s, dtype=torch.bfloat16) * 0.05)(D, D))}
    _A_in = _A_setup()

    def _B_setup():
        B, S, Dm = (1, 2048, 640)
        H, Dh = (32, 192)
        M, seg = (8, 32)
        seg = min(seg, S)
        S = S // seg * seg
        return {'x': _w((lambda *s: torch.randn(*s, dtype=torch.bfloat16) * 0.05)(B, S, Dm)), 'mem0': _w((lambda *s: torch.randn(*s, dtype=torch.bfloat16) * 1.6)(B, M, Dm)), 'Wq': _w((lambda *s: torch.randn(*s, dtype=torch.bfloat16) * 0.8)(Dm, H, Dh) * Dm ** (-0.5)), 'Wk': _w((lambda *s: torch.randn(*s, dtype=torch.bfloat16) * 0.8)(Dm, H, Dh) * Dm ** (-0.5)), 'Wv': _w((lambda *s: torch.randn(*s, dtype=torch.bfloat16) * 1.6)(Dm, H, Dh) * Dm ** (-0.5)), 'Wo': _w((lambda *s: torch.randn(*s, dtype=torch.bfloat16) * 1.6)(H, Dh, Dm) * (H * Dh) ** (-0.5)), 'seg_len': seg}
    _B_in = _B_setup()
    return {'A_x': _A_in['x'], 'A_wqkv': _A_in['wqkv'], 'A_wo': _A_in['wo'], 'B_x': _B_in['x'], 'B_mem0': _B_in['mem0'], 'B_Wq': _B_in['Wq'], 'B_Wk': _B_in['Wk'], 'B_Wv': _B_in['Wv'], 'B_Wo': _B_in['Wo'], 'B_seg_len': _B_in['seg_len']}

def reference(A_x, A_wqkv, A_wo, B_x, B_mem0, B_Wq, B_Wk, B_Wv, B_Wo, B_seg_len):

    def _A_ref(x, wqkv, wo):
        B, S, D = x.shape
        H = 32
        Dh = D // H
        W, dil = (8, 2)
        qkv = (lambda x, *d: x.permute(*d))((x @ wqkv).reshape(B, S, 3, H, Dh), 2, 0, 3, 1, 4)
        q, k, v = (qkv[0], qkv[1], qkv[2])
        scale = Dh ** (-0.5)
        pos = torch.arange(S)
        off = torch.arange(W) * dil
        idx = pos[:, None] - off[None, :]
        mask = idx >= 0
        idx_c = torch.where(mask, idx, 0).reshape(-1)
        kg = k[:, :, idx_c, :].reshape(B, H, S, W, Dh)
        vg = v[:, :, idx_c, :].reshape(B, H, S, W, Dh)
        logits = torch.einsum('bhsd,bhswd->bhsw', q, kg) * scale
        logits = torch.where(mask[None, None, :, :], logits, -1000000000.0)
        attn = _softmax(logits, axis=-1)
        o = torch.einsum('bhsw,bhswd->bhsd', attn, vg)
        return (lambda x, *d: x.permute(*d))(o, 0, 2, 1, 3).reshape(B, S, D) @ wo

    def _B_ref(x, mem0, Wq, Wk, Wv, Wo, seg_len):
        B, S, Dm = x.shape
        H, Dh = (Wq.shape[1], Wq.shape[2])
        M = mem0.shape[1]
        scale = Dh ** (-0.5)
        n_seg = S // seg_len
        L = M + seg_len
        idx = torch.arange(L)
        mask = (idx[:, None] < M) | (idx[:, None] >= idx[None, :])
        mem = mem0
        outs = []
        for s in range(n_seg):
            xs = x[:, s * seg_len:(s + 1) * seg_len, :].clone()
            h = torch.concatenate([mem, xs], axis=1)
            q = torch.einsum('btd,dhe->bhte', h, Wq)
            k = torch.einsum('btd,dhe->bhte', h, Wk)
            v = torch.einsum('btd,dhe->bhte', h, Wv)
            scores = torch.einsum('bhqe,bhke->bhqk', q, k) * scale
            scores = torch.where(mask[None, None], scores, -1000000000.0)
            p = _softmax(scores, axis=-1)
            o = torch.einsum('bhqk,bhke->bhqe', p, v)
            o = torch.einsum('bhte,hed->btd', o, Wo)
            mem = o[:, :M, :].clone()
            outs.append(o[:, M:, :])
        return torch.concatenate(outs, axis=1)
    a = _A_ref(A_x, A_wqkv, A_wo)
    b = _B_ref(B_x, B_mem0, B_Wq, B_Wk, B_Wv, B_Wo, B_seg_len)
    return torch.concatenate([a, b], axis=-1)
```

```python
import re

def v(i, n=1): return f'v{i}' if n == 1 else f'v[{i}:{i+n-1}]'
def a(i, n=1): return f'a{i}' if n == 1 else f'a[{i}:{i+n-1}]'
def s(i, n=1): return f's{i}' if n == 1 else f's[{i}:{i+n-1}]'

_REG = re.compile(r'^(-|abs\()?([vas])(?:(\d+)|\[(\d+):(\d+)\])\)?$')
TRANS = ('v_exp_f32', 'v_log_f32', 'v_rcp_f32', 'v_rsq_f32', 'v_sqrt_f32', 'v_sin_f32', 'v_cos_f32', 'v_rcp_iflag_f32')

def regs_of(op):
    op = op.strip()
    if op == 'vcc': return {('s', 'vcc')}
    if op == 'exec': return {('s', 'exec')}
    if op == 'm0': return {('s', 'm0')}
    m = _REG.match(op)
    if not m: return set()
    k = m.group(2)
    if m.group(3) is not None: return {(k, int(m.group(3)))}
    return {(k, i) for i in range(int(m.group(4)), int(m.group(5)) + 1)}

class Ins:
    __slots__ = ('text', 'mn', 'kind', 'w', 'r', 'ab', 'c', 'data', 'states', 'target', 'dpp', 'wide', 'lds')
    def __init__(self, text):
        self.text = text
        t = text.split(';')[0].strip()
        self.w = set(); self.r = set(); self.ab = set(); self.c = set(); self.data = set()
        self.states = 1; self.target = None; self.dpp = False; self.wide = False; self.lds = False
        if not t or t.startswith('.'):
            self.mn = ''; self.kind = 'none'; self.states = 0; return
        if t.endswith(':'):
            self.mn = t[:-1]; self.kind = 'label'; self.states = 0; return
        parts = t.split(None, 1)
        mn = self.mn = parts[0]
        rest = parts[1] if len(parts) > 1 else ''
        ops = []; cur = ''; d = 0
        for ch in rest:
            if ch in '[(': d += 1
            if ch in '])': d -= 1
            if ch == ',' and d == 0: ops.append(cur.strip()); cur = ''
            else: cur += ch
        if cur.strip(): ops.append(cur.strip())
        mods = ''
        if ops:
            last = ops[-1].split(None, 1)
            ops[-1] = last[0]
            mods = last[1] if len(last) > 1 else ''
        R = [regs_of(o) for o in ops]
        U = lambda xs: set().union(*xs) if xs else set()
        if mn == 's_nop':
            self.kind = 'salu'; self.states = int(ops[0], 0) + 1
        elif mn.startswith('s_cbranch') or mn == 's_branch':
            self.kind = 'branch'; self.target = ops[0]
        elif mn.startswith('s_'):
            self.kind = 'salu'
            if mn.startswith('s_cmp') or mn in ('s_waitcnt', 's_barrier', 's_endpgm', 's_setprio', 's_sleep'):
                self.r = U(R)
            else:
                self.w = R[0] if R else set(); self.r = U(R[1:])
        elif mn.startswith('v_mfma'):
            self.kind = 'mfma'; self.w = R[0]; self.ab = R[1] | R[2]; self.c = R[3]; self.r = self.ab | self.c
        elif mn.startswith('v_smfmac'):
            self.kind = 'mfma'; self.w = R[0]; self.ab = R[1] | R[2] | R[3]; self.c = R[0]; self.r = self.ab | self.c
        elif mn.startswith('v_'):
            self.kind = 'valu'
            self.dpp = ('_dpp' in mn) or ('quad_perm' in mods) or ('row_' in mods)
            if mn.startswith('v_permlane') and 'swap' in mn:
                self.w = R[0] | R[1]; self.r = R[0] | R[1]
            elif mn == 'v_nop':
                pass
            else:
                self.w = R[0]; self.r = U(R[1:])
                if mn.startswith(('v_fmac', 'v_dot2c', 'v_writelane', 'v_pk_fmac')) or self.dpp: self.r |= R[0]
                if mn.startswith(('v_add_co', 'v_sub_co', 'v_addc_co')): self.w |= R[1]
        elif mn.startswith('buffer_'):
            self.kind = 'vmem'
            self.lds = ' lds' in (' ' + mods)
            if self.lds:
                self.r = U(R) | {('s', 'm0')}
            elif mn.startswith('buffer_load'):
                self.w = R[0]; self.r = U(R[1:])
            elif mn.startswith('buffer_atomic'):
                self.r = U(R); self.data = R[0]
                if 'sc0' in mods: self.w = R[0]
            else:
                self.r = U(R); self.data = R[0]; self.wide = mn.endswith(('x3', 'x4'))
        elif mn.startswith('ds_'):
            self.kind = 'ds'
            if mn.startswith('ds_read') or '_rtn' in mn or mn.startswith(('ds_bpermute', 'ds_permute', 'ds_swizzle')):
                self.w = R[0]; self.r = U(R[1:])
            else:
                self.r = U(R)
        else:
            raise ValueError('unknown instruction: ' + text)

def vec(x): return {r for r in x if r[0] in 'va'}
def sca(x): return {r for r in x if r[0] == 's'}

def need(p, c):
    n = 0
    if p.kind == 'valu':
        pw = vec(p.w); ps = sca(p.w)
        if c.kind == 'mfma' and pw & c.r: n = max(n, 2)
        if c.kind == 'valu':
            if c.mn.startswith('v_permlane') and pw & c.r: n = max(n, 2)
            if c.dpp and pw & c.r: n = max(n, 2)
            if c.mn.startswith(('v_readlane', 'v_readfirstlane')) and pw & c.r: n = max(n, 1)
            if p.mn.replace('_e32', '').replace('_e64', '') in TRANS and pw & c.r: n = max(n, 1)
            if ps & c.r: n = max(n, 4 if c.mn.startswith(('v_readlane', 'v_writelane')) else 2)
            if p.mn.startswith('v_dot') and (pw & (c.r | c.w)):
                same = c.mn == p.mn
                if not same: n = max(n, 3)
                else:
                    n = max(n, 0)
        if p.mn.startswith('v_dot') and c.kind in ('vmem', 'ds', 'mfma') and pw & c.r: n = max(n, 3)
        if c.kind == 'vmem' and ps & c.r: n = max(n, 5)
        if c.kind == 'salu' and ps & c.r: n = max(n, 1)
    elif p.kind == 'mfma':
        big = '32x32' in p.mn
        if c.kind == 'mfma':
            if p.w & c.ab: n = max(n, 12 if big else 8)
            if p.w & c.c and not (p.w == c.c and ('32x32' in c.mn) == big): n = max(n, 10 if big else 6)
            if p.w & c.w and not (p.w & c.c) and p.w != c.w: n = max(n, 10 if big else 6)
        elif c.kind in ('valu', 'vmem', 'ds'):
            if p.w & (c.r | c.w): n = max(n, 12 if big else 8)
            if c.kind == 'valu' and p.c & c.w: n = max(n, 7 if big else 3)
    elif p.kind == 'vmem':
        if p.wide and p.data & c.w: n = max(n, 2)
    elif p.kind == 'salu':
        if ('s', 'm0') in p.w and ((c.kind == 'vmem' and c.lds) or 'addtid' in c.mn): n = max(n, 1)
    return n

WIN = 14

class Asm:
    def __init__(self):
        self.lines = []
        self._uid = 0
    def __call__(self, text):
        for ln in text.split('\n'):
            ln = ln.strip()
            if ln: self.lines.append(ln)
    def uid(self, base='L'):
        self._uid += 1
        return f'{base}_{self._uid}'
    def label(self, name): self.lines.append(name + ':')

    def finish(self):
        ins = [Ins(t) for t in self.lines]
        added = 0
        def deficit(hist, c):
            d = 0; dist = 0
            for p in reversed(hist):
                if p.states == 0: continue
                if dist >= WIN: break
                d = max(d, need(p, c) - dist)
                dist += p.states
            return d
        changed = True
        while changed:
            changed = False
            out = []
            for c in ins:
                if c.states and c.kind != 'none':
                    hist = []
                    for p in reversed(out[-3 * WIN:]):
                        if p.mn in ('s_branch', 's_endpgm'): break
                        hist.append(p)
                    hist.reverse()
                    d = deficit(hist, c)
                    if d > 0:
                        out.append(Ins(f's_nop {d-1}')); added += d; changed = True
                out.append(c)
            ins = out
            pos = {x.mn: i for i, x in enumerate(ins) if x.kind == 'label'}
            fix = {}
            for i, b in enumerate(ins):
                if b.kind != 'branch': continue
                hist = []
                for p in reversed(ins[max(0, i - 3 * WIN):i]):
                    if p.mn in ('s_branch', 's_endpgm'): break
                    hist.append(p)
                hist.reverse(); hist.append(b)
                nh = len(hist)
                j = pos[b.target]; dist = 0; worst = 0
                path = list(hist)
                while j < len(ins) and dist < WIN:
                    c = ins[j]
                    if c.states:
                        d = 0; dd = dist
                        for p in reversed(hist):
                            if p.states == 0: continue
                            if dd >= WIN: break
                            d = max(d, need(p, c) - dd)
                            dd += p.states
                        worst = max(worst, d)
                        dist += c.states
                        if c.mn == 's_endpgm': break
                        if c.mn == 's_branch':
                            j = pos[c.target]; continue
                    j += 1
                if worst > 0: fix[i] = worst
            if fix:
                out = []
                for i, x in enumerate(ins):
                    if i in fix:
                        out.append(Ins(f's_nop {fix[i]-1}')); added += fix[i]
                    out.append(x)
                ins = out; changed = True
        self.added = added
        res = []
        for x in ins:
            res.append(x.text if (x.kind == 'label' or x.text.startswith('.')) else '    ' + x.text)
        return '\n'.join(res) + '\n'
```

```python
import math
from asmlib import v, a, s

def part_a(G):
    import gen as g
    from gen import RA, f32, sW, sG, sR, sT0, sT1, sT2, sT3, R0, R1, R2, OUT, P_AX, P_AW, P_AWO
    A = G.A
    LST = 0; CH = 16384
    LQ = 3 * CH; QS = 1296
    LK = LQ + 32 * QS; KS = 648
    LV = LK + 48 * KS
    CA = 20 ** -0.5 * math.log2(math.e)
    r = RA(10, 256)
    vD1, vD2, vRd, vRds, vWq, vWk, vWs, vOst, vAq, vAk, vAqs, vAks, vPos, vMx, vSum, vBig, vOr = [r() for _ in range(17)]
    bf = r(16, 4); acc = r(12, 4); pk = r(6, 4)
    q = r(10, 2); kk = r(20, 2); lg = r(8, 2); pp = r(16, 2); o = r(20, 2)
    sRow0, sB, sCol, sColN, sBufR, sBufW, sHH, sC, sIt = range(40, 49)
    A.label('L_pa_body')
    G.srd(R0, P_AX, 2048 * 640 * 2); G.srd(R1, P_AW, 640 * 1920 * 2); G.srd(R2, P_AWO, 640 * 640 * 2)
    G.lanes()
    A(f'''s_lshl_b32 {s(sRow0)}, {s(sG)}, 3
    s_add_u32 {s(sRow0)}, {s(sRow0)}, {s(sR)}
    s_sub_u32 {s(sRow0)}, {s(sRow0)}, 24
    s_lshl_b32 {s(sRow0)}, {s(sRow0)}, 5''')
    for rt in range(3):
        A(f'''s_add_u32 {s(sT0)}, {s(sRow0)}, {16*rt - 16}
        v_add_u32 v3, {s(sT0)}, v1
        v_cmp_le_i32 vcc, 0, v3
        v_mul_u32_u24 v3, 1280, v3
        v_lshl_add_u32 v3, v2, 4, v3
        v_mov_b32 v4, {g.OOB}
        v_cndmask_b32 v3, v4, v3, vcc''')
        for ks in range(20):
            A(f'buffer_load_dwordx4 {a(80*rt + 4*ks, 4)}, v3, {s(R0,4)}, 0 offen offset:{64*ks}')
    A(f'''v_lshrrev_b32 v3, 3, v0
    v_and_b32 v4, 7, v0
    s_lshl_b32 {s(sT0)}, {s(sW)}, 3
    v_add_u32 v5, {s(sT0)}, v3
    s_and_b32 {s(sT1)}, {s(sW)}, 1
    s_lshl_b32 {s(sT1)}, {s(sT1)}, 2
    v_and_b32 v6, 2, v3
    v_or_b32 v6, {s(sT1)}, v6
    v_xor_b32 v6, v6, v4
    v_lshlrev_b32 v6, 4, v6
    v_mul_u32_u24 v7, 3840, v5
    v_add_u32 {v(vD1)}, v6, v7
    v_mul_u32_u24 v7, 1280, v5
    v_add_u32 {v(vD2)}, v6, v7
    v_lshrrev_b32 v3, 2, v1
    v_and_b32 v4, 3, v1
    v_and_b32 v5, 1, v2
    v_lshl_add_u32 v6, v2, 3, v3
    v_lshlrev_b32 v6, 7, v6
    v_and_b32 v7, 2, v3
    v_lshl_or_b32 v7, v5, 2, v7
    v_lshrrev_b32 v8, 1, v4
    s_lshl_b32 {s(sT0)}, {s(sW)}, 1
    v_or_b32 v8, {s(sT0)}, v8
    v_xor_b32 v7, v7, v8
    v_lshl_add_u32 v6, v7, 4, v6
    v_and_b32 v7, 1, v4
    v_lshl_add_u32 {v(vRd)}, v7, 3, v6
    s_lshl_b32 {s(sT0)}, {s(sW)}, 5
    v_lshl_add_u32 v6, v2, 3, {s(sT0)}          ; 32w + 8g
    v_mul_u32_u24 v7, {QS}, v1
    v_add_u32 {v(vWq)}, v6, v7
    v_add_u32 {v(vWq)}, {LQ}, {v(vWq)}
    v_lshl_add_u32 {v(vOr)}, v2, 4, v7
    v_add_u32 {v(vOr)}, {LQ}, {v(vOr)}
    v_mul_u32_u24 v7, {KS}, v1
    v_add_u32 {v(vWk)}, v6, v7
    v_add_u32 {v(vWk)}, {LK}, {v(vWk)}
    v_lshl_add_u32 v6, v5, 4, v1
    v_add_u32 v6, {s(sRow0)}, v6
    v_mul_u32_u24 v6, 2560, v6
    v_lshrrev_b32 v7, 1, v2
    v_lshl_add_u32 v6, v7, 4, v6
    v_add_u32 {v(vOst)}, {s(sT0)}, v6
    v_and_b32 v3, 31, v0
    v_add_u32 {v(vPos)}, {s(sRow0)}, v3
    v_lshrrev_b32 v4, 5, v0
    s_lshl_b32 {s(sT0)}, {s(sW)}, 2
    v_add_u32 v4, {s(sT0)}, v4
    v_mul_u32_u24 v4, 40, v4
    v_mul_u32_u24 v5, {QS}, v3
    v_add_u32 v5, v5, v4
    v_add_u32 {v(vAq)}, {LQ}, v5
    v_mul_u32_u24 v5, {KS}, v3
    v_add_u32 v5, v5, v4
    v_add_u32 {v(vAk)}, {LK + 2*KS}, v5
    v_mov_b32 {v(vBig)}, {f32(-1e9 * 20 ** 0.5)}
    s_mov_b32 {s(sC)}, {f32(CA)}
    s_mov_b32 {s(sHH)}, 0''')

    def rot(reg):
        A(f's_add_u32 {s(reg)}, {s(reg)}, {CH}\ns_cmp_eq_u32 {s(reg)}, {3*CH}\ns_cselect_b32 {s(reg)}, 0, {s(reg)}')
    def dma(srd, vD, stride, colreg, kc):
        A(f's_lshl_b32 {s(sT0)}, {s(sW)}, 10\ns_add_u32 m0, {s(sT0)}, {s(sBufW)}\ns_add_u32 {s(sT1)}, {s(colreg)}, {kc*128*stride}')
        for i in range(4):
            A(f'buffer_load_dwordx4 {v(vD)}, {s(srd,4)}, {s(sT1)} offen lds')
            if i < 3: A(f's_add_u32 m0, m0, 4096\ns_add_u32 {s(sT1)}, {s(sT1)}, {32*stride}')
        rot(sBufW)
    def block(srd, vD, stride, nrt):
        for kc in range(5):
            A(f'v_add_u32 {v(vRds)}, {s(sBufR)}, {v(vRd)}\ns_waitcnt vmcnt(4)\ns_barrier')
            for ks in range(4):
                for eh in range(2):
                    A(f'ds_read_b64_tr_b16 {v(bf + 4*ks + 2*eh, 2)}, {v(vRds)} offset:{ks*4096 + eh*512}')
            if kc < 3: dma(srd, vD, stride, sCol, kc + 2)
            else: dma(srd, vD, stride, sColN, kc - 3)
            rot(sBufR)
            for ks in range(4):
                A(f's_waitcnt lgkmcnt({6 - 2*ks})')
                for rt in range(nrt):
                    d = v(acc + 4*rt, 4); K = 4*kc + ks
                    A(f'v_mfma_f32_16x16x32_bf16 {d}, {v(bf + 4*ks, 4)}, {a(80*rt + 4*K, 4)}, {d if K else 0}')
        for rt in range(nrt):
            for i in range(2):
                A(f'v_cvt_pk_bf16_f32 {v(pk + 2*rt + i)}, {v(acc + 4*rt + 2*i)}, {v(acc + 4*rt + 2*i + 1)}')
    def phase_start(srd, vD, stride):
        A(f's_waitcnt vmcnt(0) lgkmcnt(0)\ns_barrier\ns_mov_b32 {s(sBufR)}, {LST}\ns_mov_b32 {s(sBufW)}, {LST}\ns_mov_b32 {s(sB)}, 0')
        dma(srd, vD, stride, sCol, 0); dma(srd, vD, stride, sCol, 1)

    A.label('L_pa_half')
    A(f's_mul_i32 {s(sCol)}, {s(sHH)}, 640')
    phase_start(R1, vD1, 3840)
    A.label('L_pa_blk')
    A(f'''s_add_u32 {s(sColN)}, {s(sCol)}, 128
    s_add_u32 {s(sT0)}, {s(sCol)}, {1280 - 512}
    s_cmp_eq_u32 {s(sB)}, 4
    s_cselect_b32 {s(sColN)}, {s(sT0)}, {s(sColN)}
    s_cmp_eq_u32 {s(sB)}, 9
    s_cselect_b32 {s(sColN)}, {s(sT0)}, {s(sColN)}
    s_cmp_eq_u32 {s(sB)}, 14
    s_cselect_b32 {s(sColN)}, {s(sCol)}, {s(sColN)}''')
    block(R1, vD1, 3840, 3)
    A(f'''s_cmp_ge_u32 {s(sB)}, 5
    s_cbranch_scc1 L_pa_kv
    v_add_u32 {v(vWs)}, {s(sCol)}, {v(vWq)}
    ds_write_b64 {v(vWs)}, {v(pk+2,2)}
    ds_write_b64 {v(vWs)}, {v(pk+4,2)} offset:{16*QS}
    s_branch L_pa_wr
    L_pa_kv:
    s_sub_u32 {s(sT0)}, {s(sB)}, 5
    s_lshl_b32 {s(sT0)}, {s(sT0)}, 7
    s_add_u32 {s(sT1)}, {s(sT0)}, {LV - LK - 640}
    s_cmp_ge_u32 {s(sB)}, 10
    s_cselect_b32 {s(sT0)}, {s(sT1)}, {s(sT0)}
    v_add_u32 {v(vWs)}, {s(sT0)}, {v(vWk)}
    ds_write_b64 {v(vWs)}, {v(pk,2)}
    ds_write_b64 {v(vWs)}, {v(pk+2,2)} offset:{16*KS}
    ds_write_b64 {v(vWs)}, {v(pk+4,2)} offset:{32*KS}
    L_pa_wr:
    s_waitcnt lgkmcnt(0)
    s_mov_b32 {s(sCol)}, {s(sColN)}
    s_add_u32 {s(sB)}, {s(sB)}, 1
    s_cmp_lt_u32 {s(sB)}, 15
    s_cbranch_scc1 L_pa_blk
    s_barrier
    s_mov_b32 {s(sIt)}, 0''')
    A.label('L_pa_att')
    A(f'''s_mul_i32 {s(sT0)}, {s(sIt)}, 80
    v_add_u32 {v(vAks)}, {s(sT0)}, {v(vAk)}
    s_mul_i32 {s(sT1)}, {s(sHH)}, 640
    s_add_u32 {s(sT0)}, {s(sT0)}, {s(sT1)}
    v_add_u32 {v(vAqs)}, {s(sT0)}, {v(vAq)}''')
    for i in range(5): A(f'ds_read_b64 {v(q+2*i,2)}, {v(vAqs)} offset:{8*i}')
    def rd(j, base):
        for i in range(5): A(f'ds_read_b64 {v(kk + 10*(j&1) + 2*i, 2)}, {v(vAks)} offset:{base + (14-2*j)*KS + 8*i}')
    rd(0, 0)
    for j in range(8):
        if j < 7: rd(j + 1, 0)
        else: rd(0, LV - LK)
        A('s_waitcnt lgkmcnt(5)')
        for i in range(10):
            A(f'v_dot2_f32_bf16 {v(lg+j)}, {v(q+i)}, {v(kk + 10*(j&1) + i)}, {v(lg+j) if i else 0}')
    for j in range(1, 8):
        A(f'v_cmp_le_u32 vcc, {2*j}, {v(vPos)}\nv_cndmask_b32 {v(lg+j)}, {v(vBig)}, {v(lg+j)}, vcc')
    A(f'v_max_f32 {v(vMx)}, {v(lg)}, {v(lg+1)}')
    for j in range(2, 8, 2): A(f'v_max3_f32 {v(vMx)}, {v(vMx)}, {v(lg+j)}, {v(lg+j+1)}')
    A(f'v_mul_f32 {v(vMx)}, {f32(-CA)}, {v(vMx)}')
    for j in range(8): A(f'v_fma_f32 {v(lg+j)}, {v(lg+j)}, {s(sC)}, {v(vMx)}')
    for j in range(8): A(f'v_exp_f32 {v(lg+j)}, {v(lg+j)}')
    A(f'v_add_f32 {v(vSum)}, {v(lg)}, {v(lg+1)}')
    for j in range(2, 8): A(f'v_add_f32 {v(vSum)}, {v(vSum)}, {v(lg+j)}')
    A(f'v_rcp_f32 {v(vSum)}, {v(vSum)}')
    for j in range(8):
        A(f'''v_mul_f32 {v(lg+j)}, {v(lg+j)}, {v(vSum)}
        v_cvt_pk_bf16_f32 {v(pp+2*j)}, {v(lg+j)}, 0
        v_cvt_pk_bf16_f32 {v(pp+2*j+1)}, 0, {v(lg+j)}''')
    for j in range(8):
        if j < 7: rd(j + 1, LV - LK)
        A(f's_waitcnt lgkmcnt({5 if j < 7 else 0})')
        for i in range(10):
            for h in range(2):
                A(f'v_dot2_f32_bf16 {v(o+2*i+h)}, {v(kk + 10*(j&1) + i)}, {v(pp+2*j+h)}, {v(o+2*i+h) if j else 0}')
    for i in range(10): A(f'v_cvt_pk_bf16_f32 {v(q+i)}, {v(o+2*i)}, {v(o+2*i+1)}')
    for i in range(5): A(f'ds_write_b64 {v(vAqs)}, {v(q+2*i,2)} offset:{8*i}')
    A(f'''s_waitcnt lgkmcnt(0)
    s_add_u32 {s(sIt)}, {s(sIt)}, 1
    s_cmp_lt_u32 {s(sIt)}, 2
    s_cbranch_scc1 L_pa_att
    s_add_u32 {s(sHH)}, {s(sHH)}, 1
    s_cmp_lt_u32 {s(sHH)}, 2
    s_cbranch_scc1 L_pa_half''')
    A(f's_mov_b32 {s(sCol)}, 0')
    phase_start(R2, vD2, 1280)
    for rt in range(2):
        for ks in range(20):
            A(f'ds_read_b128 {a(80*rt + 4*ks, 4)}, {v(vOr)} offset:{rt*16*QS + 64*ks}')
    A('s_waitcnt lgkmcnt(0)')
    A.label('L_pa_oblk')
    A(f'''s_add_u32 {s(sColN)}, {s(sCol)}, 128
    s_cmp_eq_u32 {s(sB)}, 9
    s_cselect_b32 {s(sColN)}, {s(sCol)}, {s(sColN)}''')
    block(R2, vD2, 1280, 2)
    A(f'''v_permlane16_swap_b32 {v(pk)}, {v(pk+2)}
    v_permlane16_swap_b32 {v(pk+1)}, {v(pk+3)}
    buffer_store_dwordx4 {v(pk,4)}, {v(vOst)}, {s(OUT,4)}, {s(sCol)} offen
    s_mov_b32 {s(sCol)}, {s(sColN)}
    s_add_u32 {s(sB)}, {s(sB)}, 1
    s_cmp_lt_u32 {s(sB)}, 10
    s_cbranch_scc1 L_pa_oblk
    s_waitcnt vmcnt(0)
    s_endpgm''')
```

```python
import re

def v(i, n=1): return f'v{i}' if n == 1 else f'v[{i}:{i+n-1}]'
def a(i, n=1): return f'a{i}' if n == 1 else f'a[{i}:{i+n-1}]'
def s(i, n=1): return f's{i}' if n == 1 else f's[{i}:{i+n-1}]'

_REG = re.compile(r'^(-|abs\()?([vas])(?:(\d+)|\[(\d+):(\d+)\])\)?$')
TRANS = ('v_exp_f32', 'v_log_f32', 'v_rcp_f32', 'v_rsq_f32', 'v_sqrt_f32', 'v_sin_f32', 'v_cos_f32', 'v_rcp_iflag_f32')

def regs_of(op):
    op = op.strip()
    if op == 'vcc': return {('s', 'vcc')}
    if op == 'exec': return {('s', 'exec')}
    if op == 'm0': return {('s', 'm0')}
    m = _REG.match(op)
    if not m: return set()
    k = m.group(2)
    if m.group(3) is not None: return {(k, int(m.group(3)))}
    return {(k, i) for i in range(int(m.group(4)), int(m.group(5)) + 1)}

class Ins:
    __slots__ = ('text', 'mn', 'kind', 'w', 'r', 'ab', 'c', 'data', 'states', 'target', 'dpp', 'wide', 'lds')
    def __init__(self, text):
        self.text = text
        t = text.split(';')[0].strip()
        self.w = set(); self.r = set(); self.ab = set(); self.c = set(); self.data = set()
        self.states = 1; self.target = None; self.dpp = False; self.wide = False; self.lds = False
        if not t or t.startswith('.'):
            self.mn = ''; self.kind = 'none'; self.states = 0; return
        if t.endswith(':'):
            self.mn = t[:-1]; self.kind = 'label'; self.states = 0; return
        parts = t.split(None, 1)
        mn = self.mn = parts[0]
        rest = parts[1] if len(parts) > 1 else ''
        ops = []; cur = ''; d = 0
        for ch in rest:
            if ch in '[(': d += 1
            if ch in '])': d -= 1
            if ch == ',' and d == 0: ops.append(cur.strip()); cur = ''
            else: cur += ch
        if cur.strip(): ops.append(cur.strip())
        mods = ''
        if ops:
            last = ops[-1].split(None, 1)
            ops[-1] = last[0]
            mods = last[1] if len(last) > 1 else ''
        R = [regs_of(o) for o in ops]
        U = lambda xs: set().union(*xs) if xs else set()
        if mn == 's_nop':
            self.kind = 'salu'; self.states = int(ops[0], 0) + 1
        elif mn.startswith('s_cbranch') or mn == 's_branch':
            self.kind = 'branch'; self.target = ops[0]
        elif mn.startswith('s_'):
            self.kind = 'salu'
            if mn.startswith('s_cmp') or mn in ('s_waitcnt', 's_barrier', 's_endpgm', 's_setprio', 's_sleep'):
                self.r = U(R)
            else:
                self.w = R[0] if R else set(); self.r = U(R[1:])
        elif mn.startswith('v_mfma'):
            self.kind = 'mfma'; self.w = R[0]; self.ab = R[1] | R[2]; self.c = R[3]; self.r = self.ab | self.c
        elif mn.startswith('v_smfmac'):
            self.kind = 'mfma'; self.w = R[0]; self.ab = R[1] | R[2] | R[3]; self.c = R[0]; self.r = self.ab | self.c
        elif mn.startswith('v_'):
            self.kind = 'valu'
            self.dpp = ('_dpp' in mn) or ('quad_perm' in mods) or ('row_' in mods)
            if mn.startswith('v_permlane') and 'swap' in mn:
                self.w = R[0] | R[1]; self.r = R[0] | R[1]
            elif mn == 'v_nop':
                pass
            else:
                self.w = R[0]; self.r = U(R[1:])
                if mn.startswith(('v_fmac', 'v_dot2c', 'v_writelane', 'v_pk_fmac')) or self.dpp: self.r |= R[0]
                if mn.startswith(('v_add_co', 'v_sub_co', 'v_addc_co')): self.w |= R[1]
        elif mn.startswith('buffer_'):
            self.kind = 'vmem'
            self.lds = ' lds' in (' ' + mods)
            if self.lds:
                self.r = U(R) | {('s', 'm0')}
            elif mn.startswith('buffer_load'):
                self.w = R[0]; self.r = U(R[1:])
            elif mn.startswith('buffer_atomic'):
                self.r = U(R); self.data = R[0]
                if 'sc0' in mods: self.w = R[0]
            else:
                self.r = U(R); self.data = R[0]; self.wide = mn.endswith(('x3', 'x4'))
        elif mn.startswith('ds_'):
            self.kind = 'ds'
            if mn.startswith('ds_read') or '_rtn' in mn or mn.startswith(('ds_bpermute', 'ds_permute', 'ds_swizzle')):
                self.w = R[0]; self.r = U(R[1:])
            else:
                self.r = U(R)
        else:
            raise ValueError('unknown instruction: ' + text)

def vec(x): return {r for r in x if r[0] in 'va'}
def sca(x): return {r for r in x if r[0] == 's'}

def need(p, c):
    n = 0
    if p.kind == 'valu':
        pw = vec(p.w); ps = sca(p.w)
        if c.kind == 'mfma' and pw & c.r: n = max(n, 2)
        if c.kind == 'valu':
            if c.mn.startswith('v_permlane') and pw & c.r: n = max(n, 2)
            if c.dpp and pw & c.r: n = max(n, 2)
            if c.mn.startswith(('v_readlane', 'v_readfirstlane')) and pw & c.r: n = max(n, 1)
            if p.mn.replace('_e32', '').replace('_e64', '') in TRANS and pw & c.r: n = max(n, 1)
            if ps & c.r: n = max(n, 4 if c.mn.startswith(('v_readlane', 'v_writelane')) else 2)
            if p.mn.startswith('v_dot') and (pw & (c.r | c.w)):
                same = c.mn == p.mn
                if not same: n = max(n, 3)
                else:
                    n = max(n, 0)
        if p.mn.startswith('v_dot') and c.kind in ('vmem', 'ds', 'mfma') and pw & c.r: n = max(n, 3)
        if c.kind == 'vmem' and ps & c.r: n = max(n, 5)
        if c.kind == 'salu' and ps & c.r: n = max(n, 1)
    elif p.kind == 'mfma':
        big = '32x32' in p.mn
        if c.kind == 'mfma':
            if p.w & c.ab: n = max(n, 12 if big else 8)
            if p.w & c.c and not (p.w == c.c and ('32x32' in c.mn) == big): n = max(n, 10 if big else 6)
            if p.w & c.w and not (p.w & c.c) and p.w != c.w: n = max(n, 10 if big else 6)
        elif c.kind in ('valu', 'vmem', 'ds'):
            if p.w & (c.r | c.w): n = max(n, 12 if big else 8)
            if c.kind == 'valu' and p.c & c.w: n = max(n, 7 if big else 3)
    elif p.kind == 'vmem':
        if p.wide and p.data & c.w: n = max(n, 2)
    elif p.kind == 'salu':
        if ('s', 'm0') in p.w and ((c.kind == 'vmem' and c.lds) or 'addtid' in c.mn): n = max(n, 1)
    return n

WIN = 14

class Asm:
    def __init__(self):
        self.lines = []
        self._uid = 0
    def __call__(self, text):
        for ln in text.split('\n'):
            ln = ln.strip()
            if ln: self.lines.append(ln)
    def uid(self, base='L'):
        self._uid += 1
        return f'{base}_{self._uid}'
    def label(self, name): self.lines.append(name + ':')

    def finish(self):
        ins = [Ins(t) for t in self.lines]
        added = 0
        def deficit(hist, c):
            d = 0; dist = 0; k = 0; after = 0
            for p in reversed(hist):
                if p.states == 0: continue
                if dist >= WIN: break
                eff = dist
                if p.kind == 'mfma' and k and c.kind != 'mfma': eff = max(dist, 4 * k + after - 1)
                d = max(d, need(p, c) - eff)
                if p.kind == 'mfma':
                    if k == 0: after = dist
                    k += 1
                dist += p.states
            return d
        changed = True
        while changed:
            changed = False
            out = []
            for c in ins:
                if c.states and c.kind != 'none':
                    hist = []
                    for p in reversed(out[-3 * WIN:]):
                        if p.mn in ('s_branch', 's_endpgm'): break
                        hist.append(p)
                    hist.reverse()
                    d = deficit(hist, c)
                    if d > 0:
                        out.append(Ins(f's_nop {d-1}')); added += d; changed = True
                out.append(c)
            ins = out
            pos = {x.mn: i for i, x in enumerate(ins) if x.kind == 'label'}
            fix = {}
            for i, b in enumerate(ins):
                if b.kind != 'branch': continue
                hist = []
                for p in reversed(ins[max(0, i - 3 * WIN):i]):
                    if p.mn in ('s_branch', 's_endpgm'): break
                    hist.append(p)
                hist.reverse(); hist.append(b)
                nh = len(hist)
                j = pos[b.target]; dist = 0; worst = 0
                path = list(hist)
                while j < len(ins) and dist < WIN:
                    c = ins[j]
                    if c.states:
                        d = 0; dd = dist
                        for p in reversed(hist):
                            if p.states == 0: continue
                            if dd >= WIN: break
                            d = max(d, need(p, c) - dd)
                            dd += p.states
                        worst = max(worst, d)
                        dist += c.states
                        if c.mn == 's_endpgm': break
                        if c.mn == 's_branch':
                            j = pos[c.target]; continue
                    j += 1
                if worst > 0: fix[i] = worst
            if fix:
                out = []
                for i, x in enumerate(ins):
                    if i in fix:
                        out.append(Ins(f's_nop {fix[i]-1}')); added += fix[i]
                    out.append(x)
                ins = out; changed = True
        self.added = added
        res = []
        for x in ins:
            res.append(x.text if (x.kind == 'label' or x.text.startswith('.')) else '    ' + x.text)
        return '\n'.join(res) + '\n'
```

```python
import math
from asmlib import v, a, s

def part_a(G):
    import gen as g
    from gen import RA, f32, sW, sG, sR, sT0, sT1, sT2, sT3, R0, R1, R2, OUT, P_AX, P_AW, P_AWO
    A = G.A
    LST = 0; CH = 16384
    LQ = 3 * CH; QS = 1296
    LK = LQ + 32 * QS; KS = 648
    LV = LK + 48 * KS
    CA = 20 ** -0.5 * math.log2(math.e)
    r = RA(10, 256)
    vD1, vD2, vRd, vRds, vWq, vWk, vWs, vOst, vAq, vAk, vAqs, vAks, vPos, vMx, vSum, vBig, vOr = [r() for _ in range(17)]
    bf = r(16, 4); acc = r(12, 4); pk = r(6, 4)
    q = r(10, 2); kk = r(20, 2); lg = r(8, 2); pp = r(16, 2); o = r(20, 2)
    sRow0, sB, sCol, sColN, sBufR, sBufW, sHH, sC, sIt = range(40, 49)
    A.label('L_pa_body')
    G.tl(3)
    G.srd(R0, P_AX, 2048 * 640 * 2); G.srd(R1, P_AW, 640 * 1920 * 2); G.srd(R2, P_AWO, 640 * 640 * 2)
    G.lanes()
    A(f'''s_lshl_b32 {s(sRow0)}, {s(sG)}, 3
    s_add_u32 {s(sRow0)}, {s(sRow0)}, {s(sR)}
    s_sub_u32 {s(sRow0)}, {s(sRow0)}, 24
    s_lshl_b32 {s(sRow0)}, {s(sRow0)}, 5''')
    for rt in range(3):
        A(f'''s_add_u32 {s(sT0)}, {s(sRow0)}, {16*rt - 16}
        v_add_u32 v3, {s(sT0)}, v1
        v_cmp_le_i32 vcc, 0, v3
        v_mul_u32_u24 v3, 1280, v3
        v_lshl_add_u32 v3, v2, 4, v3
        v_mov_b32 v4, {g.OOB}
        v_cndmask_b32 v3, v4, v3, vcc''')
        for ks in range(20):
            A(f'buffer_load_dwordx4 {a(80*rt + 4*ks, 4)}, v3, {s(R0,4)}, 0 offen offset:{64*ks}')
    A(f'''v_lshrrev_b32 v3, 3, v0
    v_and_b32 v4, 7, v0
    s_lshl_b32 {s(sT0)}, {s(sW)}, 3
    v_add_u32 v5, {s(sT0)}, v3
    s_and_b32 {s(sT1)}, {s(sW)}, 1
    s_lshl_b32 {s(sT1)}, {s(sT1)}, 2
    v_and_b32 v6, 2, v3
    v_or_b32 v6, {s(sT1)}, v6
    v_xor_b32 v6, v6, v4
    v_lshlrev_b32 v6, 4, v6
    v_mul_u32_u24 v7, 3840, v5
    v_add_u32 {v(vD1)}, v6, v7
    v_mul_u32_u24 v7, 1280, v5
    v_add_u32 {v(vD2)}, v6, v7
    v_lshrrev_b32 v3, 2, v1
    v_and_b32 v4, 3, v1
    v_and_b32 v5, 1, v2
    v_lshl_add_u32 v6, v2, 3, v3
    v_lshlrev_b32 v6, 7, v6
    v_and_b32 v7, 2, v3
    v_lshl_or_b32 v7, v5, 2, v7
    v_lshrrev_b32 v8, 1, v4
    s_lshl_b32 {s(sT0)}, {s(sW)}, 1
    v_or_b32 v8, {s(sT0)}, v8
    v_xor_b32 v7, v7, v8
    v_lshl_add_u32 v6, v7, 4, v6
    v_and_b32 v7, 1, v4
    v_lshl_add_u32 {v(vRd)}, v7, 3, v6
    s_lshl_b32 {s(sT0)}, {s(sW)}, 5
    v_lshl_add_u32 v6, v2, 3, {s(sT0)}          ; 32w + 8g
    v_mul_u32_u24 v7, {QS}, v1
    v_add_u32 {v(vWq)}, v6, v7
    v_add_u32 {v(vWq)}, {LQ}, {v(vWq)}
    v_lshl_add_u32 {v(vOr)}, v2, 4, v7
    v_add_u32 {v(vOr)}, {LQ}, {v(vOr)}
    v_mul_u32_u24 v7, {KS}, v1
    v_add_u32 {v(vWk)}, v6, v7
    v_add_u32 {v(vWk)}, {LK}, {v(vWk)}
    v_lshl_add_u32 v6, v5, 4, v1
    v_add_u32 v6, {s(sRow0)}, v6
    v_mul_u32_u24 v6, 2560, v6
    v_lshrrev_b32 v7, 1, v2
    v_lshl_add_u32 v6, v7, 4, v6
    v_add_u32 {v(vOst)}, {s(sT0)}, v6
    v_and_b32 v3, 31, v0
    v_add_u32 {v(vPos)}, {s(sRow0)}, v3
    v_lshrrev_b32 v4, 5, v0
    s_lshl_b32 {s(sT0)}, {s(sW)}, 2
    v_add_u32 v4, {s(sT0)}, v4
    v_mul_u32_u24 v4, 40, v4
    v_mul_u32_u24 v5, {QS}, v3
    v_add_u32 v5, v5, v4
    v_add_u32 {v(vAq)}, {LQ}, v5
    v_mul_u32_u24 v5, {KS}, v3
    v_add_u32 v5, v5, v4
    v_add_u32 {v(vAk)}, {LK + 2*KS}, v5
    v_mov_b32 {v(vBig)}, {f32(-1e9 * 20 ** 0.5)}
    s_mov_b32 {s(sC)}, {f32(CA)}
    s_mov_b32 {s(sHH)}, 0''')

    def rot(reg):
        A(f's_add_u32 {s(reg)}, {s(reg)}, {CH}\ns_cmp_eq_u32 {s(reg)}, {3*CH}\ns_cselect_b32 {s(reg)}, 0, {s(reg)}')
    def dma(srd, vD, stride, colreg, kc):
        A(f's_lshl_b32 {s(sT0)}, {s(sW)}, 10\ns_add_u32 m0, {s(sT0)}, {s(sBufW)}\ns_add_u32 {s(sT1)}, {s(colreg)}, {kc*128*stride}')
        for i in range(4):
            A(f'buffer_load_dwordx4 {v(vD)}, {s(srd,4)}, {s(sT1)} offen lds')
            if i < 3: A(f's_add_u32 m0, m0, 4096\ns_add_u32 {s(sT1)}, {s(sT1)}, {32*stride}')
        rot(sBufW)
    def block(srd, vD, stride, nrt):
        for kc in range(5):
            A(f'v_add_u32 {v(vRds)}, {s(sBufR)}, {v(vRd)}\ns_waitcnt vmcnt(4)\ns_barrier')
            for ks in range(4):
                for eh in range(2):
                    A(f'ds_read_b64_tr_b16 {v(bf + 4*ks + 2*eh, 2)}, {v(vRds)} offset:{ks*4096 + eh*512}')
            if kc < 3: dma(srd, vD, stride, sCol, kc + 2)
            else: dma(srd, vD, stride, sColN, kc - 3)
            rot(sBufR)
            for ks in range(4):
                A(f's_waitcnt lgkmcnt({6 - 2*ks})')
                for rt in range(nrt):
                    d = v(acc + 4*rt, 4); K = 4*kc + ks
                    A(f'v_mfma_f32_16x16x32_bf16 {d}, {v(bf + 4*ks, 4)}, {a(80*rt + 4*K, 4)}, {d if K else 0}')
        for rt in range(nrt):
            for i in range(2):
                A(f'v_cvt_pk_bf16_f32 {v(pk + 2*rt + i)}, {v(acc + 4*rt + 2*i)}, {v(acc + 4*rt + 2*i + 1)}')
    def phase_start(srd, vD, stride):
        A(f's_waitcnt vmcnt(0) lgkmcnt(0)\ns_barrier\ns_mov_b32 {s(sBufR)}, {LST}\ns_mov_b32 {s(sBufW)}, {LST}\ns_mov_b32 {s(sB)}, 0')
        dma(srd, vD, stride, sCol, 0); dma(srd, vD, stride, sCol, 1)

    A.label('L_pa_half')
    A(f's_mul_i32 {s(sCol)}, {s(sHH)}, 640')
    phase_start(R1, vD1, 3840)
    A.label('L_pa_blk')
    A(f'''s_add_u32 {s(sColN)}, {s(sCol)}, 128
    s_add_u32 {s(sT0)}, {s(sCol)}, {1280 - 512}
    s_cmp_eq_u32 {s(sB)}, 4
    s_cselect_b32 {s(sColN)}, {s(sT0)}, {s(sColN)}
    s_cmp_eq_u32 {s(sB)}, 9
    s_cselect_b32 {s(sColN)}, {s(sT0)}, {s(sColN)}
    s_cmp_eq_u32 {s(sB)}, 14
    s_cselect_b32 {s(sColN)}, {s(sCol)}, {s(sColN)}''')
    block(R1, vD1, 3840, 3)
    A(f'''s_cmp_ge_u32 {s(sB)}, 5
    s_cbranch_scc1 L_pa_kv
    v_add_u32 {v(vWs)}, {s(sCol)}, {v(vWq)}
    ds_write_b64 {v(vWs)}, {v(pk+2,2)}
    ds_write_b64 {v(vWs)}, {v(pk+4,2)} offset:{16*QS}
    s_branch L_pa_wr
    L_pa_kv:
    s_sub_u32 {s(sT0)}, {s(sB)}, 5
    s_lshl_b32 {s(sT0)}, {s(sT0)}, 7
    s_add_u32 {s(sT1)}, {s(sT0)}, {LV - LK - 640}
    s_cmp_ge_u32 {s(sB)}, 10
    s_cselect_b32 {s(sT0)}, {s(sT1)}, {s(sT0)}
    v_add_u32 {v(vWs)}, {s(sT0)}, {v(vWk)}
    ds_write_b64 {v(vWs)}, {v(pk,2)}
    ds_write_b64 {v(vWs)}, {v(pk+2,2)} offset:{16*KS}
    ds_write_b64 {v(vWs)}, {v(pk+4,2)} offset:{32*KS}
    L_pa_wr:
    s_waitcnt lgkmcnt(0)
    s_mov_b32 {s(sCol)}, {s(sColN)}
    s_add_u32 {s(sB)}, {s(sB)}, 1
    s_cmp_lt_u32 {s(sB)}, 15
    s_cbranch_scc1 L_pa_blk
    s_barrier
    s_mov_b32 {s(sIt)}, 0''')
    A.label('L_pa_att')
    A(f'''s_mul_i32 {s(sT0)}, {s(sIt)}, 80
    v_add_u32 {v(vAks)}, {s(sT0)}, {v(vAk)}
    s_mul_i32 {s(sT1)}, {s(sHH)}, 640
    s_add_u32 {s(sT0)}, {s(sT0)}, {s(sT1)}
    v_add_u32 {v(vAqs)}, {s(sT0)}, {v(vAq)}''')
    for i in range(5): A(f'ds_read_b64 {v(q+2*i,2)}, {v(vAqs)} offset:{8*i}')
    def rd(j, base):
        for i in range(5): A(f'ds_read_b64 {v(kk + 10*(j&1) + 2*i, 2)}, {v(vAks)} offset:{base + (14-2*j)*KS + 8*i}')
    rd(0, 0)
    for j in range(8):
        if j < 7: rd(j + 1, 0)
        else: rd(0, LV - LK)
        A('s_waitcnt lgkmcnt(5)')
        for i in range(10):
            A(f'v_dot2_f32_bf16 {v(lg+j)}, {v(q+i)}, {v(kk + 10*(j&1) + i)}, {v(lg+j) if i else 0}')
    for j in range(1, 8):
        A(f'v_cmp_le_u32 vcc, {2*j}, {v(vPos)}\nv_cndmask_b32 {v(lg+j)}, {v(vBig)}, {v(lg+j)}, vcc')
    A(f'v_max_f32 {v(vMx)}, {v(lg)}, {v(lg+1)}')
    for j in range(2, 8, 2): A(f'v_max3_f32 {v(vMx)}, {v(vMx)}, {v(lg+j)}, {v(lg+j+1)}')
    A(f'v_mul_f32 {v(vMx)}, {f32(-CA)}, {v(vMx)}')
    for j in range(8): A(f'v_fma_f32 {v(lg+j)}, {v(lg+j)}, {s(sC)}, {v(vMx)}')
    for j in range(8): A(f'v_exp_f32 {v(lg+j)}, {v(lg+j)}')
    A(f'v_add_f32 {v(vSum)}, {v(lg)}, {v(lg+1)}')
    for j in range(2, 8): A(f'v_add_f32 {v(vSum)}, {v(vSum)}, {v(lg+j)}')
    A(f'v_rcp_f32 {v(vSum)}, {v(vSum)}')
    for j in range(8):
        A(f'''v_mul_f32 {v(lg+j)}, {v(lg+j)}, {v(vSum)}
        v_cvt_pk_bf16_f32 {v(pp+2*j)}, {v(lg+j)}, 0
        v_cvt_pk_bf16_f32 {v(pp+2*j+1)}, 0, {v(lg+j)}''')
    for j in range(8):
        if j < 7: rd(j + 1, LV - LK)
        A(f's_waitcnt lgkmcnt({5 if j < 7 else 0})')
        for i in range(10):
            for h in range(2):
                A(f'v_dot2_f32_bf16 {v(o+2*i+h)}, {v(kk + 10*(j&1) + i)}, {v(pp+2*j+h)}, {v(o+2*i+h) if j else 0}')
    for i in range(10): A(f'v_cvt_pk_bf16_f32 {v(q+i)}, {v(o+2*i)}, {v(o+2*i+1)}')
    for i in range(5): A(f'ds_write_b64 {v(vAqs)}, {v(q+2*i,2)} offset:{8*i}')
    A(f'''s_waitcnt lgkmcnt(0)
    s_add_u32 {s(sIt)}, {s(sIt)}, 1
    s_cmp_lt_u32 {s(sIt)}, 2
    s_cbranch_scc1 L_pa_att
    s_add_u32 {s(sHH)}, {s(sHH)}, 1
    s_cmp_lt_u32 {s(sHH)}, 2
    s_cbranch_scc1 L_pa_half''')
    A(f's_mov_b32 {s(sCol)}, 0')
    phase_start(R2, vD2, 1280)
    for rt in range(2):
        for ks in range(20):
            A(f'ds_read_b128 {a(80*rt + 4*ks, 4)}, {v(vOr)} offset:{rt*16*QS + 64*ks}')
    A('s_waitcnt lgkmcnt(0)')
    A.label('L_pa_oblk')
    A(f'''s_add_u32 {s(sColN)}, {s(sCol)}, 128
    s_cmp_eq_u32 {s(sB)}, 9
    s_cselect_b32 {s(sColN)}, {s(sCol)}, {s(sColN)}''')
    block(R2, vD2, 1280, 2)
    A(f'''v_permlane16_swap_b32 {v(pk)}, {v(pk+2)}
    v_permlane16_swap_b32 {v(pk+1)}, {v(pk+3)}
    buffer_store_dwordx4 {v(pk,4)}, {v(vOst)}, {s(OUT,4)}, {s(sCol)} offen
    s_mov_b32 {s(sCol)}, {s(sColN)}
    s_add_u32 {s(sB)}, {s(sB)}, 1
    s_cmp_lt_u32 {s(sB)}, 10
    s_cbranch_scc1 L_pa_oblk
    s_waitcnt vmcnt(0)''')
    G.tl(7, True)
    A('s_endpgm')
```

```python
from asmlib import v, a, s
from gen import *

def px(self):
    A = self.A; t = self.tag; ST = self.st; o = self.o
    r = RA(10, 248)
    vHx, vHk, vH16, vXFa, vKFa, vPFa, vFlD, vFl, vMx, vMy, vSum, vBig, vXp = [r() for _ in range(13)]
    Q = r(48, 4); K = r(48, 4); KMo = r(24, 4); S = r(20, 4); P = r(12, 4)
    sRho, sXOff, sKmOff, sPxOff, sC = range(40, 45); sMask = 48
    A.label(f'L_px{t}')
    A(f's_sub_u32 {s(sRho)}, {s(sR)}, 22')
    self.lanes()
    A(f'''s_mul_i32 {s(sT0)}, {s(sW)}, 12288
    v_lshl_add_u32 {v(vHx)}, v0, 4, {s(sT0)}
    s_mul_i32 {s(sT0)}, {s(sW)}, 3072
    v_lshl_add_u32 {v(vH16)}, v0, 4, {s(sT0)}
    v_lshrrev_b32 v3, 2, v1
    v_lshlrev_b32 v3, 1, v3
    v_and_b32 v4, 1, v1
    v_or_b32 v3, v3, v4
    v_lshl_add_u32 v3, v2, 3, v3
    v_lshl_add_u32 {v(vHk)}, v3, 4, {s(sT0)}
    s_lshl_b32 {s(sT0)}, {s(sW)}, 7
    v_min_u32 v3, 11, v0
    v_lshl_add_u32 v3, v3, 2, {s(sT0)}
    v_add_u32 {v(vXFa)}, {XF}, v3
    v_min_u32 v3, 2, v0
    v_lshl_add_u32 v3, v3, 2, {s(sT0)}
    v_add_u32 {v(vKFa)}, {KF}, v3
    s_lshl_b32 {s(sT1)}, {s(sRho)}, 2
    s_add_u32 {s(sT0)}, {s(sT0)}, {s(sT1)}
    s_add_u32 {s(sT0)}, {s(sT0)}, {PF}
    v_mov_b32 {v(vPFa)}, {s(sT0)}''')
    self.oob_unless(vPFa, 'v_cmp_eq_u32 vcc, 0, v0')
    for i in range(4): A(f'v_mov_b32 {v(Q+i)}, -1\nv_mov_b32 {v(Q+4+i)}, 0')
    A(f'''v_lshlrev_b32 v3, 4, v0
    s_lshl_b32 {s(sT1)}, {s(sRho)}, 2
    s_add_u32 {s(sT1)}, {s(sT1)}, {s(sW)}
    s_lshl_b32 {s(sT2)}, {s(sG)}, 3
    s_add_u32 {s(sT2)}, {s(sT2)}, {s(sT1)}
    s_mul_i32 {s(sT2)}, {s(sT2)}, 20480''')
    for k in range(20):
        A(f'buffer_store_dwordx4 {v(Q,4)}, v3, {s(WS,4)}, {s(sT2)} offen sc1\ns_add_u32 {s(sT2)}, {s(sT2)}, 1024')
    A(f's_mul_i32 {s(sT2)}, {s(sT1)}, 20480\ns_add_u32 {s(sT2)}, {s(sT2)}, {s(sXB)}')
    for k in range(20):
        A(f'buffer_store_dwordx4 {v(Q,4)}, v3, {s(WS,4)}, {s(sT2)} offen{ST}\ns_add_u32 {s(sT2)}, {s(sT2)}, 1024')
    A(f'''s_lshl_b32 {s(sT2)}, {s(sT1)}, 8
    s_add_u32 {s(sT2)}, {s(sT2)}, {XF}
    s_add_u32 {s(sT2)}, {s(sT2)}, {s(sXB)}
    v_lshlrev_b32 v3, 2, v0
    buffer_store_dword {v(Q+4)}, v3, {s(WS,4)}, {s(sT2)} offen{ST}
    v_mov_b32 {v(vBig)}, {f32(-1e9 * 192 ** 0.5)}
    s_mov_b32 {s(sC)}, {f32(CSM)}''')
    for i in range(4):
        A(f'v_lshl_add_u32 v3, v2, 2, {i}\nv_cmp_le_u32 {s(sMask+2*i,2)}, v3, v1')
    for i in (3, 7, 10, 11): A(f'v_mov_b32 {v(P+i)}, 0')
    A('s_waitcnt vmcnt(0)\ns_barrier')
    self.srd(R3, P_BX, 2048 * 640 * 2)
    A(f's_mul_i32 {s(sT0)}, {s(sW)}, 10240\nv_lshl_add_u32 {v(vXp)}, v0, 4, {s(sT0)}\ns_mov_b32 {s(sS)}, {s(sRho)}')
    def xpre(d):
        A(f's_add_u32 {s(sT0)}, {s(sS)}, {d}\ns_min_u32 {s(sT0)}, {s(sT0)}, 63\ns_mul_i32 {s(sT0)}, {s(sT0)}, 40960')
        for k in range(10):
            if k in (4, 8): A(f's_add_u32 {s(sT0)}, {s(sT0)}, 4096')
            A(f'buffer_load_dwordx4 v[248:251], {v(vXp)}, {s(R3,4)}, {s(sT0)} offen offset:{(k%4)*1024}')
    self.arrive()
    Lx, Lg = A.uid('L_xp'), A.uid('L_xg')
    A(f's_cmp_eq_u32 {s(sRho)}, 1\ns_cbranch_scc1 {Lx}')
    A(f's_cmp_lg_u32 {s(sW)}, 0\ns_cbranch_scc1 {Lg}')
    if o.par < 0:
        Lq = A.uid('L_pr')
        A(f'''s_lshl_b32 {s(sT2)}, {s(sG)}, 14
        s_add_u32 {s(sT2)}, {s(sT2)}, {PROBE}
        s_add_u32 {s(sT3)}, {s(sT2)}, 8192
        v_lshlrev_b32 v3, 4, v0
        buffer_store_dwordx4 {v(Q,4)}, v3, {s(WS,4)}, {s(sT2)} offen sc1
        buffer_store_dwordx4 {v(Q,4)}, v3, {s(WS,4)}, {s(sT3)} offen sc1
        v_mov_b32 v3, 0
        s_mov_b32 s56, -1
        s_mov_b32 s57, -1
        s_mov_b32 s62, 0
        s_waitcnt vmcnt(0)''')
        A.label(Lq)
        for k in range(2):
            A(f'''s_memtime s[58:59]
            s_waitcnt lgkmcnt(0)
            buffer_load_dword v4, v3, {s(WS,4)}, {s((sT2, sT3)[k])} offen sc1
            s_waitcnt vmcnt(0)
            s_memtime s[60:61]
            s_waitcnt lgkmcnt(0)
            s_sub_u32 s60, s60, s58
            s_min_u32 s{56+k}, s{56+k}, s60''')
        A(f'''v_add_u32 v3, 128, v3
        s_add_u32 s62, s62, 1
        s_cmp_lt_u32 s62, 6
        s_cbranch_scc1 {Lq}
        s_cmp_lt_u32 s57, s56
        s_cselect_b32 s62, 2, 1''')
    else:
        A(f's_lshr_b32 s62, {s(sXCC)}, 2\ns_xor_b32 s62, s62, {o.par}\ns_and_b32 s62, s62, 1\ns_add_u32 s62, s62, 1')
    self.gwait()
    A(f'''v_mov_b32 v3, {PARF}
    v_mov_b32 v4, s62
    buffer_store_dword v4, v3, {s(WS,4)}, {s(sXB)} offen{ST}''')
    A.label(Lg)
    A(f's_barrier\ns_branch {Lg}x')
    A.label(Lx)
    for d in (1, 2, 3, 4, 5, 6): xpre(d)
    A.label(Lg + 'x')
    self.gwait()
    def wait_flag(addr):
        L = A.uid('L_pf'); A.label(L)
        A(f'buffer_load_dword {v(vFlD)}, {v(addr)}, {s(WS,4)}, {s(sXB)} offen sc1')
        self.budget()
        A(f's_waitcnt vmcnt(0)\nv_cmp_ge_u32 vcc, {s(sS)}, {v(vFlD)}\ns_cbranch_vccnz {L}')
    LP = f'L_px_loop{t}'; A.label(LP)
    A(f'''s_and_b32 {s(sT0)}, {s(sS)}, 7
    s_mul_i32 {s(sT1)}, {s(sT0)}, {S8}
    s_add_u32 {s(sT1)}, {s(sT1)}, {S8B}
    s_add_u32 {s(sXOff)}, {s(sXB)}, {s(sT1)}
    s_add_u32 {s(sKmOff)}, {s(sXOff)}, {KM}
    s_add_u32 {s(sPxOff)}, {s(sXOff)}, {PXB}
    s_add_u32 {s(sT0)}, {s(sS)}, 1
    v_mov_b32 {v(vFl)}, {s(sT0)}''')
    xpre(8)
    wait_flag(vXFa)
    for reg, off in ((Q, QX), (K, KX)):
        for k in range(12):
            if k % 4 == 0: A(f's_add_u32 {s(sT0)}, {s(sXOff)}, {off + k*1024}')
            A(f'buffer_load_dwordx4 {v(reg+4*k,4)}, {v(vHx)}, {s(WS,4)}, {s(sT0)} offen offset:{(k%4)*1024} sc1')
    A('s_waitcnt vmcnt(0)')
    for ks in range(6):
        for d, kt, rt in ((0, 0, 0), (8, 0, 1), (12, 1, 1)):
            A(f'v_mfma_f32_16x16x32_bf16 {v(S+d,4)}, {v(K+24*kt+4*ks,4)}, {v(Q+24*rt+4*ks,4)}, {v(S+d,4) if ks else 0}')
    for d in (0, 12):
        for i in range(4):
            A(f'v_cndmask_b32 {v(S+d+i)}, {v(vBig)}, {v(S+d+i)}, {s(sMask+2*i,2)}')
    wait_flag(vKFa)
    for k in range(6):
        A(f'buffer_load_dwordx4 {v(KMo+4*k,4)}, {v(vHk)}, {s(WS,4)}, {s(sKmOff)} offen offset:{k*512} sc1')
    for ks in range(6):
        A(f's_waitcnt vmcnt({5-ks})')
        for d, rt in ((4, 0), (16, 1)):
            A(f'v_mfma_f32_16x16x32_bf16 {v(S+d,4)}, {v(KMo+4*ks,4)}, {v(Q+24*rt+4*ks,4)}, {v(S+d,4) if ks else 0}')
    def allred(op, x, y):
        A(f'''v_mov_b32 {v(y)}, {v(x)}
        v_permlane16_swap_b32 {v(x)}, {v(y)}
        {op} {v(x)}, {v(x)}, {v(y)}
        v_mov_b32 {v(y)}, {v(x)}
        v_permlane32_swap_b32 {v(x)}, {v(y)}
        {op} {v(x)}, {v(x)}, {v(y)}''')
    for regs, outs in (([0,1,2,3,4,5], [0,1,2]), ([8,9,10,11,16,17,12,13,14,15], [4,5,6,8,9])):
        R = [S + x for x in regs]
        A(f'v_max_f32 {v(vMx)}, {v(R[0])}, {v(R[1])}')
        for i in range(2, len(R), 2): A(f'v_max3_f32 {v(vMx)}, {v(vMx)}, {v(R[i])}, {v(R[i+1])}')
        allred('v_max_f32', vMx, vMy)
        A(f'v_mul_f32 {v(vMx)}, {f32(-CSM)}, {v(vMx)}')
        for x in R: A(f'v_fma_f32 {v(x)}, {v(x)}, {s(sC)}, {v(vMx)}')
        for x in R: A(f'v_exp_f32 {v(x)}, {v(x)}')
        A(f'v_add_f32 {v(vSum)}, {v(R[0])}, {v(R[1])}')
        for x in R[2:]: A(f'v_add_f32 {v(vSum)}, {v(vSum)}, {v(x)}')
        allred('v_add_f32', vSum, vMy)
        A(f'v_rcp_f32 {v(vSum)}, {v(vSum)}')
        for x in R: A(f'v_mul_f32 {v(x)}, {v(x)}, {v(vSum)}')
        for i, oo in enumerate(outs): A(f'v_cvt_pk_bf16_f32 {v(P+oo)}, {v(R[2*i])}, {v(R[2*i+1])}')
    for k in range(3):
        A(f'buffer_store_dwordx4 {v(P+4*k,4)}, {v(vH16)}, {s(WS,4)}, {s(sPxOff)} offen offset:{k*1024}{ST}')
    A(f'''s_waitcnt vmcnt(0)
    buffer_store_dword {v(vFl)}, {v(vPFa)}, {s(WS,4)}, {s(sXB)} offen{ST}
    s_add_u32 {s(sS)}, {s(sS)}, 2
    s_cmp_lt_u32 {s(sS)}, {o.nsteps}
    s_cbranch_scc1 {LP}
    s_endpgm''')
```

```python
from asmlib import v, a, s
from gen import *

def qkv(self):
    A = self.A; t = self.tag; ST = self.st; o = self.o
    LX0, LX1, LS2, LMISC = 0, 40960, 81920, 122880
    LMEM = LMISC; LT = LMEM + 10240; LVT = LT + 2048; LKX = LVT + 1024
    r = RA(10, 248)
    vXdma, vXb0, vXb1, vMd4, vMd1, vProbe, vA0, vA1, vIdx, vVtW, vVtR, vVMst, vTW, vTR0, vTR1 = [r() for _ in range(15)]
    vSCst, vKMst, vKxW, vKxR, vXst, vXF, vKF, vFl, vPr, vKxWs, vKxRs = [r() for _ in range(11)]
    vNeg = r(4, 4); Aop = r(40, 4); acc = r(12, 4); Z = r(8, 4); Kx = r(8, 4); S = r(4, 4); vt = r(4, 4)
    xf = r(24, 4); xacc = r(24, 4); pk = r(12, 4); tq = r(4, 2)
    accV, accQ, accK = acc, acc + 4, acc + 8
    sHl, sP, sCur, sPrev, sKmOff, sXOff, sXSeg, sXbuf, sMm0, sDelta, sX1, sX2, sF0, sF1, sMark = range(40, 55)
    WQ, WK, WV = 0, 80, 160
    A.label(f'L_qkv{t}')
    self.srd(R0, P_WQ, 640 * 6144 * 2); self.srd(R1, P_WK, 640 * 6144 * 2); self.srd(R2, P_WV, 640 * 6144 * 2)
    self.srd(R3, P_BX, 2048 * 640 * 2)
    A(f'''s_mul_i32 {s(sHl)}, {s(sR)}, 86
    s_lshr_b32 {s(sHl)}, {s(sHl)}, 8
    s_mul_i32 {s(sT0)}, {s(sHl)}, 3
    s_sub_u32 {s(sP)}, {s(sR)}, {s(sT0)}''')
    self.lanes()
    vWdma = pk; vWr = pk + 1
    A(f'''v_lshrrev_b32 v3, 3, v0              ; r8
    v_and_b32 v4, 7, v0                        ; pp
    s_lshl_b32 {s(sT0)}, {s(sW)}, 3
    v_add_u32 v5, {s(sT0)}, v3
    s_and_b32 {s(sT1)}, {s(sW)}, 1
    s_lshl_b32 {s(sT1)}, {s(sT1)}, 2
    v_and_b32 v6, 2, v3
    v_or_b32 v6, {s(sT1)}, v6
    v_xor_b32 v6, v6, v4
    v_lshlrev_b32 v6, 4, v6
    v_mul_u32_u24 v7, 12288, v5
    s_lshl_b32 {s(sT2)}, {s(sG)}, 2
    s_add_u32 {s(sT2)}, {s(sT2)}, {s(sHl)}
    s_mul_i32 {s(sT2)}, {s(sT2)}, 384
    s_lshl_b32 {s(sT3)}, {s(sP)}, 7
    s_add_u32 {s(sT2)}, {s(sT2)}, {s(sT3)}
    v_add3_u32 {v(vWdma)}, v6, v7, {s(sT2)}
    v_lshrrev_b32 v6, 1, v3
    v_or_b32 v6, {s(sT1)}, v6
    v_xor_b32 v6, v6, v4
    v_lshlrev_b32 v6, 4, v6
    v_mul_u32_u24 v7, 1280, v5
    v_add_u32 {v(vXdma)}, v6, v7''')
    def xdma_begin(buf_s_or_imm):
        A(f's_lshl_b32 {s(sT0)}, {s(sW)}, 10\ns_add_u32 m0, {s(sT0)}, {buf_s_or_imm}')
    def xdma(ln):
        A(f'buffer_load_dwordx4 {v(vXdma)}, {s(R3,4)}, {s(sXSeg)} offen offset:{ln*128} lds')
        if ln < 9: A('s_add_u32 m0, m0, 3968')
    stages = [(WV, R2, 0), (WV, R2, 1), (WK, R1, 0), (WK, R1, 1), (WQ, R0, 0), (WQ, R0, 1)]
    bufs = [LX1, LS2, LMISC]
    def wdma(i):
        _, srd, half = stages[i]
        A(f's_lshl_b32 {s(sT0)}, {s(sW)}, 10\ns_add_u32 m0, {s(sT0)}, {bufs[i%3]}\ns_mov_b32 {s(sT1)}, {half*320*12288}')
        for k in range(10):
            A(f'buffer_load_dwordx4 {v(vWdma)}, {s(srd,4)}, {s(sT1)} offen lds')
            if k < 9: A(f's_add_u32 m0, m0, 4096\ns_add_u32 {s(sT1)}, {s(sT1)}, {32*12288}')
    self.tl(4)
    wdma(0); wdma(1); wdma(2)
    A(f's_mov_b32 {s(sXSeg)}, 0'); xdma_begin(LX0)
    for ln in range(10): xdma(ln)
    self.tl(5)
    A(f'''s_mul_i32 {s(sT0)}, {s(sHl)}, 3072
    s_lshl_b32 {s(sT1)}, {s(sP)}, 10
    s_add_u32 {s(sT0)}, {s(sT0)}, {s(sT1)}
    s_lshl_b32 {s(sT1)}, {s(sW)}, 8
    s_add_u32 {s(sT1)}, {s(sT1)}, {s(sT0)}
    s_add_u32 {s(sT1)}, {s(sT1)}, {VM}
    v_lshl_add_u32 {v(vVMst)}, v1, 4, {s(sT1)}''')
    self.oob_unless(vVMst, 'v_cmp_eq_u32 vcc, 0, v2')
    A(f'''v_lshrrev_b32 v3, 2, v1
    v_lshlrev_b32 v3, 1, v3
    v_and_b32 v4, 1, v1
    v_or_b32 v3, v3, v4
    v_lshl_add_u32 v3, v2, 3, v3
    v_lshl_add_u32 {v(vKMst)}, v3, 4, {s(sT0)}
    v_and_b32 v4, 2, v1''')
    self.oob_unless(vKMst, 'v_cmp_ne_u32 vcc, 0, v4')
    A(f'''s_mul_i32 {s(sT0)}, {s(sHl)}, 3840
    s_mul_i32 {s(sT1)}, {s(sP)}, 1280
    s_add_u32 {s(sT0)}, {s(sT0)}, {s(sT1)}
    s_add_u32 {s(sT0)}, {s(sT0)}, {SC}
    v_lshrrev_b32 v3, 1, v2                    ; G
    v_and_b32 v5, 1, v2                        ; half
    v_lshlrev_b32 v6, 1, v5
    v_or_b32 v7, v6, v3                        ; bitswap(g)
    v_lshl_add_u32 v7, v7, 4, v1
    v_lshlrev_b32 v7, 2, v7
    v_add_u32 v7, 1024, v7
    v_or_b32 v6, v6, v1
    v_lshl_add_u32 v6, v3, 4, v6
    v_lshlrev_b32 v6, 4, v6
    s_sub_u32 {s(sT1)}, {s(sW)}, 1
    s_lshl_b32 {s(sT1)}, {s(sT1)}, 9
    v_add_u32 v6, {s(sT1)}, v6
    s_cmp_eq_u32 {s(sW)}, 0
    s_cselect_b64 vcc, -1, 0
    v_cndmask_b32 v6, v6, v7, vcc
    v_add_u32 {v(vSCst)}, {s(sT0)}, v6''')
    self.oob_unless(vSCst, 'v_cmp_eq_u32 vcc, 0, v4')
    A(f'''s_and_b32 {s(sT0)}, {s(sW)}, 1
    s_lshl_b32 {s(sT0)}, {s(sT0)}, 9
    s_lshr_b32 {s(sT1)}, {s(sW)}, 1
    s_lshl_b32 {s(sT1)}, {s(sT1)}, 10
    s_add_u32 {s(sT0)}, {s(sT0)}, {s(sT1)}
    v_lshlrev_b32 v6, 4, v1
    v_lshl_add_u32 v6, v3, 8, v6
    v_add_u32 v6, {s(sT0)}, v6
    v_lshl_add_u32 {v(vKxW)}, v5, 11, v6
    v_add_u32 {v(vKxW)}, {LKX}, {v(vKxW)}
    s_mul_i32 {s(sT0)}, {s(sHl)}, 12288
    s_lshl_b32 {s(sT1)}, {s(sP)}, 11
    s_add_u32 {s(sT0)}, {s(sT0)}, {s(sT1)}
    v_mul_u32_u24 v7, 6144, v5
    v_add3_u32 {v(vXst)}, v6, v7, {s(sT0)}''')
    A(f'''v_and_b32 v6, 9, v1
    v_and_b32 v7, 2, v1
    v_lshl_or_b32 v6, v7, 1, v6
    v_and_b32 v7, 4, v1
    v_lshrrev_b32 v7, 1, v7
    v_or_b32 v6, v6, v7
    v_lshlrev_b32 v6, 4, v6
    v_lshl_add_u32 v6, v2, 8, v6
    s_cmp_eq_u32 {s(sW)}, 2
    s_cselect_b32 {s(sT0)}, 2048, 0
    s_add_u32 {s(sT0)}, {s(sT0)}, {LKX}
    v_add_u32 {v(vKxR)}, {s(sT0)}, v6''')
    A(f'''s_lshl_b32 {s(sT0)}, {s(sHl)}, 7
    s_lshl_b32 {s(sT1)}, {s(sP)}, 2
    s_add_u32 {s(sT2)}, {s(sT1)}, {s(sW)}
    s_lshl_b32 {s(sT2)}, {s(sT2)}, 2
    s_add_u32 {s(sT2)}, {s(sT2)}, {s(sT0)}
    s_add_u32 {s(sT2)}, {s(sT2)}, {XF}
    v_mov_b32 {v(vXF)}, {s(sT2)}
    s_add_u32 {s(sT1)}, {s(sT1)}, {s(sT0)}
    s_add_u32 {s(sT1)}, {s(sT1)}, {KF}
    s_cmp_eq_u32 {s(sW)}, 3
    s_cselect_b32 {s(sT1)}, {s(sT1)}, {OOB}
    v_mov_b32 {v(vKF)}, {s(sT1)}''')
    self.oob_unless(vXF, 'v_cmp_eq_u32 vcc, 0, v0')
    A(f'v_cndmask_b32 {v(vKF)}, v9, {v(vKF)}, vcc')
    for i in range(4): A(f'v_mov_b32 {v(vNeg+i)}, -1')
    A(f'v_mov_b32 {v(vFl)}, 0')
    def sc_store(data4, soff, wave):
        if wave == 0:
            A(f'buffer_store_dword {v(data4+2)}, {v(vSCst)}, {s(WS,4)}, {s(soff)} offen{ST}')
            A(f'buffer_store_dword {v(data4+3)}, {v(vSCst)}, {s(WS,4)}, {s(soff)} offen offset:8{ST}')
        elif wave in (1, 2):
            A(f'buffer_store_dwordx4 {v(data4,4)}, {v(vSCst)}, {s(WS,4)}, {s(soff)} offen{ST}')
    A(f'''v_lshrrev_b32 v3, 2, v1              ; r = c>>2
    v_and_b32 v4, 3, v1                        ; cc
    v_and_b32 v5, 1, v2                        ; g&1
    v_lshl_add_u32 v6, v2, 3, v3
    v_lshlrev_b32 v6, 7, v6                    ; (8g+r)*128
    v_and_b32 v7, 2, v3
    v_lshl_or_b32 v7, v5, 2, v7                ; f
    v_lshrrev_b32 v8, 1, v4
    s_lshl_b32 {s(sT0)}, {s(sW)}, 1
    v_or_b32 v8, {s(sT0)}, v8
    v_xor_b32 v7, v7, v8
    v_lshl_add_u32 v6, v7, 4, v6
    v_and_b32 v7, 1, v4
    v_lshl_add_u32 v6, v7, 3, v6''')
    for i in range(3): A(f'v_add_u32 {v(vWr+i)}, {bufs[i]}, v6')
    for eh, reg in ((0, vTR0), (1, vTR1)):
        A(f'''v_xor_b32 v6, {eh}, v5
        v_lshl_add_u32 v6, v6, 2, v3
        v_lshl_add_u32 v6, v2, 3, v6
        v_lshlrev_b32 v6, 5, v6
        v_lshl_or_b32 v7, v5, 1, {eh}
        v_xor_b32 v7, v7, v4
        v_lshl_add_u32 v6, v7, 3, v6
        v_add_u32 {v(reg)}, {LT}, v6''')
    A(f'''v_lshrrev_b32 v6, 3, v1
    v_lshlrev_b32 v6, 2, v6
    v_xor_b32 v6, v6, v1
    v_lshlrev_b32 v6, 5, v6
    v_xor_b32 v7, v2, v3
    v_lshl_add_u32 v6, v7, 3, v6
    s_lshl_b32 {s(sT0)}, {s(sW)}, 9
    s_add_u32 {s(sT0)}, {s(sT0)}, {LT}
    v_add_u32 {v(vTW)}, {s(sT0)}, v6''')
    A(f'''v_lshlrev_b32 v6, 6, v3
    v_and_b32 v7, 1, v1
    v_lshl_add_u32 v6, v7, 5, v6
    v_lshl_add_u32 v6, v2, 3, v6
    v_and_b32 v7, 2, v1
    v_lshl_add_u32 v6, v7, 1, v6
    s_lshl_b32 {s(sT0)}, {s(sW)}, 8
    s_add_u32 {s(sT0)}, {s(sT0)}, {LVT}
    v_add_u32 {v(vVtW)}, {s(sT0)}, v6
    v_lshl_add_u32 {v(vVtR)}, v1, 3, {s(sT0)}
    v_cmp_ne_u32 vcc, 0, v7
    v_mov_b32 v6, 0x4444
    v_mov_b32 v8, 0xeeee
    v_cndmask_b32 {v(vIdx)}, v6, v8, vcc''')
    A(f'''v_lshlrev_b32 v6, 4, v0
    v_add_u32 {v(vA0)}, {LMEM}, v6
    s_mul_i32 {s(sT0)}, {s(sW)}, 2560
    v_lshl_add_u32 {v(vMd4)}, v0, 4, {s(sT0)}
    v_lshl_add_u32 {v(vMd1)}, v0, 2, {s(sT0)}
    s_add_u32 {s(sMm0)}, {s(sT0)}, {LMEM}
    v_mul_u32_u24 v6, {0 if o.noprobe else 40}, v0
    v_add_u32 {v(vProbe)}, {s(sMm0)}, v6''')
    A(f'''v_lshrrev_b32 v6, 3, v1
    v_lshlrev_b32 v6, 10, v6
    v_and_b32 v7, 7, v1
    v_lshl_add_u32 v6, v7, 7, v6
    v_lshrrev_b32 v7, 1, v1
    v_xor_b32 v7, v7, v2
    v_lshl_add_u32 {v(vXb0)}, v7, 4, v6
    v_xor_b32 {v(vXb1)}, 64, {v(vXb0)}''')
    waits = [30, 30, 30, 20, 20, 10]
    self.tl(6)
    for i in range(6):
        base, _, half = stages[i]
        A(f's_waitcnt vmcnt({waits[i]})\ns_barrier')
        for ks in range(10):
            for eh in range(2):
                A(f'ds_read_b64_tr_b16 {a(base + 4*(half*10+ks) + 2*eh, 2)}, {v(vWr + i%3)} offset:{ks*4096 + eh*512}')
        A('s_waitcnt lgkmcnt(0)\ns_barrier')
        if i < 3: wdma(i + 3)
        if i == 3:
            A(f's_mov_b32 {s(sXSeg)}, 40960'); xdma_begin(LX1)
            for ln in range(10): xdma(ln)
        self.tl(8 + i)

    XD = 3
    def xrd(ks):
        for rt in range(2):
            A(f'ds_read_b128 {v(xf + 8*(ks%XD) + 4*rt, 4)}, {v(vXb1 if ks & 1 else vXb0)} offset:{(ks>>1)*4096 + rt*2048}')
    def gemm(flag_reg, dma, fill=(), preread=False):
        fill = list(fill)
        if not preread: xrd(0); xrd(1)
        def mf(m, ks, rt):
            d = v(xacc + 8*m + 4*rt, 4)
            A(f'v_mfma_f32_16x16x32_bf16 {d}, {a((WV, WK, WQ)[m] + 4*ks, 4)}, {v(xf + 8*(ks%XD) + 4*rt, 4)}, {d if ks else 0}')
        for ks in range(18):
            xrd(ks + 2)
            A('s_waitcnt lgkmcnt(4)')
            if ks == 5:
                if flag_reg is not None:
                    A(f's_waitcnt vmcnt(0)\nbuffer_store_dword {v(vFl)}, {v(flag_reg)}, {s(WS,4)}, {s(sXB)} offen{ST}')
                if dma: xdma_begin(s(sXbuf))
            n = 0
            for m in range(3):
                for rt in range(2):
                    mf(m, ks, rt)
                    n += 1
                    if dma and n == 2 and 6 <= ks < 16: xdma(ks - 6)
                    elif ks >= 7 and n >= 3 and n < 6:
                        for _ in range(2):
                            if fill: A(fill.pop(0))
        assert not fill, len(fill)
        A('s_waitcnt lgkmcnt(0)')
        def epi(m):
            x = []
            for rt in range(2):
                for i in range(2):
                    b = xacc + 8*m + 4*rt + 2*i
                    x.append(f'v_cvt_pk_bf16_f32 {v(pk + 4*m + 2*rt + i)}, {v(b)}, {v(b+1)}')
            x.append(f'v_permlane16_swap_b32 {v(pk+4*m)}, {v(pk+4*m+2)}')
            x.append(f'v_permlane16_swap_b32 {v(pk+4*m+1)}, {v(pk+4*m+3)}')
            x.append(f'buffer_store_dwordx4 {v(pk+4*m,4)}, {v(vXst)}, {s(WS,4)}, {s((sX2, sX1, sXOff)[m])} offen{ST}')
            if m == 1: x.append(f'ds_write_b128 {v(vKxWs)}, {v(pk+4,4)}')
            return x
        tog = [f's_add_u32 {s(sX1)}, {s(sXOff)}, {KX - QX}', f's_add_u32 {s(sX2)}, {s(sXOff)}, {VX - QX}',
               f'v_add_u32 {v(vXb0)}, {s(sDelta)}, {v(vXb0)}', f'v_add_u32 {v(vXb1)}, {s(sDelta)}, {v(vXb1)}',
               f's_sub_u32 {s(sXbuf)}, {s(sXbuf)}, {s(sDelta)}', f's_sub_u32 {s(sDelta)}, 0, {s(sDelta)}']
        e0 = epi(0)
        for m in range(3):
            for ks in (18, 19):
                for rt in range(2):
                    mf(m, ks, rt)
                    src = tog if m == 1 else (e0 if m == 2 else [])
                    for _ in range(2):
                        if src: A(src.pop(0))
        for x in e0 + epi(1) + epi(2): A(x)

    A(f'''s_mov_b32 {s(sDelta)}, 40960
    s_mov_b32 {s(sXbuf)}, {LX1}
    s_add_u32 {s(sXOff)}, {s(sXB)}, {S8B + QX}
    v_mov_b32 {v(vKxWs)}, {v(vKxW)}''')
    gemm(None, False)
    self.tl(2)
    self.gwait()
    self.tl(3)
    A(f'''v_mov_b32 {v(vFl)}, 1
    buffer_store_dword {v(vFl)}, {v(vXF)}, {s(WS,4)}, {s(sXB)} offen{ST}
    s_waitcnt lgkmcnt(0)
    s_barrier
    s_add_u32 {s(sXOff)}, {s(sXB)}, {S8B + S8 + QX}
    v_add_u32 {v(vKxWs)}, 4096, {v(vKxW)}
    s_mov_b32 {s(sXSeg)}, 81920''')
    gemm(None, True)
    A(f'''v_mov_b32 {v(vFl)}, 2
    s_waitcnt vmcnt(0) lgkmcnt(0)
    buffer_store_dword {v(vFl)}, {v(vXF)}, {s(WS,4)}, {s(sXB)} offen{ST}
    s_barrier
    s_add_u32 {s(sXOff)}, {s(sXB)}, {S8B + 2*S8 + QX}
    v_add_u32 {v(vKxWs)}, 8192, {v(vKxW)}
    s_mov_b32 {s(sXSeg)}, 122880
    s_mov_b32 {s(sS)}, -1
    s_add_u32 {s(sCur)}, {s(sXB)}, {3*S4}''')
    setup = [f's_add_u32 {s(sS)}, {s(sS)}, 1',
             f's_mov_b32 {s(sPrev)}, {s(sCur)}',
             f's_mov_b32 {s(sMark)}, 0',
             f's_and_b32 {s(sF0)}, {s(sS)}, 3',
             f's_mul_i32 {s(sF1)}, {s(sF0)}, {S4}',
             f's_add_u32 {s(sCur)}, {s(sXB)}, {s(sF1)}',
             f's_lshl_b32 {s(sF0)}, {s(sF0)}, 12',
             f'v_add_u32 {v(vKxRs)}, {s(sF0)}, {v(vKxR)}',
             f's_and_b32 {s(sF1)}, {s(sS)}, 7',
             f's_mul_i32 {s(sF1)}, {s(sF1)}, {S8}',
             f's_add_u32 {s(sF1)}, {s(sF1)}, {S8B + KM}',
             f's_add_u32 {s(sKmOff)}, {s(sXB)}, {s(sF1)}',
             f's_add_u32 {s(sF1)}, {s(sS)}, 3',
             f'v_mov_b32 {v(vFl)}, {s(sF1)}'] + [f'v_mov_b32 {v(acc+i)}, 0' for i in range(12)]
    gemm(None, True, setup)

    LP = f'L_qkv_loop{t}'
    A.label(LP)
    def mem_dma():
        A(f'''buffer_load_dwordx4 {v(vMd4)}, {s(WS,4)}, {s(sCur)} offen sc1 lds
        buffer_load_dwordx4 {v(vMd4)}, {s(WS,4)}, {s(sCur)} offen offset:1024 sc1 lds
        buffer_load_dword {v(vMd1)}, {s(WS,4)}, {s(sCur)} offen offset:2048 sc1 lds
        buffer_load_dword {v(vMd1)}, {s(WS,4)}, {s(sCur)} offen offset:2304 sc1 lds''')
    A(f's_mov_b32 m0, {s(sMm0)}')
    mem_dma()
    A(f'''ds_read_b128 {v(Kx,4)}, {v(vKxRs)}
    ds_read_b128 {v(Kx+4,4)}, {v(vKxRs)} offset:1024
    s_add_u32 {s(sF0)}, {s(sF0)}, 12288
    s_and_b32 {s(sF0)}, {s(sF0)}, 12288
    v_add_u32 {v(vKxWs)}, {s(sF0)}, {v(vKxW)}
    s_add_u32 {s(sT0)}, {s(sS)}, 4
    s_min_u32 {s(sT0)}, {s(sT0)}, 63
    s_mul_i32 {s(sXSeg)}, {s(sT0)}, 40960
    s_add_u32 {s(sT0)}, {s(sS)}, 3
    s_and_b32 {s(sT0)}, {s(sT0)}, 7
    s_mul_i32 {s(sT0)}, {s(sT0)}, {S8}
    s_add_u32 {s(sT0)}, {s(sT0)}, {S8B + QX}
    s_add_u32 {s(sXOff)}, {s(sXB)}, {s(sT0)}''')
    def zero_acc():
        for i in range(12): A(f'v_mov_b32 {v(acc+i)}, 0')
    Lgot, Lpoll, Lnan, Lcont = A.uid('L_got'), A.uid('L_poll'), A.uid('L_nan'), A.uid('L_cont')
    self.stamp('qkv', 'p0')
    A(f'''s_waitcnt vmcnt(0)
    ds_read_b32 {v(vPr)}, {v(vProbe)}
    buffer_store_dword {v(vFl)}, {v(vXF)}, {s(WS,4)}, {s(sXB)} offen{ST}
    s_add_u32 {s(sT0)}, {s(sS)}, 1
    s_waitcnt lgkmcnt(0)
    v_cmp_eq_u32 vcc, -1, {v(vPr)}
    v_mov_b32 {v(vFl)}, {s(sT0)}
    s_cbranch_vccz {Lgot}''')
    A.label(Lpoll + 'a')
    if o.pipe & 1: mem_dma()
    A.label(Lpoll)
    mem_dma()
    self.budget()
    A(f'''s_waitcnt vmcnt({4 if o.pipe & 1 else 0})
    ds_read_b32 {v(vPr)}, {v(vProbe)}
    s_waitcnt lgkmcnt(0)
    v_cmp_eq_u32 vcc, -1, {v(vPr)}
    s_cbranch_vccnz {Lpoll}''')
    A.label(Lgot)
    self.stamp('qkv', 'p1')
    A('s_barrier')
    self.stamp('qkv', 'b1')
    def rdA(tt):
        A(f'ds_read_b128 {v(Aop+4*tt,4)}, {v(vA0)} offset:{tt*1024}')
    def sm(accr, wb, tt):
        A(f'v_smfmac_f32_16x16x64_bf16 {v(accr,4)}, {v(Aop+4*tt,4)}, {a(wb+8*tt,8)}, {v(vIdx)}')
    for tt in range(10): rdA(tt)
    A.label(Lgot + 'r')
    for tt in range(10):
        A(f's_waitcnt lgkmcnt({9-tt})')
        sm(accV, WV, tt)
    side = {
        2: [f'v_pk_add_f32 {v(accV,2)}, {v(accV,2)}, {v(accV+2,2)}', f'v_cvt_pk_bf16_f32 {v(vt)}, {v(accV)}, {v(accV+1)}'],
        3: [f'ds_write_b32 {v(vVtW)}, {v(vt)}', f'v_cmp_u_f32 vcc, {v(accV)}, {v(accV+1)}'],
        4: [f'ds_read_b64_tr_b16 {v(vt,2)}, {v(vVtR)}', f'ds_read_b64_tr_b16 {v(vt+2,2)}, {v(vVtR)} offset:128'],
        6: [f's_cbranch_vccnz {Lnan}', Lcont + ':'],
        o.vpos: ['s_waitcnt lgkmcnt(0)', f'buffer_store_dwordx4 {v(vt,4)}, {v(vVMst)}, {s(WS,4)}, {s(sCur)} offen{ST}'],
    }
    n = 0
    for tt in range(10):
        for accr, wb in ((accQ, WQ), (accK, WK)):
            sm(accr, wb, tt)
            for x in side.get(n, []): A(x)
            if n == o.vpos: self.stamp('qkv', 'vm')
            n += 1
    Lw0, Lw3, Ljoin = A.uid('L_w0'), A.uid('L_w3'), A.uid('L_join')
    A(f's_cmp_eq_u32 {s(sW)}, 0\ns_cbranch_scc1 {Lw0}\ns_cmp_eq_u32 {s(sW)}, 3\ns_cbranch_scc1 {Lw3}')
    def tphase(wave):
        A(f'''v_pk_add_f32 {v(accQ,2)}, {v(accQ,2)}, {v(accQ+2,2)}
        v_pk_add_f32 {v(accK,2)}, {v(accK,2)}, {v(accK+2,2)}
        v_cvt_pk_bf16_f32 {v(tq)}, {v(accQ)}, {v(accQ+1)}
        v_cvt_pk_bf16_f32 {v(tq+1)}, {v(accK)}, {v(accK+1)}
        ds_write_b64 {v(vTW)}, {v(tq,2)}
        s_waitcnt lgkmcnt(0)
        s_barrier''')
        self.stamp('qkv', 'b2')
        for u in range(2):
            A(f'ds_read_b64_tr_b16 {v(Z+4*u,2)}, {v(vTR0)} offset:{u*1024}\nds_read_b64_tr_b16 {v(Z+4*u+2,2)}, {v(vTR1)} offset:{u*1024}')
        xrd(0); xrd(1)
        if wave == 3:
            A(f'''s_waitcnt lgkmcnt(6)
            buffer_store_dwordx4 {v(Z,4)}, {v(vKMst)}, {s(WS,4)}, {s(sKmOff)} offen{ST}
            s_waitcnt lgkmcnt(4)
            buffer_store_dwordx4 {v(Z+4,4)}, {v(vKMst)}, {s(WS,4)}, {s(sKmOff)} offen offset:512{ST}''')
        else:
            src = Z if wave == 0 else Kx
            A(f'''s_waitcnt lgkmcnt(6)
            v_mfma_f32_16x16x32_bf16 {v(S,4)}, {v(src,4)}, {v(Z,4)}, 0
            s_waitcnt lgkmcnt(4)
            v_mfma_f32_16x16x32_bf16 {v(S,4)}, {v(src+4,4)}, {v(Z+4,4)}, {v(S,4)}''')
            sc_store(S, sCur, wave)
            sc_store(vNeg, sPrev, wave)
    tphase(1); A(f's_branch {Ljoin}')
    A.label(Lw0); tphase(0); A(f's_branch {Ljoin}')
    A.label(Lw3); tphase(3)
    A.label(Ljoin)
    self.stamp('qkv', 'sc')
    A(f'buffer_store_dwordx4 {v(vNeg,4)}, {v(vVMst)}, {s(WS,4)}, {s(sPrev)} offen{ST}')
    Lskip, Lnext = A.uid('L_skip'), A.uid('L_next')
    A(f's_cmp_ge_u32 {s(sS)}, 61\ns_cbranch_scc1 {Lskip}')
    gemm(vKF, True, setup, True)
    self.stamp('qkv', 'ge'); self.tr_flush('qkv')
    A(f's_branch {LP}')
    A.label(Lskip)
    A(f'''s_waitcnt vmcnt(0) lgkmcnt(0)
    buffer_store_dword {v(vFl)}, {v(vKF)}, {s(WS,4)}, {s(sXB)} offen{ST}''')
    for x in setup: A(x)
    A(f's_cmp_lt_u32 {s(sS)}, 64\ns_cbranch_scc1 {LP}')
    self.stamp_out('qkv'); self.tl(7, True)
    A('s_endpgm')
    A.label(Lnan)
    A(f's_cmp_eq_u32 {s(sMark)}, 1\ns_cbranch_scc1 {Lcont}\nv_lshlrev_b32 v1, 4, v0')
    A.label(Lnan + 'r')
    A(f's_mov_b32 {s(sT0)}, {s(sCur)}\nv_mov_b32 v2, 0')
    for k in range(10):
        A(f'buffer_load_dwordx4 {v(Aop+4*k,4)}, v1, {s(WS,4)}, {s(sT0)} offen sc1\ns_add_u32 {s(sT0)}, {s(sT0)}, 1024')
    self.budget()
    A('s_waitcnt vmcnt(0) lgkmcnt(0)')
    for k in range(20): A(f'v_max3_u32 v2, v2, {v(Aop+2*k)}, {v(Aop+2*k+1)}')
    A(f'v_cmp_eq_u32 vcc, -1, v2\ns_cbranch_vccnz {Lnan}r\ns_mov_b32 {s(sMark)}, 1')
    zero_acc()
    A(f's_branch {Lgot}r')
```

```python
from asmlib import v, a, s
from gen import *

def wo(self):
    A = self.A; t = self.tag; ST = self.st; o = self.o
    LY = 0; YS = 24576; LPX = 98304; LE = 122880; ES = 1152; LRACE = LE + 8192
    r = RA(10, 248)
    (vIdxU, vIdxP, vL16, vL4, vPst0, vPl0, vPl1, vMst, vEW, vER, vYW, vYW2, vYR, vYR2, vYWs, vYW2s, vYRs, vYR2s,
     vPXR, vPXRs, vOst, vOl, vOut, vFlA, vFlT, vFlTs, vFlD, vH16, vHsc, vHscm, vHvx, vMx, vMy, vPk, vHvm, vMclr, vPclr, vYUs) = [r() for _ in range(38)]
    Y = r(32, 4); PA = r(4, 4); ONES = r(8, 4); SX = r(12, 4); SM = r(4, 2); SELB = r(6, 2); SELA = SELB + 2; vN4 = SM + 3; Dsum = r(4, 4); D = r(16, 4)
    VMo = r(12, 4); Yacc = r(16, 4); PB = r(8, 4); acc = r(8, 4); acc2 = D; vM0 = PB
    Pop = r(24, 4); Yop = r(16, 4); oacc = r(8, 4); fin = r(8, 4); ep = r(4, 2); Eop = PA; cc2 = r(2, 2); mm2 = r(2, 2)
    Uacc = Yacc
    WOr = 0; VXs = 96
    sJ, sPartOff, sPartClr, sCur, sNext, sVx0, sVx1, sVx2, sPxOff, sOst, sOst2, sOl, sOutRow, sPar, sPxM0, sF0, sF1, sPartClr2 = range(40, 58)
    A.label(f'L_wo{t}')
    self.srd(R0, P_WO, 6144 * 640 * 2); self.srd(R1, P_M0, 8 * 640 * 2)
    A(f's_sub_u32 {s(sJ)}, {s(sR)}, 12')
    self.lanes()
    vWdma0, vWdma1, vWr = Pop, Pop + 1, Pop + 2
    A(f'''v_lshrrev_b32 v3, 3, v0
    v_and_b32 v4, 7, v0
    v_and_b32 v6, 2, v3
    v_xor_b32 v6, v6, v4
    v_lshlrev_b32 v6, 4, v6
    v_mul_u32_u24 v7, 1280, v3
    s_lshl_b32 {s(sT0)}, {s(sG)}, 2
    s_add_u32 {s(sT0)}, {s(sT0)}, {s(sW)}
    s_mul_i32 {s(sT0)}, {s(sT0)}, {192*1280}
    s_lshl_b32 {s(sT1)}, {s(sJ)}, 7
    s_add_u32 {s(sT0)}, {s(sT0)}, {s(sT1)}
    v_add3_u32 {v(vWdma0)}, v6, v7, {s(sT0)}
    v_xor_b32 {v(vWdma1)}, 64, {v(vWdma0)}''')
    A(f'''s_lshl_b32 {s(sT0)}, {s(sJ)}, 14
    s_lshl_b32 {s(sT1)}, {s(sW)}, 11
    s_add_u32 {s(sT0)}, {s(sT0)}, {s(sT1)}
    s_lshl_b32 {s(sT1)}, {s(sG)}, 8
    s_add_u32 {s(sT1)}, {s(sT1)}, {s(sT0)}
    v_lshlrev_b32 v6, 4, v1
    v_lshl_add_u32 v7, v2, 13, v6
    v_add_u32 {v(vPst0)}, {s(sT1)}, v7
    v_lshlrev_b32 {v(vL16)}, 4, v0
    v_lshlrev_b32 {v(vL4)}, 2, v0
    v_add_u32 {v(vPclr)}, {s(sT1)}, {v(vL4)}
    v_add_u32 {v(vPl0)}, {s(sT0)}, {v(vL16)}
    v_add_u32 {v(vPl1)}, 1024, {v(vPl0)}''')
    self.oob_unless(vPst0, 'v_cmp_gt_u32 vcc, 2, v2')
    self.oob_unless(vPl0, f'v_cmp_ne_u32 vcc, {s(sG)}, v2')
    A('v_add_u32 v3, 4, v2')
    self.oob_unless(vPl1, f'v_cmp_ne_u32 vcc, {s(sG)}, v3')
    A(f'''s_lshl_b32 {s(sT0)}, {s(sJ)}, 2
    s_add_u32 {s(sT0)}, {s(sT0)}, {s(sW)}     ; tile
    s_lshl_b32 {s(sT1)}, {s(sT0)}, 8
    v_add_u32 {v(vMclr)}, {s(sT1)}, {v(vL4)}
    v_add_u32 {v(vMst)}, {s(sT1)}, v6''')
    self.oob_unless(vMst, 'v_cmp_eq_u32 vcc, 0, v2')
    A(f'''v_lshrrev_b32 v3, 2, v1
    v_and_b32 v7, 1, v1
    v_lshl_or_b32 v4, v3, 1, v7                ; row
    v_mul_u32_u24 v4, 1280, v4
    v_and_b32 v5, 2, v1
    v_lshl_add_u32 v4, v5, 1, v4
    s_lshl_b32 {s(sT1)}, {s(sT0)}, 5
    v_add_u32 v4, {s(sT1)}, v4
    v_lshlrev_b32 v6, 6, v3
    v_lshl_add_u32 v6, v7, 5, v6
    v_lshl_add_u32 v6, v2, 3, v6
    v_lshl_add_u32 v6, v5, 1, v6               ; Q*64 + j*32 + g*8 + kh*4
    s_mul_i32 {s(sT2)}, {s(sW)}, {ES}
    s_add_u32 {s(sT2)}, {s(sT2)}, {LE}
    v_add_u32 {v(vEW)}, {s(sT2)}, v6''')
    for q in range(4):
        A(f'buffer_load_dword {v(vM0+q)}, v4, {s(R1,4)}, 0 offen offset:{8*q}')
    A(f'v_mov_b32 {v(vN4)}, -1')
    A(f's_mul_i32 {s(sT0)}, {s(sW)}, {YS}\ns_mov_b32 m0, {s(sT0)}\ns_mov_b32 {s(sT1)}, 0')
    for k in range(24):
        A(f'buffer_load_dwordx4 {v(vWdma1 if k & 1 else vWdma0)}, {s(R0,4)}, {s(sT1)} offen lds')
        if k < 23: A(f's_add_u32 m0, m0, 1024\ns_add_u32 {s(sT1)}, {s(sT1)}, {8*1280}')
    A('s_waitcnt vmcnt(24)')
    for q in range(4): A(f'v_min_u32 {v(vM0+q)}, -2, {v(vM0+q)}')
    A(f'''v_and_b32 v7, 2, v1
    v_cmp_ne_u32 vcc, 0, v7                    ; half
    v_mov_b32 v5, 0x4444
    v_mov_b32 v6, 0xeeee
    v_cndmask_b32 {v(vIdxU)}, v5, v6, vcc
    v_mov_b32 v5, 0xe484
    v_mov_b32 v6, 0xee9e
    v_cndmask_b32 v7, v5, v6, vcc
    v_mov_b32 v5, 0x84e4
    v_mov_b32 v6, 0x9eee
    v_cndmask_b32 v8, v5, v6, vcc
    v_cmp_gt_u32 vcc, 2, v2
    v_cndmask_b32 {v(vIdxP)}, v8, v7, vcc''')
    for i in range(8): A(f'v_mov_b32 {v(ONES+i)}, {0 if i in (3,7) else 0x3f803f80}')
    for ct in range(4): A(f'v_mov_b32 {v(Y+8*ct+3)}, 0\nv_mov_b32 {v(Y+8*ct+7)}, 0')
    for hb in range(2): A(f'v_mov_b32 {v(Yop+8*hb+6)}, 0\nv_mov_b32 {v(Yop+8*hb+7)}, 0')
    A(f'''v_and_b32 v7, 1, v1
    v_cmp_ne_u32 vcc, 0, v7
    v_mov_b32 v5, 0x3f80
    v_mov_b32 v6, 0x3f800000
    v_cndmask_b32 v5, v5, v6, vcc''')
    A('v_bfe_u32 v6, v1, 1, 1')
    for i in range(2): A(f'v_cmp_eq_u32 vcc, {i}, v6\nv_cndmask_b32 {v(SELA+i)}, 0, v5, vcc\nv_mov_b32 {v(SELB+i)}, 0\nv_mov_b32 {v(SELA+2+i)}, 0')
    A(f'''v_mov_b32 {v(cc2)}, {f32(CSM)}
    v_mov_b32 {v(cc2+1)}, {f32(CSM)}
    s_lshl_b32 {s(sT0)}, {s(sW)}, 8
    s_add_u32 {s(sT0)}, {s(sT0)}, {LE}
    v_mul_u32_u24 v6, {ES}, v2
    v_lshl_add_u32 v6, v1, 3, v6
    v_add_u32 {v(vER)}, {s(sT0)}, v6
    s_mul_i32 {s(sT0)}, {s(sW)}, 1536
    v_add_u32 {v(vYW)}, {s(sT0)}, {v(vL16)}
    s_add_u32 {s(sT0)}, {s(sT0)}, 1024
    v_lshl_add_u32 {v(vYW2)}, v0, 3, {s(sT0)}
    s_mul_i32 {s(sT0)}, {s(sW)}, 6144
    v_add_u32 {v(vYR)}, {s(sT0)}, {v(vL16)}
    s_add_u32 {s(sT0)}, {s(sT0)}, 1024
    v_lshl_add_u32 {v(vYR2)}, v0, 3, {s(sT0)}
    v_add_u32 {v(vPXR)}, {LPX}, {v(vL16)}
    s_mul_i32 {s(sT0)}, {s(sW)}, 3072
    v_add_u32 {v(vH16)}, {s(sT0)}, {v(vL16)}
    v_add_u32 {v(vHvm)}, {VM}, {v(vH16)}
    s_add_u32 {s(sPxM0)}, {s(sT0)}, {LPX}
    s_mul_i32 {s(sT0)}, {s(sW)}, 3840
    s_add_u32 {s(sT0)}, {s(sT0)}, {SC}
    v_add_u32 {v(vHsc)}, {s(sT0)}, {v(vL16)}
    s_add_u32 {s(sT0)}, {s(sT0)}, 1024
    v_add_u32 {v(vHscm)}, {s(sT0)}, {v(vL4)}
    s_mul_i32 {s(sT0)}, {s(sW)}, 12288
    v_add_u32 {v(vHvx)}, {s(sT0)}, {v(vL16)}
    s_lshl_b32 {s(sT0)}, {s(sJ)}, 16
    s_lshl_b32 {s(sT2)}, {s(sW)}, 11
    s_add_u32 {s(sT0)}, {s(sT0)}, {s(sT2)}
    s_lshl_b32 {s(sT1)}, {s(sG)}, 8
    s_add_u32 {s(sT1)}, {s(sT1)}, {s(sT0)}
    v_lshlrev_b32 v6, 4, v1
    v_lshl_add_u32 v6, v2, 13, v6
    v_add_u32 {v(vOst)}, {s(sT1)}, v6
    s_lshl_b32 {s(sT1)}, {s(sG)}, 13
    s_add_u32 {s(sT1)}, {s(sT1)}, {s(sT0)}
    v_add_u32 {v(vOl)}, {s(sT1)}, {v(vL16)}
    s_mul_i32 {s(sT1)}, {s(sG)}, {4*2560}
    s_lshl_b32 {s(sT2)}, {s(sJ)}, 7
    s_add_u32 {s(sT1)}, {s(sT1)}, {s(sT2)}
    s_lshl_b32 {s(sT2)}, {s(sW)}, 5
    s_add_u32 {s(sT1)}, {s(sT1)}, {s(sT2)}
    s_add_u32 {s(sT1)}, {s(sT1)}, 1280
    v_mul_u32_u24 v6, 2560, v2
    v_lshl_add_u32 v6, v1, 1, v6
    v_add_u32 {v(vOut)}, {s(sT1)}, v6''')
    A(f'''s_lshl_b32 {s(sT0)}, {s(sW)}, 7
    v_add_u32 v5, {s(sT0)}, {v(vL4)}
    v_add_u32 v6, {XF}, v5
    v_add_u32 v7, {PF - 48}, v5
    v_cmp_gt_u32 vcc, 12, v0
    v_cndmask_b32 {v(vFlA)}, v7, v6, vcc
    v_mov_b32 v5, -2
    v_cndmask_b32 {v(vFlT)}, v5, 2, vcc''')
    self.oob_unless(vFlA, 'v_cmp_gt_u32 vcc, 14, v0')
    A(f'v_mov_b32 v5, -1000\nv_cndmask_b32 {v(vFlT)}, v5, {v(vFlT)}, vcc')
    A(f'''v_and_b32 v4, 3, v1
    v_and_b32 v5, 1, v2
    v_lshl_add_u32 v6, v2, 3, v3
    v_lshlrev_b32 v6, 7, v6
    v_and_b32 v7, 2, v3
    v_lshl_or_b32 v7, v5, 2, v7
    v_lshrrev_b32 v8, 1, v4
    v_xor_b32 v7, v7, v8
    v_lshl_add_u32 v6, v7, 4, v6
    v_and_b32 v7, 1, v4
    v_lshl_add_u32 v6, v7, 3, v6
    s_mul_i32 {s(sT0)}, {s(sW)}, {YS}
    v_add_u32 v6, {s(sT0)}, v6''')
    for ct in range(4): A(f'v_xor_b32 {v(vWr+ct)}, {32*ct}, v6')
    A('s_waitcnt vmcnt(0)')
    for ct in range(4):
        for ks in range(6):
            for eh in range(2):
                A(f'ds_read_b64_tr_b16 {a(WOr + 24*ct + 4*ks + 2*eh, 2)}, {v(vWr+ct)} offset:{ks*4096 + eh*512}')
    A(f'v_mov_b32 v4, {LRACE}\nv_mov_b32 v5, 0\nds_write_b32 v4, v5')
    A('s_waitcnt lgkmcnt(0)\ns_barrier')
    self.tl(8)
    if o.par < 0:
        Lr = A.uid('L_race')
        A(f'''s_mul_i32 {s(sT0)}, {s(sG)}, 10
        s_add_u32 {s(sT0)}, {s(sT0)}, {s(sJ)}
        s_lshl_b32 {s(sT0)}, {s(sT0)}, 14
        s_and_b32 {s(sT1)}, {s(sW)}, 1
        s_lshl_b32 {s(sT2)}, {s(sT1)}, 13
        s_add_u32 {s(sT0)}, {s(sT0)}, {s(sT2)}
        s_lshr_b32 {s(sT2)}, {s(sW)}, 1
        s_lshl_b32 {s(sT2)}, {s(sT2)}, 12
        s_add_u32 {s(sT0)}, {s(sT0)}, {s(sT2)}
        s_add_u32 {s(sT0)}, {s(sT0)}, {PROBE}
        v_mov_b32 v6, {s(sT0)}
        s_mov_b32 {s(sT2)}, 0
        s_waitcnt vmcnt(0)
        s_barrier''')
        A.label(Lr)
        A(f'''buffer_load_dword v7, v6, {s(WS,4)}, {s(sT2)} offen sc1
        s_add_u32 {s(sT2)}, {s(sT2)}, 384
        s_cmp_lt_u32 {s(sT2)}, {384*10}
        s_waitcnt vmcnt(0)
        s_cbranch_scc1 {Lr}
        s_add_u32 {s(sT1)}, {s(sT1)}, 1
        v_mov_b32 v6, {s(sT1)}
        ds_cmpst_b32 v4, v5, v6
        s_waitcnt lgkmcnt(0)
        s_barrier
        ds_read_b32 v6, v4
        s_waitcnt lgkmcnt(0)
        v_readfirstlane_b32 {s(sPar)}, v6
        s_sub_u32 {s(sPar)}, {s(sPar)}, 1
        s_and_b32 {s(sPar)}, {s(sPar)}, 1''')
    else:
        A(f's_lshr_b32 {s(sPar)}, {s(sXCC)}, 2\ns_xor_b32 {s(sPar)}, {s(sPar)}, {o.par}\ns_and_b32 {s(sPar)}, {s(sPar)}, 1')
    A(f's_lshl_b32 {s(sT0)}, {s(sPar)}, 13\nv_add_u32 {v(vPl0)}, {s(sT0)}, {v(vPl0)}\nv_add_u32 {v(vPl1)}, {s(sT0)}, {v(vPl1)}')
    self.tl(2)
    self.gwait()
    self.tl(3)
    if o.tl: A(f'v_writelane_b32 v255, {s(sPar)}, 20')
    A(f'buffer_store_dwordx4 {v(vM0,4)}, {v(vMst)}, {s(WS,4)}, {s(sXB)} offen{ST}')

    def flag_issue():
        A(f'buffer_load_dword {v(vFlD)}, {v(vFlA)}, {s(WS,4)}, {s(sXB)} offen sc1')
    def flag_wait(cnt):
        Lw, Lok = A.uid('L_fw'), A.uid('L_fok')
        if cnt is not None: A(f's_waitcnt vmcnt({cnt})')
        A(f'v_cmp_lt_i32 vcc, {v(vFlD)}, {v(vFlTs)}\ns_cbranch_vccz {Lok}')
        A.label(Lw); flag_issue(); self.budget()
        A(f's_waitcnt vmcnt(0)\nv_cmp_lt_i32 vcc, {v(vFlD)}, {v(vFlTs)}\ns_cbranch_vccnz {Lw}')
        A.label(Lok)
    def vx_loads(k0=0, k1=12):
        for k in range(k0, k1):
            A(f'buffer_load_dwordx4 {a(VXs+4*k,4)}, {v(vHvx)}, {s(WS,4)}, {s((sVx0, sVx1, sVx2)[k//4])} offen offset:{(k%4)*1024} sc1')
    def px_dma():
        for k in range(3):
            A(f'buffer_load_dwordx4 {v(vH16)}, {s(WS,4)}, {s(sPxOff)} offen offset:{k*1024} sc1 lds')
    def part_loads():
        A(f'''buffer_load_dwordx4 {v(PB,4)}, {v(vPl0)}, {s(WS,4)}, {s(sPartOff)} offen sc1
        buffer_load_dwordx4 {v(PB+4,4)}, {v(vPl1)}, {s(WS,4)}, {s(sPartOff)} offen sc1''')
    def yx(hook=None):
        def post(ct):
            b = Yacc + 8*(ct & 1); y = Y + 8*ct
            return [f'v_cvt_pk_bf16_f32 {v(y)}, {v(b)}, {v(b+1)}', f'v_cvt_pk_bf16_f32 {v(y+1)}, {v(b+2)}, {v(b+3)}',
                    f'v_cvt_pk_bf16_f32 {v(y+4)}, {v(b+4)}, {v(b+5)}', f'v_cvt_pk_bf16_f32 {v(y+5)}, {v(b+6)}, {v(b+7)}',
                    f'ds_write_b64 {v(vYWs)}, {v(y,2)} offset:{ct*6144}', f'ds_write_b64 {v(vYW2s)}, {v(y+4,2)} offset:{ct*6144}']
        n = 0
        for ct in range(4):
            pend = post(ct - 1) if ct else []
            for ks in range(6):
                for rt in range(2):
                    d = v(Yacc + 8*(ct & 1) + 4*rt, 4)
                    A(f'v_mfma_f32_16x16x32_bf16 {d}, {a(VXs + 24*rt + 4*ks, 4)}, {a(WOr + 24*ct + 4*ks, 4)}, {d if ks else 0}')
                    n += 1
                    if 2*ks + rt >= 3 and pend:
                        A(pend.pop(0))
                        if pend: A(pend.pop(0))
                    if hook: hook(n)
        return post(3)
    def out_store():
        A(f'''buffer_store_dwordx4 {v(oacc,4)}, {v(vOst)}, {s(WS,4)}, {s(sOst)} offen sc1
        buffer_store_dwordx4 {v(oacc+4,4)}, {v(vOst)}, {s(WS,4)}, {s(sOst2)} offen sc1''')
    def outpart(hook=None):
        def rd(h):
            pb = Pop + 12*(h & 1); yb = Yop + 8*(h & 1)
            A(f'ds_read_b128 {v(yb,4)}, {v(vYRs)} offset:{h*1536}')
            for k in range(2): A(f'ds_read_b128 {v(pb+4*k,4)}, {v(vPXRs)} offset:{h*3072 + k*1024}')
            A(f'ds_read_b64 {v(yb+4,2)}, {v(vYR2s)} offset:{h*1536}')
            A(f'ds_read_b128 {v(pb+8,4)}, {v(vPXRs)} offset:{h*3072 + 2048}')
        rd(0); rd(1)
        for h in range(4):
            pb = Pop + 12*(h & 1); yb = Yop + 8*(h & 1)
            if hook: hook(h)
            A(f's_waitcnt lgkmcnt({5 if h < 3 else 0})')
            A(f'''v_mfma_f32_16x16x32_bf16 {v(oacc,4)}, {v(pb,4)}, {v(yb,4)}, {v(oacc,4) if h else 0}
            v_mfma_f32_16x16x32_bf16 {v(oacc+4,4)}, {v(pb+4,4)}, {v(yb,4)}, {v(oacc+4,4) if h else 0}
            v_mfma_f32_16x16x32_bf16 {v(oacc+4,4)}, {v(pb+8,4)}, {v(yb+4,4)}, {v(oacc+4,4)}''')
            if h + 2 < 4: rd(h + 2)
    def L(txt): return [x.strip() for x in txt.split('\n') if x.strip()]
    def set_outpart(d):
        return L(f'''s_add_u32 {s(sF1)}, {s(sS)}, {d}
        s_and_b32 {s(sF0)}, {s(sF1)}, 3
        s_mul_i32 {s(sF0)}, {s(sF0)}, {YS}
        v_add_u32 {v(vYRs)}, {s(sF0)}, {v(vYR)}
        v_add_u32 {v(vYR2s)}, {s(sF0)}, {v(vYR2)}
        s_and_b32 {s(sF0)}, {s(sF1)}, 1
        s_mul_i32 {s(sF0)}, {s(sF0)}, 12288
        v_add_u32 {v(vPXRs)}, {s(sF0)}, {v(vPXR)}''')
    def set_ost(d):
        return L(f'''s_add_u32 {s(sF1)}, {s(sS)}, {d}
        s_and_b32 {s(sF0)}, {s(sF1)}, 7
        s_mul_i32 {s(sF0)}, {s(sF0)}, {OUTP_SLOT}
        s_add_u32 {s(sOst)}, {s(sF0)}, {OUTP}
        s_add_u32 {s(sOst2)}, {s(sOst)}, 32768''')
    def set_px(d):
        return L(f'''s_add_u32 {s(sF1)}, {s(sS)}, {d}
        s_and_b32 {s(sF0)}, {s(sF1)}, 7
        s_mul_i32 {s(sF0)}, {s(sF0)}, {S8}
        s_add_u32 {s(sF0)}, {s(sF0)}, {S8B + PXB}
        s_add_u32 {s(sPxOff)}, {s(sXB)}, {s(sF0)}
        s_and_b32 {s(sF0)}, {s(sF1)}, 1
        s_add_u32 m0, {s(sF0)}, 12
        s_add_u32 {s(sF1)}, {s(sF1)}, 1
        v_mov_b32 {v(vFlTs)}, -16
        v_writelane_b32 {v(vFlTs)}, {s(sF1)}, m0
        s_mul_i32 {s(sF0)}, {s(sF0)}, 12288
        s_add_u32 m0, {s(sPxM0)}, {s(sF0)}''')
    def set_fin(d):
        return L(f'''s_add_u32 {s(sF1)}, {s(sS)}, {d}
        s_and_b32 {s(sF0)}, {s(sF1)}, 7
        s_mul_i32 {s(sF0)}, {s(sF0)}, {OUTP_SLOT}
        s_add_u32 {s(sOl)}, {s(sF0)}, {OUTP}
        s_mul_i32 {s(sOutRow)}, {s(sF1)}, {32*2560}''')
    def fin_issue():
        A(f'''buffer_load_dwordx4 {v(fin,4)}, {v(vOl)}, {s(WS,4)}, {s(sOl)} offen sc1
        buffer_load_dwordx4 {v(fin+4,4)}, {v(vOl)}, {s(WS,4)}, {s(sOl)} offen offset:1024 sc1''')
    def fin_done():
        A(f'''v_pk_add_f32 {v(fin,2)}, {v(fin,2)}, {v(fin+4,2)}
        v_pk_add_f32 {v(fin+2,2)}, {v(fin+2,2)}, {v(fin+6,2)}
        v_permlane32_swap_b32 {v(fin)}, {v(fin+2)}
        v_permlane32_swap_b32 {v(fin+1)}, {v(fin+3)}
        v_pk_add_f32 {v(fin,2)}, {v(fin,2)}, {v(fin+2,2)}
        v_permlane16_swap_b32 {v(fin)}, {v(fin+1)}
        v_add_f32 {v(fin)}, {v(fin)}, {v(fin+1)}
        v_cvt_pk_bf16_f32 {v(fin)}, {v(fin)}, {v(fin)}
        buffer_store_short {v(fin)}, {v(vOut)}, {s(OUT,4)}, {s(sOutRow)} offen''')
    def gather(first_issued, younger=0):
        Lp, Lc, Lx, Lok = A.uid('L_pp'), A.uid('L_pc'), A.uid('L_px'), A.uid('L_pok')
        if not first_issued: part_loads()
        A.label(Lc)
        A(f'''s_waitcnt vmcnt({younger+1})
        v_mfma_f32_16x16x32_bf16 {v(acc2,4)}, {v(SELA,4)}, {v(PB,4)}, {v(acc,4)}
        v_mfma_f32_16x16x32_bf16 {v(acc2+4,4)}, {v(SELB,4)}, {v(PB,4)}, {v(acc+4,4)}
        v_max3_u32 {v(vMx)}, {v(PB)}, {v(PB+1)}, {v(PB+2)}
        s_waitcnt vmcnt({younger})
        v_mfma_f32_16x16x32_bf16 {v(acc2,4)}, {v(SELA,4)}, {v(PB+4,4)}, {v(acc2,4)}
        v_mfma_f32_16x16x32_bf16 {v(acc2+4,4)}, {v(SELB,4)}, {v(PB+4,4)}, {v(acc2+4,4)}
        v_max3_u32 {v(vMy)}, {v(PB+3)}, {v(PB+4)}, {v(PB+5)}
        v_max3_u32 {v(vMx)}, {v(vMx)}, {v(PB+6)}, {v(PB+7)}
        v_max_u32 {v(vMx)}, {v(vMx)}, {v(vMy)}
        v_cmp_eq_u32 vcc, -1, {v(vMx)}
        s_cbranch_vccnz {Lp}''')
        self.cold.append((Lp, lambda: (part_loads(), self.budget(), self.count(), A(f's_waitcnt vmcnt(0)\ns_branch {Lc}'))))

    A(f'''s_mov_b32 {s(sS)}, -1
    v_add_u32 {v(vFlTs)}, -1, {v(vFlT)}
    s_add_u32 {s(sVx0)}, {s(sXB)}, {S8B + VX}
    s_add_u32 {s(sVx1)}, {s(sVx0)}, 4096
    s_add_u32 {s(sVx2)}, {s(sVx0)}, 8192
    s_mov_b32 {s(sNext)}, {s(sXB)}
    v_mov_b32 {v(vYWs)}, {v(vYW)}
    v_mov_b32 {v(vYW2s)}, {v(vYW2)}''')
    flag_issue(); flag_wait(0); vx_loads(); A('s_waitcnt vmcnt(0)')
    early = L(f'''s_add_u32 {s(sF1)}, {s(sS)}, 2
    s_and_b32 {s(sF0)}, {s(sF1)}, 7
    s_mul_i32 {s(sF0)}, {s(sF0)}, {S8}
    s_add_u32 {s(sF0)}, {s(sF0)}, {S8B + VX}
    s_add_u32 {s(sVx0)}, {s(sXB)}, {s(sF0)}
    s_add_u32 {s(sVx1)}, {s(sVx0)}, 4096
    s_add_u32 {s(sVx2)}, {s(sVx0)}, 8192''') + set_outpart(-2) + set_px(-1) + set_fin(-4)
    def filler(fill, special={}):
        fill = list(fill)
        def hook(n):
            if n in special: special[n](); return
            if n > 12 and (n - 1) % 12 in (3, 4, 5): return
            for _ in range(2):
                if fill: A(fill.pop(0))
            assert n < 48 or not fill
        return hook
    for x in yx(filler(early)): A(x)
    A(f'v_mov_b32 {v(vFlTs)}, {v(vFlT)}')
    flag_issue(); flag_wait(0)
    A(f'''v_mov_b32 {v(vFlTs)}, -16
    s_mov_b32 {s(sS)}, 0
    s_add_u32 {s(sCur)}, {s(sXB)}, {3*S4}
    s_mov_b32 {s(sPartClr)}, {2*PART_SLOT}
    s_mov_b32 {s(sPartClr2)}, {2*PART_SLOT + 8192}''')
    for x in set_ost(-4): A(x)
    self.tl(4)

    LP = f'L_wo_loop{t}'
    A.label(LP)
    L1 = A.uid('L_g')
    late = L(f'''s_mov_b32 {s(sCur)}, {s(sNext)}
    v_mov_b32 {v(vYUs)}, {v(vYWs)}
    s_and_b32 {s(sF0)}, {s(sS)}, 3
    s_mul_i32 {s(sPartOff)}, {s(sF0)}, {PART_SLOT}
    s_add_u32 {s(sF0)}, {s(sF0)}, 3
    s_and_b32 {s(sF0)}, {s(sF0)}, 3
    s_mul_i32 {s(sPartClr)}, {s(sF0)}, {PART_SLOT}
    s_add_u32 {s(sPartClr2)}, {s(sPartClr)}, 8192
    s_add_u32 {s(sF1)}, {s(sS)}, 1
    s_and_b32 {s(sF0)}, {s(sF1)}, 3
    s_mul_i32 {s(sF1)}, {s(sF0)}, {S4}
    s_add_u32 {s(sNext)}, {s(sXB)}, {s(sF1)}
    s_mul_i32 {s(sF0)}, {s(sF0)}, {YS}
    v_add_u32 {v(vYWs)}, {s(sF0)}, {v(vYW)}
    v_add_u32 {v(vYW2s)}, {s(sF0)}, {v(vYW2)}''')
    late += [f'v_pk_mul_f32 {v(x,2)}, {v(Yop+6,2)}, {v(Yop+6,2)}' for x in list(range(Uacc, Uacc+16, 2)) + list(range(Dsum, Dsum+4, 2)) + list(range(D, D+16, 2))]
    assert PART == 0
    def clears():
        A(f'''buffer_store_dword {v(vN4)}, {v(vPclr)}, {s(WS,4)}, {s(sPartClr)} offen sc1
        buffer_store_dword {v(vN4)}, {v(vPclr)}, {s(WS,4)}, {s(sPartClr2)} offen sc1
        buffer_store_dword {v(vN4)}, {v(vMclr)}, {s(WS,4)}, {s(sCur)} offen{ST}''')
    if not o.x & 2: out_store()
    fin_issue()
    clears()
    for x in set_ost(-3): A(x)
    def g1hook(h):
        if not o.x & 1: vx_loads(3*h, 3*h + 3)
        for x in late[9*h:9*h+9]: A(x)
    flag_wait(None); px_dma()
    outpart(g1hook)
    A(f's_cmp_lt_u32 {s(sS)}, 5\ns_cbranch_scc1 {L1}\ns_waitcnt vmcnt({6 if o.x & 1 else 18})')
    fin_done()
    A.label(L1)
    self.stamp('wo', 'g1')
    Lv = A.uid('L_vm')
    def vm_loads():
        for k in range(3):
            A(f'buffer_load_dwordx4 {v(VMo+4*k,4)}, {v(vHvm)}, {s(WS,4)}, {s(sCur)} offen offset:{k*1024} sc1')
    if o.pipe & 2: vm_loads()
    A.label(Lv)
    vm_loads()
    self.budget()
    A(f'''s_waitcnt vmcnt({3 if o.pipe & 2 else 0})
    v_max3_u32 {v(vMx)}, {v(VMo)}, {v(VMo+1)}, {v(VMo+2)}
    v_max3_u32 {v(vMy)}, {v(VMo+3)}, {v(VMo+4)}, {v(VMo+5)}
    v_max3_u32 {v(vMx)}, {v(vMx)}, {v(VMo+6)}, {v(VMo+7)}
    v_max3_u32 {v(vMy)}, {v(vMy)}, {v(VMo+8)}, {v(VMo+9)}
    v_max3_u32 {v(vMx)}, {v(vMx)}, {v(VMo+10)}, {v(VMo+11)}
    v_max_u32 {v(vMx)}, {v(vMx)}, {v(vMy)}
    v_cmp_eq_u32 vcc, -1, {v(vMx)}
    s_cbranch_vccnz {Lv}''')
    self.stamp('wo', 'vm')
    def sc_loads():
        for p in range(3):
            A(f'buffer_load_dwordx4 {v(SX+4*p,4)}, {v(vHsc)}, {s(WS,4)}, {s(sCur)} offen offset:{p*1280} sc1')
            A(f'buffer_load_dword {v(SM+p)}, {v(vHscm)}, {s(WS,4)}, {s(sCur)} offen offset:{p*1280} sc1')
    for ct in range(4):
        for tt in range(3):
            A(f'v_smfmac_f32_16x16x64_bf16 {v(Uacc+4*ct,4)}, {v(VMo+4*tt,4)}, {a(WOr+24*ct+8*tt,8)}, {v(vIdxU)}')
    sc_loads()
    for ct in range(4):
        u = Uacc + 4*ct
        A(f'''v_pk_add_f32 {v(u,2)}, {v(u,2)}, {v(u+2,2)}
        v_cvt_pk_bf16_f32 {v(Y+8*ct+2)}, {v(u)}, {v(u+1)}
        v_cvt_pk_bf16_f32 {v(Y+8*ct+6)}, {v(u)}, {v(u+1)}
        ds_write_b32 {v(vYUs)}, {v(Y+8*ct+2)} offset:{ct*6144 + 8}''')
    self.stamp('wo', 'u')
    Ltail = f'L_wo_tail{t}'
    A(f's_cmp_eq_u32 {s(sS)}, {o.nsteps-1}\ns_cbranch_scc1 {Ltail}')
    Lsc, Lsp, Lsg = A.uid('L_sc'), A.uid('L_sp'), A.uid('L_sg')
    s0 = ep
    if o.pipe & 4: sc_loads()
    A.label(Lsc)
    A(f'''s_waitcnt vmcnt({6 if o.pipe & 4 else 0})
    v_pk_add_f32 {v(s0,2)}, {v(SX,2)}, {v(SX+4,2)}
    v_pk_add_f32 {v(s0+2,2)}, {v(SX+2,2)}, {v(SX+6,2)}
    v_add_f32 {v(vPk)}, {v(SM)}, {v(SM+1)}
    v_pk_add_f32 {v(s0,2)}, {v(s0,2)}, {v(SX+8,2)}
    v_pk_add_f32 {v(s0+2,2)}, {v(s0+2,2)}, {v(SX+10,2)}
    v_add_f32 {v(vPk)}, {v(vPk)}, {v(SM+2)}
    v_max3_f32 {v(vMx)}, {v(s0)}, {v(s0+1)}, {v(s0+2)}
    v_max3_f32 {v(vMx)}, {v(vMx)}, {v(s0+3)}, {v(vPk)}
    v_pk_add_f32 {v(mm2,2)}, {v(s0,2)}, {v(s0+2,2)}
    v_add_f32 {v(mm2)}, {v(mm2)}, {v(vPk)}
    v_max_f32_dpp {v(vMy)}, {v(vMx)}, {v(vMx)} quad_perm:[2,3,0,1] row_mask:0xf bank_mask:0xf
    v_max_f32_dpp {v(vMx)}, {v(vMx)}, {v(vMx)} quad_perm:[2,3,0,1] row_mask:0xf bank_mask:0xf
    v_cmp_u_f32 vcc, {v(mm2)}, {v(mm2+1)}
    v_permlane16_swap_b32 {v(vMx)}, {v(vMy)}
    v_max_f32 {v(vMx)}, {v(vMx)}, {v(vMy)}
    v_mov_b32 {v(vMy)}, {v(vMx)}
    s_cbranch_vccnz {Lsp}''')
    A.label(Lsg)
    self.stamp('wo', 'sc')
    A(f'''v_permlane32_swap_b32 {v(vMx)}, {v(vMy)}
    v_max_f32 {v(vMx)}, {v(vMx)}, {v(vMy)}
    v_mul_f32 {v(mm2)}, {f32(-CSM)}, {v(vMx)}
    v_pk_fma_f32 {v(s0,2)}, {v(s0,2)}, {v(cc2,2)}, {v(mm2,2)} op_sel_hi:[1,1,0]
    v_pk_fma_f32 {v(s0+2,2)}, {v(s0+2,2)}, {v(cc2,2)}, {v(mm2,2)} op_sel_hi:[1,1,0]
    v_fma_f32 {v(vPk)}, {v(vPk)}, {v(cc2)}, {v(mm2)}
    v_exp_f32 {v(s0)}, {v(s0)}
    v_exp_f32 {v(s0+1)}, {v(s0+1)}
    v_exp_f32 {v(s0+2)}, {v(s0+2)}
    v_exp_f32 {v(s0+3)}, {v(s0+3)}
    v_exp_f32 {v(vPk)}, {v(vPk)}
    v_cvt_pk_bf16_f32 {v(PA)}, {v(s0)}, {v(s0+1)}
    v_cvt_pk_bf16_f32 {v(PA+2)}, {v(s0+2)}, {v(s0+3)}
    v_cvt_pk_bf16_f32 {v(PA+1)}, {v(vPk)}, 0
    v_cvt_pk_bf16_f32 {v(PA+3)}, {v(vPk)}, 0
    v_smfmac_f32_16x16x64_bf16 {v(Dsum,4)}, {v(PA,4)}, {v(ONES,8)}, {v(vIdxP)}''')
    for ct in range(4):
        A(f'v_smfmac_f32_16x16x64_bf16 {v(D+4*ct,4)}, {v(PA,4)}, {v(Y+8*ct,8)}, {v(vIdxP)}')
    A(f'''v_pk_add_f32 {v(Dsum,2)}, {v(Dsum,2)}, {v(Dsum+2,2)}
    v_rcp_f32 {v(Dsum)}, {v(Dsum)}
    v_rcp_f32 {v(Dsum+1)}, {v(Dsum+1)}''')
    for ct in range(4):
        A(f'v_pk_add_f32 {v(D+4*ct,2)}, {v(D+4*ct,2)}, {v(D+4*ct+2,2)}')
    for ct in range(4):
        A(f'v_pk_mul_f32 {v(D+4*ct,2)}, {v(D+4*ct,2)}, {v(Dsum,2)}')
        A(f'v_cvt_pk_bf16_f32 {v(ep+ct)}, {v(D+4*ct)}, {v(D+4*ct+1)}')
        if ct & 1: A(f'ds_write2st64_b32 {v(vEW)}, {v(ep+ct-1)}, {v(ep+ct)} offset0:{ct-1} offset1:{ct}')
    self.stamp('wo', 'e')
    A(f'''s_waitcnt lgkmcnt(0)
    s_barrier
    ds_read_b64_tr_b16 {v(Eop,2)}, {v(vER)}
    ds_read_b64_tr_b16 {v(Eop+2,2)}, {v(vER)} offset:128
    s_waitcnt lgkmcnt(0)
    v_mfma_f32_16x16x32_bf16 {v(acc,4)}, {v(SELA,4)}, {v(Eop,4)}, 0
    v_mfma_f32_16x16x32_bf16 {v(acc+4,4)}, {v(SELB,4)}, {v(Eop,4)}, 0''')
    def pack(src):
        for q in range(4): A(f'v_cvt_pk_bf16_f32 {v(ep+q)}, {v(src+2*q)}, {v(src+2*q+1)}')
    pack(acc)
    A(f'buffer_store_dwordx4 {v(ep,4)}, {v(vPst0)}, {s(WS,4)}, {s(sPartOff)} offen sc1')
    self.stamp('wo', 'pp')
    def cold_sc():
        Lr = A.uid('L_sr')
        A(f's_cmp_eq_u32 {s(sF0)}, -1\ns_cbranch_scc1 {Lsg}')
        A(f'v_max3_u32 v4, {v(SM)}, {v(SM+1)}, {v(SM+2)}')
        for i in range(6): A(f'v_max3_u32 v4, v4, {v(SX+2*i)}, {v(SX+2*i+1)}')
        A(f'v_cmp_eq_u32 vcc, -1, v4\ns_cbranch_vccnz {Lr}\ns_mov_b32 {s(sF0)}, -1\ns_branch {Lsc}')
        A.label(Lr)
        sc_loads(); self.budget(); A(f's_branch {Lsc}')
    self.cold.append((Lsp, cold_sc))
    special = {o.ppos: lambda: (flag_issue(), part_loads(), self.stamp('wo', 'yx'))}
    for x in yx(filler(early, special)): A(x)
    self.stamp('wo', 'gi')
    gather(True, 0)
    self.stamp('wo', 'gd')
    pack(acc2)
    A(f'buffer_store_dwordx4 {v(ep,4)}, {v(vMst)}, {s(WS,4)}, {s(sNext)} offen{ST}')
    self.stamp('wo', 'mp')
    if o.dump:
        A(f'''s_lshl_b32 {s(sT0)}, {s(sS)}, 3
        s_add_u32 {s(sT0)}, {s(sT0)}, {s(sG)}
        s_and_b32 {s(sT1)}, {s(sG)}, 6
        s_mul_i32 {s(sT0)}, {s(sS)}, {2*MEM_SLOT}
        s_and_b32 {s(sT2)}, {s(sG)}, 1
        s_mul_i32 {s(sT2)}, {s(sT2)}, {MEM_SLOT}
        s_add_u32 {s(sT0)}, {s(sT0)}, {s(sT2)}
        s_add_u32 {s(sT0)}, {s(sT0)}, {DUMP + (2<<20)}
        s_cmp_eq_u32 {s(sT1)}, 0
        s_cselect_b32 {s(sT0)}, {s(sT0)}, {DUMP}
        buffer_store_dwordx4 {v(ep,4)}, {v(vMst)}, {s(WS,4)}, {s(sT0)} offen''')
    A(f's_add_u32 {s(sS)}, {s(sS)}, 1')
    self.tr_flush('wo')
    A(f's_branch {LP}')
    A.label(Ltail)
    self.tl(5)
    out_store()
    for d in (-2, -1, 0):
        A('s_waitcnt vmcnt(0) lgkmcnt(0)\ns_barrier')
        if d < 0:
            for x in set_px(d + 1): A(x)
            flag_issue()
        for x in set_outpart(d) + set_ost(d): A(x)
        outpart(); out_store()
        if d < 0: flag_wait(2); px_dma()
    A(f'''s_waitcnt vmcnt(0)
    s_barrier
    buffer_store_dwordx4 {v(ONES,4)}, {v(vPst0)}, {s(WS,4)}, {s(sPartOff)} offen sc1
    s_waitcnt vmcnt(0)''')
    self.tl(6)
    gather(False)
    for d in (-4, -3, -2, -1, 0):
        for x in set_fin(d): A(x)
        fin_issue(); A('s_waitcnt vmcnt(0)'); fin_done()
    self.stamp_out('wo'); self.tl(7, True)
    A('s_endpgm')
```

```python
from asmlib import v, a, s
from gen import *

def px(self):
    A = self.A; t = self.tag; ST = self.st; o = self.o
    r = RA(10, 248)
    vHx, vHk, vH16, vXFa, vKFa, vPFa, vFlD, vFl, vMx, vMy, vSum, vBig, vXp = [r() for _ in range(13)]
    Q = r(48, 4); K = r(48, 4); KMo = r(24, 4); S = r(20, 4); P = r(12, 4)
    sRho, sXOff, sKmOff, sPxOff, sC = range(40, 45); sMask = 48
    A.label(f'L_px{t}')
    A(f's_sub_u32 {s(sRho)}, {s(sR)}, 22')
    self.lanes()
    A(f'''s_mul_i32 {s(sT0)}, {s(sW)}, 12288
    v_lshl_add_u32 {v(vHx)}, v0, 4, {s(sT0)}
    s_mul_i32 {s(sT0)}, {s(sW)}, 3072
    v_lshl_add_u32 {v(vH16)}, v0, 4, {s(sT0)}
    v_lshrrev_b32 v3, 2, v1
    v_lshlrev_b32 v3, 1, v3
    v_and_b32 v4, 1, v1
    v_or_b32 v3, v3, v4
    v_lshl_add_u32 v3, v2, 3, v3
    v_lshl_add_u32 {v(vHk)}, v3, 4, {s(sT0)}
    s_lshl_b32 {s(sT0)}, {s(sW)}, 7
    v_min_u32 v3, 11, v0
    v_lshl_add_u32 v3, v3, 2, {s(sT0)}
    v_add_u32 {v(vXFa)}, {XF}, v3
    v_min_u32 v3, 2, v0
    v_lshl_add_u32 v3, v3, 2, {s(sT0)}
    v_add_u32 {v(vKFa)}, {KF}, v3
    s_lshl_b32 {s(sT1)}, {s(sRho)}, 2
    s_add_u32 {s(sT0)}, {s(sT0)}, {s(sT1)}
    s_add_u32 {s(sT0)}, {s(sT0)}, {PF}
    v_mov_b32 {v(vPFa)}, {s(sT0)}''')
    self.oob_unless(vPFa, 'v_cmp_eq_u32 vcc, 0, v0')
    for i in range(4): A(f'v_mov_b32 {v(Q+i)}, -1\nv_mov_b32 {v(Q+4+i)}, 0')
    A(f'''v_lshlrev_b32 v3, 4, v0
    s_lshl_b32 {s(sT1)}, {s(sRho)}, 2
    s_add_u32 {s(sT1)}, {s(sT1)}, {s(sW)}
    s_lshl_b32 {s(sT2)}, {s(sG)}, 3
    s_add_u32 {s(sT2)}, {s(sT2)}, {s(sT1)}
    s_mul_i32 {s(sT2)}, {s(sT2)}, 20480''')
    for k in range(20):
        A(f'buffer_store_dwordx4 {v(Q,4)}, v3, {s(WS,4)}, {s(sT2)} offen sc1\ns_add_u32 {s(sT2)}, {s(sT2)}, 1024')
    A(f'''s_waitcnt vmcnt(20)
    s_lshl_b32 {s(sT2)}, {s(sG)}, 3
    s_add_u32 {s(sT2)}, {s(sT2)}, {s(sT1)}
    s_mul_i32 {s(sT2)}, {s(sT2)}, 10240
    s_add_u32 {s(sT2)}, {s(sT2)}, {OUTP + 5*OUTP_SLOT}''')
    for k in range(10):
        A(f'buffer_store_dwordx4 {v(Q,4)}, v3, {s(WS,4)}, {s(sT2)} offen sc1\ns_add_u32 {s(sT2)}, {s(sT2)}, 1024')
    A(f's_mul_i32 {s(sT2)}, {s(sT1)}, 20480\ns_add_u32 {s(sT2)}, {s(sT2)}, {s(sXB)}')
    for k in range(20):
        A(f'buffer_store_dwordx4 {v(Q,4)}, v3, {s(WS,4)}, {s(sT2)} offen{ST}\ns_add_u32 {s(sT2)}, {s(sT2)}, 1024')
    A(f'''s_lshl_b32 {s(sT2)}, {s(sT1)}, 8
    s_add_u32 {s(sT2)}, {s(sT2)}, {XF}
    s_add_u32 {s(sT2)}, {s(sT2)}, {s(sXB)}
    v_lshlrev_b32 v3, 2, v0
    buffer_store_dword {v(Q+4)}, v3, {s(WS,4)}, {s(sT2)} offen{ST}
    buffer_store_dword {v(Q+4)}, v3, {s(WS,4)}, {s(sT2)} offen offset:2048{ST}
    v_mov_b32 {v(vBig)}, {f32(-1e9 * 192 ** 0.5)}
    s_mov_b32 {s(sC)}, {f32(CSM)}''')
    for i in range(4):
        A(f'v_lshl_add_u32 v3, v2, 2, {i}\nv_cmp_le_u32 {s(sMask+2*i,2)}, v3, v1')
    for i in (3, 7, 10, 11): A(f'v_mov_b32 {v(P+i)}, 0')
    A('s_waitcnt vmcnt(0)\ns_barrier')
    self.srd(R3, P_BX, 2048 * 640 * 2)
    A(f's_mul_i32 {s(sT0)}, {s(sW)}, 10240\nv_lshl_add_u32 {v(vXp)}, v0, 4, {s(sT0)}\ns_mov_b32 {s(sS)}, {s(sRho)}')
    def xpre(d):
        A(f's_add_u32 {s(sT0)}, {s(sS)}, {d}\ns_min_u32 {s(sT0)}, {s(sT0)}, 63\ns_mul_i32 {s(sT0)}, {s(sT0)}, 40960')
        for k in range(10):
            if k in (4, 8): A(f's_add_u32 {s(sT0)}, {s(sT0)}, 4096')
            A(f'buffer_load_dwordx4 v[248:251], {v(vXp)}, {s(R3,4)}, {s(sT0)} offen offset:{(k%4)*1024}')
    self.arrive()
    Lx, Lg = A.uid('L_xp'), A.uid('L_xg')
    A(f's_cmp_eq_u32 {s(sRho)}, 1\ns_cbranch_scc1 {Lx}')
    A(f's_cmp_lg_u32 {s(sW)}, 0\ns_cbranch_scc1 {Lg}')
    if o.par < 0:
        Lq = A.uid('L_pr')
        A(f'''s_lshl_b32 {s(sT2)}, {s(sG)}, 14
        s_add_u32 {s(sT2)}, {s(sT2)}, {PROBE}
        s_add_u32 {s(sT3)}, {s(sT2)}, 8192
        v_lshlrev_b32 v3, 4, v0
        buffer_store_dwordx4 {v(Q,4)}, v3, {s(WS,4)}, {s(sT2)} offen sc1
        buffer_store_dwordx4 {v(Q,4)}, v3, {s(WS,4)}, {s(sT3)} offen sc1
        v_mov_b32 v3, 0
        s_mov_b32 s56, -1
        s_mov_b32 s57, -1
        s_mov_b32 s62, 0
        s_waitcnt vmcnt(0)''')
        A.label(Lq)
        for k in range(2):
            A(f'''s_memtime s[58:59]
            s_waitcnt lgkmcnt(0)
            buffer_load_dword v4, v3, {s(WS,4)}, {s((sT2, sT3)[k])} offen sc1
            s_waitcnt vmcnt(0)
            s_memtime s[60:61]
            s_waitcnt lgkmcnt(0)
            s_sub_u32 s60, s60, s58
            s_min_u32 s{56+k}, s{56+k}, s60''')
        A(f'''v_add_u32 v3, 128, v3
        s_add_u32 s62, s62, 1
        s_cmp_lt_u32 s62, 6
        s_cbranch_scc1 {Lq}
        s_cmp_lt_u32 s57, s56
        s_cselect_b32 s62, 2, 1''')
    else:
        A(f's_lshr_b32 s62, {s(sXCC)}, 2\ns_xor_b32 s62, s62, {o.par}\ns_and_b32 s62, s62, 1\ns_add_u32 s62, s62, 1')
    A.label(Lg)
    A(f's_barrier\ns_branch {Lg}x')
    A.label(Lx)
    for d in (1, 2, 3, 4, 5, 6): xpre(d)
    A.label(Lg + 'x')
    self.gwait()
    A(f'''s_or_b32 {s(sT0)}, {s(sRho)}, {s(sW)}
    s_cbranch_scc1 {Lg}y
    v_mov_b32 v3, {PARF}
    v_mov_b32 v4, s62
    buffer_store_dword v4, v3, {s(WS,4)}, {s(sXB)} offen{ST}
    s_cmp_lg_u32 {s(sG)}, 0
    s_cbranch_scc1 {Lg}y
    v_mov_b32 v3, {self.GO + (12 if self.slow else 8)}
    buffer_store_dword v4, v3, {s(DBG,4)}, 0 offen sc1''')
    A.label(Lg + 'y')
    def wait_flag(addr):
        L = A.uid('L_pf'); A.label(L)
        A(f'buffer_load_dword {v(vFlD)}, {v(addr)}, {s(WS,4)}, {s(sXB)} offen sc1')
        self.budget()
        A(f's_waitcnt vmcnt(0)\nv_cmp_ge_u32 vcc, {s(sS)}, {v(vFlD)}\ns_cbranch_vccnz {L}')
    LP = f'L_px_loop{t}'; A.label(LP)
    A(f'''s_and_b32 {s(sT0)}, {s(sS)}, 7
    s_mul_i32 {s(sT1)}, {s(sT0)}, {S8}
    s_add_u32 {s(sT1)}, {s(sT1)}, {S8B}
    s_add_u32 {s(sXOff)}, {s(sXB)}, {s(sT1)}
    s_add_u32 {s(sKmOff)}, {s(sXOff)}, {KM}
    s_add_u32 {s(sPxOff)}, {s(sXOff)}, {PXB}
    s_add_u32 {s(sT0)}, {s(sS)}, 1
    v_mov_b32 {v(vFl)}, {s(sT0)}''')
    if o.x & 32:
        A(f'v_mov_b32 {v(vFl)}, 99\nbuffer_store_dword {v(vFl)}, {v(vPFa)}, {s(WS,4)}, {s(sXB)} offen\ns_endpgm')
    xpre(8)
    wait_flag(vXFa)
    for reg, off in ((Q, QX), (K, KX)):
        for k in range(12):
            if k % 4 == 0: A(f's_add_u32 {s(sT0)}, {s(sXOff)}, {off + k*1024}')
            A(f'buffer_load_dwordx4 {v(reg+4*k,4)}, {v(vHx)}, {s(WS,4)}, {s(sT0)} offen offset:{(k%4)*1024} sc1')
    A('s_waitcnt vmcnt(0)')
    for ks in range(6):
        for d, kt, rt in ((0, 0, 0), (8, 0, 1), (12, 1, 1)):
            A(f'v_mfma_f32_16x16x32_bf16 {v(S+d,4)}, {v(K+24*kt+4*ks,4)}, {v(Q+24*rt+4*ks,4)}, {v(S+d,4) if ks else 0}')
    for d in (0, 12):
        for i in range(4):
            A(f'v_cndmask_b32 {v(S+d+i)}, {v(vBig)}, {v(S+d+i)}, {s(sMask+2*i,2)}')
    wait_flag(vKFa)
    for k in range(6):
        A(f'buffer_load_dwordx4 {v(KMo+4*k,4)}, {v(vHk)}, {s(WS,4)}, {s(sKmOff)} offen offset:{k*512} sc1')
    for ks in range(6):
        A(f's_waitcnt vmcnt({5-ks})')
        for d, rt in ((4, 0), (16, 1)):
            A(f'v_mfma_f32_16x16x32_bf16 {v(S+d,4)}, {v(KMo+4*ks,4)}, {v(Q+24*rt+4*ks,4)}, {v(S+d,4) if ks else 0}')
    def allred(op, x, y):
        A(f'''v_mov_b32 {v(y)}, {v(x)}
        v_permlane16_swap_b32 {v(x)}, {v(y)}
        {op} {v(x)}, {v(x)}, {v(y)}
        v_mov_b32 {v(y)}, {v(x)}
        v_permlane32_swap_b32 {v(x)}, {v(y)}
        {op} {v(x)}, {v(x)}, {v(y)}''')
    for regs, outs in (([0,1,2,3,4,5], [0,1,2]), ([8,9,10,11,16,17,12,13,14,15], [4,5,6,8,9])):
        R = [S + x for x in regs]
        A(f'v_max_f32 {v(vMx)}, {v(R[0])}, {v(R[1])}')
        for i in range(2, len(R), 2): A(f'v_max3_f32 {v(vMx)}, {v(vMx)}, {v(R[i])}, {v(R[i+1])}')
        allred('v_max_f32', vMx, vMy)
        A(f'v_mul_f32 {v(vMx)}, {f32(-CSM)}, {v(vMx)}')
        for x in R: A(f'v_fma_f32 {v(x)}, {v(x)}, {s(sC)}, {v(vMx)}')
        for x in R: A(f'v_exp_f32 {v(x)}, {v(x)}')
        A(f'v_add_f32 {v(vSum)}, {v(R[0])}, {v(R[1])}')
        for x in R[2:]: A(f'v_add_f32 {v(vSum)}, {v(vSum)}, {v(x)}')
        allred('v_add_f32', vSum, vMy)
        A(f'v_rcp_f32 {v(vSum)}, {v(vSum)}')
        for x in R: A(f'v_mul_f32 {v(x)}, {v(x)}, {v(vSum)}')
        for i, oo in enumerate(outs): A(f'v_cvt_pk_bf16_f32 {v(P+oo)}, {v(R[2*i])}, {v(R[2*i+1])}')
    for k in range(3):
        A(f'buffer_store_dwordx4 {v(P+4*k,4)}, {v(vH16)}, {s(WS,4)}, {s(sPxOff)} offen offset:{k*1024}{ST}')
    A(f'''s_waitcnt vmcnt(0)
    buffer_store_dword {v(vFl)}, {v(vPFa)}, {s(WS,4)}, {s(sXB)} offen{ST}
    s_add_u32 {s(sS)}, {s(sS)}, 2
    s_cmp_lt_u32 {s(sS)}, {o.nsteps}
    s_cbranch_scc1 {LP}
    s_endpgm''')
```

```python
from asmlib import v, a, s
from gen import *

def qkv(self):
    A = self.A; t = self.tag; ST = self.st; o = self.o
    LX0, LX1, LS2, LMISC = 0, 40960, 81920, 122880
    LMEM = LMISC; LT = LMEM + 10240; LVT = LT + 2048; LKX = LVT + 1024
    r = RA(10, 248)
    vXdma, vXb0, vXb1, vMd4, vMd1, vProbe, vA0, vA1, vIdx, vVtW, vVtR, vVMst, vTW, vTR0, vTR1 = [r() for _ in range(15)]
    vSCst, vKMst, vKxW, vKxR, vXst, vXF, vKF, vFl, vPr, vKxWs, vKxRs = [r() for _ in range(11)]
    vNeg = r(4, 4); Aop = r(40, 4); acc = r(12, 4); Z = r(8, 4); Kx = r(8, 4); S = r(4, 4); vt = r(4, 4)
    xf = r(24, 4); xacc = r(24, 4); pk = r(12, 4); tq = r(4, 2)
    PB = r(16, 4); racc = r(8, 4); rp = r(4, 4); SELB = r(6, 2); SELA = SELB + 2
    vPl0, vPl1, vTrig, vTrD, vMst, vMclr, vFlB, vMx, vMy, vPl2, vPl3, vBF, vVclr, vSclr = [r() for _ in range(14)]
    accV, accQ, accK = acc, acc + 4, acc + 8
    sHl, sP, sCur, sPrev, sKmOff, sXOff, sXSeg, sXbuf, sMm0, sDelta, sX1, sX2, sF0, sF1, sMark, sPart = range(40, 56)
    WQ, WK, WV = 0, 80, 160
    A.label(f'L_qkv{t}')
    self.srd(R0, P_WQ, 640 * 6144 * 2); self.srd(R1, P_WK, 640 * 6144 * 2); self.srd(R2, P_WV, 640 * 6144 * 2)
    self.srd(R3, P_BX, 2048 * 640 * 2)
    A(f'''s_mul_i32 {s(sHl)}, {s(sR)}, 86
    s_lshr_b32 {s(sHl)}, {s(sHl)}, 8
    s_mul_i32 {s(sT0)}, {s(sHl)}, 3
    s_sub_u32 {s(sP)}, {s(sR)}, {s(sT0)}''')
    self.lanes()
    vWdma = pk; vWr = pk + 1
    A(f'''v_lshrrev_b32 v3, 3, v0              ; r8
    v_and_b32 v4, 7, v0                        ; pp
    s_lshl_b32 {s(sT0)}, {s(sW)}, 3
    v_add_u32 v5, {s(sT0)}, v3
    s_and_b32 {s(sT1)}, {s(sW)}, 1
    s_lshl_b32 {s(sT1)}, {s(sT1)}, 2
    v_and_b32 v6, 2, v3
    v_or_b32 v6, {s(sT1)}, v6
    v_xor_b32 v6, v6, v4
    v_lshlrev_b32 v6, 4, v6
    v_mul_u32_u24 v7, 12288, v5
    s_lshl_b32 {s(sT2)}, {s(sG)}, 2
    s_add_u32 {s(sT2)}, {s(sT2)}, {s(sHl)}
    s_mul_i32 {s(sT2)}, {s(sT2)}, 384
    s_lshl_b32 {s(sT3)}, {s(sP)}, 7
    s_add_u32 {s(sT2)}, {s(sT2)}, {s(sT3)}
    v_add3_u32 {v(vWdma)}, v6, v7, {s(sT2)}
    v_lshrrev_b32 v6, 1, v3
    v_or_b32 v6, {s(sT1)}, v6
    v_xor_b32 v6, v6, v4
    v_lshlrev_b32 v6, 4, v6
    v_mul_u32_u24 v7, 1280, v5
    v_add_u32 {v(vXdma)}, v6, v7''')
    def xdma_begin(buf_s_or_imm):
        A(f's_lshl_b32 {s(sT0)}, {s(sW)}, 10\ns_add_u32 m0, {s(sT0)}, {buf_s_or_imm}')
    def xdma(ln):
        A(f'buffer_load_dwordx4 {v(vXdma)}, {s(R3,4)}, {s(sXSeg)} offen offset:{ln*128} lds')
        if ln < 9: A('s_add_u32 m0, m0, 3968')
    stages = [(WV, R2, 0), (WV, R2, 1), (WK, R1, 0), (WK, R1, 1), (WQ, R0, 0), (WQ, R0, 1)]
    bufs = [LX1, LS2, LMISC]
    def wdma(i):
        _, srd, half = stages[i]
        A(f's_lshl_b32 {s(sT0)}, {s(sW)}, 10\ns_add_u32 m0, {s(sT0)}, {bufs[i%3]}\ns_mov_b32 {s(sT1)}, {half*320*12288}')
        for k in range(10):
            A(f'buffer_load_dwordx4 {v(vWdma)}, {s(srd,4)}, {s(sT1)} offen lds')
            if k < 9: A(f's_add_u32 m0, m0, 4096\ns_add_u32 {s(sT1)}, {s(sT1)}, {32*12288}')
    self.tl(4)
    wdma(0); wdma(1); wdma(2)
    A(f's_mov_b32 {s(sXSeg)}, 0'); xdma_begin(LX0)
    for ln in range(10): xdma(ln)
    self.tl(5)
    A(f'''s_mul_i32 {s(sT0)}, {s(sHl)}, 3072
    s_lshl_b32 {s(sT1)}, {s(sP)}, 10
    s_add_u32 {s(sT0)}, {s(sT0)}, {s(sT1)}
    s_lshl_b32 {s(sT1)}, {s(sW)}, 8
    s_add_u32 {s(sT1)}, {s(sT1)}, {s(sT0)}
    s_add_u32 {s(sT1)}, {s(sT1)}, {VM}
    v_lshl_add_u32 {v(vVclr)}, v0, 2, {s(sT1)}
    v_lshl_add_u32 {v(vVMst)}, v1, 4, {s(sT1)}''')
    self.oob_unless(vVMst, 'v_cmp_eq_u32 vcc, 0, v2')
    A(f'''v_lshrrev_b32 v3, 2, v1
    v_lshlrev_b32 v3, 1, v3
    v_and_b32 v4, 1, v1
    v_or_b32 v3, v3, v4
    v_lshl_add_u32 v3, v2, 3, v3
    v_lshl_add_u32 {v(vKMst)}, v3, 4, {s(sT0)}
    v_and_b32 v4, 2, v1''')
    self.oob_unless(vKMst, 'v_cmp_ne_u32 vcc, 0, v4')
    A(f'''s_mul_i32 {s(sT0)}, {s(sHl)}, 3840
    s_mul_i32 {s(sT1)}, {s(sP)}, 1280
    s_add_u32 {s(sT0)}, {s(sT0)}, {s(sT1)}
    s_add_u32 {s(sT0)}, {s(sT0)}, {SC}
    v_lshrrev_b32 v3, 1, v2                    ; G
    v_and_b32 v5, 1, v2                        ; half
    v_lshlrev_b32 v6, 1, v5
    v_or_b32 v7, v6, v3                        ; bitswap(g)
    v_lshl_add_u32 v7, v7, 4, v1
    v_lshlrev_b32 v7, 2, v7
    v_add_u32 v7, 1024, v7
    v_or_b32 v6, v6, v1
    v_lshl_add_u32 v6, v3, 4, v6
    v_lshlrev_b32 v6, 4, v6
    s_sub_u32 {s(sT1)}, {s(sW)}, 1
    s_lshl_b32 {s(sT1)}, {s(sT1)}, 9
    v_add_u32 v6, {s(sT1)}, v6
    s_cmp_eq_u32 {s(sW)}, 0
    s_cselect_b64 vcc, -1, 0
    v_cndmask_b32 v6, v6, v7, vcc
    v_add_u32 {v(vSCst)}, {s(sT0)}, v6
    s_lshl_b32 {s(sT1)}, {s(sW)}, 8
    s_add_u32 {s(sT1)}, {s(sT1)}, {s(sT0)}
    v_lshl_add_u32 {v(vSclr)}, v0, 2, {s(sT1)}''')
    self.oob_unless(vSCst, 'v_cmp_eq_u32 vcc, 0, v4')
    A(f'''s_and_b32 {s(sT0)}, {s(sW)}, 1
    s_lshl_b32 {s(sT0)}, {s(sT0)}, 9
    s_lshr_b32 {s(sT1)}, {s(sW)}, 1
    s_lshl_b32 {s(sT1)}, {s(sT1)}, 10
    s_add_u32 {s(sT0)}, {s(sT0)}, {s(sT1)}
    v_lshlrev_b32 v6, 4, v1
    v_lshl_add_u32 v6, v3, 8, v6
    v_add_u32 v6, {s(sT0)}, v6
    v_lshl_add_u32 {v(vKxW)}, v5, 11, v6
    v_add_u32 {v(vKxW)}, {LKX}, {v(vKxW)}
    s_mul_i32 {s(sT0)}, {s(sHl)}, 12288
    s_lshl_b32 {s(sT1)}, {s(sP)}, 11
    s_add_u32 {s(sT0)}, {s(sT0)}, {s(sT1)}
    v_mul_u32_u24 v7, 6144, v5
    v_add3_u32 {v(vXst)}, v6, v7, {s(sT0)}''')
    A(f'''v_and_b32 v6, 9, v1
    v_and_b32 v7, 2, v1
    v_lshl_or_b32 v6, v7, 1, v6
    v_and_b32 v7, 4, v1
    v_lshrrev_b32 v7, 1, v7
    v_or_b32 v6, v6, v7
    v_lshlrev_b32 v6, 4, v6
    v_lshl_add_u32 v6, v2, 8, v6
    s_cmp_eq_u32 {s(sW)}, 2
    s_cselect_b32 {s(sT0)}, 2048, 0
    s_add_u32 {s(sT0)}, {s(sT0)}, {LKX}
    v_add_u32 {v(vKxR)}, {s(sT0)}, v6''')
    A(f'''s_lshl_b32 {s(sT0)}, {s(sHl)}, 7
    s_lshl_b32 {s(sT1)}, {s(sP)}, 2
    s_add_u32 {s(sT2)}, {s(sT1)}, {s(sW)}
    s_lshl_b32 {s(sT2)}, {s(sT2)}, 2
    s_add_u32 {s(sT2)}, {s(sT2)}, {s(sT0)}
    s_add_u32 {s(sT2)}, {s(sT2)}, {XF}
    v_mov_b32 {v(vXF)}, {s(sT2)}
    s_add_u32 {s(sT1)}, {s(sT1)}, {s(sT0)}
    s_add_u32 {s(sT1)}, {s(sT1)}, {KF}
    s_cmp_eq_u32 {s(sW)}, 3
    s_cselect_b32 {s(sT1)}, {s(sT1)}, {OOB}
    v_mov_b32 {v(vKF)}, {s(sT1)}''')
    self.oob_unless(vXF, 'v_cmp_eq_u32 vcc, 0, v0')
    A(f'''v_cndmask_b32 {v(vFlB)}, 1, 3, vcc
    v_cmp_eq_u32 vcc, 1, v0
    v_add_u32 {v(vBF)}, {BF - KF}, {v(vKF)}
    v_cndmask_b32 {v(vBF)}, v9, {v(vBF)}, vcc
    v_cndmask_b32 {v(vKF)}, {v(vXF)}, {v(vKF)}, vcc''')
    for i in range(4): A(f'v_mov_b32 {v(vNeg+i)}, -1')
    A(f'''s_mul_i32 {s(sT0)}, {s(sR)}, {PBLK}
    s_lshl_b32 {s(sT1)}, {s(sW)}, 11
    s_add_u32 {s(sT0)}, {s(sT0)}, {s(sT1)}
    s_lshl_b32 {s(sT2)}, {s(sR)}, 10
    s_lshl_b32 {s(sT1)}, {s(sW)}, 8
    s_add_u32 {s(sT2)}, {s(sT2)}, {s(sT1)}
    s_cmp_lt_u32 {s(sR)}, 10
    s_cselect_b32 {s(sT0)}, {s(sT0)}, {OOB}
    s_cselect_b32 {s(sT2)}, {s(sT2)}, {OOB}
    v_lshl_add_u32 {v(vPl0)}, v0, 4, {s(sT0)}
    v_add_u32 {v(vPl1)}, 1024, {v(vPl0)}
    s_min_u32 {s(sT0)}, {s(sR)}, 9
    s_lshl_b32 {s(sT0)}, {s(sT0)}, 7
    s_add_u32 {s(sT0)}, {s(sT0)}, {TF}
    v_and_b32 v3, {0 if o.tone else 3}, v0
    v_lshl_add_u32 {v(vTrig)}, v3, 2, {s(sT0)}
    v_lshl_add_u32 {v(vMclr)}, v0, 2, {s(sT2)}
    v_lshl_add_u32 {v(vMst)}, v1, 4, {s(sT2)}''')
    self.oob_unless(vMst, 'v_cmp_eq_u32 vcc, 0, v2')
    self.sel_consts(SELB)
    def sc_store(data4, soff, wave):
        if wave == 0:
            A(f'buffer_store_dword {v(data4+2)}, {v(vSCst)}, {s(WS,4)}, {s(soff)} offen{ST}')
            A(f'buffer_store_dword {v(data4+3)}, {v(vSCst)}, {s(WS,4)}, {s(soff)} offen offset:8{ST}')
        elif wave in (1, 2):
            A(f'buffer_store_dwordx4 {v(data4,4)}, {v(vSCst)}, {s(WS,4)}, {s(soff)} offen{ST}')
    A(f'''v_lshrrev_b32 v3, 2, v1              ; r = c>>2
    v_and_b32 v4, 3, v1                        ; cc
    v_and_b32 v5, 1, v2                        ; g&1
    v_lshl_add_u32 v6, v2, 3, v3
    v_lshlrev_b32 v6, 7, v6                    ; (8g+r)*128
    v_and_b32 v7, 2, v3
    v_lshl_or_b32 v7, v5, 2, v7                ; f
    v_lshrrev_b32 v8, 1, v4
    s_lshl_b32 {s(sT0)}, {s(sW)}, 1
    v_or_b32 v8, {s(sT0)}, v8
    v_xor_b32 v7, v7, v8
    v_lshl_add_u32 v6, v7, 4, v6
    v_and_b32 v7, 1, v4
    v_lshl_add_u32 v6, v7, 3, v6''')
    for i in range(3): A(f'v_add_u32 {v(vWr+i)}, {bufs[i]}, v6')
    for eh, reg in ((0, vTR0), (1, vTR1)):
        A(f'''v_xor_b32 v6, {eh}, v5
        v_lshl_add_u32 v6, v6, 2, v3
        v_lshl_add_u32 v6, v2, 3, v6
        v_lshlrev_b32 v6, 5, v6
        v_lshl_or_b32 v7, v5, 1, {eh}
        v_xor_b32 v7, v7, v4
        v_lshl_add_u32 v6, v7, 3, v6
        v_add_u32 {v(reg)}, {LT}, v6''')
    A(f'''v_lshrrev_b32 v6, 3, v1
    v_lshlrev_b32 v6, 2, v6
    v_xor_b32 v6, v6, v1
    v_lshlrev_b32 v6, 5, v6
    v_xor_b32 v7, v2, v3
    v_lshl_add_u32 v6, v7, 3, v6
    s_lshl_b32 {s(sT0)}, {s(sW)}, 9
    s_add_u32 {s(sT0)}, {s(sT0)}, {LT}
    v_add_u32 {v(vTW)}, {s(sT0)}, v6''')
    A(f'''v_lshlrev_b32 v6, 6, v3
    v_and_b32 v7, 1, v1
    v_lshl_add_u32 v6, v7, 5, v6
    v_lshl_add_u32 v6, v2, 3, v6
    v_and_b32 v7, 2, v1
    v_lshl_add_u32 v6, v7, 1, v6
    s_lshl_b32 {s(sT0)}, {s(sW)}, 8
    s_add_u32 {s(sT0)}, {s(sT0)}, {LVT}
    v_add_u32 {v(vVtW)}, {s(sT0)}, v6
    v_lshl_add_u32 {v(vVtR)}, v1, 3, {s(sT0)}
    v_cmp_ne_u32 vcc, 0, v7
    v_mov_b32 v6, 0x4444
    v_mov_b32 v8, 0xeeee
    v_cndmask_b32 {v(vIdx)}, v6, v8, vcc''')
    A(f'''v_lshlrev_b32 v6, 4, v0
    v_add_u32 {v(vA0)}, {LMEM}, v6
    s_mul_i32 {s(sT0)}, {s(sW)}, 2560
    v_lshl_add_u32 {v(vMd4)}, v0, 4, {s(sT0)}
    v_lshl_add_u32 {v(vMd1)}, v0, 2, {s(sT0)}
    s_add_u32 {s(sMm0)}, {s(sT0)}, {LMEM}
    v_mul_u32_u24 v6, {0 if o.noprobe else 40}, v0
    v_add_u32 {v(vProbe)}, {s(sMm0)}, v6''')
    A(f'''v_lshrrev_b32 v6, 3, v1
    v_lshlrev_b32 v6, 10, v6
    v_and_b32 v7, 7, v1
    v_lshl_add_u32 v6, v7, 7, v6
    v_lshrrev_b32 v7, 1, v1
    v_xor_b32 v7, v7, v2
    v_lshl_add_u32 {v(vXb0)}, v7, 4, v6
    v_xor_b32 {v(vXb1)}, 64, {v(vXb0)}''')
    waits = [30, 30, 30, 20, 20, 10]
    self.tl(6)
    for i in range(6):
        base, _, half = stages[i]
        A(f's_waitcnt vmcnt({waits[i]})\ns_barrier')
        for ks in range(10):
            for eh in range(2):
                A(f'ds_read_b64_tr_b16 {a(base + 4*(half*10+ks) + 2*eh, 2)}, {v(vWr + i%3)} offset:{ks*4096 + eh*512}')
        A('s_waitcnt lgkmcnt(0)\ns_barrier')
        if i < 3: wdma(i + 3)
        if i == 3:
            A(f's_mov_b32 {s(sXSeg)}, 40960'); xdma_begin(LX1)
            for ln in range(10): xdma(ln)
        self.tl(8 + i)

    XD = 3
    def xrd1(ks, rt):
        A(f'ds_read_b128 {v(xf + 8*(ks%XD) + 4*rt, 4)}, {v(vXb1 if ks & 1 else vXb0)} offset:{(ks>>1)*4096 + rt*2048}')
    def xrd(ks):
        for rt in range(2): xrd1(ks, rt)
    xst = [f'buffer_store_dwordx4 {v(pk+4*m,4)}, {v(vXst)}, {s(WS,4)}, {s((sX2, sX1, sXOff)[m])} offen{ST}' for m in range(3)]
    def xstores():
        for x in xst: A(x)
    def mem_dma():
        A(f'''buffer_load_dwordx4 {v(vMd4)}, {s(WS,4)}, {s(sCur)} offen sc1 lds
        buffer_load_dwordx4 {v(vMd4)}, {s(WS,4)}, {s(sCur)} offen offset:1024 sc1 lds
        buffer_load_dword {v(vMd1)}, {s(WS,4)}, {s(sCur)} offen offset:2048 sc1 lds
        buffer_load_dword {v(vMd1)}, {s(WS,4)}, {s(sCur)} offen offset:2304 sc1 lds''')
    def trig_load():
        A(f'buffer_load_dword {v(vTrD)}, {v(vTrig)}, {s(WS,4)}, {s(sXB)} offen sc1')
    def part_loads(cp, dst):
        A(f'''buffer_load_dwordx4 {v(PB+8*dst,4)}, {v((vPl0, vPl2)[cp])}, {s(WS,4)}, {s(sPart)} offen sc1
        buffer_load_dwordx4 {v(PB+8*dst+4,4)}, {v((vPl1, vPl3)[cp])}, {s(WS,4)}, {s(sPart)} offen sc1''')
    def red_fetch():
        Lw, Lok = A.uid('L_tw'), A.uid('L_tok')
        self.stamp('qkv', 't0')
        A(f's_waitcnt vmcnt(0)\nv_cmp_gt_u32 vcc, {s(sS)}, {v(vTrD)}\ns_cbranch_vccnz {Lw}')
        A.label(Lok)
        A('s_barrier')
        part_loads(0, 0)
        self.stamp('qkv', 't1')
        def cold():
            trig_load(); trig_load(); A.label(Lw + 'a'); trig_load(); self.budget()
            A(f's_waitcnt vmcnt(2)\nv_cmp_gt_u32 vcc, {s(sS)}, {v(vTrD)}\ns_cbranch_vccz {Lok}\ns_branch {Lw}a')
        self.cold.append((Lw, cold))
    def red_try(b, younger, Lfail):
        A(f'''s_waitcnt vmcnt({younger+1})
        v_mfma_f32_16x16x32_bf16 {v(racc,4)}, {v(SELA,4)}, {v(b,4)}, 0
        v_mfma_f32_16x16x32_bf16 {v(racc+4,4)}, {v(SELB,4)}, {v(b,4)}, 0
        v_max3_u32 {v(vMx)}, {v(b)}, {v(b+1)}, {v(b+2)}
        s_waitcnt vmcnt({younger})
        v_mfma_f32_16x16x32_bf16 {v(racc,4)}, {v(SELA,4)}, {v(b+4,4)}, {v(racc,4)}
        v_max3_u32 {v(vMy)}, {v(b+3)}, {v(b+4)}, {v(b+5)}
        v_max3_u32 {v(vMx)}, {v(vMx)}, {v(b+6)}, {v(b+7)}
        v_mfma_f32_16x16x32_bf16 {v(racc+4,4)}, {v(SELB,4)}, {v(b+4,4)}, {v(racc+4,4)}
        v_max_u32 {v(vMx)}, {v(vMx)}, {v(vMy)}
        v_cmp_eq_u32 vcc, -1, {v(vMx)}''')
        for q in range(4):
            A(f'v_cvt_pk_bf16_f32 {v(rp+q)}, {v(racc+2*q)}, {v(racc+2*q+1)}')
            if q == 1: A(f's_cbranch_vccnz {Lfail}')
        A(f'buffer_store_dwordx4 {v(rp,4)}, {v(vMst)}, {s(WS,4)}, {s(sCur)} offen{ST}')
    def red_sum():
        Lp, Lc = A.uid('L_pp'), A.uid('L_pc')
        self.stamp('qkv', 'gi')
        red_try(PB, 2 if o.kb else 0, Lp)
        A.label(Lc)
        self.stamp('qkv', 'mp')
        if o.dump:
            A(f'''s_and_b32 {s(sT1)}, {s(sG)}, 6
            s_mul_i32 {s(sT0)}, {s(sS)}, {2*MEM_SLOT}
            s_and_b32 {s(sT2)}, {s(sG)}, 1
            s_mul_i32 {s(sT2)}, {s(sT2)}, {MEM_SLOT}
            s_add_u32 {s(sT0)}, {s(sT0)}, {s(sT2)}
            s_add_u32 {s(sT0)}, {s(sT0)}, {DUMP + (2<<20) - 2*MEM_SLOT}
            s_cmp_eq_u32 {s(sT1)}, 0
            s_cselect_b32 {s(sT0)}, {s(sT0)}, {DUMP}
            buffer_store_dwordx4 {v(rp,4)}, {v(vMst)}, {s(WS,4)}, {s(sT0)} offen''')
        def cold():
            self.count()
            if not o.kb: part_loads(1, 1)
            A.label(Lp + 'a')
            red_try(PB + 8, 0, Lp + 'b')
            A(f's_branch {Lc}')
            A.label(Lp + 'b')
            part_loads(0, 1); self.budget(); self.count(1000); A(f's_branch {Lp}a')
        self.cold.append((Lp, cold))

    def red_spin():
        red_fetch()
        Ls, Lx = A.uid('L_sp'), A.uid('L_sx')
        for k in range(o.spin - 2): part_loads(0, 0)
        self.stamp('qkv', 'gi')
        if o.spin == 1: A(f's_branch {Ls}b')
        A.label(Ls)
        for cp in ((1, 0) if o.alt else (0,)):
            part_loads(cp, 0); self.budget(); self.count()
            if cp == 0: A.label(Ls + 'b')
            A(f'''s_waitcnt vmcnt({2*(o.spin-1)+1})
            v_mfma_f32_16x16x32_bf16 {v(racc,4)}, {v(SELA,4)}, {v(PB,4)}, 0
            v_mfma_f32_16x16x32_bf16 {v(racc+4,4)}, {v(SELB,4)}, {v(PB,4)}, 0
            s_waitcnt vmcnt({2*(o.spin-1)})
            v_mfma_f32_16x16x32_bf16 {v(racc,4)}, {v(SELA,4)}, {v(PB+4,4)}, {v(racc,4)}
            v_mfma_f32_16x16x32_bf16 {v(racc+4,4)}, {v(SELB,4)}, {v(PB+4,4)}, {v(racc+4,4)}
            v_cmp_u_f32 vcc, {v(racc)}, {v(racc+4)}''')
            for q in range(4): A(f'v_cvt_pk_bf16_f32 {v(rp+q)}, {v(racc+2*q)}, {v(racc+2*q+1)}')
            A(f's_cbranch_vccz {Lx}' if cp else f's_cbranch_vccnz {Ls}')
        A.label(Lx)
        A(f'buffer_store_dwordx4 {v(rp,4)}, {v(vMst)}, {s(WS,4)}, {s(sCur)} offen{ST}')
        self.stamp('qkv', 'mp')

    def gemm(dma, fill=(), loop=False):
        fill = list(fill)
        if not loop: xrd(0); xrd(1)
        def mf(m, ks, rt):
            if o.x & 4 and m == 2 and ks > 0: return
            d = v(xacc + 8*m + 4*rt, 4)
            A(f'v_mfma_f32_16x16x32_bf16 {d}, {a((WV, WK, WQ)[m] + 4*ks, 4)}, {v(xf + 8*(ks%XD) + 4*rt, 4)}, {d if ks else 0}')
        vm = []
        if loop:
            vm += [lambda x=x: A(x) if not o.x & 16 else None for x in xst]
            vm += [lambda: A(f'buffer_store_dword {v(vNeg)}, {v(vVclr)}, {s(WS,4)}, {s(sPrev)} offen{ST}\nbuffer_store_dword {v(vNeg)}, {v(vSclr)}, {s(WS,4)}, {s(sPrev)} offen{ST}'),
                   lambda: A(f'buffer_store_dword {v(vNeg)}, {v(vMclr)}, {s(WS,4)}, {s(sPrev)} offen{ST}\nbuffer_store_dword {v(vNeg)}, {v(vSclr)}, {s(WS,4)}, {s(sPrev)} offen offset:256{ST}')]
        nst = len(vm)
        if dma:
            xdma_begin(s(sXbuf))
            vm += [lambda k=k: xdma(k) if not (loop and o.x & 16) else None for k in range(10)]
        if loop:
            FP = o.fp
            vm.insert(nst + FP, lambda: A(f's_waitcnt vmcnt({FP})\nbuffer_store_dword {v(vFl)}, {v(vKF)}, {s(WS,4)}, {s(sXB)} offen{ST}'))
        A('s_waitcnt lgkmcnt(2)')
        for ks in range(19):
            if loop and ks == o.k1 and not o.spin: red_fetch()
            if loop and ks == 10 and o.precache: part_loads(0, 0)
            if loop and o.kb and ks == o.k1 + o.kb and not o.spin: part_loads(1, 1)
            if loop and ks == o.k2: red_sum()
            if ks == 18: break
            for n in range(6):
                mf(n // 2, ks, n & 1)
                used = 0
                if n < 2: xrd1(ks + 2, n); used = 1
                if n in (2, 4) and vm: vm.pop(0)(); used = 2
                if n == 3 and loop and ks == o.k1 - 3: trig_load(); used = 2
                if n == 5: A(f's_waitcnt lgkmcnt({2 if ks < 17 else 0})'); used = 1
                if ks >= 6:
                    for _ in range(o.fd - used):
                        if fill: A(fill.pop(0))
            if ks == o.k1 - 1: assert not fill and not vm, (len(fill), len(vm))
        def epi(m):
            x = []
            for rt in range(2):
                for i in range(2):
                    b = xacc + 8*m + 4*rt + 2*i
                    x.append(f'v_cvt_pk_bf16_f32 {v(pk + 4*m + 2*rt + i)}, {v(b)}, {v(b+1)}')
            x.append(f'v_permlane16_swap_b32 {v(pk+4*m)}, {v(pk+4*m+2)}')
            x.append(f'v_permlane16_swap_b32 {v(pk+4*m+1)}, {v(pk+4*m+3)}')
            if m == 1: x.append(f'ds_write_b128 {v(vKxWs)}, {v(pk+4,4)}')
            return x
        tog = [f'v_add_u32 {v(vXb0)}, {s(sDelta)}, {v(vXb0)}', f'v_add_u32 {v(vXb1)}, {s(sDelta)}, {v(vXb1)}',
               f's_sub_u32 {s(sXbuf)}, {s(sXbuf)}, {s(sDelta)}', f's_sub_u32 {s(sDelta)}, 0, {s(sDelta)}']
        e0 = epi(0)
        for m in range(3):
            for ks in (18, 19):
                for rt in range(2):
                    mf(m, ks, rt)
                    src = tog if m == 1 else (e0 if m == 2 else [])
                    for _ in range(2):
                        if src: A(src.pop(0))
        rest = e0 + epi(1) + epi(2)
        if o.k2 < 20: return rest
        if loop and o.kb == 8: part_loads(1, 1)
        for x in rest: A(x)
        if loop and o.kb == 9: part_loads(1, 1)
        if loop and o.spin: red_spin()
        elif loop: red_sum()
        return []
    def set_x(seg):
        A(f'''s_add_u32 {s(sXOff)}, {s(sXB)}, {S8B + seg*S8 + QX}
        s_add_u32 {s(sX1)}, {s(sXOff)}, {KX - QX}
        s_add_u32 {s(sX2)}, {s(sXOff)}, {VX - QX}
        v_add_u32 {v(vKxWs)}, {4096*seg}, {v(vKxW)}
        s_mov_b32 {s(sXSeg)}, {40960*(seg+1)}''')

    A(f's_mov_b32 {s(sDelta)}, 40960\ns_mov_b32 {s(sXbuf)}, {LX1}')
    set_x(0)
    for x in gemm(False): A(x)
    xstores()
    self.tl(2)
    self.gwait()
    self.tl(3)
    A(f'''v_mov_b32 {v(vFl)}, 1
    buffer_store_dword {v(vFl)}, {v(vXF)}, {s(WS,4)}, {s(sXB)} offen{ST}
    s_waitcnt lgkmcnt(0)
    s_barrier''')
    set_x(1)
    for x in gemm(True): A(x)
    xstores()
    A(f'''s_waitcnt vmcnt(0) lgkmcnt(0)
    v_mov_b32 {v(vFl)}, 2
    buffer_store_dword {v(vFl)}, {v(vXF)}, {s(WS,4)}, {s(sXB)} offen{ST}
    s_barrier
    s_mov_b32 {s(sS)}, -1''')
    set_x(2)
    setup = [f's_and_b32 {s(sF0)}, {s(sS)}, 3',
             f's_mul_i32 {s(sPart)}, {s(sF0)}, {PART_SLOT}',
             f's_add_u32 {s(sS)}, {s(sS)}, 1',
             f's_mov_b32 {s(sPrev)}, {s(sCur)}',
             f's_mov_b32 {s(sMark)}, 0',
             f's_and_b32 {s(sF0)}, {s(sS)}, 3',
             f's_mul_i32 {s(sF1)}, {s(sF0)}, {S4}',
             f's_add_u32 {s(sCur)}, {s(sXB)}, {s(sF1)}',
             f's_lshl_b32 {s(sF0)}, {s(sF0)}, 12',
             f'v_add_u32 {v(vKxRs)}, {s(sF0)}, {v(vKxR)}',
             f's_xor_b32 {s(sF0)}, {s(sF0)}, 8192',
             f'v_add_u32 {v(vKxWs)}, {s(sF0)}, {v(vKxW)}',
             f's_and_b32 {s(sF1)}, {s(sS)}, 7',
             f's_mul_i32 {s(sF1)}, {s(sF1)}, {S8}',
             f's_add_u32 {s(sF1)}, {s(sF1)}, {S8B + KM}',
             f's_add_u32 {s(sKmOff)}, {s(sXB)}, {s(sF1)}',
             f's_add_u32 {s(sF1)}, {s(sS)}, 2',
             f's_and_b32 {s(sF1)}, {s(sF1)}, 7',
             f's_mul_i32 {s(sF1)}, {s(sF1)}, {S8}',
             f's_add_u32 {s(sF1)}, {s(sF1)}, {S8B + QX}',
             f's_add_u32 {s(sXOff)}, {s(sXB)}, {s(sF1)}',
             f's_add_u32 {s(sX1)}, {s(sXOff)}, {KX - QX}',
             f's_add_u32 {s(sX2)}, {s(sXOff)}, {VX - QX}',
             f'v_add_u32 {v(vFl)}, {s(sS)}, {v(vFlB)}'] + [f'v_mov_b32 {v(acc+i)}, 0' for i in range(12)]
    rest = gemm(True, setup)
    Lpf = A.uid('L_pf')
    A(f'v_mov_b32 v3, {PARF}')
    A.label(Lpf)
    A(f'buffer_load_dword v4, v3, {s(WS,4)}, {s(sXB)} offen sc1')
    self.budget()
    A(f'''s_waitcnt vmcnt(0) lgkmcnt(0)
    v_readfirstlane_b32 {s(sT0)}, v4
    s_cmp_eq_u32 {s(sT0)}, 0
    s_cbranch_scc1 {Lpf}
    s_and_b32 {s(sT0)}, {s(sT0)}, 2
    s_lshl_b32 {s(sT0)}, {s(sT0)}, 12
    v_add_u32 {v(vPl0)}, {s(sT0)}, {v(vPl0)}
    v_add_u32 {v(vPl1)}, {s(sT0)}, {v(vPl1)}
    v_add_u32 {v(vPl2)}, {16384 if o.ncopy == 4 else 0}, {v(vPl0)}
    v_add_u32 {v(vPl3)}, {16384 if o.ncopy == 4 else 0}, {v(vPl1)}
    s_mov_b32 {s(sS)}, -1
    s_add_u32 {s(sCur)}, {s(sXB)}, {3*S4}''')
    if o.tl: A(f'v_writelane_b32 v255, {s(sT0)}, 20')

    LP = f'L_qkv_loop{t}'
    A.label(LP)
    A(f's_mov_b32 m0, {s(sMm0)}')
    mem_dma()
    for x in rest: A(x)
    A(f'''ds_read_b128 {v(Kx,4)}, {v(vKxRs)}
    ds_read_b128 {v(Kx+4,4)}, {v(vKxRs)} offset:1024
    s_add_u32 {s(sT0)}, {s(sS)}, 4
    s_min_u32 {s(sT0)}, {s(sT0)}, 63
    s_mul_i32 {s(sXSeg)}, {s(sT0)}, 40960''')
    def zero_acc():
        for i in range(12): A(f'v_mov_b32 {v(acc+i)}, 0')
    Lgot, Lpoll, Lnan, Lcont = A.uid('L_got'), A.uid('L_poll'), A.uid('L_nan'), A.uid('L_cont')
    self.stamp('qkv', 'p0')
    A.label(Lpoll)
    mem_dma()
    self.budget()
    A(f'''s_waitcnt vmcnt(4)
    ds_read_b32 {v(vPr)}, {v(vProbe)}
    s_waitcnt lgkmcnt(0)
    v_cmp_eq_u32 vcc, -1, {v(vPr)}
    s_cbranch_vccnz {Lpoll}''')
    self.stamp('qkv', 'p1')
    A('s_barrier')
    self.stamp('qkv', 'b1')
    def rdA(tt):
        A(f'ds_read_b128 {v(Aop+4*tt,4)}, {v(vA0)} offset:{tt*1024}')
    def sm(accr, wb, tt):
        A(f'v_smfmac_f32_16x16x64_bf16 {v(accr,4)}, {v(Aop+4*tt,4)}, {a(wb+8*tt,8)}, {v(vIdx)}')
    PRE = 4
    for tt in range(PRE): rdA(tt)
    for tt in range(10):
        A(f's_waitcnt lgkmcnt({min(PRE - 1, 9 - tt)})')
        sm(accV, WV, tt)
        if tt + PRE < 10: rdA(tt + PRE)
        if tt == o.bpos: A(f'buffer_store_dword {v(vFl)}, {v(vBF)}, {s(WS,4)}, {s(sXB)} offen{ST}')
    A.label(Lgot + 'r')
    def halves(x): return [f'v_add_f32 {v(x)}, {v(x)}, {v(x+2)}', f'v_add_f32 {v(x+1)}, {v(x+1)}, {v(x+3)}']
    side = {
        2: halves(accV),
        3: [f'v_cvt_pk_bf16_f32 {v(vt)}, {v(accV)}, {v(accV+1)}', f'ds_write_b32 {v(vVtW)}, {v(vt)}'],
        4: [f'ds_read_b64_tr_b16 {v(vt,2)}, {v(vVtR)}', f'ds_read_b64_tr_b16 {v(vt+2,2)}, {v(vVtR)} offset:128'],
        5: [f'v_cmp_u_f32 vcc, {v(accV)}, {v(accV+1)}'],
        7: [f's_cbranch_vccnz {Lnan}', Lcont + ':'],
        o.vpos: ['s_waitcnt lgkmcnt(0)', f'buffer_store_dwordx4 {v(vt,4)}, {v(vVMst)}, {s(WS,4)}, {s(sCur)} offen{ST}'],
        14: halves(accQ),
        15: [f'v_cvt_pk_bf16_f32 {v(tq)}, {v(accQ)}, {v(accQ+1)}'],
    }
    n = 0
    for accr, wb in ((accQ, WQ), (accK, WK)):
        for tt in range(10):
            sm(accr, wb, tt)
            if n + 10 == o.bpos: A(f'buffer_store_dword {v(vFl)}, {v(vBF)}, {s(WS,4)}, {s(sXB)} offen{ST}')
            for x in side.get(n, []): A(x)
            if n == o.vpos: self.stamp('qkv', 'vm')
            n += 1
    Lw0, Lw3, Ljoin = A.uid('L_w0'), A.uid('L_w3'), A.uid('L_join')
    A(f'''v_pk_add_f32 {v(accK,2)}, {v(accK,2)}, {v(accK+2,2)}
    v_cvt_pk_bf16_f32 {v(tq+1)}, {v(accK)}, {v(accK+1)}
    ds_write_b64 {v(vTW)}, {v(tq,2)}
    s_cmp_eq_u32 {s(sW)}, 0
    s_cbranch_scc1 {Lw0}
    s_cmp_eq_u32 {s(sW)}, 3
    s_cbranch_scc1 {Lw3}''')
    def tphase(wave):
        A('s_waitcnt lgkmcnt(0)\ns_barrier')
        self.stamp('qkv', 'b2')
        for u in range(2):
            A(f'ds_read_b64_tr_b16 {v(Z+4*u,2)}, {v(vTR0)} offset:{u*1024}\nds_read_b64_tr_b16 {v(Z+4*u+2,2)}, {v(vTR1)} offset:{u*1024}')
        if wave == 3:
            A('s_waitcnt lgkmcnt(0)')
            xrd(0); xrd(1)
            A(f'''s_waitcnt lgkmcnt(0)
            buffer_store_dwordx4 {v(Z,4)}, {v(vKMst)}, {s(WS,4)}, {s(sKmOff)} offen{ST}
            buffer_store_dwordx4 {v(Z+4,4)}, {v(vKMst)}, {s(WS,4)}, {s(sKmOff)} offen offset:512{ST}''')
            self.stamp('qkv', 'sc')
        else:
            src = Z if wave == 0 else Kx
            A(f'''s_waitcnt lgkmcnt(2)
            v_mfma_f32_16x16x32_bf16 {v(S,4)}, {v(src,4)}, {v(Z,4)}, 0
            s_waitcnt lgkmcnt(0)
            v_mfma_f32_16x16x32_bf16 {v(S,4)}, {v(src+4,4)}, {v(Z+4,4)}, {v(S,4)}''')
            xrd(0); xrd(1)
            sc_store(S, sCur, wave)
            self.stamp('qkv', 'sc')
    tphase(1); A(f's_branch {Ljoin}')
    A.label(Lw0); tphase(0); A(f's_branch {Ljoin}')
    A.label(Lw3); tphase(3)
    A.label(Ljoin)
    Lskip = A.uid('L_skip')
    A(f's_cmp_eq_u32 {s(sS)}, {o.nsteps - 1}\ns_cbranch_scc1 {Lskip}')
    assert gemm(True, setup, True) == rest
    self.stamp('qkv', 'ge'); self.tr_flush('qkv')
    A(f's_branch {LP}')
    A.label(Lskip)
    A(f'''s_waitcnt vmcnt(0) lgkmcnt(0)
    buffer_store_dword {v(vFl)}, {v(vKF)}, {s(WS,4)}, {s(sXB)} offen{ST}''')
    self.stamp_out('qkv'); self.tl(7, True)
    A('s_endpgm')
    A.label(Lnan)
    A(f's_cmp_eq_u32 {s(sMark)}, 1\ns_cbranch_scc1 {Lcont}\nv_lshlrev_b32 v1, 4, v0')
    A.label(Lnan + 'r')
    A(f's_mov_b32 {s(sT0)}, {s(sCur)}\nv_mov_b32 v2, 0')
    for k in range(10):
        A(f'buffer_load_dwordx4 {v(Aop+4*k,4)}, v1, {s(WS,4)}, {s(sT0)} offen sc1\ns_add_u32 {s(sT0)}, {s(sT0)}, 1024')
    self.budget()
    A('s_waitcnt vmcnt(0) lgkmcnt(0)')
    for k in range(20): A(f'v_max3_u32 v2, v2, {v(Aop+2*k)}, {v(Aop+2*k+1)}')
    A(f'v_cmp_eq_u32 vcc, -1, v2\ns_cbranch_vccnz {Lnan}r\ns_mov_b32 {s(sMark)}, 1')
    zero_acc()
    for tt in range(10): sm(accV, WV, tt)
    A(f's_branch {Lgot}r')
```

```python
from asmlib import v, a, s
from gen import *

def wo(self):
    A = self.A; t = self.tag; ST = self.st; o = self.o
    LY = 0; YS = 24576; LPX = 98304; LE = 122880; ES = 1152; LRACE = LE + 8192
    r = RA(10, 248)
    (vIdxU, vIdxP, vL16, vL4, vPst0, vPl0, vPl1, vMst, vEW, vER, vYW, vYW2, vYR, vYR2, vYWs, vYW2s, vYRs, vYR2s,
     vPXR, vPXRs, vOst, vOl, vOut, vFlA, vFlT, vFlTs, vFlD, vH16, vHsc, vHscm, vHvx, vMx, vMy, vPk, vHvm, vPstL, vPclr, vYUs) = [r() for _ in range(38)]
    Y = r(32, 4); PA = r(4, 4); ONES = r(8, 4); SX = r(12, 4); SM = r(4, 2); SELB = r(6, 2); SELA = SELB + 2; vTfD = SM + 3; Dsum = r(4, 4); D = r(16, 4)
    VMo = r(12, 4); Yacc = r(16, 4); PB = r(8, 4); acc = r(8, 4); vM0 = PB; vN4 = PB + 4
    Pop = r(24, 4); Yop = r(16, 4); oacc = r(8, 4); fin = r(8, 4); ep = r(4, 2); Eop = PA; cc2 = r(2, 2); mm2 = r(2, 2); vTf = r(); vBFa = r()
    Uacc = Yacc
    WOr = 0; VXs = 96
    sJ, sPartOff, sPartClr, sCur, sNext, sVx0, sVx1, sVx2, sPxOff, sOst, sOst2, sOl, sOutRow, sPartClr3, sPxM0, sF0, sF1, sPartClr2 = range(40, 58); sLo8 = 58; sCl = 60; SEL2 = 144
    A.label(f'L_wo{t}')
    self.srd(R0, P_WO, 6144 * 640 * 2); self.srd(R1, P_M0, 8 * 640 * 2)
    A(f's_sub_u32 {s(sJ)}, {s(sR)}, 12')
    self.lanes()
    vWdma0, vWdma1, vWr = Pop, Pop + 1, Pop + 2
    A(f'''v_lshrrev_b32 v3, 3, v0
    v_and_b32 v4, 7, v0
    v_and_b32 v6, 2, v3
    v_xor_b32 v6, v6, v4
    v_lshlrev_b32 v6, 4, v6
    v_mul_u32_u24 v7, 1280, v3
    s_lshl_b32 {s(sT0)}, {s(sG)}, 2
    s_add_u32 {s(sT0)}, {s(sT0)}, {s(sW)}
    s_mul_i32 {s(sT0)}, {s(sT0)}, {192*1280}
    s_lshl_b32 {s(sT1)}, {s(sJ)}, 7
    s_add_u32 {s(sT0)}, {s(sT0)}, {s(sT1)}
    v_add3_u32 {v(vWdma0)}, v6, v7, {s(sT0)}
    v_xor_b32 {v(vWdma1)}, 64, {v(vWdma0)}''')
    A(f'''s_mul_i32 {s(sT0)}, {s(sJ)}, {PBLK}
    s_lshl_b32 {s(sT1)}, {s(sW)}, 11
    s_add_u32 {s(sT0)}, {s(sT0)}, {s(sT1)}
    s_lshr_b32 {s(sT1)}, {s(sW)}, 1
    s_mul_i32 {s(sT1)}, {s(sT1)}, {o.rot & 1}
    s_xor_b32 {s(sT1)}, {s(sT1)}, {s(sG)}      ; the source position varies so that a workgroup's writes spread over all channels
    v_mul_u32_u24 v7, {2*(o.rot & 1)}, v2
    v_xor_b32 v7, {s(sT1)}, v7
    v_lshlrev_b32 v6, 4, v1
    v_lshl_add_u32 v7, v7, 8, v6
    v_lshl_add_u32 v7, v2, 13, v7
    v_add_u32 {v(vPst0)}, {s(sT0)}, v7
    v_lshlrev_b32 {v(vL16)}, 4, v0
    v_lshlrev_b32 {v(vL4)}, 2, v0
    v_add_u32 {v(vPclr)}, {s(sT0)}, {v(vL4)}''')
    for k in range(4):
        A(f's_xor_b32 {s(sT2)}, {s(sT1)}, {2*k*(o.rot & 1)}\ns_lshl_b32 {s(sT2)}, {s(sT2)}, 8\ns_add_u32 {s(sCl+k)}, {s(sT2)}, {8192*k}')
    if o.ncopy < 4: self.oob_unless(vPst0, f'v_cmp_gt_u32 vcc, {o.ncopy}, v2')
    A(f'''s_lshl_b32 {s(sT2)}, {s(sJ)}, 7
    s_lshl_b32 {s(sT3)}, {s(sW)}, 2
    s_add_u32 {s(sT2)}, {s(sT2)}, {s(sT3)}
    s_add_u32 {s(sT2)}, {s(sT2)}, {TF}
    v_mov_b32 {v(vTf)}, {s(sT2)}''')
    self.oob_unless(vTf, 'v_cmp_eq_u32 vcc, 0, v0')
    A(f'''s_lshl_b32 {s(sT2)}, {s(sW)}, 7
    s_add_u32 {s(sT2)}, {s(sT2)}, {BF}
    v_min_u32 v3, 2, v0
    v_lshl_add_u32 {v(vBFa)}, v3, 2, {s(sT2)}''')
    A(f'''s_lshl_b32 {s(sT0)}, {s(sJ)}, 2
    s_add_u32 {s(sT0)}, {s(sT0)}, {s(sW)}     ; tile
    s_lshl_b32 {s(sT1)}, {s(sT0)}, 8
    v_add_u32 {v(vMst)}, {s(sT1)}, v6''')
    self.oob_unless(vMst, 'v_cmp_eq_u32 vcc, 0, v2')
    A(f'''v_lshrrev_b32 v3, 2, v1
    v_and_b32 v7, 1, v1
    v_lshl_or_b32 v4, v3, 1, v7                ; row
    v_mul_u32_u24 v4, 1280, v4
    v_and_b32 v5, 2, v1
    v_lshl_add_u32 v4, v5, 1, v4
    s_lshl_b32 {s(sT1)}, {s(sT0)}, 5
    v_add_u32 v4, {s(sT1)}, v4
    v_lshlrev_b32 v6, 6, v3
    v_lshl_add_u32 v6, v7, 5, v6
    v_lshl_add_u32 v6, v2, 3, v6
    v_lshl_add_u32 v6, v5, 1, v6               ; Q*64 + j*32 + g*8 + kh*4
    s_mul_i32 {s(sT2)}, {s(sW)}, {ES}
    s_add_u32 {s(sT2)}, {s(sT2)}, {LE}
    v_add_u32 {v(vEW)}, {s(sT2)}, v6''')
    for q in range(4):
        A(f'buffer_load_dword {v(vM0+q)}, v4, {s(R1,4)}, 0 offen offset:{8*q}')
    for q in range(4): A(f'v_mov_b32 {v(vN4+q)}, -1')
    A(f's_mul_i32 {s(sT0)}, {s(sW)}, {YS}\ns_mov_b32 m0, {s(sT0)}\ns_mov_b32 {s(sT1)}, 0')
    for k in range(24):
        A(f'buffer_load_dwordx4 {v(vWdma1 if k & 1 else vWdma0)}, {s(R0,4)}, {s(sT1)} offen lds')
        if k < 23: A(f's_add_u32 m0, m0, 1024\ns_add_u32 {s(sT1)}, {s(sT1)}, {8*1280}')
    A('s_waitcnt vmcnt(24)')
    for q in range(4): A(f'v_min_u32 {v(vM0+q)}, -2, {v(vM0+q)}')
    A(f'''v_and_b32 v7, 2, v1
    v_cmp_ne_u32 vcc, 0, v7                    ; half
    v_mov_b32 v5, 0x4444
    v_mov_b32 v6, 0xeeee
    v_cndmask_b32 {v(vIdxU)}, v5, v6, vcc
    v_mov_b32 v5, 0xe484
    v_mov_b32 v6, 0xee9e
    v_cndmask_b32 v7, v5, v6, vcc
    v_mov_b32 v5, 0x84e4
    v_mov_b32 v6, 0x9eee
    v_cndmask_b32 v8, v5, v6, vcc
    v_cmp_gt_u32 vcc, 2, v2
    v_cndmask_b32 {v(vIdxP)}, v8, v7, vcc''')
    for i in range(8): A(f'v_mov_b32 {v(ONES+i)}, {0 if i in (3,7) else 0x3f803f80}')
    for ct in range(4): A(f'v_mov_b32 {v(Y+8*ct+3)}, 0\nv_mov_b32 {v(Y+8*ct+7)}, 0')
    for hb in range(2): A(f'v_mov_b32 {v(Yop+8*hb+6)}, 0\nv_mov_b32 {v(Yop+8*hb+7)}, 0')
    self.sel_consts(SELB)
    A(f'''v_mov_b32 {v(cc2)}, {f32(CSM)}
    v_mov_b32 {v(cc2+1)}, {f32(CSM)}
    s_lshl_b32 {s(sT0)}, {s(sW)}, 8
    s_add_u32 {s(sT0)}, {s(sT0)}, {LE}
    v_mul_u32_u24 v6, {ES}, v2
    v_lshl_add_u32 v6, v1, 3, v6
    v_add_u32 {v(vER)}, {s(sT0)}, v6
    s_mul_i32 {s(sT0)}, {s(sW)}, 1536
    v_add_u32 {v(vYW)}, {s(sT0)}, {v(vL16)}
    s_add_u32 {s(sT0)}, {s(sT0)}, 1024
    v_lshl_add_u32 {v(vYW2)}, v0, 3, {s(sT0)}
    s_mul_i32 {s(sT0)}, {s(sW)}, 6144
    v_add_u32 {v(vYR)}, {s(sT0)}, {v(vL16)}
    s_add_u32 {s(sT0)}, {s(sT0)}, 1024
    v_lshl_add_u32 {v(vYR2)}, v0, 3, {s(sT0)}
    v_add_u32 {v(vPXR)}, {LPX}, {v(vL16)}
    s_mul_i32 {s(sT0)}, {s(sW)}, 3072
    v_add_u32 {v(vH16)}, {s(sT0)}, {v(vL16)}
    v_add_u32 {v(vHvm)}, {VM}, {v(vH16)}
    s_add_u32 {s(sPxM0)}, {s(sT0)}, {LPX}
    s_mul_i32 {s(sT0)}, {s(sW)}, 3840
    s_add_u32 {s(sT0)}, {s(sT0)}, {SC}
    v_add_u32 {v(vHsc)}, {s(sT0)}, {v(vL16)}
    s_add_u32 {s(sT0)}, {s(sT0)}, 1024
    v_add_u32 {v(vHscm)}, {s(sT0)}, {v(vL4)}
    s_mul_i32 {s(sT0)}, {s(sW)}, 12288
    v_add_u32 {v(vHvx)}, {s(sT0)}, {v(vL16)}
    s_lshl_b32 {s(sT0)}, {s(sJ)}, 15
    s_lshl_b32 {s(sT2)}, {s(sW)}, 10
    s_add_u32 {s(sT0)}, {s(sT0)}, {s(sT2)}
    v_lshrrev_b32 v5, 3, v0
    v_mul_u32_u24 v5, {o.rot >> 1}, v5
    v_xor_b32 v5, {s(sG)}, v5
    v_and_b32 v6, 7, v1
    v_lshlrev_b32 v6, 4, v6
    v_lshl_add_u32 v6, v5, 7, v6
    v_lshrrev_b32 v7, 3, v1
    v_lshl_add_u32 v6, v7, 12, v6
    v_lshrrev_b32 v5, 1, v2
    v_lshl_add_u32 v6, v5, 13, v6
    v_and_b32 v5, 1, v2
    v_lshl_add_u32 v6, v5, 14, v6
    v_add_u32 {v(vOst)}, {s(sT0)}, v6
    s_and_b32 {s(sT1)}, {s(sG)}, 1
    s_lshl_b32 {s(sT1)}, {s(sT1)}, 12
    s_add_u32 {s(sT0)}, {s(sT0)}, {s(sT1)}
    s_lshr_b32 {s(sT1)}, {s(sG)}, 2
    s_lshl_b32 {s(sT1)}, {s(sT1)}, 13
    s_add_u32 {s(sT0)}, {s(sT0)}, {s(sT1)}
    s_and_b32 {s(sT1)}, {s(sG)}, 2
    s_lshl_b32 {s(sT1)}, {s(sT1)}, 13
    s_add_u32 {s(sT0)}, {s(sT0)}, {s(sT1)}
    v_add_u32 {v(vOl)}, {s(sT0)}, {v(vL16)}
    s_lshr_b32 {s(sT1)}, {s(sG)}, 1
    s_mul_i32 {s(sT1)}, {s(sT1)}, {4*2560}
    s_lshl_b32 {s(sT2)}, {s(sJ)}, 7
    s_add_u32 {s(sT1)}, {s(sT1)}, {s(sT2)}
    s_lshl_b32 {s(sT2)}, {s(sW)}, 5
    s_add_u32 {s(sT1)}, {s(sT1)}, {s(sT2)}
    s_and_b32 {s(sT2)}, {s(sG)}, 1
    s_lshl_b32 {s(sT2)}, {s(sT2)}, 4
    s_add_u32 {s(sT1)}, {s(sT1)}, {s(sT2)}
    s_add_u32 {s(sT1)}, {s(sT1)}, 1280
    v_lshl_add_u32 v6, v7, 4, v2
    v_mul_u32_u24 v6, 2560, v6
    v_and_b32 v5, 7, v1
    v_lshl_add_u32 v6, v5, 1, v6
    v_add_u32 {v(vOut)}, {s(sT1)}, v6
    v_cmp_gt_u32 {s(sLo8,2)}, 8, v1
    v_and_b32 v5, 1, v1
    v_lshrrev_b32 v6, 3, v1
    v_lshl_add_u32 v5, v5, 1, v6
    v_bfe_u32 v6, v1, 2, 1
    v_cmp_ne_u32 vcc, 0, v6
    v_mov_b32 v6, 0x3f80
    v_mov_b32 v7, 0x3f800000
    v_cndmask_b32 v6, v6, v7, vcc''')
    for i in range(4): A(f'v_cmp_eq_u32 vcc, {i}, v5\nv_cndmask_b32 v7, 0, v6, vcc\nv_accvgpr_write_b32 {a(SEL2+i)}, v7')
    A(f'''s_lshl_b32 {s(sT0)}, {s(sW)}, 7
    v_add_u32 v5, {s(sT0)}, {v(vL4)}
    v_add_u32 v6, {XF}, v5
    v_add_u32 v7, {PF - 48}, v5
    v_cmp_gt_u32 vcc, 12, v0
    v_cndmask_b32 {v(vFlA)}, v7, v6, vcc
    v_mov_b32 v5, -2
    v_cndmask_b32 {v(vFlT)}, v5, 3, vcc''')
    self.oob_unless(vFlA, 'v_cmp_gt_u32 vcc, 14, v0')
    A(f'v_mov_b32 v5, -1000\nv_cndmask_b32 {v(vFlT)}, v5, {v(vFlT)}, vcc')
    A(f'''v_and_b32 v4, 3, v1
    v_and_b32 v5, 1, v2
    v_lshl_add_u32 v6, v2, 3, v3
    v_lshlrev_b32 v6, 7, v6
    v_and_b32 v7, 2, v3
    v_lshl_or_b32 v7, v5, 2, v7
    v_lshrrev_b32 v8, 1, v4
    v_xor_b32 v7, v7, v8
    v_lshl_add_u32 v6, v7, 4, v6
    v_and_b32 v7, 1, v4
    v_lshl_add_u32 v6, v7, 3, v6
    s_mul_i32 {s(sT0)}, {s(sW)}, {YS}
    v_add_u32 v6, {s(sT0)}, v6''')
    for ct in range(4): A(f'v_xor_b32 {v(vWr+ct)}, {32*ct}, v6')
    A('s_waitcnt vmcnt(0)')
    for ct in range(4):
        for ks in range(6):
            for eh in range(2):
                A(f'ds_read_b64_tr_b16 {a(WOr + 24*ct + 4*ks + 2*eh, 2)}, {v(vWr+ct)} offset:{ks*4096 + eh*512}')
    A('s_waitcnt lgkmcnt(0)\ns_barrier')
    self.tl(8)
    self.tl(2)
    self.gwait()
    self.tl(3)
    A(f'buffer_store_dwordx4 {v(vM0,4)}, {v(vMst)}, {s(WS,4)}, {s(sXB)} offen{ST}')

    def flag_issue():
        A(f'buffer_load_dword {v(vFlD)}, {v(vFlA)}, {s(WS,4)}, {s(sXB)} offen sc1')
    def flag_wait(cnt):
        Lw, Lok = A.uid('L_fw'), A.uid('L_fok')
        if cnt is not None: A(f's_waitcnt vmcnt({cnt})')
        A(f'v_cmp_lt_i32 vcc, {v(vFlD)}, {v(vFlTs)}\ns_cbranch_vccz {Lok}')
        A.label(Lw); flag_issue(); self.budget()
        A(f's_waitcnt vmcnt(0)\nv_cmp_lt_i32 vcc, {v(vFlD)}, {v(vFlTs)}\ns_cbranch_vccnz {Lw}')
        A.label(Lok)
    def vx_loads(k0=0, k1=12):
        for k in range(k0, k1):
            A(f'buffer_load_dwordx4 {a(VXs+4*k,4)}, {v(vHvx)}, {s(WS,4)}, {s((sVx0, sVx1, sVx2)[k//4])} offen offset:{(k%4)*1024} sc1')
    def px_dma():
        for k in range(3):
            A(f'buffer_load_dwordx4 {v(vH16)}, {s(WS,4)}, {s(sPxOff)} offen offset:{k*1024} sc1 lds')
    def yx(hook=None):
        ya = lambda ct: (Yacc + 8*ct) if ct < 2 else (Pop + 8*(ct - 2))
        n = 0
        for ks in range(6):
            for ct in range(4):
                for rt in range(2):
                    d = v(ya(ct) + 4*rt, 4)
                    A(f'v_mfma_f32_16x16x32_bf16 {d}, {a(VXs + 24*rt + 4*ks, 4)}, {a(WOr + 24*ct + 4*ks, 4)}, {d if ks else 0}')
                    n += 1
                    if hook: hook(n)
        post = []
        for ct in (2, 3, 0, 1):
            b = ya(ct); y = Y + 8*ct
            post += [f'v_cvt_pk_bf16_f32 {v(y)}, {v(b)}, {v(b+1)}', f'v_cvt_pk_bf16_f32 {v(y+1)}, {v(b+2)}, {v(b+3)}',
                     f'ds_write_b64 {v(vYWs)}, {v(y,2)} offset:{ct*6144}',
                     f'v_cvt_pk_bf16_f32 {v(y+4)}, {v(b+4)}, {v(b+5)}', f'v_cvt_pk_bf16_f32 {v(y+5)}, {v(b+6)}, {v(b+7)}',
                     f'ds_write_b64 {v(vYW2s)}, {v(y+4,2)} offset:{ct*6144}']
        return post
    def out_store():
        A(f'buffer_store_dwordx4 {v(oacc,4)}, {v(vOst)}, {s(WS,4)}, {s(sOst)} offen sc1')
    opack = [f'v_cvt_pk_bf16_f32 {v(oacc+q)}, {v(oacc+2*q)}, {v(oacc+2*q+1)}' for q in range(4)]
    def outpart(hook=None):
        def rd(h):
            pb = Pop + 12*(h & 1); yb = Yop + 8*(h & 1)
            A(f'ds_read_b128 {v(yb,4)}, {v(vYRs)} offset:{h*1536}')
            for k in range(2): A(f'ds_read_b128 {v(pb+4*k,4)}, {v(vPXRs)} offset:{h*3072 + k*1024}')
            A(f'ds_read_b64 {v(yb+4,2)}, {v(vYR2s)} offset:{h*1536}')
            A(f'ds_read_b128 {v(pb+8,4)}, {v(vPXRs)} offset:{h*3072 + 2048}')
        rd(0); rd(1)
        for h in range(4):
            pb = Pop + 12*(h & 1); yb = Yop + 8*(h & 1)
            if hook: hook(h)
            A(f's_waitcnt lgkmcnt({5 if h < 3 else 0})')
            A(f'''v_mfma_f32_16x16x32_bf16 {v(oacc,4)}, {v(pb,4)}, {v(yb,4)}, {v(oacc,4) if h else 0}
            v_mfma_f32_16x16x32_bf16 {v(oacc+4,4)}, {v(pb+4,4)}, {v(yb,4)}, {v(oacc+4,4) if h else 0}
            v_mfma_f32_16x16x32_bf16 {v(oacc+4,4)}, {v(pb+8,4)}, {v(yb+4,4)}, {v(oacc+4,4)}''')
            if h + 2 < 4: rd(h + 2)
    def L(txt): return [x.strip() for x in txt.split('\n') if x.strip()]
    def set_outpart(d):
        return L(f'''s_add_u32 {s(sF1)}, {s(sS)}, {d}
        s_and_b32 {s(sF0)}, {s(sF1)}, 3
        s_mul_i32 {s(sF0)}, {s(sF0)}, {YS}
        v_add_u32 {v(vYRs)}, {s(sF0)}, {v(vYR)}
        v_add_u32 {v(vYR2s)}, {s(sF0)}, {v(vYR2)}
        s_and_b32 {s(sF0)}, {s(sF1)}, 1
        s_mul_i32 {s(sF0)}, {s(sF0)}, 12288
        v_add_u32 {v(vPXRs)}, {s(sF0)}, {v(vPXR)}''')
    def set_ost(d):
        return L(f'''s_add_u32 {s(sF1)}, {s(sS)}, {d}
        s_and_b32 {s(sF0)}, {s(sF1)}, 3
        s_mul_i32 {s(sF0)}, {s(sF0)}, {OUTP_SLOT}
        s_add_u32 {s(sOst)}, {s(sF0)}, {OUTP}''')
    def set_px(d, xf=False):
        return L(f'''s_add_u32 {s(sF1)}, {s(sS)}, {d}
        s_and_b32 {s(sF0)}, {s(sF1)}, 7
        s_mul_i32 {s(sF0)}, {s(sF0)}, {S8}
        s_add_u32 {s(sF0)}, {s(sF0)}, {S8B + PXB}
        s_add_u32 {s(sPxOff)}, {s(sXB)}, {s(sF0)}
        s_and_b32 {s(sF0)}, {s(sF1)}, 1
        s_add_u32 m0, {s(sF0)}, 12
        s_add_u32 {s(sF1)}, {s(sF1)}, 1
        {f'v_add_u32 {v(vFlTs)}, {s(sS)}, {v(vFlT)}' if xf else f'v_mov_b32 {v(vFlTs)}, -16'}
        v_writelane_b32 {v(vFlTs)}, {s(sF1)}, m0
        s_mul_i32 {s(sF0)}, {s(sF0)}, 12288
        s_add_u32 m0, {s(sPxM0)}, {s(sF0)}''')
    def set_fin(d):
        return L(f'''s_add_u32 {s(sF1)}, {s(sS)}, {d}
        s_and_b32 {s(sF0)}, {s(sF1)}, 3
        s_mul_i32 {s(sF0)}, {s(sF0)}, {OUTP_SLOT}
        s_add_u32 {s(sOl)}, {s(sF0)}, {OUTP}
        s_mul_i32 {s(sOutRow)}, {s(sF1)}, {32*2560}''')
    def fin_issue(dst=None):
        A(f'buffer_load_dwordx4 {v(fin if dst is None else dst,4)}, {v(vOl)}, {s(WS,4)}, {s(sOl)} offen sc1')
    def fin_done(src=None, row=None):
        f = fin + 4
        A(f'''v_mfma_f32_16x16x32_bf16 {v(f,4)}, {a(SEL2,4)}, {v(fin if src is None else src,4)}, 0
        v_cndmask_b32 {v(f+2)}, {v(f)}, {v(f+1)}, {s(sLo8,2)}
        v_cndmask_b32 {v(f+3)}, {v(f+1)}, {v(f)}, {s(sLo8,2)}
        v_add_f32_dpp {v(f+3)}, {v(f+2)}, {v(f+3)} row_ror:8 row_mask:0xf bank_mask:0xf
        v_cvt_pk_bf16_f32 {v(f+3)}, {v(f+3)}, {v(f+3)}
        buffer_store_short {v(f+3)}, {v(vOut)}, {s(OUT,4)}, {s(sOutRow if row is None else row)} offen''')
    assert PART == 0
    nxtA = L(f'''s_add_u32 {s(sF1)}, {s(sS)}, 1
    v_mov_b32 {v(vYUs)}, {v(vYWs)}
    s_and_b32 {s(sF0)}, {s(sF1)}, 3
    s_mul_i32 {s(sPartOff)}, {s(sF0)}, {PART_SLOT}
    s_mul_i32 {s(sF1)}, {s(sF0)}, {S4}
    s_add_u32 {s(sCur)}, {s(sXB)}, {s(sF1)}
    s_xor_b32 {s(sF0)}, {s(sF0)}, 2
    s_mul_i32 {s(sPartClr)}, {s(sF0)}, {PART_SLOT}
    s_add_u32 {s(sF1)}, {s(sS)}, 2
    v_mov_b32 {v(vTfD)}, {s(sF1)}
    s_and_b32 {s(sF0)}, {s(sF1)}, 3
    s_mul_i32 {s(sNext)}, {s(sF0)}, {YS}
    s_mov_b32 {s(sOst2)}, {s(sOutRow)}''') + set_ost(-2) + set_fin(-4) + set_outpart(-1)
    nxtB = L(f'''s_add_u32 {s(sS)}, {s(sS)}, 1
    v_add_u32 {v(vYWs)}, {s(sNext)}, {v(vYW)}
    v_add_u32 {v(vYW2s)}, {s(sNext)}, {v(vYW2)}''')
    nxt2 = L(f'''s_add_u32 {s(sF1)}, {s(sS)}, 2
    s_and_b32 {s(sF0)}, {s(sF1)}, 7
    s_mul_i32 {s(sF0)}, {s(sF0)}, {S8}
    s_add_u32 {s(sF0)}, {s(sF0)}, {S8B + VX}
    s_add_u32 {s(sVx0)}, {s(sXB)}, {s(sF0)}
    s_add_u32 {s(sVx1)}, {s(sVx0)}, 4096
    s_add_u32 {s(sVx2)}, {s(sVx0)}, 8192''') + set_px(-1, True)
    nxtB += [f'v_pk_mul_f32 {v(x,2)}, {v(Yop+6,2)}, {v(Yop+6,2)}' for x in range(Uacc, Uacc+16, 2)]

    A(f'''s_mov_b32 {s(sS)}, -1
    v_add_u32 {v(vFlTs)}, -2, {v(vFlT)}
    s_add_u32 {s(sVx0)}, {s(sXB)}, {S8B + VX}
    s_add_u32 {s(sVx1)}, {s(sVx0)}, 4096
    s_add_u32 {s(sVx2)}, {s(sVx0)}, 8192
    v_mov_b32 {v(vYWs)}, {v(vYW)}
    v_mov_b32 {v(vYW2s)}, {v(vYW2)}''')
    flag_issue(); flag_wait(0); vx_loads(); A('s_waitcnt vmcnt(0)')
    for x in yx() + nxt2: A(x)
    flag_issue(); flag_wait(0); vx_loads()
    for x in nxtA + nxtB: A(x)
    for x in list(range(D, D+16)) + list(range(Dsum, Dsum+4)): A(f'v_mov_b32 {v(x)}, 0')
    Lp0 = A.uid('L_p0')
    A(f'v_mov_b32 v3, {self.GO + (12 if self.slow else 8)}')
    A.label(Lp0)
    A(f'buffer_load_dword v4, v3, {s(DBG,4)}, 0 offen sc1')
    self.budget()
    A(f'''s_waitcnt vmcnt(0)
    v_readfirstlane_b32 {s(sT0)}, v4
    s_cmp_eq_u32 {s(sT0)}, 0
    s_cbranch_scc1 {Lp0}
    s_and_b32 {s(sT0)}, {s(sT0)}, 2
    s_lshl_b32 {s(sT0)}, {s(sT0)}, 12
    s_xor_b32 {s(sT0)}, {s(sT0)}, {8192*o.oflip}
    v_xor_b32 {v(vOst)}, {s(sT0)}, {v(vOst)}
    v_xor_b32 {v(vOl)}, {s(sT0)}, {v(vOl)}''')

    self.tl(4)

    LP = f'L_wo_loop{t}'
    A.label(LP)
    Lb, Lv, Lu = A.uid('L_bf'), A.uid('L_vm'), A.uid('L_u')
    bfl = f'buffer_load_dword {v(vMx)}, {v(vBFa)}, {s(WS,4)}, {s(sXB)} offen sc1'
    for _ in range(3): A(bfl)
    if o.tr or 'dr' in o.stamp: A('s_waitcnt vmcnt(2)'); self.stamp('wo', 'dr')
    A.label(Lb)
    A(bfl); self.budget()
    A(f's_waitcnt vmcnt(3)\nv_cmp_ge_u32 vcc, {s(sS)}, {v(vMx)}\ns_cbranch_vccnz {Lb}')
    def vm_loads():
        for k in range(3):
            A(f'buffer_load_dwordx4 {v(VMo+4*k,4)}, {v(vHvm)}, {s(WS,4)}, {s(sCur)} offen offset:{k*1024} sc1')
    vm_loads()
    self.stamp('wo', 'bf')
    scl = []
    for p in range(3):
        scl.append(f'buffer_load_dwordx4 {v(SX+4*p,4)}, {v(vHsc)}, {s(WS,4)}, {s(sCur)} offen offset:{p*1280} sc1')
        scl.append(f'buffer_load_dword {v(SM+p)}, {v(vHscm)}, {s(WS,4)}, {s(sCur)} offen offset:{p*1280} sc1')
    def sc_loads():
        for x in scl: A(x)
    usm = [f'v_smfmac_f32_16x16x64_bf16 {v(Uacc+4*ct,4)}, {v(VMo+4*tt,4)}, {a(WOr+24*ct+8*tt,8)}, {v(vIdxU)}' for tt in range(3) for ct in range(4)]
    upost = []
    for ct in range(4):
        u = Uacc + 4*ct
        upost += [f'v_pk_add_f32 {v(u,2)}, {v(u,2)}, {v(u+2,2)}'] + ([f'v_cmp_u_f32 vcc, {v(u)}, {v(u+1)}'] if ct == 0 else [])
        upost += [f'v_cvt_pk_bf16_f32 {v(Y+8*ct+2)}, {v(u)}, {v(u+1)}', f'v_cvt_pk_bf16_f32 {v(Y+8*ct+6)}, {v(u)}, {v(u+1)}']
    uw = [f'ds_write_b32 {v(vYUs)}, {v(Y+8*ct+2)} offset:{ct*6144 + 8}' for ct in range(4)]
    seq = usm + upost
    pend = list(scl)
    for n, x in enumerate(seq):
        if n in (0, 4, 8): A(f's_waitcnt vmcnt({2 - n//4})')
        if n == 8: self.stamp('wo', 'vm')
        if n >= o.spos:
            for _ in range(2):
                if pend: A(pend.pop(0))
        A(x)
    for x in pend: A(x)
    A(f's_cbranch_vccnz {Lv}')
    A.label(Lu)
    def cold_vm():
        self.count(1, 'wo')
        vm_loads(); self.budget()
        A(f's_waitcnt vmcnt(0)\nv_max_u32 v4, {v(VMo)}, {v(VMo+1)}')
        for i in range(1, 6): A(f'v_max3_u32 v4, v4, {v(VMo+2*i)}, {v(VMo+2*i+1)}')
        A(f'v_cmp_eq_u32 vcc, -1, v4\ns_cbranch_vccnz {Lv}')
        sc_loads()
        for i in range(16): A(f'v_mov_b32 {v(Uacc+i)}, 0')
        for x in seq: A(x)
        A(f's_branch {Lu}')
    self.cold.append((Lv, cold_vm))
    for x in uw: A(x)
    self.stamp('wo', 'u')
    Ltail = f'L_wo_tail{t}'
    A(f's_cmp_eq_u32 {s(sS)}, {o.nsteps-1}\ns_cbranch_scc1 {Ltail}')
    Lsc, Lsp, Lsg = A.uid('L_sc'), A.uid('L_sp'), A.uid('L_sg')
    s0 = ep
    A.label(Lsc)
    A(f'''s_waitcnt vmcnt(2)
    v_pk_add_f32 {v(s0,2)}, {v(SX,2)}, {v(SX+4,2)}
    v_pk_add_f32 {v(s0+2,2)}, {v(SX+2,2)}, {v(SX+6,2)}
    v_add_f32 {v(vPk)}, {v(SM)}, {v(SM+1)}
    s_waitcnt vmcnt(0)
    v_pk_add_f32 {v(s0,2)}, {v(s0,2)}, {v(SX+8,2)}
    v_pk_add_f32 {v(s0+2,2)}, {v(s0+2,2)}, {v(SX+10,2)}
    v_add_f32 {v(vPk)}, {v(vPk)}, {v(SM+2)}
    v_max3_f32 {v(vMx)}, {v(s0)}, {v(s0+1)}, {v(s0+2)}
    v_max3_f32 {v(vMx)}, {v(vMx)}, {v(s0+3)}, {v(vPk)}
    v_pk_add_f32 {v(mm2,2)}, {v(s0,2)}, {v(s0+2,2)}
    v_add_f32 {v(mm2)}, {v(mm2)}, {v(vPk)}
    v_max_f32_dpp {v(vMy)}, {v(vMx)}, {v(vMx)} quad_perm:[2,3,0,1] row_mask:0xf bank_mask:0xf
    v_max_f32_dpp {v(vMx)}, {v(vMx)}, {v(vMx)} quad_perm:[2,3,0,1] row_mask:0xf bank_mask:0xf
    v_cmp_u_f32 vcc, {v(mm2)}, {v(mm2+1)}
    v_permlane16_swap_b32 {v(vMx)}, {v(vMy)}
    v_max_f32 {v(vMx)}, {v(vMx)}, {v(vMy)}
    v_mov_b32 {v(vMy)}, {v(vMx)}
    s_cbranch_vccnz {Lsp}''')
    A.label(Lsg)
    self.stamp('wo', 'sc')
    tflag = f'buffer_store_dword {v(vTfD)}, {v(vTf)}, {s(WS,4)}, {s(sXB)} offen{ST}'
    if o.tpos == 'sc': A(tflag)
    A(f'''v_permlane32_swap_b32 {v(vMx)}, {v(vMy)}
    v_max_f32 {v(vMx)}, {v(vMx)}, {v(vMy)}
    v_mul_f32 {v(mm2)}, {f32(-CSM)}, {v(vMx)}
    v_pk_fma_f32 {v(s0,2)}, {v(s0,2)}, {v(cc2,2)}, {v(mm2,2)} op_sel_hi:[1,1,0]
    v_pk_fma_f32 {v(s0+2,2)}, {v(s0+2,2)}, {v(cc2,2)}, {v(mm2,2)} op_sel_hi:[1,1,0]
    v_fma_f32 {v(vPk)}, {v(vPk)}, {v(cc2)}, {v(mm2)}
    v_exp_f32 {v(s0)}, {v(s0)}
    v_exp_f32 {v(s0+1)}, {v(s0+1)}
    v_exp_f32 {v(s0+2)}, {v(s0+2)}
    v_exp_f32 {v(s0+3)}, {v(s0+3)}
    v_exp_f32 {v(vPk)}, {v(vPk)}
    v_cvt_pk_bf16_f32 {v(PA)}, {v(s0)}, {v(s0+1)}
    v_cvt_pk_bf16_f32 {v(PA+2)}, {v(s0+2)}, {v(s0+3)}
    v_cvt_pk_bf16_f32 {v(PA+1)}, {v(vPk)}, 0
    v_cvt_pk_bf16_f32 {v(PA+3)}, {v(vPk)}, 0
    v_smfmac_f32_16x16x64_bf16 {v(Dsum,4)}, {v(PA,4)}, {v(ONES,8)}, {v(vIdxP)}''')
    for ct in range(4):
        A(f'v_smfmac_f32_16x16x64_bf16 {v(D+4*ct,4)}, {v(PA,4)}, {v(Y+8*ct,8)}, {v(vIdxP)}')
        if ct == 2: A(f'v_add_f32 {v(Dsum)}, {v(Dsum)}, {v(Dsum+2)}\nv_add_f32 {v(Dsum+1)}, {v(Dsum+1)}, {v(Dsum+3)}')
    if o.tpos == 'm': A(tflag)
    A(f'''v_rcp_f32 {v(Dsum)}, {v(Dsum)}
    v_rcp_f32 {v(Dsum+1)}, {v(Dsum+1)}''')
    for ct in range(4):
        A(f'v_pk_add_f32 {v(D+4*ct,2)}, {v(D+4*ct,2)}, {v(D+4*ct+2,2)}')
        A(f'v_pk_mul_f32 {v(D+4*ct,2)}, {v(D+4*ct,2)}, {v(Dsum,2)}')
        A(f'v_cvt_pk_bf16_f32 {v(ep+ct)}, {v(D+4*ct)}, {v(D+4*ct+1)}')
        if ct & 1: A(f'ds_write2st64_b32 {v(vEW)}, {v(ep+ct-1)}, {v(ep+ct)} offset0:{ct-1} offset1:{ct}')
    self.stamp('wo', 'e')
    if o.tpos == 'e': A(tflag)
    if o.flpos == 'e': flag_issue()
    zr = [f'v_mov_b32 {v(x)}, 0' for x in list(range(D, D+16)) + list(range(Dsum, Dsum+4))]
    for x in zr[:10]: A(x)
    A(f'''s_waitcnt lgkmcnt(0)
    s_barrier
    ds_read_b64_tr_b16 {v(Eop,2)}, {v(vER)}
    ds_read_b64_tr_b16 {v(Eop+2,2)}, {v(vER)} offset:128''')
    if o.tpos == 'b': A(tflag)
    for x in zr[10:]: A(x)
    A(f'''s_waitcnt lgkmcnt(0)
    v_mfma_f32_16x16x32_bf16 {v(acc,4)}, {v(SELA,4)}, {v(Eop,4)}, 0
    v_mfma_f32_16x16x32_bf16 {v(acc+4,4)}, {v(SELB,4)}, {v(Eop,4)}, 0''')
    def pack(src):
        for q in range(4): A(f'v_cvt_pk_bf16_f32 {v(ep+q)}, {v(src+2*q)}, {v(src+2*q+1)}')
    if o.tpos == 'r': A(tflag)
    if o.flpos == 'r': flag_issue()
    pack(acc)
    A(f'buffer_store_dwordx4 {v(ep,4)}, {v(vPst0)}, {s(WS,4)}, {s(sPartOff)} offen sc1')
    if o.tpos == 'pp': A(tflag)
    self.stamp('wo', 'pp')
    def cold_sc():
        A(f'v_max3_u32 v4, {v(SM)}, {v(SM+1)}, {v(SM+2)}')
        for i in range(6): A(f'v_max3_u32 v4, v4, {v(SX+2*i)}, {v(SX+2*i+1)}')
        A(f'v_cmp_eq_u32 vcc, -1, v4\ns_cbranch_vccz {Lsg}')
        sc_loads(); self.budget(); self.count(1000, 'wo'); A(f's_branch {Lsc}')
    self.cold.append((Lsp, cold_sc))
    b = o.slowpos
    def clr(k):
        return lambda: A(f's_add_u32 {s(sF0)}, {s(sPartClr)}, {s(sCl+k)}\nbuffer_store_dword {v(vN4)}, {v(vPclr)}, {s(WS,4)}, {s(sF0)} offen sc1')
    ncl = o.ncopy
    slow = ([] if o.x & 2 else [out_store, fin_issue]) + [clr(k) for k in range(ncl)]
    ny = 1 + len(slow) + (1 if o.tpos == 'pp' or (o.tpos in 'rb' and o.flpos == 'e') else 0)
    def ohook(h):
        if h == 0:
            for f in slow: f()
        if h == 1:
            for x in nxt2: A(x)
    outpart(ohook)
    flag_wait(ny)
    if not o.x & 1: px_dma()
    for x in opack: A(x)
    self.stamp('wo', 'op')
    fl = list(nxtA)
    lq = [0, 6, 1, 7, 2, 8, 3, 9, 4, 10, 5, 11]
    st = {'i': 0, 'last': 0}
    L1 = A.uid('L_g')
    def yhook(n):
        if st['i'] < 12 and n >= 8 * (st['i'] // 2 + 1) and n >= o.vx0 and n - st['last'] >= 2:
            if not o.x & 1: vx_loads(lq[st['i']], lq[st['i']] + 1)
            st['i'] += 1; st['last'] = n
            return
        for _ in range(2):
            if fl: A(fl.pop(0))
    post = yx(yhook)
    if not o.x & 1:
        for k in lq[st['i']:]: vx_loads(k, k + 1)
    A(f's_cmp_lt_u32 {s(sS)}, 5\ns_cbranch_scc1 {L1}\ns_waitcnt vmcnt({ncl + (0 if o.x & 1 else 15)})')
    fin_done(None, sOst2)
    A.label(L1)
    self.stamp('wo', 'yx')
    for x in fl + post + nxtB: A(x)
    self.stamp('wo', 'g1'); self.tr_flush('wo')
    A(f's_branch {LP}')
    A.label(Ltail)
    self.tl(5)
    out_store()
    def fin_poll(slot, dst):
        Lc = A.uid('L_fp'); A(f's_mov_b32 {s(sOl)}, {OUTP + slot*OUTP_SLOT}'); A.label(Lc)
        fin_issue(dst); self.budget()
        A(f'''s_waitcnt vmcnt(0)
        v_max3_u32 {v(vMx)}, {v(dst)}, {v(dst+1)}, {v(dst+2)}
        v_max_u32 {v(vMx)}, {v(vMx)}, {v(dst+3)}
        v_cmp_eq_u32 vcc, -1, {v(vMx)}
        s_cbranch_vccnz {Lc}''')
    n = o.nsteps
    for d in (-2, -1, 0):
        A('s_waitcnt vmcnt(0) lgkmcnt(0)\ns_barrier')
        if d == -2:
            for x in set_px(-1): A(x)
            flag_issue()
        for x in set_outpart(d): A(x)
        A(f's_mov_b32 {s(sOst)}, {OUTP + (6 + d)*OUTP_SLOT}')
        outpart()
        for x in opack: A(x)
        out_store()
        if d == -2: flag_wait(1); px_dma()
        if d == -1:
            fin_poll(5, D)
            for k, dd in enumerate((-5, -4, -3, -2)):
                slot = (n - 1 + dd) & 3 if dd < -2 else 4
                A(f's_mov_b32 {s(sOl)}, {OUTP + slot*OUTP_SLOT}'); fin_issue(Yacc + 4*k)
            A(f's_mov_b32 {s(sOutRow)}, {(n-2)*32*2560}'); fin_done(D)
            A('s_waitcnt vmcnt(1)')
            for k, dd in enumerate((-5, -4, -3, -2)):
                A(f's_mov_b32 {s(sOutRow)}, {(n-1+dd)*32*2560}'); fin_done(Yacc + 4*k)
            for x in set_px(0): A(x)
            flag_issue(); flag_wait(0); px_dma()
            self.tl(6)
    fin_poll(6, D)
    A(f's_mov_b32 {s(sOutRow)}, {(n-1)*32*2560}'); fin_done(D)
    self.stamp_out('wo'); self.tl(7, True)
    A('s_endpgm')
```

```python
from asmlib import v, a, s
from gen import *

def px(self):
    A = self.A; t = self.tag; ST = self.st; o = self.o
    r = RA(10, 248)
    vHx, vHk, vH16, vXFa, vKFa, vPFa, vFlD, vFl, vMx, vMy, vSum, vBig, vXp = [r() for _ in range(13)]
    Q = r(48, 4); K = r(48, 4); KMo = r(24, 4); S = r(20, 4); P = r(12, 4)
    sRho, sXOff, sKmOff, sPxOff, sC = range(40, 45); sMask = 48
    A.label(f'L_px{t}')
    A(f's_sub_u32 {s(sRho)}, {s(sR)}, 22')
    self.lanes()
    A(f'''s_mul_i32 {s(sT0)}, {s(sW)}, 12288
    v_lshl_add_u32 {v(vHx)}, v0, 4, {s(sT0)}
    s_mul_i32 {s(sT0)}, {s(sW)}, 3072
    v_lshl_add_u32 {v(vH16)}, v0, 4, {s(sT0)}
    v_lshrrev_b32 v3, 2, v1
    v_lshlrev_b32 v3, 1, v3
    v_and_b32 v4, 1, v1
    v_or_b32 v3, v3, v4
    v_lshl_add_u32 v3, v2, 3, v3
    v_lshl_add_u32 {v(vHk)}, v3, 4, {s(sT0)}
    s_lshl_b32 {s(sT0)}, {s(sW)}, 7
    v_min_u32 v3, 11, v0
    v_lshl_add_u32 v3, v3, 2, {s(sT0)}
    v_add_u32 {v(vXFa)}, {XF}, v3
    v_min_u32 v3, 2, v0
    v_lshl_add_u32 v3, v3, 2, {s(sT0)}
    v_add_u32 {v(vKFa)}, {KF}, v3
    s_lshl_b32 {s(sT1)}, {s(sRho)}, 2
    s_add_u32 {s(sT0)}, {s(sT0)}, {s(sT1)}
    s_add_u32 {s(sT0)}, {s(sT0)}, {PF}
    v_mov_b32 {v(vPFa)}, {s(sT0)}''')
    self.oob_unless(vPFa, 'v_cmp_eq_u32 vcc, 0, v0')
    A(f'''s_nop 0
    v_mov_b32 {v(vBig)}, {f32(-1e9 * 192 ** 0.5)}
    s_mov_b32 {s(sC)}, {f32(CSM)}''')
    for i in range(4):
        A(f'v_lshl_add_u32 v3, v2, 2, {i}\nv_cmp_le_u32 {s(sMask+2*i,2)}, v3, v1')
    for i in (3, 7, 10, 11): A(f'v_mov_b32 {v(P+i)}, 0')
    A('s_waitcnt vmcnt(0)\ns_barrier')
    self.srd(R3, P_BX, 2048 * 640 * 2)
    A(f's_mul_i32 {s(sT0)}, {s(sW)}, 10240\nv_lshl_add_u32 {v(vXp)}, v0, 4, {s(sT0)}\ns_mov_b32 {s(sS)}, {s(sRho)}')
    def xpre(d):
        A(f's_add_u32 {s(sT0)}, {s(sS)}, {d}\ns_min_u32 {s(sT0)}, {s(sT0)}, 63\ns_mul_i32 {s(sT0)}, {s(sT0)}, 40960')
        for k in range(10):
            if k in (4, 8): A(f's_add_u32 {s(sT0)}, {s(sT0)}, 4096')
            A(f'buffer_load_dwordx4 v[248:251], {v(vXp)}, {s(R3,4)}, {s(sT0)} offen offset:{(k%4)*1024}')
    Lx, Lg = A.uid('L_xp'), A.uid('L_xg')
    A(f's_cmp_eq_u32 {s(sRho)}, 1\ns_cbranch_scc1 {Lx}')
    self.gwait()
    A(f's_cmp_lg_u32 {s(sW)}, 0\ns_cbranch_scc1 {Lg}')
    if o.par < 0:
        Lq = A.uid('L_pr')
        A(f'''s_lshl_b32 {s(sT2)}, {s(sG)}, 14
        s_add_u32 {s(sT2)}, {s(sT2)}, {PROBE}
        s_add_u32 {s(sT3)}, {s(sT2)}, 8192
        v_lshlrev_b32 v3, 4, v0''')
        for k in range(4):
            A(f'''buffer_store_dwordx4 {v(Q,4)}, v3, {s(WS,4)}, {s(sT2)} offen offset:{1024*k} sc1
            buffer_store_dwordx4 {v(Q,4)}, v3, {s(WS,4)}, {s(sT3)} offen offset:{1024*k} sc1''')
        A(f'''v_mov_b32 v3, 0
        s_mov_b32 s56, -1
        s_mov_b32 s57, -1
        s_mov_b32 s62, 0
        s_mov_b32 s63, 0
        s_waitcnt vmcnt(0)''')
        A.label(Lq)
        for k in range(2):
            A(f'''s_memtime s[58:59]
            s_waitcnt lgkmcnt(0)
            buffer_load_dword v4, v3, {s(WS,4)}, {s((sT2, sT3)[k])} offen sc1
            s_waitcnt vmcnt(0)
            s_memtime s[60:61]
            s_waitcnt lgkmcnt(0)
            s_sub_u32 s60, s60, s58
            s_min_u32 s{56+k}, s{56+k}, s60''')
        A(f'''buffer_load_dword v4, {v(vXFa)}, {s(WS,4)}, {s(sXB)} offen sc1
        v_add_u32 v3, 128, v3
        s_add_u32 s62, s62, 1
        s_waitcnt vmcnt(0)
        v_cmp_eq_u32 vcc, 0, v4
        s_cmp_eq_u64 vcc, 0
        s_addc_u32 s63, s63, 0
        s_cmp_ge_u32 s63, {o.nq}
        s_cselect_b32 s62, 32, s62
        s_cmp_lt_u32 s62, 32
        s_cbranch_scc1 {Lq}
        s_cmp_lt_u32 s57, s56
        s_cselect_b32 s62, 2, 1''')
    else:
        A(f's_lshr_b32 s62, {s(sXCC)}, 2\ns_xor_b32 s62, s62, {o.par}\ns_and_b32 s62, s62, 1\ns_add_u32 s62, s62, 1')
    A.label(Lg)
    A(f's_barrier\ns_branch {Lg}x')
    A.label(Lx)
    A(f's_or_b32 {s(sT0)}, {s(sG)}, {s(sW)}\ns_cbranch_scc1 {Lx}c')
    self.coordinate()
    A.label(Lx + 'c')
    A('s_barrier')
    for d in (1, 2, 3, 4, 5, 6): xpre(d)
    A.label(Lg + 'x')
    self.gwait()
    A(f'''s_or_b32 {s(sT0)}, {s(sRho)}, {s(sW)}
    s_cbranch_scc1 {Lg}y
    v_mov_b32 v3, {PARF}
    v_mov_b32 v4, s62
    buffer_store_dword v4, v3, {s(WS,4)}, {s(sXB)} offen{ST}
    s_cmp_lg_u32 {s(sG)}, 0
    s_cbranch_scc1 {Lg}y
    v_mov_b32 v3, {self.GO + (12 if self.slow else 8)}
    buffer_store_dword v4, v3, {s(DBG,4)}, 0 offen sc1''')
    A.label(Lg + 'y')
    def wait_flag(addr):
        L = A.uid('L_pf'); A.label(L)
        A(f'buffer_load_dword {v(vFlD)}, {v(addr)}, {s(WS,4)}, {s(sXB)} offen sc1')
        self.budget()
        A(f's_waitcnt vmcnt(0)\nv_cmp_ge_u32 vcc, {s(sS)}, {v(vFlD)}\ns_cbranch_vccnz {L}')
    LP = f'L_px_loop{t}'; A.label(LP)
    A(f'''s_and_b32 {s(sT0)}, {s(sS)}, 7
    s_mul_i32 {s(sT1)}, {s(sT0)}, {S8}
    s_add_u32 {s(sT1)}, {s(sT1)}, {S8B}
    s_add_u32 {s(sXOff)}, {s(sXB)}, {s(sT1)}
    s_and_b32 {s(sT0)}, {s(sS)}, 3
    s_mul_i32 {s(sT1)}, {s(sT0)}, {S4}
    s_add_u32 {s(sT1)}, {s(sT1)}, {s(sXB)}
    s_add_u32 {s(sKmOff)}, {s(sT1)}, {KM}
    s_add_u32 {s(sPxOff)}, {s(sT1)}, {PXB}
    s_add_u32 {s(sT0)}, {s(sS)}, 1
    v_mov_b32 {v(vFl)}, {s(sT0)}''')
    if o.x & 32:
        A(f'v_mov_b32 {v(vFl)}, 99\nbuffer_store_dword {v(vFl)}, {v(vPFa)}, {s(WS,4)}, {s(sXB)} offen\ns_endpgm')
    xpre(8)
    wait_flag(vXFa)
    for reg, off in ((Q, QX), (K, KX)):
        for k in range(12):
            if k % 4 == 0: A(f's_add_u32 {s(sT0)}, {s(sXOff)}, {off + k*1024}')
            A(f'buffer_load_dwordx4 {v(reg+4*k,4)}, {v(vHx)}, {s(WS,4)}, {s(sT0)} offen offset:{(k%4)*1024} sc1')
    A('s_waitcnt vmcnt(0)')
    for ks in range(6):
        for d, kt, rt in ((0, 0, 0), (8, 0, 1), (12, 1, 1)):
            A(f'v_mfma_f32_16x16x32_bf16 {v(S+d,4)}, {v(K+24*kt+4*ks,4)}, {v(Q+24*rt+4*ks,4)}, {v(S+d,4) if ks else 0}')
    for d in (0, 12):
        for i in range(4):
            A(f'v_cndmask_b32 {v(S+d+i)}, {v(vBig)}, {v(S+d+i)}, {s(sMask+2*i,2)}')
    wait_flag(vKFa)
    for k in range(6):
        A(f'buffer_load_dwordx4 {v(KMo+4*k,4)}, {v(vHk)}, {s(WS,4)}, {s(sKmOff)} offen offset:{k*512} sc1')
    for ks in range(6):
        A(f's_waitcnt vmcnt({5-ks})')
        for d, rt in ((4, 0), (16, 1)):
            A(f'v_mfma_f32_16x16x32_bf16 {v(S+d,4)}, {v(KMo+4*ks,4)}, {v(Q+24*rt+4*ks,4)}, {v(S+d,4) if ks else 0}')
    def allred(op, x, y):
        A(f'''v_mov_b32 {v(y)}, {v(x)}
        v_permlane16_swap_b32 {v(x)}, {v(y)}
        {op} {v(x)}, {v(x)}, {v(y)}
        v_mov_b32 {v(y)}, {v(x)}
        v_permlane32_swap_b32 {v(x)}, {v(y)}
        {op} {v(x)}, {v(x)}, {v(y)}''')
    for regs, outs in (([0,1,2,3,4,5], [0,1,2]), ([8,9,10,11,16,17,12,13,14,15], [4,5,6,8,9])):
        R = [S + x for x in regs]
        A(f'v_max_f32 {v(vMx)}, {v(R[0])}, {v(R[1])}')
        for i in range(2, len(R), 2): A(f'v_max3_f32 {v(vMx)}, {v(vMx)}, {v(R[i])}, {v(R[i+1])}')
        allred('v_max_f32', vMx, vMy)
        A(f'v_mul_f32 {v(vMx)}, {f32(-CSM)}, {v(vMx)}')
        for x in R: A(f'v_fma_f32 {v(x)}, {v(x)}, {s(sC)}, {v(vMx)}')
        for x in R: A(f'v_exp_f32 {v(x)}, {v(x)}')
        A(f'v_add_f32 {v(vSum)}, {v(R[0])}, {v(R[1])}')
        for x in R[2:]: A(f'v_add_f32 {v(vSum)}, {v(vSum)}, {v(x)}')
        allred('v_add_f32', vSum, vMy)
        A(f'v_rcp_f32 {v(vSum)}, {v(vSum)}')
        for x in R: A(f'v_mul_f32 {v(x)}, {v(x)}, {v(vSum)}')
        for i, oo in enumerate(outs): A(f'v_cvt_pk_bf16_f32 {v(P+oo)}, {v(R[2*i])}, {v(R[2*i+1])}')
    for k in range(3):
        A(f'buffer_store_dwordx4 {v(P+4*k,4)}, {v(vH16)}, {s(WS,4)}, {s(sPxOff)} offen offset:{k*1024}{ST}')
    A(f'''s_waitcnt vmcnt(0)
    buffer_store_dword {v(vFl)}, {v(vPFa)}, {s(WS,4)}, {s(sXB)} offen{ST}
    s_add_u32 {s(sS)}, {s(sS)}, 2
    s_cmp_lt_u32 {s(sS)}, {o.nsteps}
    s_cbranch_scc1 {LP}
    s_endpgm''')
```

```python
from asmlib import v, a, s
from gen import *

def qkv(self):
    A = self.A; t = self.tag; ST = self.st; o = self.o
    LX0, LX1, LS2, LMISC = 0, 40960, 81920, 122880
    LMEM = LMISC; LT = LMEM + 10240; LVT = LT + 2048; LKX = LVT + 1024
    r = RA(10, 248)
    vXdma, vXb0, vXb1, vMd4, vMd1, vProbe, vA0, vA1, vIdx, vVtW, vVtR, vVMst, vTW, vTR0, vTR1 = [r() for _ in range(15)]
    vSCst, vKMst, vKxW, vKxR, vXst, vXF, vKF, vFl, vPr, vKxWs, vKxRs = [r() for _ in range(11)]
    vNeg = r(4, 4); Aop = r(40, 4); acc = r(12, 4); Z = r(8, 4); Kx = r(8, 4); S = r(4, 4); vt = r(4, 4)
    xf = r(24, 4); xacc = r(24, 4); pk = r(12, 4); tq = r(4, 2)
    PB = r(16, 4); racc = r(8, 4); rp = r(4, 4); SELB = r(6, 2); SELA = SELB + 2
    vPl0, vPl1, vTrig, vTrD, vMst, vMclr, vFlB, vMx, vMy, vPl2, vPl3, vBF, vVclr, vSclr = [r() for _ in range(14)]
    accV, accQ, accK = acc, acc + 4, acc + 8
    sHl, sP, sCur, sPrev, sKmOff, sXOff, sXSeg, sXbuf, sMm0, sDelta, sX1, sX2, sF0, sF1, sMark, sPart = range(40, 56)
    WQ, WK, WV = 0, 80, 160
    A.label(f'L_qkv{t}')
    self.srd(R0, P_WQ, 640 * 6144 * 2); self.srd(R1, P_WK, 640 * 6144 * 2); self.srd(R2, P_WV, 640 * 6144 * 2)
    self.srd(R3, P_BX, 2048 * 640 * 2)
    A(f'''s_mul_i32 {s(sHl)}, {s(sR)}, 86
    s_lshr_b32 {s(sHl)}, {s(sHl)}, 8
    s_mul_i32 {s(sT0)}, {s(sHl)}, 3
    s_sub_u32 {s(sP)}, {s(sR)}, {s(sT0)}''')
    self.lanes()
    vWdma = pk; vWr = pk + 1
    A(f'''v_lshrrev_b32 v3, 3, v0              ; r8
    v_and_b32 v4, 7, v0                        ; pp
    s_lshl_b32 {s(sT0)}, {s(sW)}, 3
    v_add_u32 v5, {s(sT0)}, v3
    s_and_b32 {s(sT1)}, {s(sW)}, 1
    s_lshl_b32 {s(sT1)}, {s(sT1)}, 2
    v_and_b32 v6, 2, v3
    v_or_b32 v6, {s(sT1)}, v6
    v_xor_b32 v6, v6, v4
    v_lshlrev_b32 v6, 4, v6
    v_mul_u32_u24 v7, 12288, v5
    s_lshl_b32 {s(sT2)}, {s(sG)}, 2
    s_add_u32 {s(sT2)}, {s(sT2)}, {s(sHl)}
    s_mul_i32 {s(sT2)}, {s(sT2)}, 384
    s_lshl_b32 {s(sT3)}, {s(sP)}, 7
    s_add_u32 {s(sT2)}, {s(sT2)}, {s(sT3)}
    v_add3_u32 {v(vWdma)}, v6, v7, {s(sT2)}
    v_lshrrev_b32 v6, 1, v3
    v_or_b32 v6, {s(sT1)}, v6
    v_xor_b32 v6, v6, v4
    v_lshlrev_b32 v6, 4, v6
    v_mul_u32_u24 v7, 1280, v5
    v_add_u32 {v(vXdma)}, v6, v7''')
    def xdma_begin(buf_s_or_imm):
        A(f's_lshl_b32 {s(sT0)}, {s(sW)}, 10\ns_add_u32 m0, {s(sT0)}, {buf_s_or_imm}')
    def xdma(ln):
        A(f'buffer_load_dwordx4 {v(vXdma)}, {s(R3,4)}, {s(sXSeg)} offen offset:{ln*128} lds')
        if ln < 9: A('s_add_u32 m0, m0, 3968')
    stages = [(WV, R2, 0), (WV, R2, 1), (WK, R1, 0), (WK, R1, 1), (WQ, R0, 0), (WQ, R0, 1)]
    bufs = [LX1, LS2, LMISC]
    def wdma(i):
        _, srd, half = stages[i]
        A(f's_lshl_b32 {s(sT0)}, {s(sW)}, 10\ns_add_u32 m0, {s(sT0)}, {bufs[i%3]}\ns_mov_b32 {s(sT1)}, {half*320*12288}')
        for k in range(10):
            A(f'buffer_load_dwordx4 {v(vWdma)}, {s(srd,4)}, {s(sT1)} offen{" nt" if o.nt & 2 else ""} lds')
            if k < 9: A(f's_add_u32 m0, m0, 4096\ns_add_u32 {s(sT1)}, {s(sT1)}, {32*12288}')
    self.tl(4)
    wdma(0); wdma(1); wdma(2)
    A(f's_mov_b32 {s(sXSeg)}, 0'); xdma_begin(LX0)
    for ln in range(10): xdma(ln)
    self.tl(5)
    A(f'''s_mul_i32 {s(sT0)}, {s(sHl)}, 3072
    s_lshl_b32 {s(sT1)}, {s(sP)}, 10
    s_add_u32 {s(sT0)}, {s(sT0)}, {s(sT1)}
    s_lshl_b32 {s(sT1)}, {s(sW)}, 8
    s_add_u32 {s(sT1)}, {s(sT1)}, {s(sT0)}
    s_add_u32 {s(sT1)}, {s(sT1)}, {VM}
    v_lshl_add_u32 {v(vVclr)}, v0, 2, {s(sT1)}
    v_lshl_add_u32 {v(vVMst)}, v1, 4, {s(sT1)}''')
    self.oob_unless(vVMst, 'v_cmp_eq_u32 vcc, 0, v2')
    A(f'''v_lshrrev_b32 v3, 2, v1
    v_lshlrev_b32 v3, 1, v3
    v_and_b32 v4, 1, v1
    v_or_b32 v3, v3, v4
    v_lshl_add_u32 v3, v2, 3, v3
    v_lshl_add_u32 {v(vKMst)}, v3, 4, {s(sT0)}
    v_and_b32 v4, 2, v1''')
    self.oob_unless(vKMst, 'v_cmp_ne_u32 vcc, 0, v4')
    A(f'''s_mul_i32 {s(sT0)}, {s(sHl)}, 3840
    s_mul_i32 {s(sT1)}, {s(sP)}, 1280
    s_add_u32 {s(sT0)}, {s(sT0)}, {s(sT1)}
    s_add_u32 {s(sT0)}, {s(sT0)}, {SC}
    v_lshrrev_b32 v3, 1, v2                    ; G
    v_and_b32 v5, 1, v2                        ; half
    v_lshlrev_b32 v6, 1, v5
    v_or_b32 v7, v6, v3                        ; bitswap(g)
    v_lshl_add_u32 v7, v7, 4, v1
    v_lshlrev_b32 v7, 2, v7
    v_add_u32 v7, 1024, v7
    v_or_b32 v6, v6, v1
    v_lshl_add_u32 v6, v3, 4, v6
    v_lshlrev_b32 v6, 4, v6
    s_sub_u32 {s(sT1)}, {s(sW)}, 1
    s_lshl_b32 {s(sT1)}, {s(sT1)}, 9
    v_add_u32 v6, {s(sT1)}, v6
    s_cmp_eq_u32 {s(sW)}, 0
    s_cselect_b64 vcc, -1, 0
    v_cndmask_b32 v6, v6, v7, vcc
    v_add_u32 {v(vSCst)}, {s(sT0)}, v6
    s_lshl_b32 {s(sT1)}, {s(sW)}, 8
    s_add_u32 {s(sT1)}, {s(sT1)}, {s(sT0)}
    v_lshl_add_u32 {v(vSclr)}, v0, 2, {s(sT1)}''')
    self.oob_unless(vSCst, 'v_cmp_eq_u32 vcc, 0, v4')
    A(f'''s_and_b32 {s(sT0)}, {s(sW)}, 1
    s_lshl_b32 {s(sT0)}, {s(sT0)}, 9
    s_lshr_b32 {s(sT1)}, {s(sW)}, 1
    s_lshl_b32 {s(sT1)}, {s(sT1)}, 10
    s_add_u32 {s(sT0)}, {s(sT0)}, {s(sT1)}
    v_lshlrev_b32 v6, 4, v1
    v_lshl_add_u32 v6, v3, 8, v6
    v_add_u32 v6, {s(sT0)}, v6
    v_lshl_add_u32 {v(vKxW)}, v5, 11, v6
    v_add_u32 {v(vKxW)}, {LKX}, {v(vKxW)}
    s_mul_i32 {s(sT0)}, {s(sHl)}, 12288
    s_lshl_b32 {s(sT1)}, {s(sP)}, 11
    s_add_u32 {s(sT0)}, {s(sT0)}, {s(sT1)}
    v_mul_u32_u24 v7, 6144, v5
    v_add3_u32 {v(vXst)}, v6, v7, {s(sT0)}''')
    A(f'''v_and_b32 v6, 9, v1
    v_and_b32 v7, 2, v1
    v_lshl_or_b32 v6, v7, 1, v6
    v_and_b32 v7, 4, v1
    v_lshrrev_b32 v7, 1, v7
    v_or_b32 v6, v6, v7
    v_lshlrev_b32 v6, 4, v6
    v_lshl_add_u32 v6, v2, 8, v6
    s_cmp_eq_u32 {s(sW)}, 2
    s_cselect_b32 {s(sT0)}, 2048, 0
    s_add_u32 {s(sT0)}, {s(sT0)}, {LKX}
    v_add_u32 {v(vKxR)}, {s(sT0)}, v6''')
    A(f'''s_lshl_b32 {s(sT0)}, {s(sHl)}, 7
    s_lshl_b32 {s(sT1)}, {s(sP)}, 2
    s_add_u32 {s(sT2)}, {s(sT1)}, {s(sW)}
    s_lshl_b32 {s(sT2)}, {s(sT2)}, 2
    s_add_u32 {s(sT2)}, {s(sT2)}, {s(sT0)}
    s_add_u32 {s(sT2)}, {s(sT2)}, {XF}
    v_mov_b32 {v(vXF)}, {s(sT2)}
    s_add_u32 {s(sT1)}, {s(sT1)}, {s(sT0)}
    s_add_u32 {s(sT1)}, {s(sT1)}, {KF}
    s_cmp_eq_u32 {s(sW)}, 3
    s_cselect_b32 {s(sT1)}, {s(sT1)}, {OOB}
    v_mov_b32 {v(vKF)}, {s(sT1)}''')
    self.oob_unless(vXF, 'v_cmp_eq_u32 vcc, 0, v0')
    A(f'''v_cndmask_b32 {v(vFlB)}, 1, 3, vcc
    v_cmp_eq_u32 vcc, 1, v0
    v_add_u32 {v(vBF)}, {BF - KF}, {v(vKF)}
    v_cndmask_b32 {v(vBF)}, v9, {v(vBF)}, vcc
    v_cndmask_b32 {v(vKF)}, {v(vXF)}, {v(vKF)}, vcc''')
    for i in range(4): A(f'v_mov_b32 {v(vNeg+i)}, -1')
    A(f'''s_mul_i32 {s(sT0)}, {s(sR)}, {PBLK}
    s_lshl_b32 {s(sT1)}, {s(sW)}, 11
    s_add_u32 {s(sT0)}, {s(sT0)}, {s(sT1)}
    s_lshl_b32 {s(sT2)}, {s(sR)}, 10
    s_lshl_b32 {s(sT1)}, {s(sW)}, 8
    s_add_u32 {s(sT2)}, {s(sT2)}, {s(sT1)}
    s_cmp_lt_u32 {s(sR)}, 10
    s_cselect_b32 {s(sT0)}, {s(sT0)}, {OOB}
    s_cselect_b32 {s(sT2)}, {s(sT2)}, {OOB}
    v_lshl_add_u32 {v(vPl0)}, v0, 4, {s(sT0)}
    v_add_u32 {v(vPl1)}, 1024, {v(vPl0)}
    s_min_u32 {s(sT0)}, {s(sR)}, 9
    s_lshl_b32 {s(sT0)}, {s(sT0)}, 7
    s_add_u32 {s(sT0)}, {s(sT0)}, {TF}
    v_and_b32 v3, {0 if o.tone else 3}, v0
    v_lshl_add_u32 {v(vTrig)}, v3, 2, {s(sT0)}
    v_lshl_add_u32 {v(vMclr)}, v0, 2, {s(sT2)}
    v_lshl_add_u32 {v(vMst)}, v1, 4, {s(sT2)}''')
    self.oob_unless(vMst, 'v_cmp_eq_u32 vcc, 0, v2')
    self.sel_consts(SELB)
    def sc_store(data4, soff, wave):
        if wave == 0:
            A(f'buffer_store_dword {v(data4+2)}, {v(vSCst)}, {s(WS,4)}, {s(soff)} offen{ST}')
            A(f'buffer_store_dword {v(data4+3)}, {v(vSCst)}, {s(WS,4)}, {s(soff)} offen offset:8{ST}')
        elif wave in (1, 2):
            A(f'buffer_store_dwordx4 {v(data4,4)}, {v(vSCst)}, {s(WS,4)}, {s(soff)} offen{ST}')
    A(f'''v_lshrrev_b32 v3, 2, v1              ; r = c>>2
    v_and_b32 v4, 3, v1                        ; cc
    v_and_b32 v5, 1, v2                        ; g&1
    v_lshl_add_u32 v6, v2, 3, v3
    v_lshlrev_b32 v6, 7, v6                    ; (8g+r)*128
    v_and_b32 v7, 2, v3
    v_lshl_or_b32 v7, v5, 2, v7                ; f
    v_lshrrev_b32 v8, 1, v4
    s_lshl_b32 {s(sT0)}, {s(sW)}, 1
    v_or_b32 v8, {s(sT0)}, v8
    v_xor_b32 v7, v7, v8
    v_lshl_add_u32 v6, v7, 4, v6
    v_and_b32 v7, 1, v4
    v_lshl_add_u32 v6, v7, 3, v6''')
    for i in range(3): A(f'v_add_u32 {v(vWr+i)}, {bufs[i]}, v6')
    for eh, reg in ((0, vTR0), (1, vTR1)):
        A(f'''v_xor_b32 v6, {eh}, v5
        v_lshl_add_u32 v6, v6, 2, v3
        v_lshl_add_u32 v6, v2, 3, v6
        v_lshlrev_b32 v6, 5, v6
        v_lshl_or_b32 v7, v5, 1, {eh}
        v_xor_b32 v7, v7, v4
        v_lshl_add_u32 v6, v7, 3, v6
        v_add_u32 {v(reg)}, {LT}, v6''')
    A(f'''v_lshrrev_b32 v6, 3, v1
    v_lshlrev_b32 v6, 2, v6
    v_xor_b32 v6, v6, v1
    v_lshlrev_b32 v6, 5, v6
    v_xor_b32 v7, v2, v3
    v_lshl_add_u32 v6, v7, 3, v6
    s_lshl_b32 {s(sT0)}, {s(sW)}, 9
    s_add_u32 {s(sT0)}, {s(sT0)}, {LT}
    v_add_u32 {v(vTW)}, {s(sT0)}, v6''')
    A(f'''v_lshlrev_b32 v6, 6, v3
    v_and_b32 v7, 1, v1
    v_lshl_add_u32 v6, v7, 5, v6
    v_lshl_add_u32 v6, v2, 3, v6
    v_and_b32 v7, 2, v1
    v_lshl_add_u32 v6, v7, 1, v6
    s_lshl_b32 {s(sT0)}, {s(sW)}, 8
    s_add_u32 {s(sT0)}, {s(sT0)}, {LVT}
    v_add_u32 {v(vVtW)}, {s(sT0)}, v6
    v_lshl_add_u32 {v(vVtR)}, v1, 3, {s(sT0)}
    v_cmp_ne_u32 vcc, 0, v7
    v_mov_b32 v6, 0x4444
    v_mov_b32 v8, 0xeeee
    v_cndmask_b32 {v(vIdx)}, v6, v8, vcc''')
    A(f'''v_lshlrev_b32 v6, 4, v0
    v_add_u32 {v(vA0)}, {LMEM}, v6
    s_mul_i32 {s(sT0)}, {s(sW)}, 2560
    v_lshl_add_u32 {v(vMd4)}, v0, 4, {s(sT0)}
    v_lshl_add_u32 {v(vMd1)}, v0, 2, {s(sT0)}
    s_add_u32 {s(sMm0)}, {s(sT0)}, {LMEM}
    v_mul_u32_u24 v6, {0 if o.noprobe else 40}, v0
    v_add_u32 {v(vProbe)}, {s(sMm0)}, v6''')
    A(f'''v_lshrrev_b32 v6, 3, v1
    v_lshlrev_b32 v6, 10, v6
    v_and_b32 v7, 7, v1
    v_lshl_add_u32 v6, v7, 7, v6
    v_lshrrev_b32 v7, 1, v1
    v_xor_b32 v7, v7, v2
    v_lshl_add_u32 {v(vXb0)}, v7, 4, v6
    v_xor_b32 {v(vXb1)}, 64, {v(vXb0)}''')
    waits = [30, 30, 30, 20, 20, 10]
    self.tl(6)
    for i in range(6):
        base, _, half = stages[i]
        A(f's_waitcnt vmcnt({waits[i]})\ns_barrier')
        for ks in range(10):
            for eh in range(2):
                A(f'ds_read_b64_tr_b16 {a(base + 4*(half*10+ks) + 2*eh, 2)}, {v(vWr + i%3)} offset:{ks*4096 + eh*512}')
        A('s_waitcnt lgkmcnt(0)\ns_barrier')
        if i < 3: wdma(i + 3)
        if i == 3:
            A(f's_mov_b32 {s(sXSeg)}, 40960'); xdma_begin(LX1)
            for ln in range(10): xdma(ln)
        self.tl(8 + i)

    XD = 3
    def xrd1(ks, rt):
        A(f'ds_read_b128 {v(xf + 8*(ks%XD) + 4*rt, 4)}, {v(vXb1 if ks & 1 else vXb0)} offset:{(ks>>1)*4096 + rt*2048}')
    def xrd(ks):
        for rt in range(2): xrd1(ks, rt)
    xst = [f'buffer_store_dwordx4 {v(pk+4*m,4)}, {v(vXst)}, {s(WS,4)}, {s((sX2, sX1, sXOff)[m])} offen{ST}' for m in range(3)]
    def xstores():
        for x in xst: A(x)
    def mem_dma():
        A(f'''buffer_load_dwordx4 {v(vMd4)}, {s(WS,4)}, {s(sCur)} offen sc1 lds
        buffer_load_dwordx4 {v(vMd4)}, {s(WS,4)}, {s(sCur)} offen offset:1024 sc1 lds
        buffer_load_dword {v(vMd1)}, {s(WS,4)}, {s(sCur)} offen offset:2048 sc1 lds
        buffer_load_dword {v(vMd1)}, {s(WS,4)}, {s(sCur)} offen offset:2304 sc1 lds''')
    def trig_load():
        A(f'buffer_load_dword {v(vTrD)}, {v(vTrig)}, {s(WS,4)}, {s(sXB)} offen sc1')
    def part_loads(cp, dst):
        A(f'''buffer_load_dwordx4 {v(PB+8*dst,4)}, {v((vPl0, vPl2)[cp])}, {s(WS,4)}, {s(sPart)} offen sc1
        buffer_load_dwordx4 {v(PB+8*dst+4,4)}, {v((vPl1, vPl3)[cp])}, {s(WS,4)}, {s(sPart)} offen sc1''')
    def red_fetch():
        Lw, Lok = A.uid('L_tw'), A.uid('L_tok')
        self.stamp('qkv', 't0')
        A(f's_waitcnt vmcnt(0)\nv_cmp_gt_u32 vcc, {s(sS)}, {v(vTrD)}\ns_cbranch_vccnz {Lw}')
        A.label(Lok)
        A('s_barrier')
        part_loads(0, 0)
        self.stamp('qkv', 't1')
        def cold():
            trig_load(); trig_load(); A.label(Lw + 'a'); trig_load(); self.budget()
            A(f's_waitcnt vmcnt(2)\nv_cmp_gt_u32 vcc, {s(sS)}, {v(vTrD)}\ns_cbranch_vccz {Lok}\ns_branch {Lw}a')
        self.cold.append((Lw, cold))
    def red_try(b, younger, Lfail):
        A(f'''s_waitcnt vmcnt({younger+1})
        v_mfma_f32_16x16x32_bf16 {v(racc,4)}, {v(SELA,4)}, {v(b,4)}, 0
        v_mfma_f32_16x16x32_bf16 {v(racc+4,4)}, {v(SELB,4)}, {v(b,4)}, 0
        v_max3_u32 {v(vMx)}, {v(b)}, {v(b+1)}, {v(b+2)}
        s_waitcnt vmcnt({younger})
        v_mfma_f32_16x16x32_bf16 {v(racc,4)}, {v(SELA,4)}, {v(b+4,4)}, {v(racc,4)}
        v_max3_u32 {v(vMy)}, {v(b+3)}, {v(b+4)}, {v(b+5)}
        v_max3_u32 {v(vMx)}, {v(vMx)}, {v(b+6)}, {v(b+7)}
        v_mfma_f32_16x16x32_bf16 {v(racc+4,4)}, {v(SELB,4)}, {v(b+4,4)}, {v(racc+4,4)}
        v_max_u32 {v(vMx)}, {v(vMx)}, {v(vMy)}
        v_cmp_eq_u32 vcc, -1, {v(vMx)}''')
        for q in range(4):
            A(f'v_cvt_pk_bf16_f32 {v(rp+q)}, {v(racc+2*q)}, {v(racc+2*q+1)}')
            if q == 1: A(f's_cbranch_vccnz {Lfail}')
        A(f'buffer_store_dwordx4 {v(rp,4)}, {v(vMst)}, {s(WS,4)}, {s(sCur)} offen{ST}')
    def red_sum():
        Lp, Lc = A.uid('L_pp'), A.uid('L_pc')
        self.stamp('qkv', 'gi')
        red_try(PB, 2 if o.kb else 0, Lp)
        A.label(Lc)
        self.stamp('qkv', 'mp')
        if o.dump:
            A(f'''s_and_b32 {s(sT1)}, {s(sG)}, 6
            s_mul_i32 {s(sT0)}, {s(sS)}, {2*MEM_SLOT}
            s_and_b32 {s(sT2)}, {s(sG)}, 1
            s_mul_i32 {s(sT2)}, {s(sT2)}, {MEM_SLOT}
            s_add_u32 {s(sT0)}, {s(sT0)}, {s(sT2)}
            s_add_u32 {s(sT0)}, {s(sT0)}, {DUMP + (2<<20) - 2*MEM_SLOT}
            s_cmp_eq_u32 {s(sT1)}, 0
            s_cselect_b32 {s(sT0)}, {s(sT0)}, {DUMP}
            buffer_store_dwordx4 {v(rp,4)}, {v(vMst)}, {s(WS,4)}, {s(sT0)} offen''')
        def cold():
            self.count()
            if not o.kb: part_loads(1, 1)
            A.label(Lp + 'a')
            red_try(PB + 8, 0, Lp + 'b')
            A(f's_branch {Lc}')
            A.label(Lp + 'b')
            part_loads(0, 1); self.budget(); self.count(1000); A(f's_branch {Lp}a')
        self.cold.append((Lp, cold))

    def red_spin():
        red_fetch()
        Ls, Lx = A.uid('L_sp'), A.uid('L_sx')
        for k in range(o.spin - 2): part_loads(0, 0)
        self.stamp('qkv', 'gi')
        if o.spin == 1: A(f's_branch {Ls}b')
        A.label(Ls)
        for cp in ((1, 0) if o.alt else (0,)):
            part_loads(cp, 0); self.budget(); self.count()
            if cp == 0: A.label(Ls + 'b')
            A(f'''s_waitcnt vmcnt({2*(o.spin-1)+1})
            v_mfma_f32_16x16x32_bf16 {v(racc,4)}, {v(SELA,4)}, {v(PB,4)}, 0
            v_mfma_f32_16x16x32_bf16 {v(racc+4,4)}, {v(SELB,4)}, {v(PB,4)}, 0
            s_waitcnt vmcnt({2*(o.spin-1)})
            v_mfma_f32_16x16x32_bf16 {v(racc,4)}, {v(SELA,4)}, {v(PB+4,4)}, {v(racc,4)}
            v_mfma_f32_16x16x32_bf16 {v(racc+4,4)}, {v(SELB,4)}, {v(PB+4,4)}, {v(racc+4,4)}
            v_cmp_u_f32 vcc, {v(racc)}, {v(racc+4)}''')
            for q in range(4): A(f'v_cvt_pk_bf16_f32 {v(rp+q)}, {v(racc+2*q)}, {v(racc+2*q+1)}')
            A(f's_cbranch_vccz {Lx}' if cp else f's_cbranch_vccnz {Ls}')
        A.label(Lx)
        A(f'buffer_store_dwordx4 {v(rp,4)}, {v(vMst)}, {s(WS,4)}, {s(sCur)} offen{ST}')
        self.stamp('qkv', 'mp')

    def gemm(dma, fill=(), loop=False):
        fill = list(fill)
        if not loop: xrd(0); xrd(1)
        def mf(m, ks, rt):
            if o.x & 4 and m == 2 and ks > 0: return
            d = v(xacc + 8*m + 4*rt, 4)
            A(f'v_mfma_f32_16x16x32_bf16 {d}, {a((WV, WK, WQ)[m] + 4*ks, 4)}, {v(xf + 8*(ks%XD) + 4*rt, 4)}, {d if ks else 0}')
        vm = []
        if loop:
            vm += [(64, lambda x=x: A(x) if not o.x & 16 else None) for x in xst]
            for reg, off in ((vVclr, 0), (vSclr, 0), (vMclr, 0), (vSclr, 256)):
                vm.append((24, lambda reg=reg, off=off: A(f'buffer_store_dword {v(vNeg)}, {v(reg)}, {s(WS,4)}, {s(sPrev)} offen offset:{off}{ST}')))
        if dma:
            xdma_begin(s(sXbuf))
            vm += [(64, lambda k=k: xdma(k) if not (loop and o.x & 16) else None) for k in range(10)]
        if loop:
            FP = o.fp
            vm.insert(3 + FP, (24, lambda: (A(f's_waitcnt vmcnt({FP})\nbuffer_store_dword {v(vFl)}, {v(vKF)}, {s(WS,4)}, {s(sXB)} offen{ST}'), st.update(flag=True))))
        st = {'flag': not loop, 'ta': 64 if loop else 0}
        A('s_waitcnt lgkmcnt(2)')
        for ks in range(19):
            if loop and ks == o.k1 and not o.spin: red_fetch()
            if loop and ks == 10 and o.precache: part_loads(0, 0)
            if loop and o.kb and ks == o.k1 + o.kb and not o.spin: part_loads(1, 1)
            if loop and ks == o.k2: red_sum()
            if ks == 18: break
            for n in range(6):
                mf(n // 2, ks, n & 1)
                used = 0
                if n < 2: xrd1(ks + 2, n); used = 1
                if 2 <= n <= 4 and vm and st['ta'] <= 16 * (6*ks + n) + o.tslack:
                    c, f = vm.pop(0); f(); st['ta'] += c; used = 2
                if n == 3 and loop and ks == o.k1 - 3: trig_load(); used = 2
                if n == 5: A(f's_waitcnt lgkmcnt({2 if ks < 17 else 0})'); used = 1
                if st['flag'] and len(vm) <= 10 - (2 if loop else 0):
                    for _ in range(o.fd - used):
                        if fill: A(fill.pop(0))
            if ks == o.k1 - 1: assert not fill and not vm, (len(fill), len(vm))
        def epi(m):
            x = []
            for rt in range(2):
                for i in range(2):
                    b = xacc + 8*m + 4*rt + 2*i
                    x.append(f'v_cvt_pk_bf16_f32 {v(pk + 4*m + 2*rt + i)}, {v(b)}, {v(b+1)}')
            x.append(f'v_permlane16_swap_b32 {v(pk+4*m)}, {v(pk+4*m+2)}')
            x.append(f'v_permlane16_swap_b32 {v(pk+4*m+1)}, {v(pk+4*m+3)}')
            if m == 1: x.append(f'ds_write_b128 {v(vKxWs)}, {v(pk+4,4)}')
            return x
        tog = [f'v_add_u32 {v(vXb0)}, {s(sDelta)}, {v(vXb0)}', f'v_add_u32 {v(vXb1)}, {s(sDelta)}, {v(vXb1)}',
               f's_sub_u32 {s(sXbuf)}, {s(sXbuf)}, {s(sDelta)}', f's_sub_u32 {s(sDelta)}, 0, {s(sDelta)}']
        e0 = epi(0)
        for m in range(3):
            for ks in (18, 19):
                for rt in range(2):
                    mf(m, ks, rt)
                    src = tog if m == 1 else (e0 if m == 2 else [])
                    for _ in range(2):
                        if src: A(src.pop(0))
        rest = e0 + epi(1) + epi(2)
        if o.k2 < 20: return rest
        if loop and o.kb == 8: part_loads(1, 1)
        for x in rest: A(x)
        if loop and o.kb == 9: part_loads(1, 1)
        if loop and o.spin: red_spin()
        elif loop: red_sum()
        return []
    def set_x(seg):
        A(f'''s_add_u32 {s(sXOff)}, {s(sXB)}, {S8B + seg*S8 + QX}
        s_add_u32 {s(sX1)}, {s(sXOff)}, {KX - QX}
        s_add_u32 {s(sX2)}, {s(sXB)}, {seg*S4 + VX}
        v_add_u32 {v(vKxWs)}, {4096*seg}, {v(vKxW)}
        s_mov_b32 {s(sXSeg)}, {40960*(seg+1)}''')

    A(f's_mov_b32 {s(sDelta)}, 40960\ns_mov_b32 {s(sXbuf)}, {LX1}')
    set_x(0)
    for x in gemm(False): A(x)
    xstores()
    self.tl(2)
    self.gwait()
    self.tl(3)
    A(f'''v_mov_b32 {v(vFl)}, 1
    buffer_store_dword {v(vFl)}, {v(vXF)}, {s(WS,4)}, {s(sXB)} offen{ST}
    s_waitcnt lgkmcnt(0)
    s_barrier''')
    set_x(1)
    for x in gemm(True): A(x)
    xstores()
    A(f'''s_waitcnt vmcnt(0) lgkmcnt(0)
    v_mov_b32 {v(vFl)}, 2
    buffer_store_dword {v(vFl)}, {v(vXF)}, {s(WS,4)}, {s(sXB)} offen{ST}
    s_barrier
    s_mov_b32 {s(sS)}, -1''')
    set_x(2)
    setup = [f's_and_b32 {s(sF0)}, {s(sS)}, 3',
             f's_mul_i32 {s(sPart)}, {s(sF0)}, {PART_SLOT}',
             f's_add_u32 {s(sS)}, {s(sS)}, 1',
             f's_mov_b32 {s(sMark)}, 0',
             f's_and_b32 {s(sF0)}, {s(sS)}, 3',
             f's_mul_i32 {s(sF1)}, {s(sF0)}, {S4}',
             f's_add_u32 {s(sCur)}, {s(sXB)}, {s(sF1)}',
             f's_lshl_b32 {s(sF0)}, {s(sF0)}, 12',
             f'v_add_u32 {v(vKxRs)}, {s(sF0)}, {v(vKxR)}',
             f's_xor_b32 {s(sF0)}, {s(sF0)}, 8192',
             f'v_add_u32 {v(vKxWs)}, {s(sF0)}, {v(vKxW)}',
             f's_add_u32 {s(sKmOff)}, {s(sCur)}, {KM}',
             f's_mul_i32 {s(sF0)}, {s(sF0)}, {S4 // 4096}',
             f's_add_u32 {s(sPrev)}, {s(sXB)}, {s(sF0)}',
             f's_add_u32 {s(sF1)}, {s(sS)}, 2',
             f's_and_b32 {s(sF1)}, {s(sF1)}, 7',
             f's_mul_i32 {s(sF1)}, {s(sF1)}, {S8}',
             f's_add_u32 {s(sF1)}, {s(sF1)}, {S8B + QX}',
             f's_add_u32 {s(sXOff)}, {s(sXB)}, {s(sF1)}',
             f's_add_u32 {s(sX1)}, {s(sXOff)}, {KX - QX}',
             f's_add_u32 {s(sX2)}, {s(sPrev)}, {VX}',
             f'v_add_u32 {v(vFl)}, {s(sS)}, {v(vFlB)}'] + [f'v_mov_b32 {v(acc+i)}, 0' for i in range(12)]
    rest = gemm(True, setup)
    Lpf = A.uid('L_pf')
    A(f'v_mov_b32 v3, {PARF}')
    A.label(Lpf)
    A(f'buffer_load_dword v4, v3, {s(WS,4)}, {s(sXB)} offen sc1')
    self.budget()
    A(f'''s_waitcnt vmcnt(0) lgkmcnt(0)
    v_readfirstlane_b32 {s(sT0)}, v4
    s_cmp_eq_u32 {s(sT0)}, 0
    s_cbranch_scc1 {Lpf}
    s_and_b32 {s(sT0)}, {s(sT0)}, 2
    s_lshl_b32 {s(sT0)}, {s(sT0)}, 12
    v_add_u32 {v(vPl0)}, {s(sT0)}, {v(vPl0)}
    v_add_u32 {v(vPl1)}, {s(sT0)}, {v(vPl1)}
    v_add_u32 {v(vPl2)}, {16384 if o.ncopy == 4 else 0}, {v(vPl0)}
    v_add_u32 {v(vPl3)}, {16384 if o.ncopy == 4 else 0}, {v(vPl1)}''')
    if o.tl: A(f'v_writelane_b32 v255, {s(sT0)}, 20')

    LP = f'L_qkv_loop{t}'
    A.label(LP)
    A(f's_mov_b32 m0, {s(sMm0)}')
    mem_dma()
    for x in rest: A(x)
    A(f'''ds_read_b128 {v(Kx,4)}, {v(vKxRs)}
    ds_read_b128 {v(Kx+4,4)}, {v(vKxRs)} offset:1024
    s_add_u32 {s(sT0)}, {s(sS)}, 4
    s_min_u32 {s(sT0)}, {s(sT0)}, 63
    s_mul_i32 {s(sXSeg)}, {s(sT0)}, 40960''')
    def zero_acc():
        for i in range(12): A(f'v_mov_b32 {v(acc+i)}, 0')
    Lgot, Lpoll, Lnan, Lcont = A.uid('L_got'), A.uid('L_poll'), A.uid('L_nan'), A.uid('L_cont')
    self.stamp('qkv', 'p0')
    A.label(Lpoll)
    mem_dma()
    self.budget()
    A(f'''s_waitcnt vmcnt(4)
    ds_read_b32 {v(vPr)}, {v(vProbe)}
    s_waitcnt lgkmcnt(0)
    v_cmp_eq_u32 vcc, -1, {v(vPr)}
    s_cbranch_vccnz {Lpoll}''')
    self.stamp('qkv', 'p1')
    A('s_barrier')
    self.stamp('qkv', 'b1')
    def rdA(tt):
        A(f'ds_read_b128 {v(Aop+4*tt,4)}, {v(vA0)} offset:{tt*1024}')
    def sm(accr, wb, tt):
        A(f'v_smfmac_f32_16x16x64_bf16 {v(accr,4)}, {v(Aop+4*tt,4)}, {a(wb+8*tt,8)}, {v(vIdx)}')
    PRE = 4
    for tt in range(PRE): rdA(tt)
    for tt in range(10):
        A(f's_waitcnt lgkmcnt({min(PRE - 1, 9 - tt)})')
        sm(accV, WV, tt)
        if tt + PRE < 10: rdA(tt + PRE)
        if tt == o.bpos: A(f'buffer_store_dword {v(vFl)}, {v(vBF)}, {s(WS,4)}, {s(sXB)} offen{ST}')
    A.label(Lgot + 'r')
    def halves(x): return [f'v_add_f32 {v(x)}, {v(x)}, {v(x+2)}', f'v_add_f32 {v(x+1)}, {v(x+1)}, {v(x+3)}']
    side = {
        2: halves(accV),
        3: [f'v_cvt_pk_bf16_f32 {v(vt)}, {v(accV)}, {v(accV+1)}', f'ds_write_b32 {v(vVtW)}, {v(vt)}'],
        4: [f'ds_read_b64_tr_b16 {v(vt,2)}, {v(vVtR)}', f'ds_read_b64_tr_b16 {v(vt+2,2)}, {v(vVtR)} offset:128'],
        5: [f'v_cmp_u_f32 vcc, {v(accV)}, {v(accV+1)}'],
        7: [f's_cbranch_vccnz {Lnan}', Lcont + ':'],
        o.vpos: ['s_waitcnt lgkmcnt(0)', f'buffer_store_dwordx4 {v(vt,4)}, {v(vVMst)}, {s(WS,4)}, {s(sCur)} offen{ST}'],
        14: halves(accQ),
        15: [f'v_cvt_pk_bf16_f32 {v(tq)}, {v(accQ)}, {v(accQ+1)}'],
    }
    n = 0
    for accr, wb in ((accQ, WQ), (accK, WK)):
        for tt in range(10):
            sm(accr, wb, tt)
            if n + 10 == o.bpos: A(f'buffer_store_dword {v(vFl)}, {v(vBF)}, {s(WS,4)}, {s(sXB)} offen{ST}')
            for x in side.get(n, []): A(x)
            if n == o.vpos: self.stamp('qkv', 'vm')
            n += 1
    Lw0, Lw3, Ljoin = A.uid('L_w0'), A.uid('L_w3'), A.uid('L_join')
    A(f'''v_pk_add_f32 {v(accK,2)}, {v(accK,2)}, {v(accK+2,2)}
    v_cvt_pk_bf16_f32 {v(tq+1)}, {v(accK)}, {v(accK+1)}
    ds_write_b64 {v(vTW)}, {v(tq,2)}
    s_cmp_eq_u32 {s(sW)}, 0
    s_cbranch_scc1 {Lw0}
    s_cmp_eq_u32 {s(sW)}, 3
    s_cbranch_scc1 {Lw3}''')
    def tphase(wave):
        A('s_waitcnt lgkmcnt(0)\ns_barrier')
        self.stamp('qkv', 'b2')
        for u in range(2):
            A(f'ds_read_b64_tr_b16 {v(Z+4*u,2)}, {v(vTR0)} offset:{u*1024}\nds_read_b64_tr_b16 {v(Z+4*u+2,2)}, {v(vTR1)} offset:{u*1024}')
        if wave == 3:
            A('s_waitcnt lgkmcnt(0)')
            xrd(0); xrd(1)
            A(f'''s_waitcnt lgkmcnt(0)
            buffer_store_dwordx4 {v(Z,4)}, {v(vKMst)}, {s(WS,4)}, {s(sKmOff)} offen{ST}
            buffer_store_dwordx4 {v(Z+4,4)}, {v(vKMst)}, {s(WS,4)}, {s(sKmOff)} offen offset:512{ST}''')
            self.stamp('qkv', 'sc')
        else:
            src = Z if wave == 0 else Kx
            A(f'''s_waitcnt lgkmcnt(2)
            v_mfma_f32_16x16x32_bf16 {v(S,4)}, {v(src,4)}, {v(Z,4)}, 0
            s_waitcnt lgkmcnt(0)
            v_mfma_f32_16x16x32_bf16 {v(S,4)}, {v(src+4,4)}, {v(Z+4,4)}, {v(S,4)}''')
            xrd(0); xrd(1)
            sc_store(S, sCur, wave)
            self.stamp('qkv', 'sc')
    tphase(1); A(f's_branch {Ljoin}')
    A.label(Lw0); tphase(0); A(f's_branch {Ljoin}')
    A.label(Lw3); tphase(3)
    A.label(Ljoin)
    Lskip = A.uid('L_skip')
    A(f's_cmp_eq_u32 {s(sS)}, {o.nsteps - 1}\ns_cbranch_scc1 {Lskip}')
    assert gemm(True, setup, True) == rest
    self.stamp('qkv', 'ge'); self.tr_flush('qkv')
    A(f's_branch {LP}')
    A.label(Lskip)
    A(f'''s_waitcnt vmcnt(0) lgkmcnt(0)
    buffer_store_dword {v(vFl)}, {v(vKF)}, {s(WS,4)}, {s(sXB)} offen{ST}''')
    self.stamp_out('qkv'); self.tl(7, True)
    A('s_endpgm')
    A.label(Lnan)
    A(f's_cmp_eq_u32 {s(sMark)}, 1\ns_cbranch_scc1 {Lcont}\nv_lshlrev_b32 v1, 4, v0')
    A.label(Lnan + 'r')
    A(f's_mov_b32 {s(sT0)}, {s(sCur)}\nv_mov_b32 v2, 0')
    for k in range(10):
        A(f'buffer_load_dwordx4 {v(Aop+4*k,4)}, v1, {s(WS,4)}, {s(sT0)} offen sc1\ns_add_u32 {s(sT0)}, {s(sT0)}, 1024')
    self.budget()
    A('s_waitcnt vmcnt(0) lgkmcnt(0)')
    for k in range(20): A(f'v_max3_u32 v2, v2, {v(Aop+2*k)}, {v(Aop+2*k+1)}')
    A(f'v_cmp_eq_u32 vcc, -1, v2\ns_cbranch_vccnz {Lnan}r\ns_mov_b32 {s(sMark)}, 1')
    zero_acc()
    for tt in range(10): sm(accV, WV, tt)
    A(f's_branch {Lgot}r')
```

```python
from asmlib import v, a, s
from gen import *

def wo(self):
    A = self.A; t = self.tag; ST = self.st; o = self.o
    LY = 0; YS = 24576; LPX = 98304; LE = 122880; ES = 1152; LRACE = LE + 8192
    r = RA(10, 248)
    (vIdxU, vIdxP, vL16, vL4, vPst0, vPl0, vPl1, vMst, vEW, vER, vYW, vYW2, vYR, vYR2, vYWs, vYW2s, vYRs, vYR2s,
     vPXR, vPXRs, vOst, vOl, vOut, vFlA, vFlT, vFlTs, vFlD, vH16, vHsc, vHscm, vHvx, vMx, vMy, vPk, vHvm, vPstL, vPclr, vYUs) = [r() for _ in range(38)]
    Y = r(32, 4); PA = r(4, 4); ONES = r(8, 4); SX = r(12, 4); SM = r(4, 2); SELB = r(6, 2); SELA = SELB + 2; vTfD = SM + 3; Dsum = r(4, 4); D = r(16, 4)
    VMo = r(12, 4); Yacc = r(16, 4); PB = r(8, 4); acc = r(8, 4); vM0 = PB; vN4 = PB + 4
    Pop = r(24, 4); Yop = r(16, 4); oacc = r(8, 4); fin = r(8, 4); ep = r(4, 2); Eop = PA; cc2 = r(2, 2); mm2 = r(2, 2); vTf = r(); vBFa = r()
    Uacc = Yacc
    WOr = 0; VXs = 96
    sJ, sPartOff, sPartClr, sCur, sNext, sVx0, sVx1, sVx2, sPxOff, sOst, sOst2, sOl, sOutRow, sPartClr3, sPxM0, sF0, sF1, sPartClr2 = range(40, 58); sLo8 = 58; sCl = 60; SEL2 = 144
    A.label(f'L_wo{t}')
    self.srd(R0, P_WO, 6144 * 640 * 2); self.srd(R1, P_M0, 8 * 640 * 2)
    A(f's_sub_u32 {s(sJ)}, {s(sR)}, 12')
    self.lanes()
    vWdma0, vWdma1, vWr = Pop, Pop + 1, Pop + 2
    A(f'''v_lshrrev_b32 v3, 3, v0
    v_and_b32 v4, 7, v0
    v_and_b32 v6, 2, v3
    v_xor_b32 v6, v6, v4
    v_lshlrev_b32 v6, 4, v6
    v_mul_u32_u24 v7, 1280, v3
    s_lshl_b32 {s(sT0)}, {s(sG)}, 2
    s_add_u32 {s(sT0)}, {s(sT0)}, {s(sW)}
    s_mul_i32 {s(sT0)}, {s(sT0)}, {192*1280}
    s_lshl_b32 {s(sT1)}, {s(sJ)}, 7
    s_add_u32 {s(sT0)}, {s(sT0)}, {s(sT1)}
    v_add3_u32 {v(vWdma0)}, v6, v7, {s(sT0)}
    v_xor_b32 {v(vWdma1)}, 64, {v(vWdma0)}''')
    A(f'''s_mul_i32 {s(sT0)}, {s(sJ)}, {PBLK}
    s_lshl_b32 {s(sT1)}, {s(sW)}, 11
    s_add_u32 {s(sT0)}, {s(sT0)}, {s(sT1)}
    s_lshr_b32 {s(sT1)}, {s(sW)}, 1
    s_mul_i32 {s(sT1)}, {s(sT1)}, {o.rot & 1}
    s_xor_b32 {s(sT1)}, {s(sT1)}, {s(sG)}      ; the source position varies so that a workgroup's writes spread over all channels
    v_mul_u32_u24 v7, {2*(o.rot & 1)}, v2
    v_xor_b32 v7, {s(sT1)}, v7
    v_lshlrev_b32 v6, 4, v1
    v_lshl_add_u32 v7, v7, 8, v6
    v_lshl_add_u32 v7, v2, 13, v7
    v_add_u32 {v(vPst0)}, {s(sT0)}, v7
    v_lshlrev_b32 {v(vL16)}, 4, v0
    v_lshlrev_b32 {v(vL4)}, 2, v0
    v_add_u32 {v(vPclr)}, {s(sT0)}, {v(vL4)}''')
    for k in range(4):
        A(f's_xor_b32 {s(sT2)}, {s(sT1)}, {2*k*(o.rot & 1)}\ns_lshl_b32 {s(sT2)}, {s(sT2)}, 8\ns_add_u32 {s(sCl+k)}, {s(sT2)}, {8192*k}')
    if o.ncopy < 4: self.oob_unless(vPst0, f'v_cmp_gt_u32 vcc, {o.ncopy}, v2')
    A(f'''s_lshl_b32 {s(sT2)}, {s(sJ)}, 7
    s_lshl_b32 {s(sT3)}, {s(sW)}, 2
    s_add_u32 {s(sT2)}, {s(sT2)}, {s(sT3)}
    s_add_u32 {s(sT2)}, {s(sT2)}, {TF}
    v_mov_b32 {v(vTf)}, {s(sT2)}''')
    self.oob_unless(vTf, 'v_cmp_eq_u32 vcc, 0, v0')
    A(f'''s_lshl_b32 {s(sT2)}, {s(sW)}, 7
    s_add_u32 {s(sT2)}, {s(sT2)}, {BF}
    v_min_u32 v3, 2, v0
    v_lshl_add_u32 {v(vBFa)}, v3, 2, {s(sT2)}''')
    A(f'''s_lshl_b32 {s(sT0)}, {s(sJ)}, 2
    s_add_u32 {s(sT0)}, {s(sT0)}, {s(sW)}     ; tile
    s_lshl_b32 {s(sT1)}, {s(sT0)}, 8
    v_add_u32 {v(vMst)}, {s(sT1)}, v6''')
    self.oob_unless(vMst, 'v_cmp_eq_u32 vcc, 0, v2')
    A(f'''v_lshrrev_b32 v3, 2, v1
    v_and_b32 v7, 1, v1
    v_lshl_or_b32 v4, v3, 1, v7                ; row
    v_mul_u32_u24 v4, 1280, v4
    v_and_b32 v5, 2, v1
    v_lshl_add_u32 v4, v5, 1, v4
    s_lshl_b32 {s(sT1)}, {s(sT0)}, 5
    v_add_u32 v4, {s(sT1)}, v4
    v_lshlrev_b32 v6, 6, v3
    v_lshl_add_u32 v6, v7, 5, v6
    v_lshl_add_u32 v6, v2, 3, v6
    v_lshl_add_u32 v6, v5, 1, v6               ; Q*64 + j*32 + g*8 + kh*4
    s_mul_i32 {s(sT2)}, {s(sW)}, {ES}
    s_add_u32 {s(sT2)}, {s(sT2)}, {LE}
    v_add_u32 {v(vEW)}, {s(sT2)}, v6''')
    for q in range(4):
        A(f'buffer_load_dword {v(vM0+q)}, v4, {s(R1,4)}, 0 offen offset:{8*q}')
    for q in range(4): A(f'v_mov_b32 {v(vN4+q)}, -1')
    A(f's_mul_i32 {s(sT0)}, {s(sW)}, {YS}\ns_mov_b32 m0, {s(sT0)}\ns_mov_b32 {s(sT1)}, 0')
    for k in range(24):
        A(f'buffer_load_dwordx4 {v(vWdma1 if k & 1 else vWdma0)}, {s(R0,4)}, {s(sT1)} offen{" nt" if o.nt & 4 else ""} lds')
        if k < 23: A(f's_add_u32 m0, m0, 1024\ns_add_u32 {s(sT1)}, {s(sT1)}, {8*1280}')
    A('s_waitcnt vmcnt(24)')
    for q in range(4): A(f'v_min_u32 {v(vM0+q)}, -2, {v(vM0+q)}')
    A(f'''v_and_b32 v7, 2, v1
    v_cmp_ne_u32 vcc, 0, v7                    ; half
    v_mov_b32 v5, 0x4444
    v_mov_b32 v6, 0xeeee
    v_cndmask_b32 {v(vIdxU)}, v5, v6, vcc
    v_mov_b32 v5, 0xe484
    v_mov_b32 v6, 0xee9e
    v_cndmask_b32 v7, v5, v6, vcc
    v_mov_b32 v5, 0x84e4
    v_mov_b32 v6, 0x9eee
    v_cndmask_b32 v8, v5, v6, vcc
    v_cmp_gt_u32 vcc, 2, v2
    v_cndmask_b32 {v(vIdxP)}, v8, v7, vcc''')
    for i in range(8): A(f'v_mov_b32 {v(ONES+i)}, {0 if i in (3,7) else 0x3f803f80}')
    for ct in range(4): A(f'v_mov_b32 {v(Y+8*ct+3)}, 0\nv_mov_b32 {v(Y+8*ct+7)}, 0')
    for hb in range(2): A(f'v_mov_b32 {v(Yop+8*hb+6)}, 0\nv_mov_b32 {v(Yop+8*hb+7)}, 0')
    self.sel_consts(SELB)
    A(f'''v_mov_b32 {v(cc2)}, {f32(CSM)}
    v_mov_b32 {v(cc2+1)}, {f32(CSM)}
    s_lshl_b32 {s(sT0)}, {s(sW)}, 8
    s_add_u32 {s(sT0)}, {s(sT0)}, {LE}
    v_mul_u32_u24 v6, {ES}, v2
    v_lshl_add_u32 v6, v1, 3, v6
    v_add_u32 {v(vER)}, {s(sT0)}, v6
    s_mul_i32 {s(sT0)}, {s(sW)}, 1536
    v_add_u32 {v(vYW)}, {s(sT0)}, {v(vL16)}
    s_add_u32 {s(sT0)}, {s(sT0)}, 1024
    v_lshl_add_u32 {v(vYW2)}, v0, 3, {s(sT0)}
    s_mul_i32 {s(sT0)}, {s(sW)}, 6144
    v_add_u32 {v(vYR)}, {s(sT0)}, {v(vL16)}
    s_add_u32 {s(sT0)}, {s(sT0)}, 1024
    v_lshl_add_u32 {v(vYR2)}, v0, 3, {s(sT0)}
    v_add_u32 {v(vPXR)}, {LPX}, {v(vL16)}
    s_mul_i32 {s(sT0)}, {s(sW)}, 3072
    v_add_u32 {v(vH16)}, {s(sT0)}, {v(vL16)}
    v_add_u32 {v(vHvm)}, {VM}, {v(vH16)}
    s_add_u32 {s(sPxM0)}, {s(sT0)}, {LPX}
    s_mul_i32 {s(sT0)}, {s(sW)}, 3840
    s_add_u32 {s(sT0)}, {s(sT0)}, {SC}
    v_add_u32 {v(vHsc)}, {s(sT0)}, {v(vL16)}
    s_add_u32 {s(sT0)}, {s(sT0)}, 1024
    v_add_u32 {v(vHscm)}, {s(sT0)}, {v(vL4)}
    s_mul_i32 {s(sT0)}, {s(sW)}, 12288
    v_add_u32 {v(vHvx)}, {s(sT0)}, {v(vL16)}
    s_lshl_b32 {s(sT0)}, {s(sJ)}, 15
    s_lshl_b32 {s(sT2)}, {s(sW)}, 10
    s_add_u32 {s(sT0)}, {s(sT0)}, {s(sT2)}
    v_lshrrev_b32 v5, 3, v0
    v_mul_u32_u24 v5, {o.rot >> 1}, v5
    v_xor_b32 v5, {s(sG)}, v5
    v_and_b32 v6, 7, v1
    v_lshlrev_b32 v6, 4, v6
    v_lshl_add_u32 v6, v5, 7, v6
    v_lshrrev_b32 v7, 3, v1
    v_lshl_add_u32 v6, v7, 12, v6
    v_lshrrev_b32 v5, 1, v2
    v_lshl_add_u32 v6, v5, 13, v6
    v_and_b32 v5, 1, v2
    v_lshl_add_u32 v6, v5, 14, v6
    v_add_u32 {v(vOst)}, {s(sT0)}, v6
    s_and_b32 {s(sT1)}, {s(sG)}, 1
    s_lshl_b32 {s(sT1)}, {s(sT1)}, 12
    s_add_u32 {s(sT0)}, {s(sT0)}, {s(sT1)}
    s_lshr_b32 {s(sT1)}, {s(sG)}, 2
    s_lshl_b32 {s(sT1)}, {s(sT1)}, 13
    s_add_u32 {s(sT0)}, {s(sT0)}, {s(sT1)}
    s_and_b32 {s(sT1)}, {s(sG)}, 2
    s_lshl_b32 {s(sT1)}, {s(sT1)}, 13
    s_add_u32 {s(sT0)}, {s(sT0)}, {s(sT1)}
    v_add_u32 {v(vOl)}, {s(sT0)}, {v(vL16)}
    s_lshr_b32 {s(sT1)}, {s(sG)}, 1
    s_mul_i32 {s(sT1)}, {s(sT1)}, {4*2560}
    s_lshl_b32 {s(sT2)}, {s(sJ)}, 7
    s_add_u32 {s(sT1)}, {s(sT1)}, {s(sT2)}
    s_lshl_b32 {s(sT2)}, {s(sW)}, 5
    s_add_u32 {s(sT1)}, {s(sT1)}, {s(sT2)}
    s_and_b32 {s(sT2)}, {s(sG)}, 1
    s_lshl_b32 {s(sT2)}, {s(sT2)}, 4
    s_add_u32 {s(sT1)}, {s(sT1)}, {s(sT2)}
    s_add_u32 {s(sT1)}, {s(sT1)}, 1280
    v_lshl_add_u32 v6, v7, 4, v2
    v_mul_u32_u24 v6, 2560, v6
    v_and_b32 v5, 7, v1
    v_lshl_add_u32 v6, v5, 1, v6
    v_add_u32 {v(vOut)}, {s(sT1)}, v6
    v_cmp_gt_u32 {s(sLo8,2)}, 8, v1
    v_and_b32 v5, 1, v1
    v_lshrrev_b32 v6, 3, v1
    v_lshl_add_u32 v5, v5, 1, v6
    v_bfe_u32 v6, v1, 2, 1
    v_cmp_ne_u32 vcc, 0, v6
    v_mov_b32 v6, 0x3f80
    v_mov_b32 v7, 0x3f800000
    v_cndmask_b32 v6, v6, v7, vcc''')
    for i in range(4): A(f'v_cmp_eq_u32 vcc, {i}, v5\nv_cndmask_b32 v7, 0, v6, vcc\nv_accvgpr_write_b32 {a(SEL2+i)}, v7')
    A(f'''s_lshl_b32 {s(sT0)}, {s(sW)}, 7
    v_add_u32 v5, {s(sT0)}, {v(vL4)}
    v_add_u32 v6, {XF}, v5
    v_add_u32 v7, {PF - 48}, v5
    v_cmp_gt_u32 vcc, 12, v0
    v_cndmask_b32 {v(vFlA)}, v7, v6, vcc
    v_mov_b32 v5, -2
    v_cndmask_b32 {v(vFlT)}, v5, 3, vcc''')
    self.oob_unless(vFlA, 'v_cmp_gt_u32 vcc, 14, v0')
    A(f'v_mov_b32 v5, -1000\nv_cndmask_b32 {v(vFlT)}, v5, {v(vFlT)}, vcc')
    A(f'''v_and_b32 v4, 3, v1
    v_and_b32 v5, 1, v2
    v_lshl_add_u32 v6, v2, 3, v3
    v_lshlrev_b32 v6, 7, v6
    v_and_b32 v7, 2, v3
    v_lshl_or_b32 v7, v5, 2, v7
    v_lshrrev_b32 v8, 1, v4
    v_xor_b32 v7, v7, v8
    v_lshl_add_u32 v6, v7, 4, v6
    v_and_b32 v7, 1, v4
    v_lshl_add_u32 v6, v7, 3, v6
    s_mul_i32 {s(sT0)}, {s(sW)}, {YS}
    v_add_u32 v6, {s(sT0)}, v6''')
    for ct in range(4): A(f'v_xor_b32 {v(vWr+ct)}, {32*ct}, v6')
    A('s_waitcnt vmcnt(0)')
    for ct in range(4):
        for ks in range(6):
            for eh in range(2):
                A(f'ds_read_b64_tr_b16 {a(WOr + 24*ct + 4*ks + 2*eh, 2)}, {v(vWr+ct)} offset:{ks*4096 + eh*512}')
    A('s_waitcnt lgkmcnt(0)\ns_barrier')
    self.tl(8)
    self.tl(2)
    self.gwait()
    self.tl(3)
    A(f'buffer_store_dwordx4 {v(vM0,4)}, {v(vMst)}, {s(WS,4)}, {s(sXB)} offen{ST}')

    def flag_issue():
        A(f'buffer_load_dword {v(vFlD)}, {v(vFlA)}, {s(WS,4)}, {s(sXB)} offen sc1')
    def flag_wait(cnt):
        Lw, Lok = A.uid('L_fw'), A.uid('L_fok')
        if cnt is not None: A(f's_waitcnt vmcnt({cnt})')
        A(f'v_cmp_lt_i32 vcc, {v(vFlD)}, {v(vFlTs)}\ns_cbranch_vccz {Lok}')
        A.label(Lw); flag_issue(); self.budget()
        A(f's_waitcnt vmcnt(0)\nv_cmp_lt_i32 vcc, {v(vFlD)}, {v(vFlTs)}\ns_cbranch_vccnz {Lw}')
        A.label(Lok)
    def vx_loads(k0=0, k1=12):
        for k in range(k0, k1):
            A(f'buffer_load_dwordx4 {a(VXs+4*k,4)}, {v(vHvx)}, {s(WS,4)}, {s((sVx0, sVx1, sVx2)[k//4])} offen offset:{(k%4)*1024} sc1')
    def px_dma():
        for k in range(3):
            A(f'buffer_load_dwordx4 {v(vH16)}, {s(WS,4)}, {s(sPxOff)} offen offset:{k*1024} sc1 lds')
    def yx(hook=None):
        ya = lambda ct: (Yacc + 8*ct) if ct < 2 else (Pop + 8*(ct - 2))
        n = 0
        for ks in range(6):
            for ct in range(4):
                for rt in range(2):
                    d = v(ya(ct) + 4*rt, 4)
                    A(f'v_mfma_f32_16x16x32_bf16 {d}, {a(VXs + 24*rt + 4*ks, 4)}, {a(WOr + 24*ct + 4*ks, 4)}, {d if ks else 0}')
                    n += 1
                    if hook: hook(n)
        post = []
        for ct in (2, 3, 0, 1):
            b = ya(ct); y = Y + 8*ct
            post += [f'v_cvt_pk_bf16_f32 {v(y)}, {v(b)}, {v(b+1)}', f'v_cvt_pk_bf16_f32 {v(y+1)}, {v(b+2)}, {v(b+3)}',
                     f'ds_write_b64 {v(vYWs)}, {v(y,2)} offset:{ct*6144}',
                     f'v_cvt_pk_bf16_f32 {v(y+4)}, {v(b+4)}, {v(b+5)}', f'v_cvt_pk_bf16_f32 {v(y+5)}, {v(b+6)}, {v(b+7)}',
                     f'ds_write_b64 {v(vYW2s)}, {v(y+4,2)} offset:{ct*6144}']
        return post
    def out_store():
        A(f'buffer_store_dwordx4 {v(oacc,4)}, {v(vOst)}, {s(WS,4)}, {s(sOst)} offen sc1')
    opack = [f'v_cvt_pk_bf16_f32 {v(oacc+q)}, {v(oacc+2*q)}, {v(oacc+2*q+1)}' for q in range(4)]
    def outpart(hook=None):
        def rd(h):
            pb = Pop + 12*(h & 1); yb = Yop + 8*(h & 1)
            A(f'ds_read_b128 {v(yb,4)}, {v(vYRs)} offset:{h*1536}')
            for k in range(2): A(f'ds_read_b128 {v(pb+4*k,4)}, {v(vPXRs)} offset:{h*3072 + k*1024}')
            A(f'ds_read_b64 {v(yb+4,2)}, {v(vYR2s)} offset:{h*1536}')
            A(f'ds_read_b128 {v(pb+8,4)}, {v(vPXRs)} offset:{h*3072 + 2048}')
        rd(0); rd(1)
        for h in range(4):
            pb = Pop + 12*(h & 1); yb = Yop + 8*(h & 1)
            if hook: hook(h)
            A(f's_waitcnt lgkmcnt({5 if h < 3 else 0})')
            A(f'''v_mfma_f32_16x16x32_bf16 {v(oacc,4)}, {v(pb,4)}, {v(yb,4)}, {v(oacc,4) if h else 0}
            v_mfma_f32_16x16x32_bf16 {v(oacc+4,4)}, {v(pb+4,4)}, {v(yb,4)}, {v(oacc+4,4) if h else 0}
            v_mfma_f32_16x16x32_bf16 {v(oacc+4,4)}, {v(pb+8,4)}, {v(yb+4,4)}, {v(oacc+4,4)}''')
            if h + 2 < 4: rd(h + 2)
    def L(txt): return [x.strip() for x in txt.split('\n') if x.strip()]
    def set_outpart(d):
        return L(f'''s_add_u32 {s(sF1)}, {s(sS)}, {d}
        s_and_b32 {s(sF0)}, {s(sF1)}, 3
        s_mul_i32 {s(sF0)}, {s(sF0)}, {YS}
        v_add_u32 {v(vYRs)}, {s(sF0)}, {v(vYR)}
        v_add_u32 {v(vYR2s)}, {s(sF0)}, {v(vYR2)}
        s_and_b32 {s(sF0)}, {s(sF1)}, 1
        s_mul_i32 {s(sF0)}, {s(sF0)}, 12288
        v_add_u32 {v(vPXRs)}, {s(sF0)}, {v(vPXR)}''')
    def set_ost(d):
        return L(f'''s_add_u32 {s(sF1)}, {s(sS)}, {d}
        s_and_b32 {s(sF0)}, {s(sF1)}, 3
        s_mul_i32 {s(sF0)}, {s(sF0)}, {OUTP_SLOT}
        s_add_u32 {s(sOst)}, {s(sF0)}, {OUTP}''')
    def set_px(d, xf=False):
        return L(f'''s_add_u32 {s(sF1)}, {s(sS)}, {d}
        s_and_b32 {s(sF0)}, {s(sF1)}, 3
        s_mul_i32 {s(sF0)}, {s(sF0)}, {S4}
        s_add_u32 {s(sF0)}, {s(sF0)}, {PXB}
        s_add_u32 {s(sPxOff)}, {s(sXB)}, {s(sF0)}
        s_and_b32 {s(sF0)}, {s(sF1)}, 1
        s_add_u32 m0, {s(sF0)}, 12
        s_add_u32 {s(sF1)}, {s(sF1)}, 1
        {f'v_add_u32 {v(vFlTs)}, {s(sS)}, {v(vFlT)}' if xf else f'v_mov_b32 {v(vFlTs)}, -16'}
        v_writelane_b32 {v(vFlTs)}, {s(sF1)}, m0
        s_mul_i32 {s(sF0)}, {s(sF0)}, 12288
        s_add_u32 m0, {s(sPxM0)}, {s(sF0)}''')
    def set_fin(d):
        return L(f'''s_add_u32 {s(sF1)}, {s(sS)}, {d}
        s_and_b32 {s(sF0)}, {s(sF1)}, 3
        s_mul_i32 {s(sF0)}, {s(sF0)}, {OUTP_SLOT}
        s_add_u32 {s(sOl)}, {s(sF0)}, {OUTP}
        s_mul_i32 {s(sOutRow)}, {s(sF1)}, {32*2560}''')
    def fin_issue(dst=None):
        A(f'buffer_load_dwordx4 {v(fin if dst is None else dst,4)}, {v(vOl)}, {s(WS,4)}, {s(sOl)} offen sc1')
    def fin_done(src=None, row=None):
        f = fin + 4
        A(f'''v_mfma_f32_16x16x32_bf16 {v(f,4)}, {a(SEL2,4)}, {v(fin if src is None else src,4)}, 0
        v_cndmask_b32 {v(f+2)}, {v(f)}, {v(f+1)}, {s(sLo8,2)}
        v_cndmask_b32 {v(f+3)}, {v(f+1)}, {v(f)}, {s(sLo8,2)}
        v_add_f32_dpp {v(f+3)}, {v(f+2)}, {v(f+3)} row_ror:8 row_mask:0xf bank_mask:0xf
        v_cvt_pk_bf16_f32 {v(f+3)}, {v(f+3)}, {v(f+3)}
        buffer_store_short {v(f+3)}, {v(vOut)}, {s(OUT,4)}, {s(sOutRow if row is None else row)} offen''')
    assert PART == 0
    nxtA = L(f'''s_add_u32 {s(sF1)}, {s(sS)}, 1
    v_mov_b32 {v(vYUs)}, {v(vYWs)}
    s_and_b32 {s(sF0)}, {s(sF1)}, 3
    s_mul_i32 {s(sPartOff)}, {s(sF0)}, {PART_SLOT}
    s_mul_i32 {s(sF1)}, {s(sF0)}, {S4}
    s_add_u32 {s(sCur)}, {s(sXB)}, {s(sF1)}
    s_xor_b32 {s(sF0)}, {s(sF0)}, 2
    s_mul_i32 {s(sPartClr)}, {s(sF0)}, {PART_SLOT}
    s_add_u32 {s(sF1)}, {s(sS)}, 2
    v_mov_b32 {v(vTfD)}, {s(sF1)}
    s_and_b32 {s(sF0)}, {s(sF1)}, 3
    s_mul_i32 {s(sNext)}, {s(sF0)}, {YS}
    s_mov_b32 {s(sOst2)}, {s(sOutRow)}''') + set_ost(-2) + set_fin(-4) + set_outpart(-1)
    nxtB = L(f'''s_add_u32 {s(sS)}, {s(sS)}, 1
    v_add_u32 {v(vYWs)}, {s(sNext)}, {v(vYW)}
    v_add_u32 {v(vYW2s)}, {s(sNext)}, {v(vYW2)}''')
    nxt2 = L(f'''s_add_u32 {s(sF1)}, {s(sS)}, 2
    s_and_b32 {s(sF0)}, {s(sF1)}, 3
    s_mul_i32 {s(sF0)}, {s(sF0)}, {S4}
    s_add_u32 {s(sF0)}, {s(sF0)}, {VX}
    s_add_u32 {s(sVx0)}, {s(sXB)}, {s(sF0)}
    s_add_u32 {s(sVx1)}, {s(sVx0)}, 4096
    s_add_u32 {s(sVx2)}, {s(sVx0)}, 8192''') + set_px(-1, True)
    nxtB += [f'v_pk_mul_f32 {v(x,2)}, {v(Yop+6,2)}, {v(Yop+6,2)}' for x in range(Uacc, Uacc+16, 2)]

    A(f'''s_mov_b32 {s(sS)}, -1
    v_add_u32 {v(vFlTs)}, -2, {v(vFlT)}
    s_add_u32 {s(sVx0)}, {s(sXB)}, {VX}
    s_add_u32 {s(sVx1)}, {s(sVx0)}, 4096
    s_add_u32 {s(sVx2)}, {s(sVx0)}, 8192
    v_mov_b32 {v(vYWs)}, {v(vYW)}
    v_mov_b32 {v(vYW2s)}, {v(vYW2)}''')
    flag_issue(); flag_wait(0); vx_loads(); A('s_waitcnt vmcnt(0)')
    for x in yx() + nxt2: A(x)
    flag_issue(); flag_wait(0); vx_loads()
    for x in nxtA + nxtB: A(x)
    for x in list(range(D, D+16)) + list(range(Dsum, Dsum+4)): A(f'v_mov_b32 {v(x)}, 0')
    Lp0 = A.uid('L_p0')
    A(f'v_mov_b32 v3, {self.GO + (12 if self.slow else 8)}')
    A.label(Lp0)
    A(f'buffer_load_dword v4, v3, {s(DBG,4)}, 0 offen sc1')
    self.budget()
    A(f'''s_waitcnt vmcnt(0)
    v_readfirstlane_b32 {s(sT0)}, v4
    s_cmp_eq_u32 {s(sT0)}, 0
    s_cbranch_scc1 {Lp0}
    s_and_b32 {s(sT0)}, {s(sT0)}, 2
    s_lshl_b32 {s(sT0)}, {s(sT0)}, 12
    s_xor_b32 {s(sT0)}, {s(sT0)}, {8192*o.oflip}
    v_xor_b32 {v(vOst)}, {s(sT0)}, {v(vOst)}
    v_xor_b32 {v(vOl)}, {s(sT0)}, {v(vOl)}''')
    for sl in (5, 6):
        A(f's_mov_b32 {s(sT0)}, {OUTP + sl*OUTP_SLOT}\nbuffer_store_dwordx4 {v(vN4,4)}, {v(vOst)}, {s(WS,4)}, {s(sT0)} offen sc1')

    self.tl(4)

    LP = f'L_wo_loop{t}'
    A.label(LP)
    Lb, Lv, Lu = A.uid('L_bf'), A.uid('L_vm'), A.uid('L_u')
    bfl = f'buffer_load_dword {v(vMx)}, {v(vBFa)}, {s(WS,4)}, {s(sXB)} offen sc1'
    for _ in range(3): A(bfl)
    if o.tr or 'dr' in o.stamp: A('s_waitcnt vmcnt(2)'); self.stamp('wo', 'dr')
    A.label(Lb)
    A(bfl); self.budget()
    A(f's_waitcnt vmcnt(3)\nv_cmp_ge_u32 vcc, {s(sS)}, {v(vMx)}\ns_cbranch_vccnz {Lb}')
    def vm_loads():
        for k in range(3):
            A(f'buffer_load_dwordx4 {v(VMo+4*k,4)}, {v(vHvm)}, {s(WS,4)}, {s(sCur)} offen offset:{k*1024} sc1')
    vm_loads()
    self.stamp('wo', 'bf')
    scl = []
    for p in range(3):
        scl.append(f'buffer_load_dwordx4 {v(SX+4*p,4)}, {v(vHsc)}, {s(WS,4)}, {s(sCur)} offen offset:{p*1280} sc1')
        scl.append(f'buffer_load_dword {v(SM+p)}, {v(vHscm)}, {s(WS,4)}, {s(sCur)} offen offset:{p*1280} sc1')
    def sc_loads():
        for x in scl: A(x)
    usm = [f'v_smfmac_f32_16x16x64_bf16 {v(Uacc+4*ct,4)}, {v(VMo+4*tt,4)}, {a(WOr+24*ct+8*tt,8)}, {v(vIdxU)}' for tt in range(3) for ct in range(4)]
    upost = []
    for ct in range(4):
        u = Uacc + 4*ct
        upost += [f'v_pk_add_f32 {v(u,2)}, {v(u,2)}, {v(u+2,2)}'] + ([f'v_cmp_u_f32 vcc, {v(u)}, {v(u+1)}'] if ct == 0 else [])
        upost += [f'v_cvt_pk_bf16_f32 {v(Y+8*ct+2)}, {v(u)}, {v(u+1)}', f'v_cvt_pk_bf16_f32 {v(Y+8*ct+6)}, {v(u)}, {v(u+1)}']
    uw = [f'ds_write_b32 {v(vYUs)}, {v(Y+8*ct+2)} offset:{ct*6144 + 8}' for ct in range(4)]
    seq = usm + upost
    pend = list(scl)
    for n, x in enumerate(seq):
        if n in (0, 4, 8): A(f's_waitcnt vmcnt({2 - n//4})')
        if n == 8: self.stamp('wo', 'vm')
        if n >= o.spos:
            for _ in range(2):
                if pend: A(pend.pop(0))
        A(x)
    for x in pend: A(x)
    A(f's_cbranch_vccnz {Lv}')
    A.label(Lu)
    def cold_vm():
        self.count(1, 'wo')
        vm_loads(); self.budget()
        A(f's_waitcnt vmcnt(0)\nv_max_u32 v4, {v(VMo)}, {v(VMo+1)}')
        for i in range(1, 6): A(f'v_max3_u32 v4, v4, {v(VMo+2*i)}, {v(VMo+2*i+1)}')
        A(f'v_cmp_eq_u32 vcc, -1, v4\ns_cbranch_vccnz {Lv}')
        sc_loads()
        for i in range(16): A(f'v_mov_b32 {v(Uacc+i)}, 0')
        for x in seq: A(x)
        A(f's_branch {Lu}')
    self.cold.append((Lv, cold_vm))
    for x in uw: A(x)
    self.stamp('wo', 'u')
    Ltail = f'L_wo_tail{t}'
    A(f's_cmp_eq_u32 {s(sS)}, {o.nsteps-1}\ns_cbranch_scc1 {Ltail}')
    Lsc, Lsp, Lsg = A.uid('L_sc'), A.uid('L_sp'), A.uid('L_sg')
    s0 = ep
    A.label(Lsc)
    A(f'''s_waitcnt vmcnt(2)
    v_pk_add_f32 {v(s0,2)}, {v(SX,2)}, {v(SX+4,2)}
    v_pk_add_f32 {v(s0+2,2)}, {v(SX+2,2)}, {v(SX+6,2)}
    v_add_f32 {v(vPk)}, {v(SM)}, {v(SM+1)}
    s_waitcnt vmcnt(0)
    v_pk_add_f32 {v(s0,2)}, {v(s0,2)}, {v(SX+8,2)}
    v_pk_add_f32 {v(s0+2,2)}, {v(s0+2,2)}, {v(SX+10,2)}
    v_add_f32 {v(vPk)}, {v(vPk)}, {v(SM+2)}
    v_max3_f32 {v(vMx)}, {v(s0)}, {v(s0+1)}, {v(s0+2)}
    v_max3_f32 {v(vMx)}, {v(vMx)}, {v(s0+3)}, {v(vPk)}
    v_pk_add_f32 {v(mm2,2)}, {v(s0,2)}, {v(s0+2,2)}
    v_add_f32 {v(mm2)}, {v(mm2)}, {v(vPk)}
    v_max_f32_dpp {v(vMy)}, {v(vMx)}, {v(vMx)} quad_perm:[2,3,0,1] row_mask:0xf bank_mask:0xf
    v_max_f32_dpp {v(vMx)}, {v(vMx)}, {v(vMx)} quad_perm:[2,3,0,1] row_mask:0xf bank_mask:0xf
    v_cmp_u_f32 vcc, {v(mm2)}, {v(mm2+1)}
    v_permlane16_swap_b32 {v(vMx)}, {v(vMy)}
    v_max_f32 {v(vMx)}, {v(vMx)}, {v(vMy)}
    v_mov_b32 {v(vMy)}, {v(vMx)}
    s_cbranch_vccnz {Lsp}''')
    A.label(Lsg)
    self.stamp('wo', 'sc')
    tflag = f'buffer_store_dword {v(vTfD)}, {v(vTf)}, {s(WS,4)}, {s(sXB)} offen{ST}'
    if o.tpos == 'sc': A(tflag)
    A(f'''v_permlane32_swap_b32 {v(vMx)}, {v(vMy)}
    v_max_f32 {v(vMx)}, {v(vMx)}, {v(vMy)}
    v_mul_f32 {v(mm2)}, {f32(-CSM)}, {v(vMx)}
    v_pk_fma_f32 {v(s0,2)}, {v(s0,2)}, {v(cc2,2)}, {v(mm2,2)} op_sel_hi:[1,1,0]
    v_pk_fma_f32 {v(s0+2,2)}, {v(s0+2,2)}, {v(cc2,2)}, {v(mm2,2)} op_sel_hi:[1,1,0]
    v_fma_f32 {v(vPk)}, {v(vPk)}, {v(cc2)}, {v(mm2)}
    v_exp_f32 {v(s0)}, {v(s0)}
    v_exp_f32 {v(s0+1)}, {v(s0+1)}
    v_exp_f32 {v(s0+2)}, {v(s0+2)}
    v_exp_f32 {v(s0+3)}, {v(s0+3)}
    v_exp_f32 {v(vPk)}, {v(vPk)}
    v_cvt_pk_bf16_f32 {v(PA)}, {v(s0)}, {v(s0+1)}
    v_cvt_pk_bf16_f32 {v(PA+2)}, {v(s0+2)}, {v(s0+3)}
    v_cvt_pk_bf16_f32 {v(PA+1)}, {v(vPk)}, 0
    v_cvt_pk_bf16_f32 {v(PA+3)}, {v(vPk)}, 0
    v_smfmac_f32_16x16x64_bf16 {v(Dsum,4)}, {v(PA,4)}, {v(ONES,8)}, {v(vIdxP)}''')
    for ct in range(4):
        A(f'v_smfmac_f32_16x16x64_bf16 {v(D+4*ct,4)}, {v(PA,4)}, {v(Y+8*ct,8)}, {v(vIdxP)}')
        if ct == 2: A(f'v_add_f32 {v(Dsum)}, {v(Dsum)}, {v(Dsum+2)}\nv_add_f32 {v(Dsum+1)}, {v(Dsum+1)}, {v(Dsum+3)}')
    if o.tpos == 'm': A(tflag)
    A(f'''v_rcp_f32 {v(Dsum)}, {v(Dsum)}
    v_rcp_f32 {v(Dsum+1)}, {v(Dsum+1)}''')
    for ct in range(4):
        A(f'v_pk_add_f32 {v(D+4*ct,2)}, {v(D+4*ct,2)}, {v(D+4*ct+2,2)}')
        A(f'v_pk_mul_f32 {v(D+4*ct,2)}, {v(D+4*ct,2)}, {v(Dsum,2)}')
        A(f'v_cvt_pk_bf16_f32 {v(ep+ct)}, {v(D+4*ct)}, {v(D+4*ct+1)}')
        if ct & 1: A(f'ds_write2st64_b32 {v(vEW)}, {v(ep+ct-1)}, {v(ep+ct)} offset0:{ct-1} offset1:{ct}')
    self.stamp('wo', 'e')
    if o.tpos == 'e': A(tflag)
    if o.flpos == 'e': flag_issue()
    zr = [f'v_mov_b32 {v(x)}, 0' for x in list(range(D, D+16)) + list(range(Dsum, Dsum+4))]
    for x in zr[:10]: A(x)
    A(f'''s_waitcnt lgkmcnt(0)
    s_barrier
    ds_read_b64_tr_b16 {v(Eop,2)}, {v(vER)}
    ds_read_b64_tr_b16 {v(Eop+2,2)}, {v(vER)} offset:128''')
    if o.tpos == 'b': A(tflag)
    for x in zr[10:]: A(x)
    A(f'''s_waitcnt lgkmcnt(0)
    v_mfma_f32_16x16x32_bf16 {v(acc,4)}, {v(SELA,4)}, {v(Eop,4)}, 0
    v_mfma_f32_16x16x32_bf16 {v(acc+4,4)}, {v(SELB,4)}, {v(Eop,4)}, 0''')
    def pack(src):
        for q in range(4): A(f'v_cvt_pk_bf16_f32 {v(ep+q)}, {v(src+2*q)}, {v(src+2*q+1)}')
    if o.tpos == 'r': A(tflag)
    if o.flpos == 'r': flag_issue()
    pack(acc)
    A(f'buffer_store_dwordx4 {v(ep,4)}, {v(vPst0)}, {s(WS,4)}, {s(sPartOff)} offen sc1')
    if o.tpos == 'pp': A(tflag)
    self.stamp('wo', 'pp')
    def cold_sc():
        A(f'v_max3_u32 v4, {v(SM)}, {v(SM+1)}, {v(SM+2)}')
        for i in range(6): A(f'v_max3_u32 v4, v4, {v(SX+2*i)}, {v(SX+2*i+1)}')
        A(f'v_cmp_eq_u32 vcc, -1, v4\ns_cbranch_vccz {Lsg}')
        sc_loads(); self.budget(); self.count(1000, 'wo'); A(f's_branch {Lsc}')
    self.cold.append((Lsp, cold_sc))
    b = o.slowpos
    def clr(k):
        return lambda: A(f's_add_u32 {s(sF0)}, {s(sPartClr)}, {s(sCl+k)}\nbuffer_store_dword {v(vN4)}, {v(vPclr)}, {s(WS,4)}, {s(sF0)} offen sc1')
    ncl = o.ncopy
    slow = ([] if o.x & 2 else [out_store, fin_issue]) + [clr(k) for k in range(ncl)]
    ny = 1 + len(slow) + (1 if o.tpos == 'pp' or (o.tpos in 'rb' and o.flpos == 'e') else 0)
    def ohook(h):
        if h == 0:
            for f in slow: f()
        if h == 1:
            for x in nxt2: A(x)
    outpart(ohook)
    flag_wait(ny)
    if not o.x & 1: px_dma()
    for x in opack: A(x)
    self.stamp('wo', 'op')
    fl = list(nxtA)
    lq = [0, 6, 1, 7, 2, 8, 3, 9, 4, 10, 5, 11]
    st = {'i': 0, 'last': 0}
    L1 = A.uid('L_g')
    def yhook(n):
        if st['i'] < 12 and n >= 8 * (st['i'] // 2 + 1) and n >= o.vx0 and n - st['last'] >= 2:
            if not o.x & 1: vx_loads(lq[st['i']], lq[st['i']] + 1)
            st['i'] += 1; st['last'] = n
            return
        for _ in range(2):
            if fl: A(fl.pop(0))
    post = yx(yhook)
    if not o.x & 1:
        for k in lq[st['i']:]: vx_loads(k, k + 1)
    A(f's_cmp_lt_u32 {s(sS)}, 5\ns_cbranch_scc1 {L1}\ns_waitcnt vmcnt({ncl + (0 if o.x & 1 else 15)})')
    fin_done(None, sOst2)
    A.label(L1)
    self.stamp('wo', 'yx')
    for x in fl + post + nxtB: A(x)
    self.stamp('wo', 'g1'); self.tr_flush('wo')
    A(f's_branch {LP}')
    A.label(Ltail)
    self.tl(5)
    out_store()
    def fin_poll(slot, dst):
        Lc = A.uid('L_fp'); A(f's_mov_b32 {s(sOl)}, {OUTP + slot*OUTP_SLOT}'); A.label(Lc)
        fin_issue(dst); self.budget()
        A(f'''s_waitcnt vmcnt(0)
        v_max3_u32 {v(vMx)}, {v(dst)}, {v(dst+1)}, {v(dst+2)}
        v_max_u32 {v(vMx)}, {v(vMx)}, {v(dst+3)}
        v_cmp_eq_u32 vcc, -1, {v(vMx)}
        s_cbranch_vccnz {Lc}''')
    n = o.nsteps
    for d in (-2, -1, 0):
        A('s_waitcnt vmcnt(0) lgkmcnt(0)\ns_barrier')
        if d == -2:
            for x in set_px(-1): A(x)
            flag_issue()
        for x in set_outpart(d): A(x)
        A(f's_mov_b32 {s(sOst)}, {OUTP + (6 + d)*OUTP_SLOT}')
        outpart()
        for x in opack: A(x)
        out_store()
        if d == -2: flag_wait(1); px_dma()
        if d == -1:
            fin_poll(5, D)
            for k, dd in enumerate((-5, -4, -3, -2)):
                slot = (n - 1 + dd) & 3 if dd < -2 else 4
                A(f's_mov_b32 {s(sOl)}, {OUTP + slot*OUTP_SLOT}'); fin_issue(Yacc + 4*k)
            A(f's_mov_b32 {s(sOutRow)}, {(n-2)*32*2560}'); fin_done(D)
            A('s_waitcnt vmcnt(1)')
            for k, dd in enumerate((-5, -4, -3, -2)):
                A(f's_mov_b32 {s(sOutRow)}, {(n-1+dd)*32*2560}'); fin_done(Yacc + 4*k)
            for x in set_px(0): A(x)
            flag_issue(); flag_wait(0); px_dma()
            self.tl(6)
    fin_poll(6, D)
    A(f's_mov_b32 {s(sOutRow)}, {(n-1)*32*2560}'); fin_done(D)
    self.stamp_out('wo'); self.tl(7, True)
    A('s_endpgm')
```

```python
import re

def v(i, n=1): return f'v{i}' if n == 1 else f'v[{i}:{i+n-1}]'
def a(i, n=1): return f'a{i}' if n == 1 else f'a[{i}:{i+n-1}]'
def s(i, n=1): return f's{i}' if n == 1 else f's[{i}:{i+n-1}]'

_REG = re.compile(r'^(-|abs\()?([vas])(?:(\d+)|\[(\d+):(\d+)\])\)?$')
TRANS = ('v_exp_f32', 'v_log_f32', 'v_rcp_f32', 'v_rsq_f32', 'v_sqrt_f32', 'v_sin_f32', 'v_cos_f32', 'v_rcp_iflag_f32')

def regs_of(op):
    op = op.strip()
    if op in ('vcc', 'vcc_lo', 'vcc_hi'): return {('s', 'vcc')}
    if op in ('exec', 'exec_lo', 'exec_hi'): return {('s', 'exec')}
    if op == 'm0': return {('s', 'm0')}
    m = _REG.match(op)
    if not m: return set()
    k = m.group(2)
    if m.group(3) is not None: return {(k, int(m.group(3)))}
    return {(k, i) for i in range(int(m.group(4)), int(m.group(5)) + 1)}

class Ins:
    __slots__ = ('text', 'mn', 'kind', 'w', 'r', 'ab', 'c', 'data', 'states', 'target', 'dpp', 'wide', 'lds')
    def __init__(self, text):
        self.text = text
        t = text.split(';')[0].strip()
        self.w = set(); self.r = set(); self.ab = set(); self.c = set(); self.data = set()
        self.states = 1; self.target = None; self.dpp = False; self.wide = False; self.lds = False
        if not t or t.startswith('.'):
            self.mn = ''; self.kind = 'none'; self.states = 0; return
        if t.endswith(':'):
            self.mn = t[:-1]; self.kind = 'label'; self.states = 0; return
        parts = t.split(None, 1)
        mn = self.mn = parts[0]
        rest = parts[1] if len(parts) > 1 else ''
        ops = []; cur = ''; d = 0
        for ch in rest:
            if ch in '[(': d += 1
            if ch in '])': d -= 1
            if ch == ',' and d == 0: ops.append(cur.strip()); cur = ''
            else: cur += ch
        if cur.strip(): ops.append(cur.strip())
        mods = ''
        if ops:
            last = ops[-1].split(None, 1)
            ops[-1] = last[0]
            mods = last[1] if len(last) > 1 else ''
        R = [regs_of(o) for o in ops]
        U = lambda xs: set().union(*xs) if xs else set()
        if mn == 's_nop':
            self.kind = 'salu'; self.states = int(ops[0], 0) + 1
        elif mn.startswith('s_cbranch') or mn == 's_branch':
            self.kind = 'branch'; self.target = ops[0]
        elif mn.startswith('s_'):
            self.kind = 'salu'
            if mn.startswith('s_cmp') or mn in ('s_waitcnt', 's_barrier', 's_endpgm', 's_setprio', 's_sleep'):
                self.r = U(R)
            else:
                self.w = R[0] if R else set(); self.r = U(R[1:])
        elif mn.startswith('v_mfma'):
            self.kind = 'mfma'; self.w = R[0]; self.ab = R[1] | R[2]; self.c = R[3]; self.r = self.ab | self.c
        elif mn.startswith('v_smfmac'):
            self.kind = 'mfma'; self.w = R[0]; self.ab = R[1] | R[2] | R[3]; self.c = R[0]; self.r = self.ab | self.c
        elif mn.startswith('v_'):
            self.kind = 'valu'
            self.dpp = ('_dpp' in mn) or ('quad_perm' in mods) or ('row_' in mods)
            if mn.startswith('v_permlane') and 'swap' in mn:
                self.w = R[0] | R[1]; self.r = R[0] | R[1]
            elif mn == 'v_nop':
                pass
            else:
                self.w = R[0]; self.r = U(R[1:])
                if mn.startswith(('v_fmac', 'v_dot2c', 'v_writelane', 'v_pk_fmac')) or self.dpp: self.r |= R[0]
                if mn.startswith(('v_add_co', 'v_sub_co', 'v_addc_co')): self.w |= R[1]
        elif mn in ('buffer_wbl2', 'buffer_inv'):
            self.kind = 'vmem'
        elif mn.startswith('global_load'):
            self.kind = 'vmem'; self.w = R[0]; self.r = U(R[1:])
        elif mn.startswith('buffer_'):
            self.kind = 'vmem'
            self.lds = ' lds' in (' ' + mods)
            if self.lds:
                self.r = U(R) | {('s', 'm0')}
            elif mn.startswith('buffer_load'):
                self.w = R[0]; self.r = U(R[1:])
            elif mn.startswith('buffer_atomic'):
                self.r = U(R); self.data = R[0]
                if 'sc0' in mods: self.w = R[0]
            else:
                self.r = U(R); self.data = R[0]; self.wide = mn.endswith(('x3', 'x4'))
        elif mn.startswith('ds_'):
            self.kind = 'ds'
            if mn.startswith('ds_read') or '_rtn' in mn or mn.startswith(('ds_bpermute', 'ds_permute', 'ds_swizzle')):
                self.w = R[0]; self.r = U(R[1:])
            else:
                self.r = U(R)
        else:
            raise ValueError('unknown instruction: ' + text)

def vec(x): return {r for r in x if r[0] in 'va'}
def sca(x): return {r for r in x if r[0] == 's'}

def need(p, c):
    n = 0
    if p.kind == 'valu':
        pw = vec(p.w); ps = sca(p.w)
        if c.kind == 'mfma' and pw & c.r: n = max(n, 2)
        if c.kind == 'valu':
            if c.mn.startswith('v_permlane') and pw & c.r: n = max(n, 2)
            if c.dpp and pw & c.r: n = max(n, 2)
            if c.mn.startswith(('v_readlane', 'v_readfirstlane')) and pw & c.r: n = max(n, 1)
            if p.mn.replace('_e32', '').replace('_e64', '') in TRANS and pw & c.r: n = max(n, 1)
            if ps & c.r: n = max(n, 4 if c.mn.startswith(('v_readlane', 'v_writelane')) else 2)
            if p.mn.startswith('v_dot') and (pw & (c.r | c.w)):
                same = c.mn == p.mn
                if not same: n = max(n, 3)
                else:
                    n = max(n, 0)
        if p.mn.startswith('v_dot') and c.kind in ('vmem', 'ds', 'mfma') and pw & c.r: n = max(n, 3)
        if c.kind == 'vmem' and ps & c.r: n = max(n, 5)
        if c.kind == 'salu' and ps & c.r: n = max(n, 1)
    elif p.kind == 'mfma':
        big = '32x32' in p.mn
        if c.kind == 'mfma':
            if p.w & c.ab: n = max(n, 12 if big else 8)
            if p.w & c.c and not (p.w == c.c and ('32x32' in c.mn) == big): n = max(n, 10 if big else 6)
            if p.w & c.w and not (p.w & c.c) and p.w != c.w: n = max(n, 10 if big else 6)
        elif c.kind in ('valu', 'vmem', 'ds'):
            if p.w & (c.r | c.w): n = max(n, 12 if big else 8)
            if c.kind == 'valu' and p.c & c.w: n = max(n, 7 if big else 3)
    elif p.kind == 'vmem':
        if p.wide and p.data & c.w: n = max(n, 2)
    elif p.kind == 'salu':
        if ('s', 'm0') in p.w and ((c.kind == 'vmem' and c.lds) or 'addtid' in c.mn): n = max(n, 1)
    return n

WIN = 14

class Asm:
    def __init__(self):
        self.lines = []
        self._uid = 0
    def __call__(self, text):
        for ln in text.split('\n'):
            ln = ln.strip()
            if ln: self.lines.append(ln)
    def uid(self, base='L'):
        self._uid += 1
        return f'{base}_{self._uid}'
    def label(self, name): self.lines.append(name + ':')

    def finish(self):
        ins = [Ins(t) for t in self.lines]
        added = 0
        def deficit(hist, c):
            d = 0; dist = 0; k = 0; after = 0
            for p in reversed(hist):
                if p.states == 0: continue
                if dist >= WIN: break
                eff = dist
                if p.kind == 'mfma' and k and c.kind != 'mfma': eff = max(dist, 4 * k + after - 1)
                d = max(d, need(p, c) - eff)
                if p.kind == 'mfma':
                    if k == 0: after = dist
                    k += 1
                dist += p.states
            return d
        changed = True
        while changed:
            changed = False
            out = []
            for c in ins:
                if c.states and c.kind != 'none':
                    hist = []
                    for p in reversed(out[-3 * WIN:]):
                        if p.mn in ('s_branch', 's_endpgm'): break
                        hist.append(p)
                    hist.reverse()
                    d = deficit(hist, c)
                    if d > 0:
                        out.append(Ins(f's_nop {d-1}')); added += d; changed = True
                out.append(c)
            ins = out
            pos = {x.mn: i for i, x in enumerate(ins) if x.kind == 'label'}
            fix = {}
            for i, b in enumerate(ins):
                if b.kind != 'branch': continue
                hist = []
                for p in reversed(ins[max(0, i - 3 * WIN):i]):
                    if p.mn in ('s_branch', 's_endpgm'): break
                    hist.append(p)
                hist.reverse(); hist.append(b)
                nh = len(hist)
                j = pos[b.target]; dist = 0; worst = 0
                path = list(hist)
                while j < len(ins) and dist < WIN:
                    c = ins[j]
                    if c.states:
                        d = 0; dd = dist
                        for p in reversed(hist):
                            if p.states == 0: continue
                            if dd >= WIN: break
                            d = max(d, need(p, c) - dd)
                            dd += p.states
                        worst = max(worst, d)
                        dist += c.states
                        if c.mn == 's_endpgm': break
                        if c.mn == 's_branch':
                            j = pos[c.target]; continue
                    j += 1
                if worst > 0: fix[i] = worst
            if fix:
                out = []
                for i, x in enumerate(ins):
                    if i in fix:
                        out.append(Ins(f's_nop {fix[i]-1}')); added += fix[i]
                    out.append(x)
                ins = out; changed = True
        self.added = added
        res = []
        for x in ins:
            res.append(x.text if (x.kind == 'label' or x.text.startswith('.')) else '    ' + x.text)
        return '\n'.join(res) + '\n'
```

```python
import math
from asmlib import v, a, s

def part_a(G):
    import gen as g
    from gen import RA, f32, sW, sG, sR, sT0, sT1, sT2, sT3, R0, R1, R2, OUT, P_AX, P_AW, P_AWO, OOB
    A = G.A
    CH = 20480; NB = 4
    RS = 168
    LQ = NB * CH; LK = LQ + 128 * RS; LV = LK + 128 * RS
    CA = 20 ** -0.5 * math.log2(math.e)
    r = RA(10, 248)
    vD = r(5, 1)
    vRd, vRds, vWq, vWs, vOst, vAq, vAk, vAqs, vAks, vPos, vMx, vSum, vBig, vOr = [r() for _ in range(14)]
    OV = r(64, 4)
    bf = r(40, 4); acc = r(40, 4); pk = r(16, 4)
    t = RA(bf + 20, pk + 16)
    q = t(10, 2); kk = t(20, 2); lg = t(8, 2); pp = t(16, 2); o = t(20, 2)
    sRow0, sM, sCol, sNcol, sNkc, sNm, sBufR, sBufW, sHG, sC, sIt, sLeft, sG0, sCnt, sBlk = range(40, 55)
    xfrag = lambda rt, K: a(80*rt + 4*K, 4)
    def oreg(rt, K, half=None):
        i = 4 * (20*rt + K); n = 4
        if half is not None: i += 2*half; n = 2
        return a(160 + i, n) if i < 96 else v(OV + i - 96, n)

    A.label('L_pa_body')
    G.tl(3)
    A(f'''s_sub_u32 {s(sT0)}, {s(sR)}, {g.R_PA}
    s_cmp_ge_u32 {s(sT0)}, 3
    s_cbranch_scc1 L_pa_end
    s_mul_i32 {s(sG0)}, {s(sT0)}, 3
    s_add_u32 {s(sG0)}, {s(sG0)}, {s(sG)}
    s_and_b32 {s(sG0)}, {s(sG0)}, {7 * G.o.arot}
    s_cmp_eq_u32 {s(sT0)}, 0
    s_cselect_b32 {s(sT1)}, 0x76543210, 0
    s_cmp_eq_u32 {s(sT0)}, 1
    s_cselect_b32 {s(sT1)}, {'0x54c321b0' if G.o.amap else '0x76543210'}, {s(sT1)}
    s_cmp_eq_u32 {s(sT0)}, 2
    s_cselect_b32 {s(sT1)}, {'0xf9ea87d6' if G.o.amap else '0xfedcba98'}, {s(sT1)}
    s_lshl_b32 {s(sT2)}, {s(sG)}, 2
    s_lshr_b32 {s(sT1)}, {s(sT1)}, {s(sT2)}
    s_and_b32 {s(sT1)}, {s(sT1)}, 15
    s_min_u32 {s(sT0)}, {s(sT0)}, 1
    s_lshl_b32 {s(sT0)}, {s(sT0)}, 3
    s_add_u32 {s(sBlk)}, {s(sT0)}, {s(sT1)}
    s_mul_i32 {s(sRow0)}, {s(sBlk)}, 112
    s_lshl_b32 {s(sT0)}, {s(sW)}, 5
    s_add_u32 {s(sRow0)}, {s(sRow0)}, {s(sT0)}
    s_sub_u32 {s(sRow0)}, {s(sRow0)}, 16        ; first row of this wave''')
    G.srd(R0, P_AX, 2048 * 640 * 2); G.srd(R1, P_AW, 640 * 1920 * 2); G.srd(R2, P_AWO, 640 * 640 * 2)
    G.lanes()
    for rt in range(2):
        A(f'''s_add_u32 {s(sT0)}, {s(sRow0)}, {16*rt}
        v_add_u32 v3, {s(sT0)}, v1
        v_cmp_gt_u32 vcc, 2048, v3
        v_mul_u32_u24 v3, 1280, v3
        v_lshl_add_u32 v3, v2, 4, v3
        v_mov_b32 v4, {OOB}
        v_cndmask_b32 v3, v4, v3, vcc''')
        for ks in range(20):
            A(f'buffer_load_dwordx4 {xfrag(rt, ks)}, v3, {s(R0,4)}, 0 offen offset:{64*ks}')
    def dma_addr(stride):
        for n in range(5):
            A(f'''v_add_u32 v3, {64*n}, v0
            v_mul_u32_u24 v4, 6554, v3
            v_lshrrev_b32 v4, 16, v4
            v_mul_u32_u24 v5, 10, v4
            v_sub_u32 v5, v3, v5
            v_and_b32 v6, 19, v4
            v_and_b32 v7, 4, v4
            v_lshl_or_b32 v6, v7, 1, v6
            v_and_b32 v7, 8, v4
            v_lshrrev_b32 v7, 1, v7
            v_or_b32 v6, v6, v7
            s_lshl_b32 {s(sT0)}, {s(sW)}, 5
            v_add_u32 v6, {s(sT0)}, v6
            v_mul_u32_u24 v6, {stride}, v6
            v_lshl_add_u32 {v(vD+n)}, v5, 4, v6''')
    dma_addr(3840)
    A(f'''v_lshrrev_b32 v3, 2, v1                 ; r
    v_and_b32 v4, 3, v1                           ; cc
    v_and_b32 v5, 1, v2
    v_lshl_add_u32 v3, v5, 2, v3
    v_lshrrev_b32 v6, 1, v2
    v_lshl_add_u32 v3, v6, 4, v3
    v_mul_u32_u24 v3, 160, v3
    v_lshl_add_u32 {v(vRd)}, v4, 3, v3
    s_lshl_b32 {s(sT0)}, {s(sW)}, 5
    v_add_u32 v3, {s(sT0)}, v1
    v_mul_u32_u24 v3, {RS}, v3
    v_add_u32 v3, {LQ}, v3
    v_lshl_add_u32 {v(vWq)}, v2, 3, v3
    v_lshl_add_u32 {v(vOr)}, v2, 4, v3
    v_add_u32 {v(vOr)}, -32, {v(vOr)}
    v_lshl_add_u32 v3, v5, 4, v1
    v_add_u32 v4, {s(sT0)}, v3
    v_add_u32 v3, {s(sRow0)}, v3
    v_cmp_le_u32 {s(sT2,2)}, 16, v4
    v_cmp_gt_u32 vcc, 2048, v3
    s_and_b64 vcc, vcc, {s(sT2,2)}
    v_mul_u32_u24 v3, 2560, v3
    v_lshl_add_u32 v3, v6, 4, v3
    v_mov_b32 v4, {OOB}
    v_cndmask_b32 {v(vOst)}, v4, v3, vcc
    v_and_b32 v3, 31, v0
    v_add_u32 {v(vPos)}, {s(sRow0)}, v3
    v_add_u32 v3, {s(sT0)}, v3
    v_mul_u32_u24 v3, {RS}, v3
    v_lshrrev_b32 v4, 5, v0
    v_mul_u32_u24 v4, 40, v4
    v_add_u32 v3, v3, v4
    v_add_u32 {v(vAq)}, {LQ}, v3
    v_add_u32 {v(vAk)}, {LK - 14*RS}, v3
    v_mov_b32 {v(vBig)}, {f32(-1e9 * 20 ** 0.5)}
    s_mov_b32 {s(sC)}, {f32(CA)}''')

    def rot(reg):
        return [f's_add_u32 {s(reg)}, {s(reg)}, {CH}', f's_cmp_eq_u32 {s(reg)}, {NB*CH}', f's_cselect_b32 {s(reg)}, 0, {s(reg)}']
    def dma(srd, stride, qkv, lds=True):
        x = [f's_mul_i32 {s(sT0)}, {s(sW)}, 5120', f's_add_u32 m0, {s(sT0)}, {s(sBufW)}',
             f's_mul_i32 {s(sT1)}, {s(sNkc)}, {128*stride}', f's_add_u32 {s(sT1)}, {s(sT1)}, {s(sNcol)}']
        for n in range(5):
            x.append(f'buffer_load_dwordx4 {v(vD+n)}, {s(srd,4)}, {s(sT1)} offen lds' if lds else f'buffer_load_dwordx4 v[248:251], {v(vD+n)}, {s(srd,4)}, {s(sT1)} offen')
            if n < 4: x.append('s_add_u32 m0, m0, 1024')
        y = x; x = []
        x += rot(sBufW)
        x += [f's_cmp_lg_u32 {s(sLeft)}, 0', f's_cselect_b32 {s(sT0)}, 1, 0', f's_sub_u32 {s(sLeft)}, {s(sLeft)}, {s(sT0)}',
              f's_add_u32 {s(sNkc)}, {s(sNkc)}, {s(sT0)}', f's_cmp_eq_u32 {s(sNkc)}, 5', f's_cselect_b32 {s(sNkc)}, 0, {s(sNkc)}']
        if qkv:
            x += [f's_cselect_b32 {s(sT0)}, 1280, 0', f's_addc_u32 {s(sNm)}, {s(sNm)}, 0', f's_add_u32 {s(sNcol)}, {s(sNcol)}, {s(sT0)}',
                  f's_cmp_eq_u32 {s(sNm)}, 3', f's_cselect_b32 {s(sNm)}, 0, {s(sNm)}', f's_cselect_b32 {s(sT0)}, {3840 - 160}, 0',
                  f's_cmp_eq_u32 {s(sNcol)}, {3840 + 1120}', f's_cselect_b32 {s(sT0)}, {s(sNcol)}, {s(sT0)}',
                  f's_sub_u32 {s(sNcol)}, {s(sNcol)}, {s(sT0)}']
        else:
            x += [f's_cselect_b32 {s(sT0)}, 160, 0', f's_add_u32 {s(sNcol)}, {s(sNcol)}, {s(sT0)}',
                  f's_cmp_eq_u32 {s(sNcol)}, 1280', f's_cselect_b32 {s(sNcol)}, 0, {s(sNcol)}']
        return y[:5] + x + y[5:]
    def rd(ks, ct):
        b = bf + 20*(ks & 1) + 4*ct
        return [f'ds_read_b64_tr_b16 {v(b + 2*eh, 2)}, {v(vRds)} offset:{ks*5120 + eh*1280 + ct*32}' for eh in range(2)]
    def next_chunk():
        A(f'v_add_u32 {v(vRds)}, {s(sBufR)}, {v(vRd)}\ns_waitcnt vmcnt(10) lgkmcnt(0)\ns_barrier')
        return [x for ct in range(5) for x in rd(0, ct)]
    def block(srd, stride, qkv, frag):
        for kc in range(5):
            fl = rot(sBufR) + dma(srd, stride, qkv)
            first = []; n = 0; last = -9
            for ks in range(4):
                for ct in range(5):
                    if ks == 3 and ct == 2:
                        assert not fl
                        first = next_chunk()
                    if ks < 3 or ct < 2: A(f's_waitcnt lgkmcnt({8 if ks < 3 else 8 - 2*ct})')
                    nx = rd(ks + 1, ct) if ks < 3 else []
                    for rt in range(2):
                        d = v(acc + 8*ct + 4*rt, 4); K = 4*kc + ks
                        A(f'v_mfma_f32_16x16x32_bf16 {d}, {v(bf + 20*(ks & 1) + 4*ct, 4)}, {frag(rt, K)}, {d if K else 0}')
                        n += 1
                        if nx: A(nx[rt])
                        for _ in range(2):
                            if first: A(first.pop(0))
                        for _ in range(2):
                            if fl and (not fl[0].startswith('buffer') or n - last >= 5):
                                if fl[0].startswith('buffer'): last = n
                                A(fl.pop(0))
    def stream_start(nchunks):
        A(f'''s_mov_b32 {s(sBufR)}, 0
        s_mov_b32 {s(sBufW)}, 0
        s_mul_i32 {s(sNcol)}, {s(sG0)}, 160
        s_mov_b32 {s(sNkc)}, 0
        s_mov_b32 {s(sNm)}, 0
        s_mov_b32 {s(sLeft)}, {nchunks - 1}
        s_mov_b32 {s(sHG)}, {s(sG0)}
        s_mov_b32 {s(sCnt)}, 0''')
    def phase_start(srd, stride, qkv, nchunks):
        if not qkv: A('s_waitcnt vmcnt(0) lgkmcnt(0)\ns_barrier')
        stream_start(nchunks)
        for _ in range(3):
            for x in dma(srd, stride, qkv): A(x)
        for x in next_chunk(): A(x)
    A(f's_cmp_lt_u32 {s(sBlk)}, 19\ns_cbranch_scc1 L_pa_rows')
    if G.o.xwarm:
        G.srd(g.R3, g.P_BX, 2048 * 640 * 2)
        A(f'''s_sub_u32 {s(sT0)}, {s(sBlk)}, 19
        s_lshl_b32 {s(sT0)}, {s(sT0)}, 2
        s_add_u32 {s(sT0)}, {s(sT0)}, {s(sW)}
        s_lshl_b32 {s(sT0)}, {s(sT0)}, 11
        v_lshl_add_u32 v3, v0, 4, {s(sT0)}
        s_mov_b32 {s(sT1)}, {6*40960}
        L_pa_xw:
        buffer_load_dwordx4 v[248:251], v3, {s(g.R3,4)}, {s(sT1)} offen{" nt" if G.o.xwarm == 2 else ""}
        buffer_load_dwordx4 v[248:251], v3, {s(g.R3,4)}, {s(sT1)} offen offset:1024{" nt" if G.o.xwarm == 2 else ""}
        s_add_u32 {s(sT1)}, {s(sT1)}, 40960
        s_waitcnt vmcnt(20)
        s_cmp_lt_u32 {s(sT1)}, {64*40960}
        s_cbranch_scc1 L_pa_xw''')
        if G.o.partA == 2: A('s_branch L_pa_end')
    for srd, stride, qkv, n in ((R1, 3840, True, 46), (R2, 1280, False, 41)):
        if not qkv: dma_addr(1280)
        stream_start(n)
        L = A.uid('L_pa_pf'); A.label(L)
        for x in dma(srd, stride, qkv, False): A(x)
        A(f's_waitcnt vmcnt(20)\ns_cmp_lg_u32 {s(sLeft)}, 0\ns_cbranch_scc1 {L}')
    A('s_branch L_pa_end\nL_pa_rows:')
    if G.o.partA == 2: A('s_branch L_pa_end')
    def cvt(ct):
        for rt in range(2):
            for i in range(2):
                b = acc + 8*ct + 4*rt + 2*i
                A(f'v_cvt_pk_bf16_f32 {v(pk + 2*rt + i)}, {v(b)}, {v(b+1)}')

    phase_start(R1, 3840, True, 120)
    G.tl(4)
    A.label('L_pa_grp')
    G.tl(8)
    A(f's_mov_b32 {s(sM)}, 0')
    A.label('L_pa_blk')
    block(R1, 3840, True, xfrag)
    A(f'v_add_u32 {v(vWs)}, {s(sM)}, {v(vWq)}')
    for ct in range(5):
        cvt(ct)
        A(f'ds_write_b64 {v(vWs)}, {v(pk,2)} offset:{32*ct}\nds_write_b64 {v(vWs)}, {v(pk+2,2)} offset:{32*ct + 16*RS}')
    A(f'''s_waitcnt lgkmcnt(0)
    s_add_u32 {s(sM)}, {s(sM)}, {128*RS}
    s_cmp_lt_u32 {s(sM)}, {3*128*RS}
    s_cbranch_scc1 L_pa_blk
    s_barrier
    s_mov_b32 {s(sIt)}, 0''')
    G.tl(9)
    A.label('L_pa_att')
    A(f'v_add_u32 {v(vAks)}, {s(sIt)}, {v(vAk)}\nv_add_u32 {v(vAqs)}, {s(sIt)}, {v(vAq)}')
    for i in range(5): A(f'ds_read_b64 {v(q+2*i,2)}, {v(vAqs)} offset:{8*i}')
    def rdk(j, base):
        for i in range(5): A(f'ds_read_b64 {v(kk + 10*(j&1) + 2*i, 2)}, {v(vAks)} offset:{base + (14-2*j)*RS + 8*i}')
    rdk(0, 0)
    for j in range(8):
        if j < 7: rdk(j + 1, 0)
        else: rdk(0, LV - LK)
        A('s_waitcnt lgkmcnt(5)')
        for i in range(10):
            A(f'v_dot2_f32_bf16 {v(lg+j)}, {v(q+i)}, {v(kk + 10*(j&1) + i)}, {v(lg+j) if i else 0}')
    for j in range(1, 8):
        A(f'v_cmp_le_i32 vcc, {2*j}, {v(vPos)}\nv_cndmask_b32 {v(lg+j)}, {v(vBig)}, {v(lg+j)}, vcc')
    A(f'v_max_f32 {v(vMx)}, {v(lg)}, {v(lg+1)}')
    for j in range(2, 8, 2): A(f'v_max3_f32 {v(vMx)}, {v(vMx)}, {v(lg+j)}, {v(lg+j+1)}')
    A(f'v_mul_f32 {v(vMx)}, {f32(-CA)}, {v(vMx)}')
    for j in range(8): A(f'v_fma_f32 {v(lg+j)}, {v(lg+j)}, {s(sC)}, {v(vMx)}')
    for j in range(8): A(f'v_exp_f32 {v(lg+j)}, {v(lg+j)}')
    A(f'v_add_f32 {v(vSum)}, {v(lg)}, {v(lg+1)}')
    for j in range(2, 8): A(f'v_add_f32 {v(vSum)}, {v(vSum)}, {v(lg+j)}')
    A(f'v_rcp_f32 {v(vSum)}, {v(vSum)}')
    for j in range(8):
        A(f'''v_mul_f32 {v(lg+j)}, {v(lg+j)}, {v(vSum)}
        v_cvt_pk_bf16_f32 {v(pp+2*j)}, {v(lg+j)}, 0
        v_cvt_pk_bf16_f32 {v(pp+2*j+1)}, 0, {v(lg+j)}''')
    for j in range(8):
        if j < 7: rdk(j + 1, LV - LK)
        A(f's_waitcnt lgkmcnt({5 if j < 7 else 0})')
        for i in range(10):
            for h in range(2):
                A(f'v_dot2_f32_bf16 {v(o+2*i+h)}, {v(kk + 10*(j&1) + i)}, {v(pp+2*j+h)}, {v(o+2*i+h) if j else 0}')
    for i in range(10): A(f'v_cvt_pk_bf16_f32 {v(q+i)}, {v(o+2*i)}, {v(o+2*i+1)}')
    for i in range(5): A(f'ds_write_b64 {v(vAqs)}, {v(q+2*i,2)} offset:{8*i}')
    A(f'''s_waitcnt lgkmcnt(0)
    s_add_u32 {s(sIt)}, {s(sIt)}, 80
    s_cmp_lt_u32 {s(sIt)}, 160
    s_cbranch_scc1 L_pa_att''')
    G.tl(10)
    for hg in range(8):
        if hg < 7: A(f's_cmp_lg_u32 {s(sHG)}, {hg}\ns_cbranch_scc1 L_pa_o{hg+1}')
        K0 = 5 * (hg // 2)
        steps = [(K0, 32, None), (K0 + 1, 96, None), (K0 + 2, 160, 'lo')] if hg % 2 == 0 else [(K0 + 2, 0, 'hi'), (K0 + 3, 64, None), (K0 + 4, 128, None)]
        for K, off, part in steps:
            if part == 'lo': A('s_mov_b32 exec_hi, 0')
            if part == 'hi': A('s_mov_b32 exec_lo, 0')
            for rt in range(2):
                for half in range(2):
                    A(f'ds_read_b64 {oreg(rt, K, half)}, {v(vOr)} offset:{off + rt*16*RS + 8*half}')
            if part: A('s_mov_b64 exec, -1')
        if hg < 7: A(f's_branch L_pa_oe\nL_pa_o{hg+1}:')
    A(f'''L_pa_oe:
    s_waitcnt lgkmcnt(0)
    s_add_u32 {s(sHG)}, {s(sHG)}, 1
    s_and_b32 {s(sHG)}, {s(sHG)}, 7
    s_cmp_lg_u32 {s(sHG)}, {s(sG0)}
    s_cbranch_scc1 L_pa_grp''')
    dma_addr(1280)
    phase_start(R2, 1280, False, 40)
    A(f's_mul_i32 {s(sCol)}, {s(sG0)}, 160')
    G.tl(11)
    A.label('L_pa_oblk')
    block(R2, 1280, False, oreg)
    for ct in range(5):
        cvt(ct)
        A(f'''v_permlane16_swap_b32 {v(pk)}, {v(pk+2)}
        v_permlane16_swap_b32 {v(pk+1)}, {v(pk+3)}
        buffer_store_dwordx4 {v(pk,4)}, {v(vOst)}, {s(OUT,4)}, {s(sCol)} offen offset:{32*ct}''')
    A(f'''s_add_u32 {s(sCol)}, {s(sCol)}, 160
    s_cmp_eq_u32 {s(sCol)}, 1280
    s_cselect_b32 {s(sCol)}, 0, {s(sCol)}
    s_add_u32 {s(sCnt)}, {s(sCnt)}, 1
    s_cmp_lt_u32 {s(sCnt)}, 8
    s_cbranch_scc1 L_pa_oblk''')
    A.label('L_pa_end')
    A('s_waitcnt vmcnt(0)')
    if G.o.wb & 1: A('buffer_wbl2 sc1\ns_waitcnt vmcnt(0)')
    G.hd(13); G.tl(7, True)
    A('s_endpgm')
```

```python
from asmlib import v, a, s
from gen import *

def px(self):
    A = self.A; t = self.tag; ST = self.st; o = self.o
    r = RA(10, 248)
    vHx, vHk, vH16, vXFa, vKFa, vPFa, vFlD, vFl, vMx, vMy, vSum, vBig, vXp = [r() for _ in range(13)]
    Q = r(48, 4); K = r(48, 4); KMo = r(24, 4); S = r(20, 4); P = r(12, 4)
    sRho, sXOff, sKmOff, sPxOff, sC = range(40, 45); sMask = 48
    A.label(f'L_px{t}')
    self.lanes()
    A(f'''s_mul_i32 {s(sT0)}, {s(sW)}, 12288
    v_lshl_add_u32 {v(vHx)}, v0, 4, {s(sT0)}
    s_mul_i32 {s(sT0)}, {s(sW)}, 3072
    v_lshl_add_u32 {v(vH16)}, v0, 4, {s(sT0)}
    v_lshrrev_b32 v3, 2, v1
    v_lshlrev_b32 v3, 1, v3
    v_and_b32 v4, 1, v1
    v_or_b32 v3, v3, v4
    v_lshl_add_u32 v3, v2, 3, v3
    v_lshl_add_u32 {v(vHk)}, v3, 4, {s(sT0)}
    s_lshl_b32 {s(sT0)}, {s(sW)}, 7
    v_min_u32 v3, 11, v0
    v_lshl_add_u32 v3, v3, 2, {s(sT0)}
    v_add_u32 {v(vXFa)}, {XF}, v3
    v_min_u32 v3, 2, v0
    v_lshl_add_u32 v3, v3, 2, {s(sT0)}
    v_add_u32 {v(vKFa)}, {KF}, v3
    v_add_u32 {v(vXp)}, {BF}, v3
    s_add_u32 {s(sT0)}, {s(sT0)}, {PF}
    v_mov_b32 {v(vPFa)}, {s(sT0)}''')
    self.oob_unless(vPFa, 'v_cmp_eq_u32 vcc, 0, v0')
    A(f'''s_nop 0
    v_mov_b32 {v(vBig)}, {f32(-1e9 * 192 ** 0.5)}
    s_mov_b32 {s(sC)}, {f32(CSM)}''')
    for i in range(4):
        A(f'v_lshl_add_u32 v3, v2, 2, {i}\nv_cmp_le_u32 {s(sMask+2*i,2)}, v3, v1')
    for i in (3, 7, 10, 11): A(f'v_mov_b32 {v(P+i)}, 0')
    A('s_waitcnt vmcnt(0)\ns_barrier')
    Lg = A.uid('L_xg')
    A(f's_mov_b32 {s(sS)}, 0\ns_or_b32 {s(sT0)}, {s(sG)}, {s(sW)}\ns_cbranch_scc1 {Lg}c')
    self.coordinate()
    A.label(Lg + 'c')
    A('s_barrier')
    self.gwait()
    A(f's_cmp_lg_u32 {s(sW)}, 0\ns_cbranch_scc1 {Lg}')
    if o.par < 0:
        Lq = A.uid('L_pr')
        A(f'''s_lshl_b32 {s(sT2)}, {s(sG)}, 14
        s_add_u32 {s(sT2)}, {s(sT2)}, {PROBE}
        s_add_u32 {s(sT3)}, {s(sT2)}, 8192
        v_lshlrev_b32 v3, 4, v0''')
        for k in range(4):
            A(f'''buffer_store_dwordx4 {v(Q,4)}, v3, {s(WS,4)}, {s(sT2)} offen offset:{1024*k} sc1
            buffer_store_dwordx4 {v(Q,4)}, v3, {s(WS,4)}, {s(sT3)} offen offset:{1024*k} sc1''')
        A(f'''v_mov_b32 v3, 0
        s_mov_b32 s56, -1
        s_mov_b32 s57, -1
        s_mov_b32 s62, 0
        s_mov_b32 s63, 0
        s_waitcnt vmcnt(0)''')
        A.label(Lq)
        for k in range(2):
            A(f'''s_memtime s[58:59]
            s_waitcnt lgkmcnt(0)
            buffer_load_dword v4, v3, {s(WS,4)}, {s((sT2, sT3)[k])} offen sc1
            s_waitcnt vmcnt(0)
            s_memtime s[60:61]
            s_waitcnt lgkmcnt(0)
            s_sub_u32 s60, s60, s58
            s_min_u32 s{56+k}, s{56+k}, s60''')
        A(f'''buffer_load_dword v4, {v(vXFa)}, {s(WS,4)}, {s(sXB)} offen sc1
        v_add_u32 v3, 128, v3
        s_add_u32 s62, s62, 1
        s_waitcnt vmcnt(0)
        v_cmp_eq_u32 vcc, 0, v4
        s_cmp_eq_u64 vcc, 0
        s_addc_u32 s63, s63, 0
        s_cmp_ge_u32 s63, {o.nq}
        s_cselect_b32 s62, 32, s62
        s_min_u32 s58, s56, s57
        s_max_u32 s59, s56, s57
        s_sub_u32 s59, s59, s58
        s_cmp_ge_u32 s59, 150
        s_cselect_b32 s58, s58, -1
        s_cmp_le_u32 s58, {o.qthr}
        s_cselect_b32 s62, 32, s62
        s_cmp_lt_u32 s62, 32
        s_cbranch_scc1 {Lq}
        s_cmp_lt_u32 s57, s56
        s_cselect_b32 s62, 2, 1''')
    else:
        A(f's_lshr_b32 s62, {s(sXCC)}, 2\ns_xor_b32 s62, s62, {o.par}\ns_and_b32 s62, s62, 1\ns_add_u32 s62, s62, 1')
    A(f'''s_nop 0
    v_mov_b32 v3, {PARF}
    v_mov_b32 v4, s62
    buffer_store_dword v4, v3, {s(WS,4)}, {s(sXB)} offen{ST}
    s_cmp_lg_u32 {s(sG)}, 0
    s_cbranch_scc1 {Lg}
    v_mov_b32 v3, {self.GO + (12 if self.slow else 8)}
    buffer_store_dword v4, v3, {s(DBG,4)}, 0 offen sc1''')
    A.label(Lg)
    A('s_barrier')
    def wait_flag(addr):
        L = A.uid('L_pf'); A.label(L)
        A(f'buffer_load_dword {v(vFlD)}, {v(addr)}, {s(WS,4)}, {s(sXB)} offen sc1')
        self.budget()
        A(f's_waitcnt vmcnt(0)\nv_cmp_ge_u32 vcc, {s(sS)}, {v(vFlD)}\ns_cbranch_vccnz {L}')
    def xloads(reg, off):
        x = []
        for k in range(12):
            if k % 4 == 0: x.append(f's_add_u32 {s(sT0)}, {s(sXOff)}, {off + k*1024}')
            x.append(f'buffer_load_dwordx4 {v(reg+4*k,4)}, {v(vHx)}, {s(WS,4)}, {s(sT0)} offen offset:{(k%4)*1024} sc1')
        return x
    if o.x & 32:
        A(f'v_mov_b32 {v(vFl)}, 99\nbuffer_store_dword {v(vFl)}, {v(vPFa)}, {s(WS,4)}, {s(sXB)} offen\ns_endpgm')
    A(f's_add_u32 {s(sXOff)}, {s(sXB)}, {S8B}')
    wait_flag(vXp)
    for x in xloads(K, KX) + xloads(Q, QX): A(x)
    A('s_waitcnt vmcnt(0)')
    LP = f'L_px_loop{t}'; A.label(LP)
    A(f'''s_and_b32 {s(sT0)}, {s(sS)}, 3
    s_mul_i32 {s(sT1)}, {s(sT0)}, {S4}
    s_add_u32 {s(sT1)}, {s(sT1)}, {s(sXB)}
    s_add_u32 {s(sKmOff)}, {s(sT1)}, {KM}
    s_add_u32 {s(sPxOff)}, {s(sT1)}, {PXB}
    s_add_u32 {s(sT0)}, {s(sS)}, 1
    v_mov_b32 {v(vFl)}, {s(sT0)}
    s_and_b32 {s(sT0)}, {s(sT0)}, 3
    s_mul_i32 {s(sT1)}, {s(sT0)}, {S8}
    s_add_u32 {s(sT1)}, {s(sT1)}, {S8B}
    s_add_u32 {s(sXOff)}, {s(sXB)}, {s(sT1)}''')
    for ks in range(6):
        for d, kt, rt in ((0, 0, 0), (8, 0, 1), (12, 1, 1)):
            A(f'v_mfma_f32_16x16x32_bf16 {v(S+d,4)}, {v(K+24*kt+4*ks,4)}, {v(Q+24*rt+4*ks,4)}, {v(S+d,4) if ks else 0}')
    for d in (0, 12):
        for i in range(4):
            A(f'v_cndmask_b32 {v(S+d+i)}, {v(vBig)}, {v(S+d+i)}, {s(sMask+2*i,2)}')
    wait_flag(vKFa)
    for k in range(6):
        A(f'buffer_load_dwordx4 {v(KMo+4*k,4)}, {v(vHk)}, {s(WS,4)}, {s(sKmOff)} offen offset:{k*512} sc1')
    for ks in range(6):
        A(f's_waitcnt vmcnt({5-ks})')
        for d, rt in ((4, 0), (16, 1)):
            A(f'v_mfma_f32_16x16x32_bf16 {v(S+d,4)}, {v(KMo+4*ks,4)}, {v(Q+24*rt+4*ks,4)}, {v(S+d,4) if ks else 0}')
    Lfin = A.uid('L_pxl')
    A(f's_cmp_eq_u32 {s(sS)}, {o.nsteps - 1}\ns_cbranch_scc1 {Lfin}')
    real = A; nxt = xloads(K, KX) + xloads(Q, QX); body = []
    A = lambda txt: body.extend(x.strip() for x in txt.split('\n') if x.strip())
    def allred(op, x, y):
        A(f'''v_mov_b32 {v(y)}, {v(x)}
        v_permlane16_swap_b32 {v(x)}, {v(y)}
        {op} {v(x)}, {v(x)}, {v(y)}
        v_mov_b32 {v(y)}, {v(x)}
        v_permlane32_swap_b32 {v(x)}, {v(y)}
        {op} {v(x)}, {v(x)}, {v(y)}''')
    for regs, outs in (([0,1,2,3,4,5], [0,1,2]), ([8,9,10,11,16,17,12,13,14,15], [4,5,6,8,9])):
        R = [S + x for x in regs]
        A(f'v_max_f32 {v(vMx)}, {v(R[0])}, {v(R[1])}')
        for i in range(2, len(R), 2): A(f'v_max3_f32 {v(vMx)}, {v(vMx)}, {v(R[i])}, {v(R[i+1])}')
        allred('v_max_f32', vMx, vMy)
        A(f'v_mul_f32 {v(vMx)}, {f32(-CSM)}, {v(vMx)}')
        for x in R: A(f'v_fma_f32 {v(x)}, {v(x)}, {s(sC)}, {v(vMx)}')
        for x in R: A(f'v_exp_f32 {v(x)}, {v(x)}')
        A(f'v_add_f32 {v(vSum)}, {v(R[0])}, {v(R[1])}')
        for x in R[2:]: A(f'v_add_f32 {v(vSum)}, {v(vSum)}, {v(x)}')
        allred('v_add_f32', vSum, vMy)
        A(f'v_rcp_f32 {v(vSum)}, {v(vSum)}')
        for x in R: A(f'v_mul_f32 {v(x)}, {v(x)}, {v(vSum)}')
        for i, oo in enumerate(outs): A(f'v_cvt_pk_bf16_f32 {v(P+oo)}, {v(R[2*i])}, {v(R[2*i+1])}')
    A = real
    def finish():
        for k in range(3):
            A(f'buffer_store_dwordx4 {v(P+4*k,4)}, {v(vH16)}, {s(WS,4)}, {s(sPxOff)} offen offset:{k*1024}{ST}')
        A(f's_waitcnt vmcnt(0)\nbuffer_store_dword {v(vFl)}, {v(vPFa)}, {s(WS,4)}, {s(sXB)} offen{ST}')
    for n, x in enumerate(body):
        if n % 4 == 0 and nxt: A(nxt.pop(0))
        A(x)
    for x in nxt: A(x)
    finish()
    A(f's_add_u32 {s(sS)}, {s(sS)}, 1\ns_branch {LP}')
    A.label(Lfin)
    for x in body: A(x)
    finish()
    A('s_endpgm')
```

```python
from asmlib import v, a, s
from gen import *

def proj(self, QK):
    A = self.A; t = self.tag; ST = self.st; o = self.o
    role = 'qkv' if QK else 'v'
    LA = 2 if QK else 3
    LX0, LX1, LS2, LMISC = 0, 40960, 81920, 122880
    LMEM = LMISC; LT = LMEM + 10240; LKX = LT + 2048
    r = RA(10, 240)
    vXdma, vXb0, vXb1, vMd4, vMd1, vProbe, vA0, vIdx, vPr, vXst, vFl, vBF, vNeg, vTW, vTR0, vPrA = [r() for _ in range(16)]
    Aop = r(40, 4); acc = r(8, 4); Z = r(8, 4); xf = r(24, 4); xacc = r(16, 4); pk = r(8, 4); tq = r(2, 2)
    if QK:
        (vTR1, vSCst, vKMst, vKxW, vKxR, vKF, vKxWs, vKxRs, vPl0, vPl1, vPl2, vPl3, vTrig, vTrD, vMst, vMclr, vSclr, vMx, vMy) = [r() for _ in range(19)]
        Kx = r(8, 4); S = r(4, 4); PB = r(16, 4); racc = r(8, 4); rp = r(4, 4); SELB = r(6, 2); SELA = SELB + 2
    else:
        vVMst, vVclr, vXF, vXp, vTrig, vTrD, vEf, vEn, vBa, vOst, vOl, vOut, vOloc = [r() for _ in range(13)]
        fw = r(8, 4); fin = r(8, 4); ft = r(8, 4); SEL2 = 160
    sB, sCur, sClr, sKmOff, sX0, sX1, sXSeg, sXbuf, sMm0, sDelta, sF0, sF1, sMark, sPart, sThr, sW0, sD1, sXp = range(40, 58)
    sLo8 = 58; sFwL, sFwS, sFinL, sFinR = sKmOff, sPart, sThr, 60
    A.label(f'L_{role}{t}')
    if QK:
        self.srd(R0, P_WQ, 640 * 6144 * 2); self.srd(R1, P_WK, 640 * 6144 * 2)
        A(f's_mov_b32 {s(sB)}, {s(sR)}')
    else:
        self.srd(R0, P_WV, 640 * 6144 * 2)
        A(f's_sub_u32 {s(sB)}, {s(sR)}, {R_V}\ns_lshl_b32 {s(sB)}, {s(sB)}, 1')
    self.srd(R3, P_BX, 2048 * 640 * 2)
    self.lanes()
    vWdma = pk; vWr = pk + 1
    A(f'''v_lshrrev_b32 v3, 3, v0              ; r8
    v_and_b32 v4, 7, v0                        ; pp
    s_lshl_b32 {s(sT0)}, {s(sW)}, 3
    v_add_u32 v5, {s(sT0)}, v3
    s_and_b32 {s(sT1)}, {s(sW)}, 1
    s_lshl_b32 {s(sT1)}, {s(sT1)}, 2
    v_and_b32 v6, 2, v3
    v_or_b32 v6, {s(sT1)}, v6
    v_xor_b32 v6, v6, v4
    v_lshlrev_b32 v6, 4, v6
    v_mul_u32_u24 v7, 12288, v5
    s_mul_i32 {s(sT2)}, {s(sG)}, 1536
    s_lshl_b32 {s(sT3)}, {s(sB)}, 7
    s_add_u32 {s(sT2)}, {s(sT2)}, {s(sT3)}
    v_add3_u32 {v(vWdma)}, v6, v7, {s(sT2)}
    v_lshrrev_b32 v6, 1, v3
    v_or_b32 v6, {s(sT1)}, v6
    v_xor_b32 v6, v6, v4
    v_lshlrev_b32 v6, 4, v6
    v_mul_u32_u24 v7, 1280, v5
    v_add_u32 {v(vXdma)}, v6, v7''')
    def xdma_begin(buf_s_or_imm):
        A(f's_lshl_b32 {s(sT0)}, {s(sW)}, 10\ns_add_u32 m0, {s(sT0)}, {buf_s_or_imm}')
    def xdma(ln):
        A(f'buffer_load_dwordx4 {v(vXdma)}, {s(R3,4)}, {s(sXSeg)} offen offset:{ln*128} lds')
        if ln < 9: A('s_add_u32 m0, m0, 3968')
    stages = [(0, 0), (1, 0), (0, 1), (1, 1)]
    bufs = [LS2, LX1, LMISC]
    def wdma(i):
        m, half = stages[i]
        srd = (R0, R1)[m] if QK else R0
        A(f's_lshl_b32 {s(sT0)}, {s(sW)}, 10\ns_add_u32 m0, {s(sT0)}, {bufs[i%3]}\ns_mov_b32 {s(sT1)}, {half*320*12288 + (0 if QK else 128*m)}')
        for k in range(10):
            A(f'buffer_load_dwordx4 {v(vWdma)}, {s(srd,4)}, {s(sT1)} offen{" nt" if o.nt & 2 else ""} lds')
            if k < 9: A(f's_add_u32 m0, m0, 4096\ns_add_u32 {s(sT1)}, {s(sT1)}, {32*12288}')
    self.tl(4)
    wdma(0); wdma(1); wdma(2)
    A(f's_mov_b32 {s(sXSeg)}, 0'); xdma_begin(LX0)
    for ln in range(10): xdma(ln)
    if not QK and o.touch:
        A(f'''s_lshl_b32 {s(sT3)}, {s(sB)}, 1
        s_add_u32 {s(sT3)}, {s(sT3)}, {s(sW)}
        s_mul_i32 {s(sT3)}, {s(sT3)}, 7168
        s_add_u32 {s(sT3)}, {s(sT3)}, {OL}
        s_add_u32 s61, {s(sT3)}, {s(sXB)}''')
    self.tl(5)

    def head_part(b, hl, p):
        A(f's_mul_i32 {s(hl)}, {s(b)}, 86\ns_lshr_b32 {s(hl)}, {s(hl)}, 8\ns_mul_i32 {s(p)}, {s(hl)}, 3\ns_sub_u32 {s(p)}, {s(b)}, {s(p)}')
    sHl, sP, sHl1, sP1 = 60, 59, 62, 63
    head_part(sB, sHl, sP)
    A(f's_add_u32 {s(sT0)}, {s(sB)}, 1'); head_part(sT0, sHl1, sP1)
    A(f'''v_lshrrev_b32 v3, 1, v2
    v_and_b32 v5, 1, v2
    s_lshl_b32 {s(sT0)}, {s(sW)}, 9
    v_lshlrev_b32 v6, 4, v1
    v_lshl_add_u32 v6, v3, 8, v6
    v_add_u32 v6, {s(sT0)}, v6
    s_mul_i32 {s(sT0)}, {s(sHl)}, 12288
    s_lshl_b32 {s(sT1)}, {s(sP)}, 11
    s_add_u32 {s(sT0)}, {s(sT0)}, {s(sT1)}
    v_mul_u32_u24 v7, 6144, v5
    v_add3_u32 {v(vXst)}, v6, v7, {s(sT0)}
    v_mov_b32 {v(vNeg)}, -1''')
    if QK:
        A(f'''s_mov_b32 {s(sD1)}, {KX - QX}
        v_lshl_add_u32 {v(vKxW)}, v5, 11, v6
        v_add_u32 {v(vKxW)}, {LKX}, {v(vKxW)}''')
        A(f'''s_mul_i32 {s(sT0)}, {s(sB)}, 1280
        s_add_u32 {s(sT0)}, {s(sT0)}, {SC}
        v_lshlrev_b32 v6, 1, v5
        v_or_b32 v7, v6, v3                        ; bitswap(g)
        v_lshl_add_u32 v7, v7, 4, v1
        v_lshlrev_b32 v7, 2, v7
        v_add_u32 v7, 1024, v7
        v_or_b32 v6, v6, v1
        v_lshl_add_u32 v6, v3, 4, v6
        v_lshlrev_b32 v6, 4, v6
        s_sub_u32 {s(sT1)}, {s(sW)}, 1
        s_lshl_b32 {s(sT1)}, {s(sT1)}, 9
        v_add_u32 v6, {s(sT1)}, v6
        s_cmp_eq_u32 {s(sW)}, 0
        s_cselect_b64 vcc, -1, 0
        v_cndmask_b32 v6, v6, v7, vcc
        v_add_u32 {v(vSCst)}, {s(sT0)}, v6
        s_lshl_b32 {s(sT1)}, {s(sW)}, 8
        s_add_u32 {s(sT1)}, {s(sT1)}, {s(sT0)}
        v_lshl_add_u32 {v(vSclr)}, v0, 2, {s(sT1)}
        v_and_b32 v4, 2, v1''')
        self.oob_unless(vSCst, 'v_cmp_eq_u32 vcc, 0, v4')
        A(f'''s_lshl_b32 {s(sT0)}, {s(sB)}, 10
        v_lshrrev_b32 v3, 2, v1
        v_lshlrev_b32 v3, 1, v3
        v_and_b32 v6, 1, v1
        v_or_b32 v3, v3, v6
        v_lshl_add_u32 v3, v2, 3, v3
        v_lshl_add_u32 {v(vKMst)}, v3, 4, {s(sT0)}''')
        self.oob_unless(vKMst, 'v_cmp_ne_u32 vcc, 0, v4')
        A(f'''v_and_b32 v6, 9, v1
        v_lshl_or_b32 v6, v4, 1, v6
        v_and_b32 v7, 4, v1
        v_lshrrev_b32 v7, 1, v7
        v_or_b32 v6, v6, v7
        v_lshlrev_b32 v6, 4, v6
        v_lshl_add_u32 v6, v2, 8, v6
        s_cmp_eq_u32 {s(sW)}, 2
        s_cselect_b32 {s(sT0)}, 2048, 0
        s_add_u32 {s(sT0)}, {s(sT0)}, {LKX}
        v_add_u32 {v(vKxR)}, {s(sT0)}, v6''')
        A(f'''s_lshl_b32 {s(sT0)}, {s(sHl)}, 7
        s_lshl_b32 {s(sT1)}, {s(sP)}, 2
        s_add_u32 {s(sT1)}, {s(sT1)}, {s(sT0)}
        s_add_u32 {s(sT1)}, {s(sT1)}, {KF}
        s_cmp_eq_u32 {s(sW)}, 3
        s_cselect_b32 {s(sT1)}, {s(sT1)}, {OOB}
        s_cselect_b32 {s(sW0)}, -1, {0 if o.onep else -1}
        v_mov_b32 {v(vKF)}, {s(sT1)}''')
        self.oob_unless(vKF, 'v_cmp_eq_u32 vcc, 0, v0')
        A(f'v_add_u32 {v(vBF)}, {BF - KF}, {v(vKF)}')
        A(f'''s_mul_i32 {s(sT0)}, {s(sR)}, {PBLK}
        {'s_lshl_b32 %s, %s, 11' % (s(sT1), s(sW)) if not o.lay else 's_and_b32 %s, %s, 1' % (s(sT1), s(sW)) + chr(10) + 's_mul_i32 %s, %s, %d' % (s(sT1), s(sT1), o.lay & 0xffff) + chr(10) + 's_add_u32 %s, %s, %s' % (s(sT0), s(sT0), s(sT1)) + chr(10) + 's_lshr_b32 %s, %s, 1' % (s(sT1), s(sW)) + chr(10) + 's_mul_i32 %s, %s, %d' % (s(sT1), s(sT1), o.lay >> 16)}
        s_add_u32 {s(sT0)}, {s(sT0)}, {s(sT1)}
        s_lshl_b32 {s(sT2)}, {s(sR)}, 10
        s_lshl_b32 {s(sT1)}, {s(sW)}, 8
        s_add_u32 {s(sT2)}, {s(sT2)}, {s(sT1)}
        s_cmp_lt_u32 {s(sR)}, 10
        s_cselect_b32 {s(sT0)}, {s(sT0)}, {OOB}
        s_cselect_b32 {s(sT2)}, {s(sT2)}, {OOB}
        s_lshl_b32 {s(sT1)}, {s(sG)}, 8
        v_lshlrev_b32 v3, 4, v0
        v_xor_b32 v3, {s(sT1)}, v3
        v_add_u32 {v(vPl0)}, {s(sT0)}, v3
        v_xor_b32 v3, 1024, v3
        v_add_u32 {v(vPl1)}, {s(sT0)}, v3
        s_min_u32 {s(sT0)}, {s(sR)}, 9
        s_lshl_b32 {s(sT0)}, {s(sT0)}, 7
        s_add_u32 {s(sT0)}, {s(sT0)}, {TF}
        s_add_u32 {s(sT0)}, {s(sT0)}, {s(sXB)}
        v_and_b32 v3, {0 if o.tone else 3}, v0
        v_lshl_add_u32 {v(vTrig)}, v3, 2, {s(sT0)}
        v_lshl_add_u32 {v(vMclr)}, v0, 2, {s(sT2)}
        v_lshl_add_u32 {v(vMst)}, v1, 4, {s(sT2)}''')
        self.oob_unless(vMst, 'v_cmp_eq_u32 vcc, 0, v2')
        self.sel_consts(SELB)
    else:
        A(f'''s_mul_i32 {s(sD1)}, {s(sHl1)}, 12288
        s_lshl_b32 {s(sT1)}, {s(sP1)}, 11
        s_add_u32 {s(sD1)}, {s(sD1)}, {s(sT1)}
        s_sub_u32 {s(sD1)}, {s(sD1)}, {s(sT0)}
        s_lshl_b32 {s(sT0)}, {s(sB)}, 10
        s_lshl_b32 {s(sT1)}, {s(sW)}, 8
        s_add_u32 {s(sT1)}, {s(sT1)}, {s(sT0)}
        s_add_u32 {s(sT1)}, {s(sT1)}, {VM}
        v_lshl_add_u32 {v(vVclr)}, v0, 2, {s(sT1)}
        v_and_b32 v6, 60, v0
        v_bfe_u32 v7, v0, 1, 1
        v_or_b32 v6, v6, v7
        v_and_b32 v7, 1, v0
        v_lshl_or_b32 v6, v7, 1, v6
        s_and_b32 {s(sT0)}, {s(sW)}, 1
        s_lshl_b32 {s(sT0)}, {s(sT0)}, 3
        v_xor_b32 v6, {s(sT0)}, v6
        v_lshl_add_u32 {v(vVMst)}, v6, 2, {s(sT1)}''')
        A(f'''s_lshl_b32 {s(sT0)}, {s(sHl)}, 5
        s_lshl_b32 {s(sT1)}, {s(sHl1)}, 5
        v_mov_b32 v3, {s(sT0)}
        v_mov_b32 v4, {s(sT1)}
        v_mov_b32 v6, {s(sP)}
        v_mov_b32 v7, {s(sP1)}
        v_cmp_eq_u32 vcc, 0, v0
        v_cndmask_b32 v3, v4, v3, vcc
        v_cndmask_b32 v6, v7, v6, vcc
        v_add_u32 v4, v3, v6
        s_cmp_eq_u32 {s(sW)}, 3
        s_cselect_b32 {s(sT1)}, 0, {OOB}
        s_add_u32 {s(sT1)}, {s(sT1)}, {BF + 12}
        v_lshl_add_u32 {v(vBF)}, v4, 2, {s(sT1)}
        v_lshl_add_u32 v4, v6, 2, v3
        s_lshl_b32 {s(sT1)}, {s(sW)}, 2
        s_add_u32 {s(sT1)}, {s(sT1)}, {XF}
        v_lshl_add_u32 {v(vXF)}, v4, 2, {s(sT1)}''')
        self.oob_unless(vBF, 'v_cmp_gt_u32 vcc, 2, v0')
        A(f'''v_cndmask_b32 {v(vXF)}, v9, {v(vXF)}, vcc
        s_lshl_b32 {s(sT0)}, {s(sB)}, 1
        s_add_u32 {s(sT0)}, {s(sT0)}, {s(sW)}
        s_sub_u32 {s(sT0)}, {s(sT0)}, 4
        s_lshl_b32 {s(sT0)}, {s(sT0)}, 11
        s_cmp_eq_u32 {s(sB)}, 0
        s_cselect_b32 {s(sT0)}, {OOB}, {s(sT0)}
        v_lshl_add_u32 {v(vXp)}, v0, 4, {s(sT0)}
        v_mov_b32 {v(vTrig)}, {TF}''')
    A(f'''v_lshrrev_b32 v3, 2, v1              ; r = c>>2
    v_and_b32 v4, 3, v1                        ; cc
    v_and_b32 v5, 1, v2                        ; g&1
    v_lshl_add_u32 v6, v2, 3, v3
    v_lshlrev_b32 v6, 7, v6                    ; (8g+r)*128
    v_and_b32 v7, 2, v3
    v_lshl_or_b32 v7, v5, 2, v7                ; f
    v_lshrrev_b32 v8, 1, v4
    s_lshl_b32 {s(sT0)}, {s(sW)}, 1
    v_or_b32 v8, {s(sT0)}, v8
    v_xor_b32 v7, v7, v8
    v_lshl_add_u32 v6, v7, 4, v6
    v_and_b32 v7, 1, v4
    v_lshl_add_u32 v6, v7, 3, v6''')
    for i in range(3): A(f'v_add_u32 {v(vWr+i)}, {bufs[i]}, v6')
    A(f's_lshl_b32 {s(sT0)}, {s(sW)}, 9\ns_add_u32 {s(sT0)}, {s(sT0)}, {LT}')
    if QK:
        for eh, reg in ((0, vTR0), (1, vTR1)):
            A(f'''v_xor_b32 v6, {eh}, v5
            v_lshl_add_u32 v6, v6, 2, v3
            v_lshl_add_u32 v6, v2, 3, v6
            v_lshlrev_b32 v6, 5, v6
            v_lshl_or_b32 v7, v5, 1, {eh}
            v_xor_b32 v7, v7, v4
            v_lshl_add_u32 v6, v7, 3, v6
            v_add_u32 {v(reg)}, {LT}, v6''')
        A(f'''v_lshrrev_b32 v6, 3, v1
        v_lshlrev_b32 v6, 2, v6
        v_xor_b32 v6, v6, v1
        v_lshlrev_b32 v6, 5, v6
        v_xor_b32 v7, v2, v3
        v_lshl_add_u32 v6, v7, 3, v6
        v_add_u32 {v(vTW)}, {s(sT0)}, v6''')
    A(f'''v_and_b32 v7, 2, v1
    v_cmp_ne_u32 vcc, 0, v7
    v_mov_b32 v6, 0x4444
    v_mov_b32 v8, 0xeeee
    v_cndmask_b32 {v(vIdx)}, v6, v8, vcc
    v_lshlrev_b32 v6, 4, v0
    v_add_u32 {v(vA0)}, {LMEM}, v6
    s_mul_i32 {s(sT0)}, {s(sW)}, 2560
    v_lshl_add_u32 {v(vMd4)}, v0, 4, {s(sT0)}
    v_lshl_add_u32 {v(vMd1)}, v0, 2, {s(sT0)}
    s_add_u32 {s(sMm0)}, {s(sT0)}, {LMEM}
    v_mul_u32_u24 v6, {0 if o.noprobe else 40}, v0
    v_add_u32 {v(vProbe)}, {s(sMm0)}, v6
    v_mul_u32_u24 v6, {0 if o.noprobe else 164}, v0
    v_min_u32 v6, 10236, v6
    v_add_u32 {v(vPrA)}, {LMEM}, v6
    v_lshrrev_b32 v6, 3, v1
    v_lshlrev_b32 v6, 10, v6
    v_and_b32 v7, 7, v1
    v_lshl_add_u32 v6, v7, 7, v6
    v_lshrrev_b32 v7, 1, v1
    v_xor_b32 v7, v7, v2
    v_lshl_add_u32 {v(vXb0)}, v7, 4, v6
    v_xor_b32 {v(vXb1)}, 64, {v(vXb0)}''')
    waits = [30, 30, 30, 10]
    self.tl(6)
    for i in range(4):
        m, half = stages[i]
        A(f's_waitcnt vmcnt({waits[i]})\ns_barrier')
        for ks in range(10):
            for eh in range(2):
                A(f'ds_read_b64_tr_b16 {a(80*m + 4*(half*10+ks) + 2*eh, 2)}, {v(vWr + i%3)} offset:{ks*4096 + eh*512}')
        A('s_waitcnt lgkmcnt(0)')
        if i < 2: A('s_barrier')
        if i == 0: wdma(3)
        if i == 1:
            A(f's_mov_b32 {s(sXSeg)}, 40960'); xdma_begin(LX1)
            for ln in range(10): xdma(ln)
        if i == 3 and not QK and o.touch:
            A('v_lshlrev_b32 v3, 4, v0')
            for k in range(7): A(f'buffer_load_dwordx4 v[248:251], v3, {s(WS,4)}, s61 offen sc1\ns_add_u32 s61, s61, 1024')
        self.tl(8 + i)

    XD = 3
    TD = o.edep if o.epos else 4
    def xrd1(ks, rt):
        A(f'ds_read_b128 {v(xf + 8*(ks%XD) + 4*rt, 4)}, {v(vXb1 if ks & 1 else vXb0)} offset:{(ks>>1)*4096 + rt*2048}')
    def xrd(ks):
        for rt in range(2): xrd1(ks, rt)
    def xstores():
        if o.x & 16: return
        for m in range(2): A(f'buffer_store_dwordx4 {v(pk+4*m,4)}, {v(vXst)}, {s(WS,4)}, {s((sX0, sX1)[m])} offen{ST}')
    def mem_dma():
        A(f'''buffer_load_dwordx4 {v(vMd4)}, {s(WS,4)}, {s(sCur)} offen sc1 lds
        buffer_load_dwordx4 {v(vMd4)}, {s(WS,4)}, {s(sCur)} offen offset:1024 sc1 lds
        buffer_load_dword {v(vMd1)}, {s(WS,4)}, {s(sCur)} offen offset:2048 sc1 lds
        buffer_load_dword {v(vMd1)}, {s(WS,4)}, {s(sCur)} offen offset:2304 sc1 lds''')
    trig = f'buffer_load_dword {v(vTrD)}, {v(vTrig)}, {s(WS,4)}, 0 offen sc1'
    def trig_load(): A(trig)
    def part_loads(cp, dst):
        A(f'''buffer_load_dwordx4 {v(PB+8*dst,4)}, {v((vPl0, vPl2)[cp])}, {s(WS,4)}, {s(sPart)} offen sc1
        buffer_load_dwordx4 {v(PB+8*dst+4,4)}, {v((vPl1, vPl3)[cp])}, {s(WS,4)}, {s(sPart)} offen sc1''')
    def red_wait():
        self.stamp(role, 't0')
        self.spin(trig, f'v_cmp_gt_u32 vcc, {s(sThr)}, {v(vTrD)}', TD, True)
        A('s_barrier')
    def red_try(b, younger, Lfail):
        A(f'''s_waitcnt vmcnt({younger + 1})
        v_mfma_f32_16x16x32_bf16 {v(racc,4)}, {v(SELA,4)}, {v(b,4)}, 0
        v_mfma_f32_16x16x32_bf16 {v(racc+4,4)}, {v(SELB,4)}, {v(b,4)}, 0
        s_waitcnt vmcnt({younger})
        v_mfma_f32_16x16x32_bf16 {v(racc,4)}, {v(SELA,4)}, {v(b+4,4)}, {v(racc,4)}
        v_mfma_f32_16x16x32_bf16 {v(racc+4,4)}, {v(SELB,4)}, {v(b+4,4)}, {v(racc+4,4)}
        v_cmp_u_f32 vcc, {v(racc)}, {v(racc)}''')
        for q in range(4): A(f'v_cvt_pk_bf16_f32 {v(rp+q)}, {v(racc+2*q)}, {v(racc+2*q+1)}')
        A(f's_cbranch_vccnz {Lfail}')
    def red_sum(order):
        Lp, Lc = A.uid('L_pp'), A.uid('L_pc')
        self.stamp(role, 'gi')
        red_try(PB, 2 * (len(order) - 1), Lp)
        A.label(Lc)
        A(f'buffer_store_dwordx4 {v(rp,4)}, {v(vMst)}, {s(WS,4)}, {s(sCur)} offen{ST}')
        self.stamp(role, 'mp')
        if o.dump:
            A(f'''s_and_b32 {s(sT1)}, {s(sG)}, 6
            s_mul_i32 {s(sT0)}, {s(sS)}, {2*MEM_SLOT}
            s_and_b32 {s(sT2)}, {s(sG)}, 1
            s_mul_i32 {s(sT2)}, {s(sT2)}, {MEM_SLOT}
            s_add_u32 {s(sT0)}, {s(sT0)}, {s(sT2)}
            s_add_u32 {s(sT0)}, {s(sT0)}, {DUMP + (2<<20) - 2*MEM_SLOT}
            s_cmp_eq_u32 {s(sT1)}, 0
            s_cselect_b32 {s(sT0)}, {s(sT0)}, {DUMP}
            buffer_store_dwordx4 {v(rp,4)}, {v(vMst)}, {s(WS,4)}, {s(sT0)} offen''')
        def cold():
            for k in range(2):
                b = PB + 8*k
                if k: A.label(f'{Lp}_1')
                part_loads(k ^ 1, k ^ 1)
                self.count(1 if k == 0 else 1000); self.budget()
                A(f'v_max_u32 {v(vMx)}, {v(b)}, {v(b+1)}')
                for i in range(1, 4): A(f'v_max3_u32 {v(vMx)}, {v(vMx)}, {v(b+2*i)}, {v(b+2*i+1)}')
                A(f'v_cmp_eq_u32 vcc, -1, {v(vMx)}\ns_cbranch_vccz {Lc}')
                red_try(PB + 8*(k ^ 1), 0, f'{Lp}_1' if k == 0 else Lp)
                A(f's_branch {Lc}')
        self.cold.append((Lp, cold))

    def fin_loads():
        A(f's_cmp_lt_i32 {s(sFinR)}, 0\ns_cselect_b32 {s(sFinL)}, {s(sXB)}, {s(sFinL)}')
        for k in range(2): A(f'buffer_load_dwordx4 {v(fin+4*k,4)}, {v(vOl)}, {s(WS,4)}, {s(sFinL)} offen offset:{1024*k} sc1')
    def fin_out():
        Lf = A.uid('L_fin')
        A(f's_cmp_lt_i32 {s(sFinR)}, 0\ns_cbranch_scc1 {Lf}')
        a0, a1 = [self.fin_rows(fin + 4*k, ft + 4*k, vOut, sFinR, sLo8, SEL2, 32*k) for k in range(2)]
        for x, y in zip(a0, a1): A(x); A(y)
        A.label(Lf)
    def forward(younger):
        Lf = A.uid('L_fw')
        A(f's_waitcnt vmcnt({younger})\ns_cmp_lt_i32 {s(sFinR)}, {-4*32*2560}\ns_cbranch_scc1 {Lf}c')
        A.label(Lf)
        for k in range(2): A(f'buffer_store_dwordx4 {v(fw+4*k,4)}, {v(vOst)}, {s(WS,4)}, {s(sFwS)} offen offset:{1024*k} sc1')
        def cold():
            for i in range(8): A(f'v_mov_b32 {v(fw+i)}, -1')
            A(f's_add_u32 {s(sFwS)}, {s(sFwS)}, {4*OUTP_SLOT}\ns_branch {Lf}')
        self.cold.append((Lf + 'c', cold))

    def gemm(dma, fill=(), loop=False):
        fill = list(fill)
        if not loop: xrd(0); xrd(1)
        vm = []
        st = {'flag': not (loop and QK), 'ta': (200 if QK else 64) if loop else 0, 'n': 0, 'clr': 0}
        def clr(reg, off):
            A(f'buffer_store_dword {v(vNeg)}, {v(reg)}, {s(WS,4)}, {s(sClr)} offen offset:{off}{ST}'); st['clr'] -= 1
        if loop and not QK:
            vm.append((128, lambda: [A(f'buffer_load_dwordx4 {v(fw+4*k,4)}, {v(vOloc)}, {s(WS,4)}, {s(sFwL)} offen offset:{1024*k} sc1') for k in range(2)]))
            vm.append((128, fin_loads))
            vm.append((128, lambda: [A(f'buffer_load_dwordx4 v[248:251], {v(vXp)}, {s(R3,4)}, {s(sXp)} offen offset:{1024*k}') for k in range(2)]))
            vm.append((128, lambda: forward(4)))
        if loop:
            for reg, off in (((vSclr, 0), (vMclr, 0), (vSclr, 256)) if QK else ((vVclr, 0), (vVclr, 1024))):
                vm.append((24, lambda reg=reg, off=off: clr(reg, off))); st['clr'] += 1
        if dma:
            xdma_begin(s(sXbuf))
            vm += [(64, lambda k=k: xdma(k) if not (loop and o.x & 256) else None) for k in range(10)]
        if loop and QK:
            vm.insert(o.fp, (24, lambda: (A(f's_waitcnt vmcnt({o.fp})\nbuffer_store_dword {v(vFl)}, {v(vKF)}, {s(WS,4)}, {s(sXB)} offen{ST}'), st.update(flag=True))))
        ev = []; order = []
        if loop and QK:
            ev = [(o.k1 - d, trig_load) for d in range(o.esp*(TD - 1), 0, -o.esp)] + [(o.k1, red_wait)]
            half = lambda h: A(f'buffer_load_dwordx4 {v(PB+4*h,4)}, {v((vPl0, vPl1)[h])}, {s(WS,4)}, {s(sPart)} offen sc1')
            ev.append((o.k1 + o.ka, lambda: half(0)))
            ev.append((o.k1 + o.ka + o.ksplit, lambda: (half(1), self.stamp(role, 't1'), order.append('A'))))
            assert [e[0] for e in ev] == sorted(e[0] for e in ev)
        if loop and not QK and o.epos:
            ev = [(o.epos + d, lambda reg=reg: A(f'buffer_store_dword {v(vFl)}, {v(reg)}, {s(WS,4)}, 0 offen sc1')) for reg, d in ((vEf, 0), (vEn, o.enear))]
        def events(n):
            k = 0
            while ev and ev[0][0] <= n:
                if ev[0][1] is red_wait: assert not vm and not fill, (len(vm), len(fill))
                ev.pop(0)[1](); k += 1
            return k
        def mf(m, ks, rt):
            d = v(xacc + 8*m + 4*rt, 4)
            A('s_nop 3' if (loop and o.x & 64 and ks) else f'v_mfma_f32_16x16x32_bf16 {d}, {a(80*m + 4*ks, 4)}, {v(xf + 8*(ks%XD) + 4*rt, 4)}, {d if ks else 0}')
            st['n'] += 1
            return 2 * events(st['n'])
        A('s_waitcnt lgkmcnt(2)')
        for ks in range(18):
            for n in range(4):
                used = mf(n // 2, ks, n & 1)
                if n < 2 and not (loop and o.x & 128 and ks > 0): xrd1(ks + 2, n); used += 1
                if n == 2 and vm and st['ta'] <= 16 * st['n'] + ((o.tslack if QK else o.tslackv) if loop else 0):
                    c, f = vm.pop(0); f(); st['ta'] += c; used += 2
                    if c < 64 and vm and vm[0][0] < 64 and st['clr']: c, f = vm.pop(0); f(); st['ta'] += c
                if n == 3: A(f's_waitcnt lgkmcnt({2 if ks < 17 else 0})'); used += 1
                for _ in range(o.fd - used):
                    if fill: A(fill.pop(0))
        assert not fill and (not QK or not vm)
        while vm: vm.pop(0)[1]()
        def epi(m):
            x = []
            for rt in range(2):
                for i in range(2):
                    b = xacc + 8*m + 4*rt + 2*i
                    x.append(f'v_cvt_pk_bf16_f32 {v(pk + 4*m + 2*rt + i)}, {v(b)}, {v(b+1)}')
            x.append(f'v_permlane16_swap_b32 {v(pk+4*m)}, {v(pk+4*m+2)}')
            x.append(f'v_permlane16_swap_b32 {v(pk+4*m+1)}, {v(pk+4*m+3)}')
            if m == 1 and QK: x.append(f'ds_write_b128 {v(vKxWs)}, {v(pk+4,4)}')
            return x
        tog = [f'v_add_u32 {v(vXb0)}, {s(sDelta)}, {v(vXb0)}', f'v_add_u32 {v(vXb1)}, {s(sDelta)}, {v(vXb1)}',
               f's_sub_u32 {s(sXbuf)}, {s(sXbuf)}, {s(sDelta)}', f's_sub_u32 {s(sDelta)}, 0, {s(sDelta)}']
        for m in range(2):
            for ks in (18, 19):
                for rt in range(2):
                    mf(m, ks, rt)
                    if tog: A(tog.pop(0))
        for x in epi(0) + epi(1): A(x)
        if loop and QK:
            while 'A' not in order: ev.pop(0)[1]()
            events(81)
            kxr = f'ds_read_b128 {v(Kx,4)}, {v(vKxRs)}\nds_read_b128 {v(Kx+4,4)}, {v(vKxRs)} offset:1024'
            if not o.mb & 4: xstores(); order.append('X')
            if not o.mb & 2:
                A(kxr)
                for x in late: A(x)
            events(999)
            red_sum(order)
            if o.mb & 1: A('s_barrier')
            if o.mb & 4: xstores()
            for _ in range(o.dly): A('s_nop 3')
            if o.mb & 2:
                A(kxr)
                for x in late: A(x)
        else:
            xstores()
            if loop: A('s_waitcnt vmcnt(18)'); fin_out()
    def set_x(seg):
        A(f'''s_add_u32 {s(sX0)}, {s(sXB)}, {S8B + seg*S8 + QX if QK else seg*S4 + VX}
        s_add_u32 {s(sX1)}, {s(sX0)}, {s(sD1)}
        s_mov_b32 {s(sXSeg)}, {40960*(seg+1)}''')
        if QK: A(f'v_add_u32 {v(vKxWs)}, {4096*seg}, {v(vKxW)}')
    L = lambda txt: [x.strip() for x in txt.split('\n') if x.strip()]
    setup = L(f'''s_and_b32 {s(sF0)}, {s(sS)}, 3
    s_mul_i32 {s(sPart)}, {s(sF0)}, {PART_SLOT}''') if QK else []
    setup += L(f'''s_add_u32 {s(sF1)}, {s(sS)}, {LA}
    s_and_b32 {s(sF0)}, {s(sF1)}, 3
    s_mul_i32 {s(sF0)}, {s(sF0)}, {S8 if QK else S4}
    s_add_u32 {s(sF0)}, {s(sF0)}, {S8B + QX if QK else VX}
    s_add_u32 {s(sX0)}, {s(sXB)}, {s(sF0)}
    s_add_u32 {s(sX1)}, {s(sX0)}, {s(sD1)}''')
    if QK: setup += L(f'''s_and_b32 {s(sF0)}, {s(sF1)}, 3
    s_lshl_b32 {s(sF0)}, {s(sF0)}, 12
    v_add_u32 {v(vKxWs)}, {s(sF0)}, {v(vKxW)}''')
    setup += L(f'''s_add_u32 {s(sS)}, {s(sS)}, 1
    s_mov_b32 {s(sMark)}, 0
    s_and_b32 {s(sF0)}, {s(sS)}, 3
    s_mul_i32 {s(sF1)}, {s(sF0)}, {S4}
    s_add_u32 {s(sCur)}, {s(sXB)}, {s(sF1)}
''')
    if QK: setup += L(f'''s_and_b32 {s(sThr)}, {s(sS)}, {s(sW0)}
    s_lshl_b32 {s(sF0)}, {s(sF0)}, 12
    v_add_u32 {v(vKxRs)}, {s(sF0)}, {v(vKxR)}
    s_add_u32 {s(sKmOff)}, {s(sCur)}, {KM}''')
    late = L(f'''s_add_u32 {s(sF0)}, {s(sS)}, 2
    s_and_b32 {s(sF0)}, {s(sF0)}, 3
    s_mul_i32 {s(sF0)}, {s(sF0)}, {S4}
    s_add_u32 {s(sClr)}, {s(sXB)}, {s(sF0)}
    s_add_u32 {s(sF0)}, {s(sS)}, {LA + 1}
    s_min_u32 {s(sF0)}, {s(sF0)}, 63
    s_mul_i32 {s(sXSeg)}, {s(sF0)}, 40960
    s_add_u32 {s(sF1)}, {s(sS)}, 1
    v_mov_b32 {v(vFl)}, {s(sF1)}
    s_mov_b32 m0, {s(sMm0)}''') + [f'v_mov_b32 {v(acc+i)}, 0' for i in range(8)]
    if not QK: late += L(f'''s_add_u32 {s(sF0)}, {s(sS)}, 6
    s_min_u32 {s(sF0)}, {s(sF0)}, 63
    s_mul_i32 {s(sXp)}, {s(sF0)}, 40960
    s_and_b32 {s(sF0)}, {s(sS)}, 3
    s_mul_i32 {s(sF1)}, {s(sF0)}, {OL_SLOT}
    s_add_u32 {s(sFwL)}, {s(sF1)}, {s(sXB)}
    s_mul_i32 {s(sF1)}, {s(sF0)}, {OUTP_SLOT}
    s_add_u32 {s(sFwS)}, {s(sF1)}, {OUTP}
    s_xor_b32 {s(sF0)}, {s(sF0)}, 2
    s_mul_i32 {s(sF1)}, {s(sF0)}, {OUTP_SLOT}
    s_add_u32 {s(sFinL)}, {s(sF1)}, {OUTP}
    s_sub_u32 {s(sF1)}, {s(sS)}, 6
    s_mul_i32 {s(sFinR)}, {s(sF1)}, {32*2560}''')

    A(f's_mov_b32 {s(sDelta)}, 40960\ns_mov_b32 {s(sXbuf)}, {LX1}\ns_mov_b32 {s(sS)}, -1')
    set_x(0)
    gemm(False)
    self.tl(2); self.hd(8)
    self.gwait()
    self.tl(3)
    for seg in range(1, LA):
        A('s_waitcnt vmcnt(0) lgkmcnt(0)')
        if not QK: A(f'v_mov_b32 {v(vFl)}, {seg}\nbuffer_store_dword {v(vFl)}, {v(vXF)}, {s(WS,4)}, {s(sXB)} offen{ST}')
        A('s_barrier')
        set_x(seg)
        gemm(True, setup if seg == LA - 1 else ())
    self.tl(12)
    if QK:
        Lpf = A.uid('L_pf')
        A(f'v_mov_b32 v3, {PARF}')
        A.label(Lpf)
        A(f'buffer_load_dword v4, v3, {s(WS,4)}, {s(sXB)} offen sc1')
        self.budget()
        A(f'''s_waitcnt vmcnt(0)
        v_readfirstlane_b32 {s(sT0)}, v4
        s_cmp_eq_u32 {s(sT0)}, 0
        s_cbranch_scc1 {Lpf}
        s_and_b32 {s(sT0)}, {s(sT0)}, 2
        s_lshl_b32 {s(sT0)}, {s(sT0)}, 12
        v_mov_b32 v3, {s(sT0)}
        v_mov_b32 v4, {16384 if o.loc else 'v3'}
        v_cmp_gt_u32 vcc, 16, v0
        v_cndmask_b32 v3, v3, v4, vcc
        v_add_u32 {v(vPl0)}, v3, {v(vPl0)}
        v_add_u32 {v(vPl1)}, {s(sT0)}, {v(vPl1)}
        v_add_u32 {v(vPl2)}, {16384 if o.ncopy == 4 else 0}, {v(vPl0)}
        v_add_u32 {v(vPl3)}, {16384 if o.ncopy == 4 else 0}, {v(vPl1)}
        ds_read_b128 {v(Kx,4)}, {v(vKxRs)}
        ds_read_b128 {v(Kx+4,4)}, {v(vKxRs)} offset:1024''')
        if o.tl: A(f'v_writelane_b32 v255, {s(sT0)}, 20')
        if o.x & 512: A(f'v_mov_b32 {v(vPl0)}, {OOB}\nv_mov_b32 {v(vPl2)}, {OOB}')
        if o.epos:
            self.side0()
            A(f'''s_and_b32 {s(sT1)}, {s(sG)}, 1
            s_lshl_b32 {s(sT1)}, {s(sT1)}, 12
            s_lshr_b32 {s(sT2)}, {s(sG)}, 2
            s_lshl_b32 {s(sT2)}, {s(sT2)}, 13
            s_add_u32 {s(sT1)}, {s(sT1)}, {s(sT2)}
            s_and_b32 {s(sT2)}, {s(sG)}, 2
            s_lshl_b32 {s(sT2)}, {s(sT2)}, 13
            s_add_u32 {s(sT1)}, {s(sT1)}, {s(sT2)}
            s_xor_b32 {s(sT1)}, {s(sT1)}, {s(sT0)}
            s_add_u32 {s(sT1)}, {s(sT1)}, {EF}
            v_lshrrev_b32 v4, 2, v0
            v_lshl_add_u32 v3, v4, 9, {s(sT1)}
            v_cmp_ne_u32 {s(sT2,2)}, {s(sG)}, v4
            v_cmp_gt_u32 vcc, 32, v0
            s_and_b64 vcc, vcc, {s(sT2,2)}
            s_and_b32 vcc_lo, vcc_lo, {s(sW0)}
            v_cndmask_b32 {v(vTrig)}, {v(vTrig)}, v3, vcc''')
        for x in late: A(x)
        self.hd(9)

    elif o.epos:
        self.side0()
        A(f'''v_and_b32 v3, 1, v0
        v_lshlrev_b32 v3, 12, v3
        v_bfe_u32 v5, v0, 2, 1
        v_lshl_add_u32 v3, v5, 13, v3
        v_bfe_u32 v4, v0, 1, 1
        v_lshl_add_u32 v3, v4, 14, v3
        v_xor_b32 v3, {s(sT0)}, v3
        s_lshl_b32 {s(sT1)}, {s(sG)}, 9
        s_add_u32 {s(sT1)}, {s(sT1)}, {EF}
        s_xor_b32 {s(sW0)}, {s(sW)}, 3
        s_or_b32 {s(sW0)}, {s(sW0)}, {s(sB)}
        s_cselect_b32 {s(sT1)}, {OOB}, {s(sT1)}
        v_add_u32 {v(vEf)}, {s(sT1)}, v3''')
        self.oob_unless(vEf, 'v_cmp_gt_u32 vcc, 8, v0')
        self.oob_unless(vEf, f'v_cmp_ne_u32 vcc, {s(sG)}, v0')
        A(f'''s_lshr_b32 {s(sT1)}, {s(sG)}, 2
        v_cmp_eq_u32 vcc, {s(sT1)}, v5
        v_cndmask_b32 {v(vEn)}, v9, {v(vEf)}, vcc
        v_cndmask_b32 {v(vEf)}, {v(vEf)}, v9, vcc
        v_and_b32 v3, 7, v0
        v_min_u32 v3, 5, v3
        v_bfe_u32 v4, v0, 3, 2
        v_lshlrev_b32 v4, 7, v4
        v_lshl_add_u32 v3, v3, 2, v4
        v_add_u32 {v(vBa)}, {BF + 32}, v3
        s_mov_b32 s61, {s(sT0)}
        s_lshl_b32 {s(sT3)}, {s(sB)}, 1
        s_add_u32 {s(sT3)}, {s(sT3)}, {s(sW)}
        s_lshl_b32 {s(sT3)}, {s(sT3)}, 1
        s_sub_u32 {s(sT3)}, {s(sT3)}, 8''')
        self.lanes()
        self.out_addr(sT3, vOst, vOl, vOut, vOloc, sLo8, SEL2)
        A(f'v_xor_b32 {v(vOst)}, s61, {v(vOst)}\nv_xor_b32 {v(vOl)}, s61, {v(vOl)}\ns_cmp_lg_u32 {s(sB)}, 0\ns_cselect_b64 vcc, -1, 0\nv_mov_b32 v9, {OOB}')
        for reg in (vOst, vOl, vOut, vOloc): A(f'v_cndmask_b32 {v(reg)}, v9, {v(reg)}, vcc')

    self.tl(13)
    LP = f'L_{role}_loop{t}'
    A.label(LP)
    if not QK:
        for x in late: A(x)
        if o.vgate:
            Lv = A.uid('L_vg')
            A.label(Lv); A(f'buffer_load_dword {v(vTrD)}, {v(vTrig)}, {s(WS,4)}, {s(sXB)} offen sc1'); self.budget()
            A(f's_waitcnt vmcnt(0)\nv_cmp_gt_u32 vcc, {s(sS)}, {v(vTrD)}\ns_cbranch_vccnz {Lv}')
    Lredo, Lpoll, Lnan, Lcont = A.uid('L_redo'), A.uid('L_poll'), A.uid('L_nan'), A.uid('L_cont')
    mem_dma()
    self.stamp(role, 'p0')
    A.label(Lpoll)
    mem_dma()
    self.budget(); self.count(1, 'mem')
    A(f'''s_waitcnt vmcnt(4)
    ds_read_b32 {v(vPr)}, {v(vProbe)}
    s_waitcnt lgkmcnt(0)
    v_cmp_eq_u32 vcc, -1, {v(vPr)}
    s_cbranch_vccnz {Lpoll}''')
    self.stamp(role, 'p1')
    A('s_barrier')
    self.stamp(role, 'b1')
    def rdA(tt):
        A(f'ds_read_b128 {v(Aop+4*tt,4)}, {v(vA0)} offset:{tt*1024}')
    def sm(m, tt):
        A(f'v_smfmac_f32_16x16x64_bf16 {v(acc+4*m,4)}, {v(Aop+4*tt,4)}, {a(80*m+8*tt,8)}, {v(vIdx)}')
    NI = o.ni if QK else 5
    seq = [(m, tt) for tt in range(NI) for m in range(2)] + [(0, tt) for tt in range(NI, 10)] + [(1, tt) for tt in range(NI, 10)]
    e0 = 10 + NI
    PRE = o.pre0 if QK else 4; issued = PRE; waited = -1
    for tt in range(PRE): rdA(tt)
    bpos = o.bpos if QK else o.bposv
    bfl = lambda off=0: A(f'buffer_store_dword {v(vFl)}, {v(vBF)}, {s(WS,4)}, {s(sXB)} offen offset:{off}{ST}')
    def zrd(u): A(f'ds_read_b64_tr_b16 {v(Z+4*u,2)}, {v(vTR0)} offset:{u*1024}\nds_read_b64_tr_b16 {v(Z+4*u+2,2)}, {v(vTR1)} offset:{u*1024}')
    def scores(src, y=0):
        A(f'''s_waitcnt lgkmcnt({2+y})
        v_mfma_f32_16x16x32_bf16 {v(S,4)}, {v(src,4)}, {v(Z,4)}, 0
        s_waitcnt lgkmcnt({y})
        v_mfma_f32_16x16x32_bf16 {v(S,4)}, {v(src+4,4)}, {v(Z+4,4)}, {v(S,4)}''')
    vst = lambda m: A(f'buffer_store_dword {v(tq+m)}, {v(vVMst)}, {s(WS,4)}, {s(sCur)} offen offset:{1024*m}{ST}')
    cvt = lambda m: A(f'v_cvt_pk_bf16_f32 {v(tq+m)}, {v(acc+4*m)}, {v(acc+4*m+1)}')
    cmpu = lambda: A(f'v_cmp_u_f32 vcc, {v(acc)}, {v(acc+1)}')
    brn = lambda: A(f's_cbranch_vccnz {Lnan}\n{Lcont}:')
    side = {e0 + 2: [lambda: A(f'v_add_f32 {v(acc)}, {v(acc)}, {v(acc+2)}\nv_add_f32 {v(acc+1)}, {v(acc+1)}, {v(acc+3)}')]}
    if QK:
        side.update({e0 + 3: [lambda: cvt(0), lambda: A(f'ds_write_b32 {v(vTW)}, {v(tq)}')], e0 + 4: [cmpu], e0 + 6: [brn],
                     e0 + 7: [lambda: A('s_waitcnt lgkmcnt(0)\ns_barrier'), lambda: self.stamp(role, 'ba'), lambda: zrd(0)], e0 + 8: [lambda: zrd(1)]})
    else:
        side.update({e0 + 3: [cmpu, lambda: cvt(0)], e0 + 5: [brn, lambda: vst(0)]})
    for n, (m, tt) in enumerate(seq):
        if n == e0: self.stamp(role, 'qe'); A.label(Lredo)
        if n == 1: self.stamp(role, 's1')
        if tt > waited: A(f's_waitcnt lgkmcnt({issued - 1 - tt})'); waited = tt
        sm(m, tt)
        if issued < 10: rdA(issued); issued += 1
        if n == bpos: bfl()
        for f in side.pop(n, []): f()
    for n in sorted(side):
        for f in side[n]: f()
    def post1():
        A(f'v_pk_add_f32 {v(acc+4,2)}, {v(acc+4,2)}, {v(acc+6,2)}')
        cvt(1)
    if QK:
        Lw0, Lw3, Ljoin = A.uid('L_w0'), A.uid('L_w3'), A.uid('L_join')
        A(f'''s_cmp_eq_u32 {s(sW)}, 0
        s_cbranch_scc1 {Lw0}
        s_cmp_eq_u32 {s(sW)}, 3
        s_cbranch_scc1 {Lw3}''')
        def tphase(wave):
            xs = lambda: (A(f'buffer_store_dwordx4 {v(S,4)}, {v(vSCst)}, {s(WS,4)}, {s(sCur)} offen{ST}'), self.stamp(role, 'sc'))
            if wave == 1 and o.xo == 2: scores(Kx)
            post1()
            A(f'ds_write_b32 {v(vTW)}, {v(tq+1)} offset:4')
            if wave == 1 and o.xo < 2: scores(Kx, 1)
            if wave == 1 and o.xo: xs()
            A('s_waitcnt lgkmcnt(0)\ns_barrier')
            if wave == 1 and not o.xo: xs()
            self.stamp(role, 'b2')
            if wave != 1: zrd(0); zrd(1)
            if wave == 3:
                bfl(32)
                A('s_waitcnt lgkmcnt(0)')
                xrd(0); xrd(1)
                A(f'''s_waitcnt lgkmcnt(0)
                buffer_store_dwordx4 {v(Z,4)}, {v(vKMst)}, {s(WS,4)}, {s(sKmOff)} offen{ST}
                buffer_store_dwordx4 {v(Z+4,4)}, {v(vKMst)}, {s(WS,4)}, {s(sKmOff)} offen offset:512{ST}''')
            else:
                if wave == 0: scores(Z)
                xrd(0); xrd(1)
                if wave == 0:
                    A(f'buffer_store_dword {v(S+2)}, {v(vSCst)}, {s(WS,4)}, {s(sCur)} offen{ST}')
                    A(f'buffer_store_dword {v(S+3)}, {v(vSCst)}, {s(WS,4)}, {s(sCur)} offen offset:8{ST}')
            if wave != 1: self.stamp(role, 'sc')
        tphase(1); A(f's_branch {Ljoin}')
        A.label(Lw0); tphase(0); A(f's_branch {Ljoin}')
        A.label(Lw3); tphase(3)
        A.label(Ljoin)
    else:
        post1(); vst(1)
        self.stamp(role, 'vm')
        bfl(32)
        xrd(0); xrd(1)
    Lend = A.uid('L_end')
    A(f's_cmp_eq_u32 {s(sS)}, {o.nsteps - 1}\ns_cbranch_scc1 {Lend}')
    if QK: self.tr_flush(role, 1)
    if not QK and o.epos:
        La = A.uid('L_an'); bl = f'buffer_load_dword {v(vTrD)}, {v(vBa)}, {s(WS,4)}, {s(sXB)} offen sc1'
        A(f's_cmp_lg_u32 {s(sW0)}, 0\ns_cbranch_scc1 {La}x')
        self.spin(bl, f'v_cmp_ge_u32 vcc, {s(sS)}, {v(vTrD)}', 7 if o.fpoll else 4)
        A.label(La + 'x')
        A('s_barrier')
    gemm(True, setup, True)
    self.stamp(role, 'ge')
    if not QK: self.tr_flush(role)
    A(f's_branch {LP}')
    A.label(Lend)
    if not QK: fin_loads()
    A('s_waitcnt vmcnt(0) lgkmcnt(0)')
    if not QK: fin_out(); A('s_waitcnt vmcnt(0)')
    if QK:
        A(f'buffer_store_dword {v(vFl)}, {v(vKF)}, {s(WS,4)}, {s(sXB)} offen{ST}')
        self.hd(10)
    if not QK and o.wb & 2:
        Lw = A.uid('L_wb')
        A(f's_cmp_lg_u32 {s(sW0)}, 0\ns_cbranch_scc1 {Lw}\nbuffer_wbl2 sc1\ns_waitcnt vmcnt(0)\n{Lw}:')
    self.stamp_out(role); self.tl(7, True)
    A('s_endpgm')
    A.label(Lnan)
    A(f's_cmp_eq_u32 {s(sMark)}, 1\ns_cbranch_scc1 {Lcont}\nv_lshlrev_b32 v1, 4, v0')
    A.label(Lnan + 'r')
    A(f's_mov_b32 {s(sT0)}, {s(sCur)}\nv_mov_b32 v2, 0')
    for k in range(10):
        A(f'buffer_load_dwordx4 {v(Aop+4*k,4)}, v1, {s(WS,4)}, {s(sT0)} offen sc1\ns_add_u32 {s(sT0)}, {s(sT0)}, 1024')
    self.budget()
    A('s_waitcnt vmcnt(0) lgkmcnt(0)')
    for k in range(20): A(f'v_max3_u32 v2, v2, {v(Aop+2*k)}, {v(Aop+2*k+1)}')
    A(f'v_cmp_eq_u32 vcc, -1, v2\ns_cbranch_vccnz {Lnan}r\ns_mov_b32 {s(sMark)}, 1')
    for i in range(8): A(f'v_mov_b32 {v(acc+i)}, 0')
    for m, tt in seq[:e0]: sm(m, tt)
    A(f's_branch {Lredo}')
```

```python
from asmlib import v, a, s
from gen import *

def wo(self):
    A = self.A; t = self.tag; ST = self.st; o = self.o
    LY = 0; YS = 24576; LPX = 98304; LE = 122880; ES = 1152; LVM = LE + 8192
    r = RA(10, 248)
    (vIdxU, vIdxP, vL16, vL4, vPst0, vOloc, vVr0, vMst, vEW, vER, vYW, vYW2, vYR, vYR2, vYWs, vYW2s, vYRs, vYR2s,
     vPXR, vPXRs, vOst, vOl, vOut, vFlA, vFlT, vFlTs, vFlD, vH16, vHsc, vHscm, vHvx, vMx, vMy, vPk, vHvm, vEf, vPclr, vYUs) = [r() for _ in range(38)]
    Y = r(32, 4); PA = r(4, 4); ONES = r(8, 4); SX = r(12, 4); SM = r(4, 2); SELB = r(6, 2); SELA = SELB + 2; vTfD = SM + 3; Dsum = r(4, 4); D = r(16, 4)
    VMo = r(12, 4); Yacc = r(16, 4); PB = r(8, 4); acc = r(8, 4); vM0 = PB; vN4 = PB + 4
    Pop = r(24, 4); Yop = r(16, 4); oacc = r(8, 4); fin = r(8, 4); ep = r(4, 2); Eop = PA; cc2 = r(2, 2); mm2 = r(2, 2); vTf = r(); vBFa = r(); vVr1 = vL4
    Uacc = Yacc
    WOr = 0; VXs = 96
    sJ, sPartOff, sPartClr, sCur, sNext, sVx0, sVx1, sVx2, sPxOff, sOst, sOst2, sOl, sOutRow, sVmM0, sPxM0, sF0, sF1, sPartClr2 = range(40, 58); sLo8 = 58; sCl = 60; SEL2 = 144
    A.label(f'L_wo{t}')
    self.srd(R0, P_WO, 6144 * 640 * 2); self.srd(R1, P_M0, 8 * 640 * 2)
    A(f's_sub_u32 {s(sJ)}, {s(sR)}, {R_WO}')
    self.lanes()
    vWdma0, vWdma1, vWr = Pop, Pop + 1, Pop + 2
    A(f'''v_lshrrev_b32 v3, 3, v0
    v_and_b32 v4, 7, v0
    v_and_b32 v6, 2, v3
    v_xor_b32 v6, v6, v4
    v_lshlrev_b32 v6, 4, v6
    v_mul_u32_u24 v7, 1280, v3
    s_lshl_b32 {s(sT0)}, {s(sG)}, 2
    s_add_u32 {s(sT0)}, {s(sT0)}, {s(sW)}
    s_mul_i32 {s(sT0)}, {s(sT0)}, {192*1280}
    s_lshl_b32 {s(sT1)}, {s(sJ)}, 7
    s_add_u32 {s(sT0)}, {s(sT0)}, {s(sT1)}
    v_add3_u32 {v(vWdma0)}, v6, v7, {s(sT0)}
    v_xor_b32 {v(vWdma1)}, 64, {v(vWdma0)}''')
    A(f'''s_mul_i32 {s(sT0)}, {s(sJ)}, {PBLK}
    {'s_lshl_b32 %s, %s, 11' % (s(sT1), s(sW)) if not o.lay else 's_and_b32 %s, %s, 1' % (s(sT1), s(sW)) + chr(10) + 's_mul_i32 %s, %s, %d' % (s(sT1), s(sT1), o.lay & 0xffff) + chr(10) + 's_add_u32 %s, %s, %s' % (s(sT0), s(sT0), s(sT1)) + chr(10) + 's_lshr_b32 %s, %s, 1' % (s(sT1), s(sW)) + chr(10) + 's_mul_i32 %s, %s, %d' % (s(sT1), s(sT1), o.lay >> 16)}
    s_add_u32 {s(sT0)}, {s(sT0)}, {s(sT1)}
    s_lshr_b32 {s(sT1)}, {s(sW)}, 1
    s_mul_i32 {s(sT1)}, {s(sT1)}, {o.rot & 1}
    s_xor_b32 {s(sT1)}, {s(sT1)}, {s(sG)}      ; the source position varies so that a workgroup's writes spread over all channels
    v_mul_u32_u24 v7, {2*(o.rot & 1)}, v2
    v_xor_b32 v7, {s(sT1)}, v7
    v_lshlrev_b32 v6, 4, v1
    v_lshl_add_u32 v7, v7, 8, v6
    v_lshl_add_u32 v7, v2, 13, v7
    v_add_u32 {v(vPst0)}, {s(sT0)}, v7
    v_lshlrev_b32 {v(vL16)}, 4, v0
    v_lshlrev_b32 {v(vL4)}, 2, v0
    v_add_u32 {v(vPclr)}, {s(sT0)}, {v(vL4)}''')
    for k in range(4):
        A(f's_xor_b32 {s(sT2)}, {s(sT1)}, {2*k*(o.rot & 1)}\ns_lshl_b32 {s(sT2)}, {s(sT2)}, 8\ns_add_u32 {s(sCl+k)}, {s(sT2)}, {8192*k}')
    if o.loc:
        assert o.ncopy == 2 and not o.rot & 1
        A(f'v_mov_b32 {v(vEf)}, {v(vPst0)}')
        self.oob_unless(vEf, 'v_cmp_eq_u32 vcc, 2, v2')
    if o.ncopy < 4: self.oob_unless(vPst0, f'v_cmp_gt_u32 vcc, {o.ncopy}, v2')
    A(f'''s_lshl_b32 {s(sT2)}, {s(sJ)}, 7
    s_lshl_b32 {s(sT3)}, {s(sW)}, 2
    s_add_u32 {s(sT2)}, {s(sT2)}, {s(sT3)}
    s_add_u32 {s(sT2)}, {s(sT2)}, {TF}
    v_mov_b32 {v(vTf)}, {s(sT2)}''')
    self.oob_unless(vTf, 'v_cmp_eq_u32 vcc, 0, v0')
    A(f'''s_lshl_b32 {s(sT2)}, {s(sW)}, 7
    s_add_u32 {s(sT2)}, {s(sT2)}, {BF}
    v_min_u32 v3, 5, v0
    v_lshl_add_u32 {v(vBFa)}, v3, 2, {s(sT2)}''')
    A(f'''s_lshl_b32 {s(sT0)}, {s(sJ)}, 2
    s_add_u32 {s(sT0)}, {s(sT0)}, {s(sW)}     ; tile
    s_lshl_b32 {s(sT1)}, {s(sT0)}, 8
    v_add_u32 {v(vMst)}, {s(sT1)}, v6''')
    self.oob_unless(vMst, 'v_cmp_eq_u32 vcc, 0, v2')
    A(f'''v_lshrrev_b32 v3, 2, v1
    v_and_b32 v7, 1, v1
    v_lshl_or_b32 v4, v3, 1, v7                ; row
    v_mul_u32_u24 v4, 1280, v4
    v_and_b32 v5, 2, v1
    v_lshl_add_u32 v4, v5, 1, v4
    s_lshl_b32 {s(sT1)}, {s(sT0)}, 5
    v_add_u32 v4, {s(sT1)}, v4
    v_lshlrev_b32 v6, 6, v3
    v_lshl_add_u32 v6, v7, 5, v6
    v_lshl_add_u32 v6, v2, 3, v6
    v_lshl_add_u32 v6, v5, 1, v6               ; Q*64 + j*32 + g*8 + kh*4
    s_mul_i32 {s(sT2)}, {s(sW)}, {ES}
    s_add_u32 {s(sT2)}, {s(sT2)}, {LE}
    v_add_u32 {v(vEW)}, {s(sT2)}, v6''')
    for q in range(4):
        A(f'buffer_load_dword {v(vM0+q)}, v4, {s(R1,4)}, 0 offen offset:{8*q}')
    for q in range(4): A(f'v_mov_b32 {v(vN4+q)}, -1')
    A(f's_mul_i32 {s(sT0)}, {s(sW)}, {YS}\ns_mov_b32 m0, {s(sT0)}\ns_mov_b32 {s(sT1)}, 0')
    for k in range(24):
        A(f'buffer_load_dwordx4 {v(vWdma1 if k & 1 else vWdma0)}, {s(R0,4)}, {s(sT1)} offen{" nt" if o.nt & 4 else ""} lds')
        if k < 23: A(f's_add_u32 m0, m0, 1024\ns_add_u32 {s(sT1)}, {s(sT1)}, {8*1280}')
    A('s_waitcnt vmcnt(24)')
    for q in range(4): A(f'v_min_u32 {v(vM0+q)}, -2, {v(vM0+q)}')
    A(f'''v_and_b32 v7, 2, v1
    v_cmp_ne_u32 vcc, 0, v7                    ; half
    v_mov_b32 v5, 0x4444
    v_mov_b32 v6, 0xeeee
    v_cndmask_b32 {v(vIdxU)}, v5, v6, vcc
    v_mov_b32 v5, 0xe484
    v_mov_b32 v6, 0xee9e
    v_cndmask_b32 v7, v5, v6, vcc
    v_mov_b32 v5, 0x84e4
    v_mov_b32 v6, 0x9eee
    v_cndmask_b32 v8, v5, v6, vcc
    v_cmp_gt_u32 vcc, 2, v2
    v_cndmask_b32 {v(vIdxP)}, v8, v7, vcc''')
    for i in range(8): A(f'v_mov_b32 {v(ONES+i)}, {0 if i in (3,7) else 0x3f803f80}')
    for ct in range(4): A(f'v_mov_b32 {v(Y+8*ct+3)}, 0\nv_mov_b32 {v(Y+8*ct+7)}, 0')
    for hb in range(2): A(f'v_mov_b32 {v(Yop+8*hb+6)}, 0\nv_mov_b32 {v(Yop+8*hb+7)}, 0')
    self.sel_consts(SELB)
    A(f'''v_mov_b32 {v(cc2)}, {f32(CSM)}
    v_mov_b32 {v(cc2+1)}, {f32(CSM)}
    s_lshl_b32 {s(sT0)}, {s(sW)}, 8
    s_add_u32 {s(sT0)}, {s(sT0)}, {LE}
    v_mul_u32_u24 v6, {ES}, v2
    v_lshl_add_u32 v6, v1, 3, v6
    v_add_u32 {v(vER)}, {s(sT0)}, v6
    s_mul_i32 {s(sT0)}, {s(sW)}, 1536
    v_add_u32 {v(vYW)}, {s(sT0)}, {v(vL16)}
    s_add_u32 {s(sT0)}, {s(sT0)}, 1024
    v_lshl_add_u32 {v(vYW2)}, v0, 3, {s(sT0)}
    s_mul_i32 {s(sT0)}, {s(sW)}, 6144
    v_add_u32 {v(vYR)}, {s(sT0)}, {v(vL16)}
    s_add_u32 {s(sT0)}, {s(sT0)}, 1024
    v_lshl_add_u32 {v(vYR2)}, v0, 3, {s(sT0)}
    v_add_u32 {v(vPXR)}, {LPX}, {v(vL16)}
    s_mul_i32 {s(sT0)}, {s(sW)}, 3072
    v_add_u32 {v(vH16)}, {s(sT0)}, {v(vL16)}
    v_add_u32 {v(vHvm)}, {VM}, {v(vH16)}
    s_add_u32 {s(sPxM0)}, {s(sT0)}, {LPX}
    s_mul_i32 {s(sT0)}, {s(sW)}, 3840
    s_add_u32 {s(sT0)}, {s(sT0)}, {SC}
    v_add_u32 {v(vHsc)}, {s(sT0)}, {v(vL16)}
    s_add_u32 {s(sT0)}, {s(sT0)}, 1024
    v_add_u32 {v(vHscm)}, {s(sT0)}, {v(vL4)}
    s_mul_i32 {s(sT0)}, {s(sW)}, 12288
    v_add_u32 {v(vHvx)}, {s(sT0)}, {v(vL16)}
    s_lshl_b32 {s(sT3)}, {s(sJ)}, 2
    s_add_u32 {s(sT3)}, {s(sT3)}, {s(sW)}''')
    self.out_addr(sT3, vOst, vOl, vOut, vOloc, sLo8, SEL2)
    A(f'''s_lshl_b32 {s(sT0)}, {s(sW)}, 7
    v_add_u32 v5, {s(sT0)}, {v(vL4)}
    v_add_u32 v6, {XF}, v5
    v_add_u32 v7, {PF - 48}, v5
    v_cmp_gt_u32 vcc, 12, v0
    v_cndmask_b32 {v(vFlA)}, v7, v6, vcc
    v_mov_b32 v5, -2
    v_cndmask_b32 {v(vFlT)}, v5, 3, vcc''')
    self.oob_unless(vFlA, 'v_cmp_gt_u32 vcc, 14, v0')
    A(f'v_mov_b32 v5, -1000\nv_cndmask_b32 {v(vFlT)}, v5, {v(vFlT)}, vcc')
    A(f'''v_and_b32 v4, 3, v1
    v_lshlrev_b32 v6, 6, v4
    v_lshl_add_u32 v6, v3, 3, v6
    v_lshl_add_u32 v6, v2, 8, v6
    v_and_b32 v5, 1, v2
    v_lshl_add_u32 v6, v5, 5, v6
    s_mul_i32 {s(sT0)}, {s(sW)}, 3072
    s_add_u32 {s(sVmM0)}, {s(sT0)}, {LVM}
    v_add_u32 {v(vVr0)}, {s(sVmM0)}, v6
    v_xor_b32 {v(vVr1)}, 32, {v(vVr0)}''')
    A(f'''v_and_b32 v4, 3, v1
    v_and_b32 v5, 1, v2
    v_lshl_add_u32 v6, v2, 3, v3
    v_lshlrev_b32 v6, 7, v6
    v_and_b32 v7, 2, v3
    v_lshl_or_b32 v7, v5, 2, v7
    v_lshrrev_b32 v8, 1, v4
    v_xor_b32 v7, v7, v8
    v_lshl_add_u32 v6, v7, 4, v6
    v_and_b32 v7, 1, v4
    v_lshl_add_u32 v6, v7, 3, v6
    s_mul_i32 {s(sT0)}, {s(sW)}, {YS}
    v_add_u32 v6, {s(sT0)}, v6''')
    for ct in range(4): A(f'v_xor_b32 {v(vWr+ct)}, {32*ct}, v6')
    A('s_waitcnt vmcnt(0)')
    for ct in range(4):
        for ks in range(6):
            for eh in range(2):
                A(f'ds_read_b64_tr_b16 {a(WOr + 24*ct + 4*ks + 2*eh, 2)}, {v(vWr+ct)} offset:{ks*4096 + eh*512}')
    A('s_waitcnt lgkmcnt(0)\ns_barrier')
    self.tl(8)
    self.tl(2)
    self.gwait()
    self.tl(3)
    A(f'buffer_store_dwordx4 {v(vM0,4)}, {v(vMst)}, {s(WS,4)}, {s(sXB)} offen{ST}')
    if o.touch and not self.slow:
        self.srd(R3, P_BX, 2048 * 640 * 2)
        A(f'''s_lshl_b32 {s(sT3)}, {s(sJ)}, 2
        s_add_u32 {s(sT3)}, {s(sT3)}, {s(sW)}
        s_lshl_b32 {s(sT3)}, {s(sT3)}, 10
        s_add_u32 {s(sT2)}, {s(sT3)}, 81920
        s_add_u32 {s(sT3)}, {s(sT3)}, {s(sXB)}''')
        for k in range(4):
            A(f'buffer_load_dwordx4 v[248:251], {v(vL16)}, {s(R3,4)}, {s(sT2)} offen\ns_add_u32 {s(sT2)}, {s(sT2)}, 40960')
        if o.loc:
            for k in range(4): A(f's_mov_b32 {s(sT2)}, {k*PART_SLOT}\nbuffer_load_dwordx4 v[248:251], {v(vEf)}, {s(WS,4)}, {s(sT2)} offen sc1')
        for k in range(12 if o.touch == 1 else 22):
            A(f'buffer_load_dwordx4 v[248:251], {v(vL16)}, {s(WS,4)}, {s(sT3)} offen sc1\ns_add_u32 {s(sT3)}, {s(sT3)}, 40960')

    def flag_issue():
        A(f'buffer_load_dword {v(vFlD)}, {v(vFlA)}, {s(WS,4)}, {s(sXB)} offen sc1')
    def flag_wait(cnt):
        Lw, Lok = A.uid('L_fw'), A.uid('L_fok')
        if cnt is not None: A(f's_waitcnt vmcnt({cnt})')
        A(f'v_cmp_lt_i32 vcc, {v(vFlD)}, {v(vFlTs)}\ns_cbranch_vccz {Lok}')
        A.label(Lw); flag_issue(); self.budget()
        A(f's_waitcnt vmcnt(0)\nv_cmp_lt_i32 vcc, {v(vFlD)}, {v(vFlTs)}\ns_cbranch_vccnz {Lw}')
        A.label(Lok)
    def vx_loads(k0=0, k1=12):
        for k in range(k0, k1):
            A(f'buffer_load_dwordx4 {a(VXs+4*k,4)}, {v(vHvx)}, {s(WS,4)}, {s((sVx0, sVx1, sVx2)[k//4])} offen offset:{(k%4)*1024} sc1')
    def px_dma():
        for k in range(3):
            A(f'buffer_load_dwordx4 {v(vH16)}, {s(WS,4)}, {s(sPxOff)} offen offset:{k*1024} sc1 lds')
    def yx(hook=None):
        ya = lambda ct: (Yacc + 8*ct) if ct < 2 else (Pop + 8*(ct - 2))
        n = 0
        for ks in range(6):
            for ct in range(4):
                for rt in range(2):
                    d = v(ya(ct) + 4*rt, 4)
                    A(f'v_mfma_f32_16x16x32_bf16 {d}, {a(VXs + 24*rt + 4*ks, 4)}, {a(WOr + 24*ct + 4*ks, 4)}, {d if ks else 0}')
                    n += 1
                    if hook: hook(n)
        post = []
        for ct in (2, 3, 0, 1):
            b = ya(ct); y = Y + 8*ct
            post += [f'v_cvt_pk_bf16_f32 {v(y)}, {v(b)}, {v(b+1)}', f'v_cvt_pk_bf16_f32 {v(y+1)}, {v(b+2)}, {v(b+3)}',
                     f'ds_write_b64 {v(vYWs)}, {v(y,2)} offset:{ct*6144}',
                     f'v_cvt_pk_bf16_f32 {v(y+4)}, {v(b+4)}, {v(b+5)}', f'v_cvt_pk_bf16_f32 {v(y+5)}, {v(b+6)}, {v(b+7)}',
                     f'ds_write_b64 {v(vYW2s)}, {v(y+4,2)} offset:{ct*6144}']
        return post
    def out_store(src=None):
        A(f'buffer_store_dwordx4 {v(oacc if src is None else src,4)}, {v(vOst)}, {s(WS,4)}, {s(sOst)} offen sc1')
    opack = [f'v_cvt_pk_bf16_f32 {v(oacc+q)}, {v(oacc+2*q)}, {v(oacc+2*q+1)}' for q in range(4)]
    opack += [f'v_mov_b32 {v(oacc+4+i)}, {v(oacc+i)}' for i in range(2)]
    opack += [f'v_mov_b32_dpp {v(oacc+i)}, {v(oacc+2+i)} row_ror:8 row_mask:0xf bank_mask:0xc' for i in range(2)]
    opack += [f'v_mov_b32_dpp {v(oacc+2+i)}, {v(oacc+4+i)} row_ror:8 row_mask:0xf bank_mask:0x3' for i in range(2)]
    def outpart(hook=None):
        def rd(h):
            pb = Pop + 12*(h & 1); yb = Yop + 8*(h & 1)
            A(f'ds_read_b128 {v(yb,4)}, {v(vYRs)} offset:{h*1536}')
            for k in range(2): A(f'ds_read_b128 {v(pb+4*k,4)}, {v(vPXRs)} offset:{h*3072 + k*1024}')
            A(f'ds_read_b64 {v(yb+4,2)}, {v(vYR2s)} offset:{h*1536}')
            A(f'ds_read_b128 {v(pb+8,4)}, {v(vPXRs)} offset:{h*3072 + 2048}')
        rd(0); rd(1)
        for h in range(4):
            pb = Pop + 12*(h & 1); yb = Yop + 8*(h & 1)
            if hook: hook(h)
            A(f's_waitcnt lgkmcnt({5 if h < 3 else 0})')
            A(f'''v_mfma_f32_16x16x32_bf16 {v(oacc,4)}, {v(pb,4)}, {v(yb,4)}, {v(oacc,4) if h else 0}
            v_mfma_f32_16x16x32_bf16 {v(oacc+4,4)}, {v(pb+4,4)}, {v(yb,4)}, {v(oacc+4,4) if h else 0}
            v_mfma_f32_16x16x32_bf16 {v(oacc+4,4)}, {v(pb+8,4)}, {v(yb+4,4)}, {v(oacc+4,4)}''')
            if h + 2 < 4: rd(h + 2)
    def L(txt): return [x.strip() for x in txt.split('\n') if x.strip()]
    def set_outpart(d):
        return L(f'''s_add_u32 {s(sF1)}, {s(sS)}, {d}
        s_and_b32 {s(sF0)}, {s(sF1)}, 3
        s_mul_i32 {s(sF0)}, {s(sF0)}, {YS}
        v_add_u32 {v(vYRs)}, {s(sF0)}, {v(vYR)}
        v_add_u32 {v(vYR2s)}, {s(sF0)}, {v(vYR2)}
        s_and_b32 {s(sF0)}, {s(sF1)}, 1
        s_mul_i32 {s(sF0)}, {s(sF0)}, 12288
        v_add_u32 {v(vPXRs)}, {s(sF0)}, {v(vPXR)}''')
    def set_ost(d):
        return L(f'''s_add_u32 {s(sF1)}, {s(sS)}, {d}
        s_and_b32 {s(sF0)}, {s(sF1)}, 3
        s_mul_i32 {s(sF0)}, {s(sF0)}, {OL_SLOT}
        s_add_u32 {s(sOst)}, {s(sF0)}, {s(sXB)}''')
    def set_px(d, xf=False):
        return L(f'''s_add_u32 {s(sF1)}, {s(sS)}, {d}
        s_and_b32 {s(sF0)}, {s(sF1)}, 3
        s_mul_i32 {s(sF0)}, {s(sF0)}, {S4}
        s_add_u32 {s(sF0)}, {s(sF0)}, {PXB}
        s_add_u32 {s(sPxOff)}, {s(sXB)}, {s(sF0)}
        s_and_b32 {s(sF0)}, {s(sF1)}, 1
        s_add_u32 {s(sF1)}, {s(sF1)}, 1
        {f'v_add_u32 {v(vFlTs)}, {s(sS)}, {v(vFlT)}' if xf else f'v_mov_b32 {v(vFlTs)}, -16'}
        v_writelane_b32 {v(vFlTs)}, {s(sF1)}, 12
        s_mul_i32 {s(sF0)}, {s(sF0)}, 12288
        s_add_u32 m0, {s(sPxM0)}, {s(sF0)}''')
    def fin_issue(dst=None):
        A(f'buffer_load_dwordx4 {v(fin if dst is None else dst,4)}, {v(vOl)}, {s(WS,4)}, {s(sOl)} offen sc1')
    def fin_done(src):
        for x in self.fin_rows(src, fin + 4, vOut, sOutRow, sLo8, SEL2): A(x)
    assert PART == 0
    nxtA = L(f'''s_mov_b32 {s(sOst2)}, {s(sPartClr)}
    s_add_u32 {s(sF1)}, {s(sS)}, 1
    v_mov_b32 {v(vYUs)}, {v(vYWs)}
    s_and_b32 {s(sF0)}, {s(sF1)}, 3
    s_mul_i32 {s(sPartOff)}, {s(sF0)}, {PART_SLOT}
    s_mul_i32 {s(sF1)}, {s(sF0)}, {S4}
    s_add_u32 {s(sCur)}, {s(sXB)}, {s(sF1)}
    s_xor_b32 {s(sF0)}, {s(sF0)}, 2
    s_mul_i32 {s(sPartClr)}, {s(sF0)}, {PART_SLOT}
    s_add_u32 {s(sF1)}, {s(sS)}, 2
    v_mov_b32 {v(vTfD)}, {s(sF1)}
    s_and_b32 {s(sF0)}, {s(sF1)}, 3
    s_mul_i32 {s(sNext)}, {s(sF0)}, {YS}''') + set_ost(-1) + set_outpart(-1)
    nxtB = L(f'''s_add_u32 {s(sS)}, {s(sS)}, 1
    s_mov_b32 m0, {s(sVmM0)}
    v_add_u32 {v(vYWs)}, {s(sNext)}, {v(vYW)}
    v_add_u32 {v(vYW2s)}, {s(sNext)}, {v(vYW2)}''')
    nxt2 = L(f'''s_add_u32 {s(sF1)}, {s(sS)}, 2
    s_and_b32 {s(sF0)}, {s(sF1)}, 3
    s_mul_i32 {s(sF0)}, {s(sF0)}, {S4}
    s_add_u32 {s(sF0)}, {s(sF0)}, {VX}
    s_add_u32 {s(sVx0)}, {s(sXB)}, {s(sF0)}
    s_add_u32 {s(sVx1)}, {s(sVx0)}, 4096
    s_add_u32 {s(sVx2)}, {s(sVx0)}, 8192''') + set_px(-1)
    nxtB += [f'v_pk_mul_f32 {v(x,2)}, {v(Yop+6,2)}, {v(Yop+6,2)}' for x in range(Uacc, Uacc+16, 2)]

    A(f'''s_mov_b32 {s(sS)}, -1
    v_add_u32 {v(vFlTs)}, -2, {v(vFlT)}
    s_add_u32 {s(sVx0)}, {s(sXB)}, {VX}
    s_add_u32 {s(sVx1)}, {s(sVx0)}, 4096
    s_add_u32 {s(sVx2)}, {s(sVx0)}, 8192
    v_mov_b32 {v(vYWs)}, {v(vYW)}
    v_mov_b32 {v(vYW2s)}, {v(vYW2)}''')
    flag_issue(); flag_wait(0); vx_loads(); A('s_waitcnt vmcnt(0)')
    for x in yx() + nxt2: A(x)
    A(f'v_add_u32 {v(vFlTs)}, -1, {v(vFlT)}')
    flag_issue(); flag_wait(0); vx_loads()
    for x in nxtA + nxtB: A(x)
    for x in list(range(D, D+16)) + list(range(Dsum, Dsum+4)): A(f'v_mov_b32 {v(x)}, 0')
    self.tl(4)

    LP = f'L_wo_loop{t}'
    A.label(LP)
    Lb, Lv, Lu = A.uid('L_bf'), A.uid('L_vm'), A.uid('L_u')
    bfl = f'buffer_load_dword {v(vMx)}, {v(vBFa)}, {s(WS,4)}, {s(sXB)} offen sc1'
    if o.tr or 'dr' in o.stamp: A(bfl + '\ns_waitcnt vmcnt(0)'); self.stamp('wo', 'dr')
    self.spin(bfl, f'v_cmp_ge_u32 vcc, {s(sS)}, {v(vMx)}', 7 if o.fpoll else 4)
    def vm_loads():
        for k in range(3):
            A(f'buffer_load_dwordx4 {v(vHvm)}, {s(WS,4)}, {s(sCur)} offen offset:{k*1024} sc1 lds')
    vm_loads()
    self.stamp('wo', 'bf')
    sxl = [f'buffer_load_dwordx4 {v(SX+4*p,4)}, {v(vHsc)}, {s(WS,4)}, {s(sCur)} offen offset:{p*1280} sc1' for p in range(3)]
    sml = [f'buffer_load_dword {v(SM+p)}, {v(vHscm)}, {s(WS,4)}, {s(sCur)} offen offset:{p*1280} sc1' for p in range(3)]
    def sc_loads():
        for x in sxl + sml: A(x)
    vrd = lambda tt: f'ds_read_b64_tr_b16 {v(VMo+4*tt,2)}, {v(vVr0)} offset:{tt*1024}\nds_read_b64_tr_b16 {v(VMo+4*tt+2,2)}, {v(vVr1)} offset:{tt*1024}'
    usm = [f'v_smfmac_f32_16x16x64_bf16 {v(Uacc+4*ct,4)}, {v(VMo+4*tt,4)}, {a(WOr+24*ct+8*tt,8)}, {v(vIdxU)}' for tt in range(3) for ct in range(4)]
    upost = []
    for ct in range(4):
        u = Uacc + 4*ct
        upost += [f'v_pk_add_f32 {v(u,2)}, {v(u,2)}, {v(u+2,2)}'] + ([f'v_cmp_u_f32 vcc, {v(u)}, {v(u+1)}'] if ct == 0 else [])
        upost += [f'v_cvt_pk_bf16_f32 {v(Y+8*ct+2)}, {v(u)}, {v(u+1)}', f'v_cvt_pk_bf16_f32 {v(Y+8*ct+6)}, {v(u)}, {v(u+1)}']
    uw = [f'ds_write_b32 {v(vYUs)}, {v(Y+8*ct+2)} offset:{ct*6144 + 8}' for ct in range(4)]
    seq = usm + upost
    for tt in range(3):
        A(f's_waitcnt vmcnt({2 - tt + (3 if tt > o.spos else 0)})'); A(vrd(tt))
        if tt == o.spos:
            for x in sxl: A(x)
    self.stamp('wo', 'vm')
    Ltail = f'L_wo_tail{t}'; last = f's_cmp_eq_u32 {s(sS)}, {o.nsteps-1}'
    A(last)
    for n, x in enumerate(seq):
        if n in (0, 4, 8): A(f's_waitcnt lgkmcnt({4 - n//2})')
        A(x)
        if 0 <= n - o.mpos < 3: A(sml[n - o.mpos])
    A(f's_cbranch_vccnz {Lv}')
    A.label(Lu)
    def cold_vm():
        self.count(1, 'wo')
        vm_loads(); self.budget()
        A(f'v_add_u32 v5, {s(sVmM0)}, {v(vL16)}\ns_waitcnt vmcnt(0)')
        for k in range(3): A(f'ds_read_b128 {v(VMo+4*k,4)}, v5 offset:{1024*k}')
        A(f's_waitcnt lgkmcnt(0)\nv_max_u32 v4, {v(VMo)}, {v(VMo+1)}')
        for i in range(1, 6): A(f'v_max3_u32 v4, v4, {v(VMo+2*i)}, {v(VMo+2*i+1)}')
        A(f'v_cmp_eq_u32 vcc, -1, v4\ns_cbranch_vccnz {Lv}')
        sc_loads()
        for tt in range(3): A(vrd(tt))
        for i in range(16): A(f'v_mov_b32 {v(Uacc+i)}, 0')
        A('s_waitcnt lgkmcnt(0)')
        for x in seq: A(x)
        A(f'{last}\ns_branch {Lu}')
    self.cold.append((Lv, cold_vm))
    self.stamp('wo', 'u')
    A(f's_cbranch_scc1 {Ltail}')
    Lsc, Lsp, Lsg = A.uid('L_sc'), A.uid('L_sp'), A.uid('L_sg')
    s0 = ep
    A.label(Lsc)
    A(f'''s_waitcnt vmcnt(4)
    v_pk_add_f32 {v(s0,2)}, {v(SX,2)}, {v(SX+4,2)}
    v_pk_add_f32 {v(s0+2,2)}, {v(SX+2,2)}, {v(SX+6,2)}
    s_waitcnt vmcnt(3)
    v_pk_add_f32 {v(s0,2)}, {v(s0,2)}, {v(SX+8,2)}
    v_pk_add_f32 {v(s0+2,2)}, {v(s0+2,2)}, {v(SX+10,2)}
    v_max3_f32 {v(vMx)}, {v(s0)}, {v(s0+1)}, {v(s0+2)}
    v_pk_add_f32 {v(mm2,2)}, {v(s0,2)}, {v(s0+2,2)}
    s_waitcnt vmcnt(0)
    v_add_f32 {v(vPk)}, {v(SM)}, {v(SM+1)}
    v_add_f32 {v(vPk)}, {v(vPk)}, {v(SM+2)}
    v_max3_f32 {v(vMx)}, {v(vMx)}, {v(s0+3)}, {v(vPk)}
    v_add_f32 {v(mm2)}, {v(mm2)}, {v(vPk)}
    v_max_f32_dpp {v(vMy)}, {v(vMx)}, {v(vMx)} quad_perm:[2,3,0,1] row_mask:0xf bank_mask:0xf
    v_max_f32_dpp {v(vMx)}, {v(vMx)}, {v(vMx)} quad_perm:[2,3,0,1] row_mask:0xf bank_mask:0xf
    v_cmp_u_f32 vcc, {v(mm2)}, {v(mm2+1)}
    v_permlane16_swap_b32 {v(vMx)}, {v(vMy)}
    v_max_f32 {v(vMx)}, {v(vMx)}, {v(vMy)}
    v_mov_b32 {v(vMy)}, {v(vMx)}
    s_cbranch_vccnz {Lsp}''')
    A.label(Lsg)
    self.stamp('wo', 'sc')
    tflag = f'buffer_store_dword {v(vTfD)}, {v(vTf)}, {s(WS,4)}, {s(sXB)} offen{ST}'
    if o.tpos == 'sc': A(tflag)
    A(f'''v_permlane32_swap_b32 {v(vMx)}, {v(vMy)}
    v_max_f32 {v(vMx)}, {v(vMx)}, {v(vMy)}
    v_mul_f32 {v(mm2)}, {f32(-CSM)}, {v(vMx)}
    v_pk_fma_f32 {v(s0,2)}, {v(s0,2)}, {v(cc2,2)}, {v(mm2,2)} op_sel_hi:[1,1,0]
    v_pk_fma_f32 {v(s0+2,2)}, {v(s0+2,2)}, {v(cc2,2)}, {v(mm2,2)} op_sel_hi:[1,1,0]
    v_fma_f32 {v(vPk)}, {v(vPk)}, {v(cc2)}, {v(mm2)}
    v_exp_f32 {v(s0)}, {v(s0)}
    v_exp_f32 {v(s0+1)}, {v(s0+1)}
    v_exp_f32 {v(s0+2)}, {v(s0+2)}
    v_exp_f32 {v(s0+3)}, {v(s0+3)}
    v_exp_f32 {v(vPk)}, {v(vPk)}
    v_cvt_pk_bf16_f32 {v(PA)}, {v(s0)}, {v(s0+1)}
    v_cvt_pk_bf16_f32 {v(PA+2)}, {v(s0+2)}, {v(s0+3)}
    v_cvt_pk_bf16_f32 {v(PA+1)}, {v(vPk)}, 0
    v_cvt_pk_bf16_f32 {v(PA+3)}, {v(vPk)}, 0
    v_smfmac_f32_16x16x64_bf16 {v(Dsum,4)}, {v(PA,4)}, {v(ONES,8)}, {v(vIdxP)}''')
    for ct in range(4):
        A(f'v_smfmac_f32_16x16x64_bf16 {v(D+4*ct,4)}, {v(PA,4)}, {v(Y+8*ct,8)}, {v(vIdxP)}')
        if ct == 2: A(f'v_add_f32 {v(Dsum)}, {v(Dsum)}, {v(Dsum+2)}\nv_add_f32 {v(Dsum+1)}, {v(Dsum+1)}, {v(Dsum+3)}')
    if o.tpos == 'm': A(tflag)
    A(f'''v_rcp_f32 {v(Dsum)}, {v(Dsum)}
    v_rcp_f32 {v(Dsum+1)}, {v(Dsum+1)}''')
    for ct in range(4):
        A(f'v_pk_add_f32 {v(D+4*ct,2)}, {v(D+4*ct,2)}, {v(D+4*ct+2,2)}')
        A(f'v_pk_mul_f32 {v(D+4*ct,2)}, {v(D+4*ct,2)}, {v(Dsum,2)}')
        A(f'v_cvt_pk_bf16_f32 {v(ep+ct)}, {v(D+4*ct)}, {v(D+4*ct+1)}')
        if ct & 1: A(f'ds_write2st64_b32 {v(vEW)}, {v(ep+ct-1)}, {v(ep+ct)} offset0:{ct-1} offset1:{ct}')
    self.stamp('wo', 'e')
    if o.tpos == 'e': A(tflag)
    if o.flpos == 'e': flag_issue()
    zr = [f'v_mov_b32 {v(x)}, 0' for x in list(range(D, D+16)) + list(range(Dsum, Dsum+4))]
    for x in zr[:10]: A(x)
    A(f'''s_waitcnt lgkmcnt(0)
    s_barrier
    ds_read_b64_tr_b16 {v(Eop,2)}, {v(vER)}
    ds_read_b64_tr_b16 {v(Eop+2,2)}, {v(vER)} offset:128''')
    if o.tpos == 'b': A(tflag)
    for x in zr[10:]: A(x)
    A(f'''s_waitcnt lgkmcnt(0)
    v_mfma_f32_16x16x32_bf16 {v(acc,4)}, {v(SELA,4)}, {v(Eop,4)}, 0
    v_mfma_f32_16x16x32_bf16 {v(acc+4,4)}, {v(SELB,4)}, {v(Eop,4)}, 0''')
    def pack(src):
        for q in range(4): A(f'v_cvt_pk_bf16_f32 {v(ep+q)}, {v(src+2*q)}, {v(src+2*q+1)}')
    if o.tpos == 'r': A(tflag)
    if o.flpos == 'r': flag_issue()
    pack(acc)
    lst = f'buffer_store_dwordx4 {v(ep,4)}, {v(vEf)}, {s(WS,4)}, {s(sPartOff)} offen{ST}'
    if o.loc == 2: A(lst)
    A(f'buffer_store_dwordx4 {v(ep,4)}, {v(vPst0)}, {s(WS,4)}, {s(sPartOff)} offen sc1')
    if o.loc == 1: A(lst)
    if o.tpos == 'pp': A(tflag)
    self.stamp('wo', 'pp')
    def cold_sc():
        A(f'v_max3_u32 v4, {v(SM)}, {v(SM+1)}, {v(SM+2)}')
        for i in range(6): A(f'v_max3_u32 v4, v4, {v(SX+2*i)}, {v(SX+2*i+1)}')
        A(f'v_cmp_eq_u32 vcc, -1, v4\ns_cbranch_vccz {Lsg}')
        sc_loads(); self.budget(); self.count(1000, 'wo'); A(f's_branch {Lsc}')
    self.cold.append((Lsp, cold_sc))
    b = o.slowpos
    def clr(k):
        return lambda: A(f's_add_u32 {s(sF0)}, {s(sOst2 if o.clate else sPartClr)}, {s(sCl+k)}\nbuffer_store_dword {v(vN4)}, {v(vPclr)}, {s(WS,4)}, {s(sF0)} offen{" sc1" if k < o.ncopy else ST}')
    ncl = o.ncopy + (1 if o.loc else 0)
    clears = [clr(k) for k in range(ncl)]
    slow = clears if o.clate else []
    ny = 1 + (1 if o.loc else 0) + (0 if o.clate else ncl) + (1 if o.tpos == 'pp' or (o.tpos in 'rb' and o.flpos == 'e') else 0)
    L1 = A.uid('L_g')
    def ohook(h):
        if h == 0 and not o.clate:
            for f in clears: f()
        if h == 1:
            for x in nxt2: A(x)
    for x in uw: A(x)
    outpart(ohook)
    flag_wait(ny)
    if not o.x & 1: px_dma()
    for x in opack: A(x)
    A(f'buffer_store_dwordx4 {v(oacc,4)}, {v(vOloc)}, {s(WS,4)}, {s(sOst)} offen{ST}')
    self.stamp('wo', 'op')
    fl = list(nxtA)
    lq = [0, 6, 1, 7, 2, 8, 3, 9, 4, 10, 5, 11]
    st = {'i': 0, 'last': 0}
    def yhook(n):
        if st['i'] < o.nvx and n >= 8 * (st['i'] // 2 + 1) and n >= o.vx0 and n - st['last'] >= 2:
            if not o.x & 1: vx_loads(lq[st['i']], lq[st['i']] + 1)
            st['i'] += 1; st['last'] = n
            return
        if not fl and slow and n >= o.slowpos: slow.pop(0)(); return
        for _ in range(3):
            if fl: A(fl.pop(0))
    post = yx(yhook)
    if not o.x & 1:
        for k in lq[st['i']:o.nvx]: vx_loads(k, k + 1)
    for f in slow: f()
    self.stamp('wo', 'yx')
    for x in post + nxtB: A(x)
    if not o.x & 1:
        for k in lq[o.nvx:]: vx_loads(k, k + 1)
    self.stamp('wo', 'g1'); self.tr_flush('wo')
    A(f's_branch {LP}')
    A.label(Ltail)
    self.tl(5)
    for x in uw: A(x)
    n = o.nsteps
    tslot = lambda d: {0: 4, -1: 5}.get(d, 11 + d)
    for k, d in enumerate((-5, -4)):
        A(f's_add_u32 {s(sT1)}, {s(sXB)}, {((n - 1 + d) & 3) * OL_SLOT}\nbuffer_load_dwordx4 {v(D+4*k,4)}, {v(vOloc)}, {s(WS,4)}, {s(sT1)} offen sc1')
    self.side0()
    A(f'v_xor_b32 {v(vOst)}, {s(sT0)}, {v(vOst)}\nv_xor_b32 {v(vOl)}, {s(sT0)}, {v(vOl)}')
    for d, src in ((-5, D), (-4, D + 4), (-3, oacc)):
        A(f's_mov_b32 {s(sOst)}, {OUTP + tslot(d)*OUTP_SLOT}'); out_store(src)
    def fin_poll(slot, dst):
        Lc = A.uid('L_fp'); A(f's_mov_b32 {s(sOl)}, {OUTP + slot*OUTP_SLOT}'); A.label(Lc)
        fin_issue(dst); self.budget()
        A(f'''s_waitcnt vmcnt(0)
        v_max3_u32 {v(vMx)}, {v(dst)}, {v(dst+1)}, {v(dst+2)}
        v_max_u32 {v(vMx)}, {v(vMx)}, {v(dst+3)}
        v_cmp_eq_u32 vcc, -1, {v(vMx)}
        s_cbranch_vccnz {Lc}''')
    for d in (-2, -1, 0):
        A('s_waitcnt lgkmcnt(0)\ns_barrier' if d == -2 else 's_waitcnt vmcnt(0) lgkmcnt(0)\ns_barrier')
        if d == -2:
            for x in set_px(-1): A(x)
            flag_issue()
        for x in set_outpart(d): A(x)
        A(f's_mov_b32 {s(sOst)}, {OUTP + tslot(d)*OUTP_SLOT}')
        outpart()
        for x in opack: A(x)
        out_store()
        if d == -2: flag_wait(1); px_dma()
        if d == -1:
            fin_poll(5, D)
            for k, dd in enumerate((-5, -4, -3, -2)):
                slot = tslot(dd)
                A(f's_mov_b32 {s(sOl)}, {OUTP + slot*OUTP_SLOT}'); fin_issue(Yacc + 4*k)
            A(f's_mov_b32 {s(sOutRow)}, {(n-2)*32*2560}'); fin_done(D)
            A('s_waitcnt vmcnt(1)')
            for k, dd in enumerate((-5, -4, -3, -2)):
                A(f's_mov_b32 {s(sOutRow)}, {(n-1+dd)*32*2560}'); fin_done(Yacc + 4*k)
            for x in set_px(0): A(x)
            flag_issue(); flag_wait(0); px_dma()
            self.tl(6)
    fin_poll(4, D)
    A(f's_mov_b32 {s(sOutRow)}, {(n-1)*32*2560}'); fin_done(D)
    self.hd(11); self.stamp_out('wo'); self.tl(7, True)
    A('s_endpgm')
```

```python
from asmlib import v, a, s
from gen import *

def proj(self, QK):
    A = self.A; t = self.tag; ST = self.st; o = self.o
    role = 'qkv' if QK else 'v'
    LA = 2 if QK else 3
    LX0, LX1, LS2, LMISC = 0, 40960, 81920, 122880
    LMEM = LMISC; LT = LMEM + 10240; LKX = LT + 2048
    r = RA(10, 240)
    vXdma, vXb0, vXb1, vMd4, vMd1, vProbe, vA0, vIdx, vPr, vXst, vFl, vBF, vNeg, vTW, vTR0, vPrA = [r() for _ in range(16)]
    Aop = r(40, 4); acc = r(8, 4); Z = r(8, 4); xf = r(24, 4); xacc = r(16, 4); pk = r(8, 4); tq = r(2, 2)
    if QK:
        (vTR1, vSCst, vKMst, vKxW, vKxR, vKF, vKxWs, vKxRs, vPl0, vPl1, vPl2, vPl3, vTrig, vTrD, vMst, vMclr, vSclr, vMx, vMy) = [r() for _ in range(19)]
        Kx = r(8, 4); S = r(4, 4); PB = r(16, 4); racc = r(8, 4); rp = r(4, 4); SELB = r(6, 2); SELA = SELB + 2
    else:
        vVMst, vVclr, vXF, vXp, vTrig, vTrD, vEf, vEn, vBa, vOst, vOl, vOut, vOloc = [r() for _ in range(13)]
        fw = r(8, 4); fin = r(8, 4); ft = r(8, 4); SEL2 = 160
    sB, sCur, sClr, sKmOff, sX0, sX1, sXSeg, sXbuf, sMm0, sDelta, sF0, sF1, sMark, sPart, sThr, sW0, sD1, sXp = range(40, 58)
    sLo8 = 58; sFwL, sFwS, sFinL, sFinR = sKmOff, sPart, sThr, 60
    A.label(f'L_{role}{t}')
    if QK:
        self.srd(R0, P_WQ, 640 * 6144 * 2); self.srd(R1, P_WK, 640 * 6144 * 2)
        A(f's_mov_b32 {s(sB)}, {s(sR)}')
    else:
        self.srd(R0, P_WV, 640 * 6144 * 2)
        A(f's_sub_u32 {s(sB)}, {s(sR)}, {R_V}\ns_lshl_b32 {s(sB)}, {s(sB)}, 1')
    self.srd(R3, P_BX, 2048 * 640 * 2)
    self.lanes()
    vWdma = pk; vWr = pk + 1
    A(f'''v_lshrrev_b32 v3, 3, v0              ; r8
    v_and_b32 v4, 7, v0                        ; pp
    s_lshl_b32 {s(sT0)}, {s(sW)}, 3
    v_add_u32 v5, {s(sT0)}, v3
    s_and_b32 {s(sT1)}, {s(sW)}, 1
    s_lshl_b32 {s(sT1)}, {s(sT1)}, 2
    v_and_b32 v6, 2, v3
    v_or_b32 v6, {s(sT1)}, v6
    v_xor_b32 v6, v6, v4
    v_lshlrev_b32 v6, 4, v6
    v_mul_u32_u24 v7, 12288, v5
    s_mul_i32 {s(sT2)}, {s(sG)}, 1536
    s_lshl_b32 {s(sT3)}, {s(sB)}, 7
    s_add_u32 {s(sT2)}, {s(sT2)}, {s(sT3)}
    v_add3_u32 {v(vWdma)}, v6, v7, {s(sT2)}
    v_lshrrev_b32 v6, 1, v3
    v_or_b32 v6, {s(sT1)}, v6
    v_xor_b32 v6, v6, v4
    v_lshlrev_b32 v6, 4, v6
    v_mul_u32_u24 v7, 1280, v5
    v_add_u32 {v(vXdma)}, v6, v7''')
    def xdma_begin(buf_s_or_imm):
        A(f's_lshl_b32 {s(sT0)}, {s(sW)}, 10\ns_add_u32 m0, {s(sT0)}, {buf_s_or_imm}')
    def xdma(ln):
        A(f'buffer_load_dwordx4 {v(vXdma)}, {s(R3,4)}, {s(sXSeg)} offen offset:{ln*128} lds')
        if ln < 9: A('s_add_u32 m0, m0, 3968')
    stages = [(0, 0), (1, 0), (0, 1), (1, 1)]
    bufs = [LS2, LX1, LMISC]
    def wdma(i):
        m, half = stages[i]
        srd = (R0, R1)[m] if QK else R0
        A(f's_lshl_b32 {s(sT0)}, {s(sW)}, 10\ns_add_u32 m0, {s(sT0)}, {bufs[i%3]}\ns_mov_b32 {s(sT1)}, {half*320*12288 + (0 if QK else 128*m)}')
        for k in range(10):
            A(f'buffer_load_dwordx4 {v(vWdma)}, {s(srd,4)}, {s(sT1)} offen{" nt" if o.nt & 2 else ""} lds')
            if k < 9: A(f's_add_u32 m0, m0, 4096\ns_add_u32 {s(sT1)}, {s(sT1)}, {32*12288}')
    self.tl(4)
    wdma(0); wdma(1); wdma(2)
    A(f's_mov_b32 {s(sXSeg)}, 0'); xdma_begin(LX0)
    for ln in range(10): xdma(ln)
    if not QK and o.touch:
        A(f'''s_lshl_b32 {s(sT3)}, {s(sB)}, 1
        s_add_u32 {s(sT3)}, {s(sT3)}, {s(sW)}
        s_mul_i32 {s(sT3)}, {s(sT3)}, 7168
        s_add_u32 {s(sT3)}, {s(sT3)}, {OL}
        s_add_u32 s61, {s(sT3)}, {s(sXB)}''')
    self.tl(5)

    def head_part(b, hl, p):
        A(f's_mul_i32 {s(hl)}, {s(b)}, 86\ns_lshr_b32 {s(hl)}, {s(hl)}, 8\ns_mul_i32 {s(p)}, {s(hl)}, 3\ns_sub_u32 {s(p)}, {s(b)}, {s(p)}')
    sHl, sP, sHl1, sP1 = 60, 59, 62, 63
    head_part(sB, sHl, sP)
    A(f's_add_u32 {s(sT0)}, {s(sB)}, 1'); head_part(sT0, sHl1, sP1)
    A(f'''v_lshrrev_b32 v3, 1, v2
    v_and_b32 v5, 1, v2
    s_lshl_b32 {s(sT0)}, {s(sW)}, 9
    v_lshlrev_b32 v6, 4, v1
    v_lshl_add_u32 v6, v3, 8, v6
    v_add_u32 v6, {s(sT0)}, v6
    s_mul_i32 {s(sT0)}, {s(sHl)}, 12288
    s_lshl_b32 {s(sT1)}, {s(sP)}, 11
    s_add_u32 {s(sT0)}, {s(sT0)}, {s(sT1)}
    v_mul_u32_u24 v7, 6144, v5
    v_add3_u32 {v(vXst)}, v6, v7, {s(sT0)}
    v_mov_b32 {v(vNeg)}, -1''')
    if QK:
        A(f'''s_mov_b32 {s(sD1)}, {KX - QX}
        v_lshl_add_u32 {v(vKxW)}, v5, 11, v6
        v_add_u32 {v(vKxW)}, {LKX}, {v(vKxW)}''')
        A(f'''s_mul_i32 {s(sT0)}, {s(sB)}, 1280
        s_add_u32 {s(sT0)}, {s(sT0)}, {SC}
        v_lshlrev_b32 v6, 1, v5
        v_or_b32 v7, v6, v3                        ; bitswap(g)
        v_lshl_add_u32 v7, v7, 4, v1
        v_lshlrev_b32 v7, 2, v7
        v_add_u32 v7, 1024, v7
        v_or_b32 v6, v6, v1
        v_lshl_add_u32 v6, v3, 4, v6
        v_lshlrev_b32 v6, 4, v6
        s_sub_u32 {s(sT1)}, {s(sW)}, 1
        s_lshl_b32 {s(sT1)}, {s(sT1)}, 9
        v_add_u32 v6, {s(sT1)}, v6
        s_cmp_eq_u32 {s(sW)}, 0
        s_cselect_b64 vcc, -1, 0
        v_cndmask_b32 v6, v6, v7, vcc
        v_add_u32 {v(vSCst)}, {s(sT0)}, v6
        s_lshl_b32 {s(sT1)}, {s(sW)}, 8
        s_add_u32 {s(sT1)}, {s(sT1)}, {s(sT0)}
        v_lshl_add_u32 {v(vSclr)}, v0, 2, {s(sT1)}
        v_and_b32 v4, 2, v1''')
        self.oob_unless(vSCst, 'v_cmp_eq_u32 vcc, 0, v4')
        A(f'''s_lshl_b32 {s(sT0)}, {s(sB)}, 10
        v_lshrrev_b32 v3, 2, v1
        v_lshlrev_b32 v3, 1, v3
        v_and_b32 v6, 1, v1
        v_or_b32 v3, v3, v6
        v_lshl_add_u32 v3, v2, 3, v3
        v_lshl_add_u32 {v(vKMst)}, v3, 4, {s(sT0)}''')
        self.oob_unless(vKMst, 'v_cmp_ne_u32 vcc, 0, v4')
        A(f'''v_and_b32 v6, 9, v1
        v_lshl_or_b32 v6, v4, 1, v6
        v_and_b32 v7, 4, v1
        v_lshrrev_b32 v7, 1, v7
        v_or_b32 v6, v6, v7
        v_lshlrev_b32 v6, 4, v6
        v_lshl_add_u32 v6, v2, 8, v6
        s_cmp_eq_u32 {s(sW)}, 2
        s_cselect_b32 {s(sT0)}, 2048, 0
        s_add_u32 {s(sT0)}, {s(sT0)}, {LKX}
        v_add_u32 {v(vKxR)}, {s(sT0)}, v6''')
        A(f'''s_lshl_b32 {s(sT0)}, {s(sHl)}, 7
        s_lshl_b32 {s(sT1)}, {s(sP)}, 2
        s_add_u32 {s(sT1)}, {s(sT1)}, {s(sT0)}
        s_add_u32 {s(sT1)}, {s(sT1)}, {KF}
        s_cmp_eq_u32 {s(sW)}, 3
        s_cselect_b32 {s(sT1)}, {s(sT1)}, {OOB}
        s_cselect_b32 {s(sW0)}, -1, {0 if o.onep else -1}
        v_mov_b32 {v(vKF)}, {s(sT1)}''')
        self.oob_unless(vKF, 'v_cmp_eq_u32 vcc, 0, v0')
        A(f'v_add_u32 {v(vBF)}, {BF - KF}, {v(vKF)}')
        A(f'''s_mul_i32 {s(sT0)}, {s(sR)}, {PBLK}
        {'s_lshl_b32 %s, %s, 11' % (s(sT1), s(sW)) if not o.lay else 's_and_b32 %s, %s, 1' % (s(sT1), s(sW)) + chr(10) + 's_mul_i32 %s, %s, %d' % (s(sT1), s(sT1), o.lay & 0xffff) + chr(10) + 's_add_u32 %s, %s, %s' % (s(sT0), s(sT0), s(sT1)) + chr(10) + 's_lshr_b32 %s, %s, 1' % (s(sT1), s(sW)) + chr(10) + 's_mul_i32 %s, %s, %d' % (s(sT1), s(sT1), o.lay >> 16)}
        s_add_u32 {s(sT0)}, {s(sT0)}, {s(sT1)}
        s_lshl_b32 {s(sT2)}, {s(sR)}, 10
        s_lshl_b32 {s(sT1)}, {s(sW)}, 8
        s_add_u32 {s(sT2)}, {s(sT2)}, {s(sT1)}
        s_cmp_lt_u32 {s(sR)}, 10
        s_cselect_b32 {s(sT0)}, {s(sT0)}, {OOB}
        s_cselect_b32 {s(sT2)}, {s(sT2)}, {OOB}
        s_lshl_b32 {s(sT1)}, {s(sG)}, 8
        v_lshlrev_b32 v3, 4, v0
        v_xor_b32 v3, {s(sT1)}, v3
        v_add_u32 {v(vPl0)}, {s(sT0)}, v3
        v_xor_b32 v3, 1024, v3
        v_add_u32 {v(vPl1)}, {s(sT0)}, v3
        s_min_u32 {s(sT0)}, {s(sR)}, 9
        s_lshl_b32 {s(sT0)}, {s(sT0)}, 7
        s_add_u32 {s(sT0)}, {s(sT0)}, {TF}
        s_add_u32 {s(sT0)}, {s(sT0)}, {s(sXB)}
        v_and_b32 v3, {0 if o.tone else 3}, v0
        v_lshl_add_u32 {v(vTrig)}, v3, 2, {s(sT0)}
        v_lshl_add_u32 {v(vMclr)}, v0, 2, {s(sT2)}
        v_lshl_add_u32 {v(vMst)}, v1, 4, {s(sT2)}''')
        self.oob_unless(vMst, 'v_cmp_eq_u32 vcc, 0, v2')
        self.sel_consts(SELB)
    else:
        A(f'''s_mul_i32 {s(sD1)}, {s(sHl1)}, 12288
        s_lshl_b32 {s(sT1)}, {s(sP1)}, 11
        s_add_u32 {s(sD1)}, {s(sD1)}, {s(sT1)}
        s_sub_u32 {s(sD1)}, {s(sD1)}, {s(sT0)}
        s_lshl_b32 {s(sT0)}, {s(sB)}, 10
        s_lshl_b32 {s(sT1)}, {s(sW)}, 8
        s_add_u32 {s(sT1)}, {s(sT1)}, {s(sT0)}
        s_add_u32 {s(sT1)}, {s(sT1)}, {VM}
        v_lshl_add_u32 {v(vVclr)}, v0, 2, {s(sT1)}
        v_and_b32 v6, 60, v0
        v_bfe_u32 v7, v0, 1, 1
        v_or_b32 v6, v6, v7
        v_and_b32 v7, 1, v0
        v_lshl_or_b32 v6, v7, 1, v6
        s_and_b32 {s(sT0)}, {s(sW)}, 1
        s_lshl_b32 {s(sT0)}, {s(sT0)}, 3
        v_xor_b32 v6, {s(sT0)}, v6
        v_lshl_add_u32 {v(vVMst)}, v6, 2, {s(sT1)}''')
        A(f'''s_lshl_b32 {s(sT0)}, {s(sHl)}, 5
        s_lshl_b32 {s(sT1)}, {s(sHl1)}, 5
        v_mov_b32 v3, {s(sT0)}
        v_mov_b32 v4, {s(sT1)}
        v_mov_b32 v6, {s(sP)}
        v_mov_b32 v7, {s(sP1)}
        v_cmp_eq_u32 vcc, 0, v0
        v_cndmask_b32 v3, v4, v3, vcc
        v_cndmask_b32 v6, v7, v6, vcc
        v_add_u32 v4, v3, v6
        s_cmp_eq_u32 {s(sW)}, 3
        s_cselect_b32 {s(sT1)}, 0, {OOB}
        s_add_u32 {s(sT1)}, {s(sT1)}, {BF + 12}
        v_lshl_add_u32 {v(vBF)}, v4, 2, {s(sT1)}
        v_lshl_add_u32 v4, v6, 2, v3
        s_lshl_b32 {s(sT1)}, {s(sW)}, 2
        s_add_u32 {s(sT1)}, {s(sT1)}, {XF}
        v_lshl_add_u32 {v(vXF)}, v4, 2, {s(sT1)}''')
        self.oob_unless(vBF, 'v_cmp_gt_u32 vcc, 2, v0')
        A(f'''v_cndmask_b32 {v(vXF)}, v9, {v(vXF)}, vcc
        s_lshl_b32 {s(sT0)}, {s(sB)}, 1
        s_add_u32 {s(sT0)}, {s(sT0)}, {s(sW)}
        s_sub_u32 {s(sT0)}, {s(sT0)}, 4
        s_lshl_b32 {s(sT0)}, {s(sT0)}, 11
        s_cmp_eq_u32 {s(sB)}, 0
        s_cselect_b32 {s(sT0)}, {OOB}, {s(sT0)}
        v_lshl_add_u32 {v(vXp)}, v0, 4, {s(sT0)}
        v_mov_b32 {v(vTrig)}, {TF}''')
    A(f'''v_lshrrev_b32 v3, 2, v1              ; r = c>>2
    v_and_b32 v4, 3, v1                        ; cc
    v_and_b32 v5, 1, v2                        ; g&1
    v_lshl_add_u32 v6, v2, 3, v3
    v_lshlrev_b32 v6, 7, v6                    ; (8g+r)*128
    v_and_b32 v7, 2, v3
    v_lshl_or_b32 v7, v5, 2, v7                ; f
    v_lshrrev_b32 v8, 1, v4
    s_lshl_b32 {s(sT0)}, {s(sW)}, 1
    v_or_b32 v8, {s(sT0)}, v8
    v_xor_b32 v7, v7, v8
    v_lshl_add_u32 v6, v7, 4, v6
    v_and_b32 v7, 1, v4
    v_lshl_add_u32 v6, v7, 3, v6''')
    for i in range(3): A(f'v_add_u32 {v(vWr+i)}, {bufs[i]}, v6')
    A(f's_lshl_b32 {s(sT0)}, {s(sW)}, 9\ns_add_u32 {s(sT0)}, {s(sT0)}, {LT}')
    if QK:
        for eh, reg in ((0, vTR0), (1, vTR1)):
            A(f'''v_xor_b32 v6, {eh}, v5
            v_lshl_add_u32 v6, v6, 2, v3
            v_lshl_add_u32 v6, v2, 3, v6
            v_lshlrev_b32 v6, 5, v6
            v_lshl_or_b32 v7, v5, 1, {eh}
            v_xor_b32 v7, v7, v4
            v_lshl_add_u32 v6, v7, 3, v6
            v_add_u32 {v(reg)}, {LT}, v6''')
        A(f'''v_lshrrev_b32 v6, 3, v1
        v_lshlrev_b32 v6, 2, v6
        v_xor_b32 v6, v6, v1
        v_lshlrev_b32 v6, 5, v6
        v_xor_b32 v7, v2, v3
        v_lshl_add_u32 v6, v7, 3, v6
        v_add_u32 {v(vTW)}, {s(sT0)}, v6''')
    A(f'''v_and_b32 v7, 2, v1
    v_cmp_ne_u32 vcc, 0, v7
    v_mov_b32 v6, 0x4444
    v_mov_b32 v8, 0xeeee
    v_cndmask_b32 {v(vIdx)}, v6, v8, vcc
    v_lshlrev_b32 v6, 4, v0
    v_add_u32 {v(vA0)}, {LMEM}, v6
    s_mul_i32 {s(sT0)}, {s(sW)}, 2560
    v_lshl_add_u32 {v(vMd4)}, v0, 4, {s(sT0)}
    v_lshl_add_u32 {v(vMd1)}, v0, 2, {s(sT0)}
    s_add_u32 {s(sMm0)}, {s(sT0)}, {LMEM}
    v_mul_u32_u24 v6, {0 if o.noprobe else 40}, v0
    v_add_u32 {v(vProbe)}, {s(sMm0)}, v6
    v_mul_u32_u24 v6, {0 if o.noprobe else 164}, v0
    v_min_u32 v6, 10236, v6
    v_add_u32 {v(vPrA)}, {LMEM}, v6
    v_lshrrev_b32 v6, 3, v1
    v_lshlrev_b32 v6, 10, v6
    v_and_b32 v7, 7, v1
    v_lshl_add_u32 v6, v7, 7, v6
    v_lshrrev_b32 v7, 1, v1
    v_xor_b32 v7, v7, v2
    v_lshl_add_u32 {v(vXb0)}, v7, 4, v6
    v_xor_b32 {v(vXb1)}, 64, {v(vXb0)}''')
    waits = [30, 30, 30, 10]
    self.tl(6)
    for i in range(4):
        m, half = stages[i]
        A(f's_waitcnt vmcnt({waits[i]})\ns_barrier')
        for ks in range(10):
            for eh in range(2):
                A(f'ds_read_b64_tr_b16 {a(80*m + 4*(half*10+ks) + 2*eh, 2)}, {v(vWr + i%3)} offset:{ks*4096 + eh*512}')
        A('s_waitcnt lgkmcnt(0)')
        if i < 2: A('s_barrier')
        if i == 0: wdma(3)
        if i == 1:
            A(f's_mov_b32 {s(sXSeg)}, 40960'); xdma_begin(LX1)
            for ln in range(10): xdma(ln)
        if i == 3 and not QK and o.touch:
            A('v_lshlrev_b32 v3, 4, v0')
            for k in range(7): A(f'buffer_load_dwordx4 v[248:251], v3, {s(WS,4)}, s61 offen sc1\ns_add_u32 s61, s61, 1024')
        self.tl(8 + i)

    XD = 3
    TD = o.edep if o.epos else 4
    def xrd1(ks, rt):
        A(f'ds_read_b128 {v(xf + 8*(ks%XD) + 4*rt, 4)}, {v(vXb1 if ks & 1 else vXb0)} offset:{(ks>>1)*4096 + rt*2048}')
    def xrd(ks):
        for rt in range(2): xrd1(ks, rt)
    def xstores():
        if o.x & 16: return
        for m in range(2): A(f'buffer_store_dwordx4 {v(pk+4*m,4)}, {v(vXst)}, {s(WS,4)}, {s((sX0, sX1)[m])} offen{ST}')
    def mem_dma():
        A(f'''buffer_load_dwordx4 {v(vMd4)}, {s(WS,4)}, {s(sCur)} offen sc1 lds
        buffer_load_dwordx4 {v(vMd4)}, {s(WS,4)}, {s(sCur)} offen offset:1024 sc1 lds
        buffer_load_dword {v(vMd1)}, {s(WS,4)}, {s(sCur)} offen offset:2048 sc1 lds
        buffer_load_dword {v(vMd1)}, {s(WS,4)}, {s(sCur)} offen offset:2304 sc1 lds''')
    trig = f'buffer_load_dword {v(vTrD)}, {v(vTrig)}, {s(WS,4)}, 0 offen sc1'
    def trig_load(): A(trig)
    def part_loads(cp, dst):
        A(f'''buffer_load_dwordx4 {v(PB+8*dst,4)}, {v((vPl0, vPl2)[cp])}, {s(WS,4)}, {s(sPart)} offen sc1
        buffer_load_dwordx4 {v(PB+8*dst+4,4)}, {v((vPl1, vPl3)[cp])}, {s(WS,4)}, {s(sPart)} offen sc1''')
    def red_wait():
        self.stamp(role, 't0')
        self.spin(trig, f'v_cmp_gt_u32 vcc, {s(sThr)}, {v(vTrD)}', TD, True)
        A('s_barrier')
    def red_try(b, younger, Lfail):
        A(f'''s_waitcnt vmcnt({younger + 1})
        v_mfma_f32_16x16x32_bf16 {v(racc,4)}, {v(SELA,4)}, {v(b,4)}, 0
        v_mfma_f32_16x16x32_bf16 {v(racc+4,4)}, {v(SELB,4)}, {v(b,4)}, 0
        s_waitcnt vmcnt({younger})
        v_mfma_f32_16x16x32_bf16 {v(racc,4)}, {v(SELA,4)}, {v(b+4,4)}, {v(racc,4)}
        v_mfma_f32_16x16x32_bf16 {v(racc+4,4)}, {v(SELB,4)}, {v(b+4,4)}, {v(racc+4,4)}
        v_cmp_u_f32 vcc, {v(racc)}, {v(racc)}''')
        for q in range(4): A(f'v_cvt_pk_bf16_f32 {v(rp+q)}, {v(racc+2*q)}, {v(racc+2*q+1)}')
        A(f's_cbranch_vccnz {Lfail}')
    def red_sum(order):
        Lp, Lc = A.uid('L_pp'), A.uid('L_pc')
        self.stamp(role, 'gi')
        red_try(PB, 2 * (len(order) - 1), Lp)
        A.label(Lc)
        A(f'buffer_store_dwordx4 {v(rp,4)}, {v(vMst)}, {s(WS,4)}, {s(sCur)} offen{ST}')
        self.stamp(role, 'mp')
        if o.dump:
            A(f'''s_and_b32 {s(sT1)}, {s(sG)}, 6
            s_mul_i32 {s(sT0)}, {s(sS)}, {2*MEM_SLOT}
            s_and_b32 {s(sT2)}, {s(sG)}, 1
            s_mul_i32 {s(sT2)}, {s(sT2)}, {MEM_SLOT}
            s_add_u32 {s(sT0)}, {s(sT0)}, {s(sT2)}
            s_add_u32 {s(sT0)}, {s(sT0)}, {DUMP + (2<<20) - 2*MEM_SLOT}
            s_cmp_eq_u32 {s(sT1)}, 0
            s_cselect_b32 {s(sT0)}, {s(sT0)}, {DUMP}
            buffer_store_dwordx4 {v(rp,4)}, {v(vMst)}, {s(WS,4)}, {s(sT0)} offen''')
        def cold():
            for k in range(2):
                b = PB + 8*k
                if k: A.label(f'{Lp}_1')
                part_loads(k ^ 1, k ^ 1)
                self.count(1 if k == 0 else 1000); self.budget()
                A(f'v_max_u32 {v(vMx)}, {v(b)}, {v(b+1)}')
                for i in range(1, 4): A(f'v_max3_u32 {v(vMx)}, {v(vMx)}, {v(b+2*i)}, {v(b+2*i+1)}')
                A(f'v_cmp_eq_u32 vcc, -1, {v(vMx)}\ns_cbranch_vccz {Lc}')
                red_try(PB + 8*(k ^ 1), 0, f'{Lp}_1' if k == 0 else Lp)
                A(f's_branch {Lc}')
        self.cold.append((Lp, cold))

    def fin_loads():
        A(f's_cmp_lt_i32 {s(sFinR)}, 0\ns_cselect_b32 {s(sFinL)}, {s(sXB)}, {s(sFinL)}')
        for k in range(2): A(f'buffer_load_dwordx4 {v(fin+4*k,4)}, {v(vOl)}, {s(WS,4)}, {s(sFinL)} offen offset:{1024*k} sc1')
    def fin_out():
        Lf = A.uid('L_fin')
        A(f's_cmp_lt_i32 {s(sFinR)}, 0\ns_cbranch_scc1 {Lf}')
        a0, a1 = [self.fin_rows(fin + 4*k, ft + 4*k, vOut, sFinR, sLo8, SEL2, 32*k) for k in range(2)]
        for x, y in zip(a0, a1): A(x); A(y)
        A.label(Lf)
    def forward(younger):
        Lf = A.uid('L_fw')
        A(f's_waitcnt vmcnt({younger})\ns_cmp_lt_i32 {s(sFinR)}, {-4*32*2560}\ns_cbranch_scc1 {Lf}c')
        A.label(Lf)
        for k in range(2): A(f'buffer_store_dwordx4 {v(fw+4*k,4)}, {v(vOst)}, {s(WS,4)}, {s(sFwS)} offen offset:{1024*k} sc1')
        def cold():
            for i in range(8): A(f'v_mov_b32 {v(fw+i)}, -1')
            A(f's_add_u32 {s(sFwS)}, {s(sFwS)}, {4*OUTP_SLOT}\ns_branch {Lf}')
        self.cold.append((Lf + 'c', cold))

    def gemm(dma, fill=(), loop=False):
        fill = list(fill)
        if not loop: xrd(0); xrd(1)
        vm = []
        st = {'flag': not (loop and QK), 'ta': (200 if QK else 64) if loop else 0, 'n': 0, 'clr': 0}
        def clr(reg, off):
            A(f'buffer_store_dword {v(vNeg)}, {v(reg)}, {s(WS,4)}, {s(sClr)} offen offset:{off}{ST}'); st['clr'] -= 1
        if loop and not QK:
            vm.append((128, lambda: [A(f'buffer_load_dwordx4 {v(fw+4*k,4)}, {v(vOloc)}, {s(WS,4)}, {s(sFwL)} offen offset:{1024*k} sc1') for k in range(2)]))
            vm.append((128, fin_loads))
            vm.append((128, lambda: [A(f'buffer_load_dwordx4 v[248:251], {v(vXp)}, {s(R3,4)}, {s(sXp)} offen offset:{1024*k}') for k in range(2)]))
            vm.append((128, lambda: forward(4)))
        if loop:
            for reg, off in (((vSclr, 0), (vMclr, 0), (vSclr, 256)) if QK else ((vVclr, 0), (vVclr, 1024))):
                vm.append((24, lambda reg=reg, off=off: clr(reg, off))); st['clr'] += 1
        if dma:
            xdma_begin(s(sXbuf))
            vm += [(64, lambda k=k: xdma(k) if not (loop and o.x & 256) else None) for k in range(10)]
        if loop and QK:
            vm.insert(o.fp, (24, lambda: (A(f's_waitcnt vmcnt({o.fp})\nbuffer_store_dword {v(vFl)}, {v(vKF)}, {s(WS,4)}, {s(sXB)} offen{ST}'), st.update(flag=True))))
        ev = []; order = []
        if loop and QK:
            ev = [(o.k1 - d, trig_load) for d in range(o.esp*(TD - 1), 0, -o.esp)] + [(o.k1, red_wait)]
            half = lambda h: A(f'buffer_load_dwordx4 {v(PB+4*h,4)}, {v((vPl0, vPl1)[h])}, {s(WS,4)}, {s(sPart)} offen sc1')
            ev.append((o.k1 + o.ka, lambda: half(0)))
            ev.append((o.k1 + o.ka + o.ksplit, lambda: (half(1), self.stamp(role, 't1'), order.append('A'))))
            assert [e[0] for e in ev] == sorted(e[0] for e in ev)
        if loop and not QK and o.epos:
            ev = [(o.epos + d, lambda reg=reg: A(f'buffer_store_dword {v(vFl)}, {v(reg)}, {s(WS,4)}, 0 offen sc1')) for reg, d in ((vEf, 0), (vEn, o.enear))]
        def events(n):
            k = 0
            while ev and ev[0][0] <= n:
                if ev[0][1] is red_wait: assert not vm and not fill, (len(vm), len(fill))
                ev.pop(0)[1](); k += 1
            return k
        def mf(m, ks, rt):
            d = v(xacc + 8*m + 4*rt, 4)
            A('s_nop 3' if (loop and o.x & 64 and ks) else f'v_mfma_f32_16x16x32_bf16 {d}, {a(80*m + 4*ks, 4)}, {v(xf + 8*(ks%XD) + 4*rt, 4)}, {d if ks else 0}')
            st['n'] += 1
            return 2 * events(st['n'])
        A('s_waitcnt lgkmcnt(2)')
        for ks in range(18):
            for n in range(4):
                used = mf(n // 2, ks, n & 1)
                if n < 2 and not (loop and o.x & 128 and ks > 0): xrd1(ks + 2, n); used += 1
                if n == 2 and vm and st['ta'] <= 16 * st['n'] + ((o.tslack if QK else o.tslackv) if loop else 0):
                    c, f = vm.pop(0); f(); st['ta'] += c; used += 2
                    if c < 64 and vm and vm[0][0] < 64 and st['clr']: c, f = vm.pop(0); f(); st['ta'] += c
                if n == 3: A(f's_waitcnt lgkmcnt({2 if ks < 17 else 0})'); used += 1
                for _ in range(o.fd - used):
                    if fill: A(fill.pop(0))
        assert not fill and (not QK or not vm)
        while vm: vm.pop(0)[1]()
        def epi(m):
            x = []
            for rt in range(2):
                for i in range(2):
                    b = xacc + 8*m + 4*rt + 2*i
                    x.append(f'v_cvt_pk_bf16_f32 {v(pk + 4*m + 2*rt + i)}, {v(b)}, {v(b+1)}')
            x.append(f'v_permlane16_swap_b32 {v(pk+4*m)}, {v(pk+4*m+2)}')
            x.append(f'v_permlane16_swap_b32 {v(pk+4*m+1)}, {v(pk+4*m+3)}')
            if m == 1 and QK: x.append(f'ds_write_b128 {v(vKxWs)}, {v(pk+4,4)}')
            return x
        tog = [f'v_add_u32 {v(vXb0)}, {s(sDelta)}, {v(vXb0)}', f'v_add_u32 {v(vXb1)}, {s(sDelta)}, {v(vXb1)}',
               f's_sub_u32 {s(sXbuf)}, {s(sXbuf)}, {s(sDelta)}', f's_sub_u32 {s(sDelta)}, 0, {s(sDelta)}']
        for m in range(2):
            for ks in (18, 19):
                for rt in range(2):
                    mf(m, ks, rt)
                    if tog: A(tog.pop(0))
        for x in epi(0) + epi(1): A(x)
        if loop and QK:
            while 'A' not in order: ev.pop(0)[1]()
            events(81)
            xstores(); order.append('X')
            A(f's_mov_b32 m0, {s(sMm0)}')
            events(999)
            red_sum(order)
            A('s_barrier')
        else:
            xstores()
            if loop: A('s_waitcnt vmcnt(18)'); fin_out()
    def set_x(seg):
        A(f'''s_add_u32 {s(sX0)}, {s(sXB)}, {S8B + seg*S8 + QX if QK else seg*S4 + VX}
        s_add_u32 {s(sX1)}, {s(sX0)}, {s(sD1)}
        s_mov_b32 {s(sXSeg)}, {40960*(seg+1)}''')
        if QK: A(f'v_add_u32 {v(vKxWs)}, {4096*seg}, {v(vKxW)}')
    L = lambda txt: [x.strip() for x in txt.split('\n') if x.strip()]
    setup = L(f'''s_and_b32 {s(sF0)}, {s(sS)}, 3
    s_mul_i32 {s(sPart)}, {s(sF0)}, {PART_SLOT}''') if QK else []
    setup += L(f'''s_add_u32 {s(sF1)}, {s(sS)}, {LA}
    s_and_b32 {s(sF0)}, {s(sF1)}, 3
    s_mul_i32 {s(sF0)}, {s(sF0)}, {S8 if QK else S4}
    s_add_u32 {s(sF0)}, {s(sF0)}, {S8B + QX if QK else VX}
    s_add_u32 {s(sX0)}, {s(sXB)}, {s(sF0)}
    s_add_u32 {s(sX1)}, {s(sX0)}, {s(sD1)}''')
    if QK: setup += L(f'''s_and_b32 {s(sF0)}, {s(sF1)}, 3
    s_lshl_b32 {s(sF0)}, {s(sF0)}, 12
    v_add_u32 {v(vKxWs)}, {s(sF0)}, {v(vKxW)}''')
    setup += L(f'''s_add_u32 {s(sS)}, {s(sS)}, 1
    s_mov_b32 {s(sMark)}, 0
    s_and_b32 {s(sF0)}, {s(sS)}, 3
    s_mul_i32 {s(sF1)}, {s(sF0)}, {S4}
    s_add_u32 {s(sCur)}, {s(sXB)}, {s(sF1)}
''')
    if QK: setup += L(f'''s_and_b32 {s(sThr)}, {s(sS)}, {s(sW0)}
    s_lshl_b32 {s(sF0)}, {s(sF0)}, 12
    v_add_u32 {v(vKxRs)}, {s(sF0)}, {v(vKxR)}
    s_add_u32 {s(sKmOff)}, {s(sCur)}, {KM}''')
    late = L(f'''s_add_u32 {s(sF0)}, {s(sS)}, 2
    s_and_b32 {s(sF0)}, {s(sF0)}, 3
    s_mul_i32 {s(sF0)}, {s(sF0)}, {S4}
    s_add_u32 {s(sClr)}, {s(sXB)}, {s(sF0)}
    s_add_u32 {s(sF0)}, {s(sS)}, {LA + 1}
    s_min_u32 {s(sF0)}, {s(sF0)}, 63
    s_mul_i32 {s(sXSeg)}, {s(sF0)}, 40960
    s_add_u32 {s(sF1)}, {s(sS)}, 1
    v_mov_b32 {v(vFl)}, {s(sF1)}
    s_mov_b32 m0, {s(sMm0)}''') + [f'v_mov_b32 {v(acc+i)}, 0' for i in range(8)]
    if not QK: late += L(f'''s_add_u32 {s(sF0)}, {s(sS)}, 6
    s_min_u32 {s(sF0)}, {s(sF0)}, 63
    s_mul_i32 {s(sXp)}, {s(sF0)}, 40960
    s_and_b32 {s(sF0)}, {s(sS)}, 3
    s_mul_i32 {s(sF1)}, {s(sF0)}, {OL_SLOT}
    s_add_u32 {s(sFwL)}, {s(sF1)}, {s(sXB)}
    s_mul_i32 {s(sF1)}, {s(sF0)}, {OUTP_SLOT}
    s_add_u32 {s(sFwS)}, {s(sF1)}, {OUTP}
    s_xor_b32 {s(sF0)}, {s(sF0)}, 2
    s_mul_i32 {s(sF1)}, {s(sF0)}, {OUTP_SLOT}
    s_add_u32 {s(sFinL)}, {s(sF1)}, {OUTP}
    s_sub_u32 {s(sF1)}, {s(sS)}, 6
    s_mul_i32 {s(sFinR)}, {s(sF1)}, {32*2560}''')

    A(f's_mov_b32 {s(sDelta)}, 40960\ns_mov_b32 {s(sXbuf)}, {LX1}\ns_mov_b32 {s(sS)}, -1')
    set_x(0)
    gemm(False)
    self.tl(2); self.hd(8)
    self.gwait()
    self.tl(3)
    for seg in range(1, LA):
        A('s_waitcnt vmcnt(0) lgkmcnt(0)')
        if not QK: A(f'v_mov_b32 {v(vFl)}, {seg}\nbuffer_store_dword {v(vFl)}, {v(vXF)}, {s(WS,4)}, {s(sXB)} offen{ST}')
        A('s_barrier')
        set_x(seg)
        gemm(True, setup if seg == LA - 1 else ())
    self.tl(12)
    if QK:
        Lpf = A.uid('L_pf')
        A(f'v_mov_b32 v3, {PARF}')
        A.label(Lpf)
        A(f'buffer_load_dword v4, v3, {s(WS,4)}, {s(sXB)} offen sc1')
        self.budget()
        A(f'''s_waitcnt vmcnt(0)
        v_readfirstlane_b32 {s(sT0)}, v4
        s_cmp_eq_u32 {s(sT0)}, 0
        s_cbranch_scc1 {Lpf}
        s_and_b32 {s(sT0)}, {s(sT0)}, 2
        s_lshl_b32 {s(sT0)}, {s(sT0)}, 12
        v_mov_b32 v3, {s(sT0)}
        v_mov_b32 v4, {16384 if o.loc else 'v3'}
        v_cmp_gt_u32 vcc, 16, v0
        v_cndmask_b32 v3, v3, v4, vcc
        v_add_u32 {v(vPl0)}, v3, {v(vPl0)}
        v_add_u32 {v(vPl1)}, {s(sT0)}, {v(vPl1)}
        v_add_u32 {v(vPl2)}, {16384 if o.ncopy == 4 else 0}, {v(vPl0)}
        v_add_u32 {v(vPl3)}, {16384 if o.ncopy == 4 else 0}, {v(vPl1)}
        s_mov_b32 m0, {s(sMm0)}''')
        if o.tl: A(f'v_writelane_b32 v255, {s(sT0)}, 20')
        if o.x & 512: A(f'v_mov_b32 {v(vPl0)}, {OOB}\nv_mov_b32 {v(vPl2)}, {OOB}')
        if o.epos:
            self.side0()
            A(f'''s_and_b32 {s(sT1)}, {s(sG)}, 1
            s_lshl_b32 {s(sT1)}, {s(sT1)}, 12
            s_lshr_b32 {s(sT2)}, {s(sG)}, 2
            s_lshl_b32 {s(sT2)}, {s(sT2)}, 13
            s_add_u32 {s(sT1)}, {s(sT1)}, {s(sT2)}
            s_and_b32 {s(sT2)}, {s(sG)}, 2
            s_lshl_b32 {s(sT2)}, {s(sT2)}, 13
            s_add_u32 {s(sT1)}, {s(sT1)}, {s(sT2)}
            s_xor_b32 {s(sT1)}, {s(sT1)}, {s(sT0)}
            s_add_u32 {s(sT1)}, {s(sT1)}, {EF}
            v_lshrrev_b32 v4, 2, v0
            v_lshl_add_u32 v3, v4, 9, {s(sT1)}
            v_cmp_ne_u32 {s(sT2,2)}, {s(sG)}, v4
            v_cmp_gt_u32 vcc, 32, v0
            s_and_b64 vcc, vcc, {s(sT2,2)}
            s_and_b32 vcc_lo, vcc_lo, {s(sW0)}
            v_cndmask_b32 {v(vTrig)}, {v(vTrig)}, v3, vcc''')
        self.hd(9)

    elif o.epos:
        self.side0()
        A(f'''v_and_b32 v3, 1, v0
        v_lshlrev_b32 v3, 12, v3
        v_bfe_u32 v5, v0, 2, 1
        v_lshl_add_u32 v3, v5, 13, v3
        v_bfe_u32 v4, v0, 1, 1
        v_lshl_add_u32 v3, v4, 14, v3
        v_xor_b32 v3, {s(sT0)}, v3
        s_lshl_b32 {s(sT1)}, {s(sG)}, 9
        s_add_u32 {s(sT1)}, {s(sT1)}, {EF}
        s_xor_b32 {s(sW0)}, {s(sW)}, 3
        s_or_b32 {s(sW0)}, {s(sW0)}, {s(sB)}
        s_cselect_b32 {s(sT1)}, {OOB}, {s(sT1)}
        v_add_u32 {v(vEf)}, {s(sT1)}, v3''')
        self.oob_unless(vEf, 'v_cmp_gt_u32 vcc, 8, v0')
        self.oob_unless(vEf, f'v_cmp_ne_u32 vcc, {s(sG)}, v0')
        A(f'''s_lshr_b32 {s(sT1)}, {s(sG)}, 2
        v_cmp_eq_u32 vcc, {s(sT1)}, v5
        v_cndmask_b32 {v(vEn)}, v9, {v(vEf)}, vcc
        v_cndmask_b32 {v(vEf)}, {v(vEf)}, v9, vcc
        v_and_b32 v3, 7, v0
        v_min_u32 v3, 5, v3
        v_bfe_u32 v4, v0, 3, 2
        v_lshlrev_b32 v4, 7, v4
        v_lshl_add_u32 v3, v3, 2, v4
        v_add_u32 {v(vBa)}, {BF + 32}, v3
        s_mov_b32 s61, {s(sT0)}
        s_lshl_b32 {s(sT3)}, {s(sB)}, 1
        s_add_u32 {s(sT3)}, {s(sT3)}, {s(sW)}
        s_lshl_b32 {s(sT3)}, {s(sT3)}, 1
        s_sub_u32 {s(sT3)}, {s(sT3)}, 8''')
        self.lanes()
        self.out_addr(sT3, vOst, vOl, vOut, vOloc, sLo8, SEL2)
        A(f'v_xor_b32 {v(vOst)}, s61, {v(vOst)}\nv_xor_b32 {v(vOl)}, s61, {v(vOl)}\ns_cmp_lg_u32 {s(sB)}, 0\ns_cselect_b64 vcc, -1, 0\nv_mov_b32 v9, {OOB}')
        for reg in (vOst, vOl, vOut, vOloc): A(f'v_cndmask_b32 {v(reg)}, v9, {v(reg)}, vcc')

    self.tl(13)
    LP = f'L_{role}_loop{t}'
    A.label(LP)
    if not QK:
        for x in late: A(x)
        if o.vgate:
            Lv = A.uid('L_vg')
            A.label(Lv); A(f'buffer_load_dword {v(vTrD)}, {v(vTrig)}, {s(WS,4)}, {s(sXB)} offen sc1'); self.budget()
            A(f's_waitcnt vmcnt(0)\nv_cmp_gt_u32 vcc, {s(sS)}, {v(vTrD)}\ns_cbranch_vccnz {Lv}')
    Lredo, Lpoll, Lnan, Lcont = A.uid('L_redo'), A.uid('L_poll'), A.uid('L_nan'), A.uid('L_cont')
    if QK:
        late += [f'ds_read_b128 {v(Kx,4)}, {v(vKxRs)}', f'ds_read_b128 {v(Kx+4,4)}, {v(vKxRs)} offset:1024']
        for x in late[:o.nl]: A(x)
    mem_dma()
    if QK:
        for x in late[o.nl:]: A(x)
        for _ in range(o.dly): A('s_nop 3')
    self.stamp(role, 'p0')
    A.label(Lpoll)
    mem_dma()
    self.budget(); self.count(1, 'mem')
    A(f'''s_waitcnt vmcnt(4)
    ds_read_b32 {v(vPr)}, {v(vProbe)}
    s_waitcnt lgkmcnt(0)
    v_cmp_eq_u32 vcc, -1, {v(vPr)}
    s_cbranch_vccnz {Lpoll}''')
    self.stamp(role, 'p1')
    A('s_barrier')
    self.stamp(role, 'b1')
    def rdA(tt):
        A(f'ds_read_b128 {v(Aop+4*tt,4)}, {v(vA0)} offset:{tt*1024}')
    def sm(m, tt):
        A(f'v_smfmac_f32_16x16x64_bf16 {v(acc+4*m,4)}, {v(Aop+4*tt,4)}, {a(80*m+8*tt,8)}, {v(vIdx)}')
    NI = o.ni if QK else 5
    seq = [(m, tt) for tt in range(NI) for m in range(2)] + [(0, tt) for tt in range(NI, 10)] + [(1, tt) for tt in range(NI, 10)]
    e0 = 10 + NI
    PRE = o.pre0 if QK else 4; issued = PRE; waited = -1
    for tt in range(PRE): rdA(tt)
    bpos = o.bpos if QK else o.bposv
    bfl = lambda off=0: A(f'buffer_store_dword {v(vFl)}, {v(vBF)}, {s(WS,4)}, {s(sXB)} offen offset:{off}{ST}')
    def zrd(u): A(f'ds_read_b64_tr_b16 {v(Z+4*u,2)}, {v(vTR0)} offset:{u*1024}\nds_read_b64_tr_b16 {v(Z+4*u+2,2)}, {v(vTR1)} offset:{u*1024}')
    def scores(src, y=0):
        A(f'''s_waitcnt lgkmcnt({2+y})
        v_mfma_f32_16x16x32_bf16 {v(S,4)}, {v(src,4)}, {v(Z,4)}, 0
        s_waitcnt lgkmcnt({y})
        v_mfma_f32_16x16x32_bf16 {v(S,4)}, {v(src+4,4)}, {v(Z+4,4)}, {v(S,4)}''')
    vst = lambda m: A(f'buffer_store_dword {v(tq+m)}, {v(vVMst)}, {s(WS,4)}, {s(sCur)} offen offset:{1024*m}{ST}')
    cvt = lambda m: A(f'v_cvt_pk_bf16_f32 {v(tq+m)}, {v(acc+4*m)}, {v(acc+4*m+1)}')
    cmpu = lambda: A(f'v_cmp_u_f32 vcc, {v(acc)}, {v(acc+1)}')
    brn = lambda: A(f's_cbranch_vccnz {Lnan}\n{Lcont}:')
    side = {e0 + 2: [lambda: A(f'v_add_f32 {v(acc)}, {v(acc)}, {v(acc+2)}\nv_add_f32 {v(acc+1)}, {v(acc+1)}, {v(acc+3)}')]}
    if QK:
        side.update({e0 + 3: [lambda: cvt(0), lambda: A(f'ds_write_b32 {v(vTW)}, {v(tq)}')], e0 + 4: [cmpu], e0 + 6: [brn],
                     e0 + 7: [lambda: A('s_waitcnt lgkmcnt(0)\ns_barrier'), lambda: self.stamp(role, 'ba'), lambda: zrd(0)], e0 + 8: [lambda: zrd(1)]})
    else:
        side.update({e0 + 3: [cmpu, lambda: cvt(0)], e0 + 5: [brn, lambda: vst(0)]})
    for n, (m, tt) in enumerate(seq):
        if n == e0: self.stamp(role, 'qe'); A.label(Lredo)
        if n == 1: self.stamp(role, 's1')
        if tt > waited: A(f's_waitcnt lgkmcnt({issued - 1 - tt})'); waited = tt
        sm(m, tt)
        if issued < 10: rdA(issued); issued += 1
        if n == bpos: bfl()
        for f in side.pop(n, []): f()
    for n in sorted(side):
        for f in side[n]: f()
    def post1():
        A(f'v_pk_add_f32 {v(acc+4,2)}, {v(acc+4,2)}, {v(acc+6,2)}')
        cvt(1)
    if QK:
        Lw0, Lw3, Ljoin = A.uid('L_w0'), A.uid('L_w3'), A.uid('L_join')
        A(f'''s_cmp_eq_u32 {s(sW)}, 0
        s_cbranch_scc1 {Lw0}
        s_cmp_eq_u32 {s(sW)}, 3
        s_cbranch_scc1 {Lw3}''')
        def tphase(wave):
            xs = lambda: (A(f'buffer_store_dwordx4 {v(S,4)}, {v(vSCst)}, {s(WS,4)}, {s(sCur)} offen{ST}'), self.stamp(role, 'sc'))
            if wave == 1 and o.xo == 2: scores(Kx)
            post1()
            A(f'ds_write_b32 {v(vTW)}, {v(tq+1)} offset:4')
            if wave == 1 and o.xo < 2: scores(Kx, 1)
            if wave == 1 and o.xo: xs()
            A('s_waitcnt lgkmcnt(0)\ns_barrier')
            if wave == 1 and not o.xo: xs()
            self.stamp(role, 'b2')
            if wave != 1: zrd(0); zrd(1)
            if wave == 3:
                bfl(32)
                A('s_waitcnt lgkmcnt(0)')
                xrd(0); xrd(1)
                A(f'''s_waitcnt lgkmcnt(0)
                buffer_store_dwordx4 {v(Z,4)}, {v(vKMst)}, {s(WS,4)}, {s(sKmOff)} offen{ST}
                buffer_store_dwordx4 {v(Z+4,4)}, {v(vKMst)}, {s(WS,4)}, {s(sKmOff)} offen offset:512{ST}''')
            else:
                if wave == 0: scores(Z)
                xrd(0); xrd(1)
                if wave == 0:
                    A(f'buffer_store_dword {v(S+2)}, {v(vSCst)}, {s(WS,4)}, {s(sCur)} offen{ST}')
                    A(f'buffer_store_dword {v(S+3)}, {v(vSCst)}, {s(WS,4)}, {s(sCur)} offen offset:8{ST}')
            if wave != 1: self.stamp(role, 'sc')
        tphase(1); A(f's_branch {Ljoin}')
        A.label(Lw0); tphase(0); A(f's_branch {Ljoin}')
        A.label(Lw3); tphase(3)
        A.label(Ljoin)
    else:
        post1(); vst(1)
        self.stamp(role, 'vm')
        bfl(32)
        xrd(0); xrd(1)
    Lend = A.uid('L_end')
    A(f's_cmp_eq_u32 {s(sS)}, {o.nsteps - 1}\ns_cbranch_scc1 {Lend}')
    if QK: self.tr_flush(role, 1)
    if not QK and o.epos:
        La = A.uid('L_an'); bl = f'buffer_load_dword {v(vTrD)}, {v(vBa)}, {s(WS,4)}, {s(sXB)} offen sc1'
        A(f's_cmp_lg_u32 {s(sW0)}, 0\ns_cbranch_scc1 {La}x')
        self.spin(bl, f'v_cmp_ge_u32 vcc, {s(sS)}, {v(vTrD)}', 7 if o.fpoll else 4)
        A.label(La + 'x')
        A('s_barrier')
    gemm(True, setup, True)
    self.stamp(role, 'ge')
    if not QK: self.tr_flush(role)
    A(f's_branch {LP}')
    A.label(Lend)
    if not QK: fin_loads()
    A('s_waitcnt vmcnt(0) lgkmcnt(0)')
    if not QK: fin_out(); A('s_waitcnt vmcnt(0)')
    if QK:
        A(f'buffer_store_dword {v(vFl)}, {v(vKF)}, {s(WS,4)}, {s(sXB)} offen{ST}')
        self.hd(10)
    if not QK and o.wb & 2:
        Lw = A.uid('L_wb')
        A(f's_cmp_lg_u32 {s(sW0)}, 0\ns_cbranch_scc1 {Lw}\nbuffer_wbl2 sc1\ns_waitcnt vmcnt(0)\n{Lw}:')
    self.stamp_out(role); self.tl(7, True)
    A('s_endpgm')
    A.label(Lnan)
    A(f's_cmp_eq_u32 {s(sMark)}, 1\ns_cbranch_scc1 {Lcont}\nv_lshlrev_b32 v1, 4, v0')
    A.label(Lnan + 'r')
    A(f's_mov_b32 {s(sT0)}, {s(sCur)}\nv_mov_b32 v2, 0')
    for k in range(10):
        A(f'buffer_load_dwordx4 {v(Aop+4*k,4)}, v1, {s(WS,4)}, {s(sT0)} offen sc1\ns_add_u32 {s(sT0)}, {s(sT0)}, 1024')
    self.budget()
    A('s_waitcnt vmcnt(0) lgkmcnt(0)')
    for k in range(20): A(f'v_max3_u32 v2, v2, {v(Aop+2*k)}, {v(Aop+2*k+1)}')
    A(f'v_cmp_eq_u32 vcc, -1, v2\ns_cbranch_vccnz {Lnan}r\ns_mov_b32 {s(sMark)}, 1')
    for i in range(8): A(f'v_mov_b32 {v(acc+i)}, 0')
    for m, tt in seq[:e0]: sm(m, tt)
    A(f's_branch {Lredo}')
```

```python
import math
from asmlib import v, a, s

def part_a(G):
    import gen as g
    from gen import RA, f32, sW, sG, sR, sT0, sT1, sT2, sT3, R0, R1, R2, OUT, P_AX, P_AW, P_AWO, OOB
    A = G.A
    CH = 20480; NB = 4
    RS = 168
    LQ = NB * CH; LK = LQ + 128 * RS; LV = LK + 128 * RS
    CA = 20 ** -0.5 * math.log2(math.e)
    r = RA(10, 248)
    vD = r(5, 1)
    vRd, vRds, vWq, vWs, vOst, vAq, vAk, vAqs, vAks, vPos, vMx, vSum, vBig, vOr = [r() for _ in range(14)]
    OV = r(64, 4)
    bf = r(40, 4); acc = r(40, 4); pk = r(16, 4)
    t = RA(bf + 20, pk + 16)
    q = t(10, 2); kk = t(20, 2); lg = t(8, 2); pp = t(16, 2); o = t(20, 2)
    sRow0, sM, sCol, sNcol, sNkc, sNm, sBufR, sBufW, sHG, sC, sIt, sLeft, sG0, sCnt, sBlk = range(40, 55)
    xfrag = lambda rt, K: a(80*rt + 4*K, 4)
    def oreg(rt, K, half=None):
        i = 4 * (20*rt + K); n = 4
        if half is not None: i += 2*half; n = 2
        return a(160 + i, n) if i < 96 else v(OV + i - 96, n)

    A.label('L_pa_body')
    G.tl(3)
    A(f'''s_sub_u32 {s(sT0)}, {s(sR)}, {g.R_PA}
    s_cmp_ge_u32 {s(sT0)}, 3
    s_cbranch_scc1 L_pa_end
    s_mul_i32 {s(sG0)}, {s(sT0)}, 3
    s_add_u32 {s(sG0)}, {s(sG0)}, {s(sG)}
    s_and_b32 {s(sG0)}, {s(sG0)}, {7 * G.o.arot}
    s_cmp_eq_u32 {s(sT0)}, 0
    s_cselect_b32 {s(sT1)}, 0x76543210, 0
    s_cmp_eq_u32 {s(sT0)}, 1
    s_cselect_b32 {s(sT1)}, {'0x54c321b0' if G.o.amap else '0x76543210'}, {s(sT1)}
    s_cmp_eq_u32 {s(sT0)}, 2
    s_cselect_b32 {s(sT1)}, {'0xf9ea87d6' if G.o.amap else '0xfedcba98'}, {s(sT1)}
    s_lshl_b32 {s(sT2)}, {s(sG)}, 2
    s_lshr_b32 {s(sT1)}, {s(sT1)}, {s(sT2)}
    s_and_b32 {s(sT1)}, {s(sT1)}, 15
    s_min_u32 {s(sT0)}, {s(sT0)}, 1
    s_lshl_b32 {s(sT0)}, {s(sT0)}, 3
    s_add_u32 {s(sBlk)}, {s(sT0)}, {s(sT1)}
    s_mul_i32 {s(sRow0)}, {s(sBlk)}, 112
    s_lshl_b32 {s(sT0)}, {s(sW)}, 5
    s_add_u32 {s(sRow0)}, {s(sRow0)}, {s(sT0)}
    s_sub_u32 {s(sRow0)}, {s(sRow0)}, 16        ; first row of this wave''')
    G.srd(R0, P_AX, 2048 * 640 * 2); G.srd(R1, P_AW, 640 * 1920 * 2); G.srd(R2, P_AWO, 640 * 640 * 2)
    G.lanes()
    for rt in range(2):
        A(f'''s_add_u32 {s(sT0)}, {s(sRow0)}, {16*rt}
        v_add_u32 v3, {s(sT0)}, v1
        v_cmp_gt_u32 vcc, 2048, v3
        v_mul_u32_u24 v3, 1280, v3
        v_lshl_add_u32 v3, v2, 4, v3
        v_mov_b32 v4, {OOB}
        v_cndmask_b32 v3, v4, v3, vcc''')
        for ks in range(20):
            A(f'buffer_load_dwordx4 {xfrag(rt, ks)}, v3, {s(R0,4)}, 0 offen offset:{64*ks}')
    def dma_addr(stride):
        for n in range(5):
            A(f'''v_add_u32 v3, {64*n}, v0
            v_mul_u32_u24 v4, 6554, v3
            v_lshrrev_b32 v4, 16, v4
            v_mul_u32_u24 v5, 10, v4
            v_sub_u32 v5, v3, v5
            v_and_b32 v6, 19, v4
            v_and_b32 v7, 4, v4
            v_lshl_or_b32 v6, v7, 1, v6
            v_and_b32 v7, 8, v4
            v_lshrrev_b32 v7, 1, v7
            v_or_b32 v6, v6, v7
            s_lshl_b32 {s(sT0)}, {s(sW)}, 5
            v_add_u32 v6, {s(sT0)}, v6
            v_mul_u32_u24 v6, {stride}, v6
            v_lshl_add_u32 {v(vD+n)}, v5, 4, v6''')
    dma_addr(3840)
    A(f'''v_lshrrev_b32 v3, 2, v1                 ; r
    v_and_b32 v4, 3, v1                           ; cc
    v_and_b32 v5, 1, v2
    v_lshl_add_u32 v3, v5, 2, v3
    v_lshrrev_b32 v6, 1, v2
    v_lshl_add_u32 v3, v6, 4, v3
    v_mul_u32_u24 v3, 160, v3
    v_lshl_add_u32 {v(vRd)}, v4, 3, v3
    s_lshl_b32 {s(sT0)}, {s(sW)}, 5
    v_add_u32 v3, {s(sT0)}, v1
    v_mul_u32_u24 v3, {RS}, v3
    v_add_u32 v3, {LQ}, v3
    v_lshl_add_u32 {v(vWq)}, v2, 3, v3
    v_lshl_add_u32 {v(vOr)}, v2, 4, v3
    v_add_u32 {v(vOr)}, -32, {v(vOr)}
    v_lshl_add_u32 v3, v5, 4, v1
    v_add_u32 v4, {s(sT0)}, v3
    v_add_u32 v3, {s(sRow0)}, v3
    v_cmp_le_u32 {s(sT2,2)}, 16, v4
    v_cmp_gt_u32 vcc, 2048, v3
    s_and_b64 vcc, vcc, {s(sT2,2)}
    v_mul_u32_u24 v3, 2560, v3
    v_lshl_add_u32 v3, v6, 4, v3
    v_mov_b32 v4, {OOB}
    v_cndmask_b32 {v(vOst)}, v4, v3, vcc
    v_and_b32 v3, 31, v0
    v_add_u32 {v(vPos)}, {s(sRow0)}, v3
    v_add_u32 v3, {s(sT0)}, v3
    v_mul_u32_u24 v3, {RS}, v3
    v_lshrrev_b32 v4, 5, v0
    v_mul_u32_u24 v4, 40, v4
    v_add_u32 v3, v3, v4
    v_add_u32 {v(vAq)}, {LQ}, v3
    v_add_u32 {v(vAk)}, {LK - 14*RS}, v3
    v_mov_b32 {v(vBig)}, {f32(-1e9 * 20 ** 0.5)}
    s_mov_b32 {s(sC)}, {f32(CA)}''')

    def rot(reg):
        return [f's_add_u32 {s(reg)}, {s(reg)}, {CH}', f's_cmp_eq_u32 {s(reg)}, {NB*CH}', f's_cselect_b32 {s(reg)}, 0, {s(reg)}']
    def dma(srd, stride, qkv, lds=True):
        x = [f's_mul_i32 {s(sT0)}, {s(sW)}, 5120', f's_add_u32 m0, {s(sT0)}, {s(sBufW)}',
             f's_mul_i32 {s(sT1)}, {s(sNkc)}, {128*stride}', f's_add_u32 {s(sT1)}, {s(sT1)}, {s(sNcol)}']
        for n in range(5):
            x.append(f'buffer_load_dwordx4 {v(vD+n)}, {s(srd,4)}, {s(sT1)} offen lds' if lds else f'buffer_load_dwordx4 v[248:251], {v(vD+n)}, {s(srd,4)}, {s(sT1)} offen')
            if n < 4: x.append('s_add_u32 m0, m0, 1024')
        y = x; x = []
        x += rot(sBufW)
        x += [f's_cmp_lg_u32 {s(sLeft)}, 0', f's_cselect_b32 {s(sT0)}, 1, 0', f's_sub_u32 {s(sLeft)}, {s(sLeft)}, {s(sT0)}',
              f's_add_u32 {s(sNkc)}, {s(sNkc)}, {s(sT0)}', f's_cmp_eq_u32 {s(sNkc)}, 5', f's_cselect_b32 {s(sNkc)}, 0, {s(sNkc)}']
        if qkv:
            x += [f's_cselect_b32 {s(sT0)}, 1280, 0', f's_addc_u32 {s(sNm)}, {s(sNm)}, 0', f's_add_u32 {s(sNcol)}, {s(sNcol)}, {s(sT0)}',
                  f's_cmp_eq_u32 {s(sNm)}, 3', f's_cselect_b32 {s(sNm)}, 0, {s(sNm)}', f's_cselect_b32 {s(sT0)}, {3840 - 160}, 0',
                  f's_cmp_eq_u32 {s(sNcol)}, {3840 + 1120}', f's_cselect_b32 {s(sT0)}, {s(sNcol)}, {s(sT0)}',
                  f's_sub_u32 {s(sNcol)}, {s(sNcol)}, {s(sT0)}']
        else:
            x += [f's_cselect_b32 {s(sT0)}, 160, 0', f's_add_u32 {s(sNcol)}, {s(sNcol)}, {s(sT0)}',
                  f's_cmp_eq_u32 {s(sNcol)}, 1280', f's_cselect_b32 {s(sNcol)}, 0, {s(sNcol)}']
        return y[:5] + x + y[5:]
    def rd(ks, ct):
        b = bf + 20*(ks & 1) + 4*ct
        return [f'ds_read_b64_tr_b16 {v(b + 2*eh, 2)}, {v(vRds)} offset:{ks*5120 + eh*1280 + ct*32}' for eh in range(2)]
    def next_chunk():
        A(f'v_add_u32 {v(vRds)}, {s(sBufR)}, {v(vRd)}\ns_waitcnt vmcnt(10) lgkmcnt(0)\ns_barrier')
        return [x for ct in range(5) for x in rd(0, ct)]
    def block(srd, stride, qkv, frag):
        for kc in range(5):
            fl = rot(sBufR) + dma(srd, stride, qkv)
            first = []; n = 0; last = -9
            for ks in range(4):
                for ct in range(5):
                    if ks == 3 and ct == 2:
                        assert not fl
                        first = next_chunk()
                    if ks < 3 or ct < 2: A(f's_waitcnt lgkmcnt({8 if ks < 3 else 8 - 2*ct})')
                    nx = rd(ks + 1, ct) if ks < 3 else []
                    for rt in range(2):
                        d = v(acc + 8*ct + 4*rt, 4); K = 4*kc + ks
                        A(f'v_mfma_f32_16x16x32_bf16 {d}, {v(bf + 20*(ks & 1) + 4*ct, 4)}, {frag(rt, K)}, {d if K else 0}')
                        n += 1
                        if nx: A(nx[rt])
                        for _ in range(2):
                            if first: A(first.pop(0))
                        for _ in range(2):
                            if fl and (not fl[0].startswith('buffer') or n - last >= 5):
                                if fl[0].startswith('buffer'): last = n
                                A(fl.pop(0))
    def stream_start(nchunks):
        A(f'''s_mov_b32 {s(sBufR)}, 0
        s_mov_b32 {s(sBufW)}, 0
        s_mul_i32 {s(sNcol)}, {s(sG0)}, 160
        s_mov_b32 {s(sNkc)}, 0
        s_mov_b32 {s(sNm)}, 0
        s_mov_b32 {s(sLeft)}, {nchunks - 1}
        s_mov_b32 {s(sHG)}, {s(sG0)}
        s_mov_b32 {s(sCnt)}, 0''')
    def phase_start(srd, stride, qkv, nchunks):
        if not qkv: A('s_waitcnt vmcnt(0) lgkmcnt(0)\ns_barrier')
        stream_start(nchunks)
        for _ in range(3):
            for x in dma(srd, stride, qkv): A(x)
        for x in next_chunk(): A(x)
    A(f's_cmp_lt_u32 {s(sBlk)}, 19\ns_cbranch_scc1 L_pa_rows')
    if G.o.xwarm:
        G.srd(g.R3, g.P_BX, 2048 * 640 * 2)
        A(f'''s_sub_u32 {s(sT0)}, {s(sBlk)}, 19
        s_lshl_b32 {s(sT0)}, {s(sT0)}, 2
        s_add_u32 {s(sT0)}, {s(sT0)}, {s(sW)}
        s_lshl_b32 {s(sT0)}, {s(sT0)}, 11
        v_lshl_add_u32 v3, v0, 4, {s(sT0)}
        s_mov_b32 {s(sT1)}, {6*40960}
        L_pa_xw:
        buffer_load_dwordx4 v[248:251], v3, {s(g.R3,4)}, {s(sT1)} offen{" nt" if G.o.xwarm == 2 else ""}
        buffer_load_dwordx4 v[248:251], v3, {s(g.R3,4)}, {s(sT1)} offen offset:1024{" nt" if G.o.xwarm == 2 else ""}
        s_add_u32 {s(sT1)}, {s(sT1)}, 40960
        s_waitcnt vmcnt(20)
        s_cmp_lt_u32 {s(sT1)}, {64*40960}
        s_cbranch_scc1 L_pa_xw''')
        if G.o.partA == 2: A('s_branch L_pa_end')
    for srd, stride, qkv, n in ((R1, 3840, True, 46), (R2, 1280, False, 41)):
        if not qkv: dma_addr(1280)
        stream_start(n)
        L = A.uid('L_pa_pf'); A.label(L)
        for x in dma(srd, stride, qkv, False): A(x)
        A(f's_waitcnt vmcnt(20)\ns_cmp_lg_u32 {s(sLeft)}, 0\ns_cbranch_scc1 {L}')
    A('s_branch L_pa_end\nL_pa_rows:')
    if G.o.partA == 2: A('s_branch L_pa_end')
    def cvt(ct):
        for rt in range(2):
            for i in range(2):
                b = acc + 8*ct + 4*rt + 2*i
                A(f'v_cvt_pk_bf16_f32 {v(pk + 2*rt + i)}, {v(b)}, {v(b+1)}')

    phase_start(R1, 3840, True, 120)
    G.tl(4)
    A.label('L_pa_grp')
    G.tl(8)
    A(f's_mov_b32 {s(sM)}, 0')
    A.label('L_pa_blk')
    block(R1, 3840, True, xfrag)
    A(f'v_add_u32 {v(vWs)}, {s(sM)}, {v(vWq)}')
    for ct in range(5):
        cvt(ct)
        A(f'ds_write_b64 {v(vWs)}, {v(pk,2)} offset:{32*ct}\nds_write_b64 {v(vWs)}, {v(pk+2,2)} offset:{32*ct + 16*RS}')
    A(f'''s_waitcnt lgkmcnt(0)
    s_add_u32 {s(sM)}, {s(sM)}, {128*RS}
    s_cmp_lt_u32 {s(sM)}, {3*128*RS}
    s_cbranch_scc1 L_pa_blk
    s_barrier
    s_mov_b32 {s(sIt)}, 0''')
    G.tl(9)
    A.label('L_pa_att')
    A(f'v_add_u32 {v(vAks)}, {s(sIt)}, {v(vAk)}\nv_add_u32 {v(vAqs)}, {s(sIt)}, {v(vAq)}')
    for i in range(5): A(f'ds_read_b64 {v(q+2*i,2)}, {v(vAqs)} offset:{8*i}')
    def rdk(j, base):
        for i in range(5): A(f'ds_read_b64 {v(kk + 10*(j&1) + 2*i, 2)}, {v(vAks)} offset:{base + (14-2*j)*RS + 8*i}')
    rdk(0, 0)
    for j in range(8):
        if j < 7: rdk(j + 1, 0)
        else: rdk(0, LV - LK)
        A('s_waitcnt lgkmcnt(5)')
        for i in range(10):
            A(f'v_dot2_f32_bf16 {v(lg+j)}, {v(q+i)}, {v(kk + 10*(j&1) + i)}, {v(lg+j) if i else 0}')
    for j in range(1, 8):
        A(f'v_cmp_le_i32 vcc, {2*j}, {v(vPos)}\nv_cndmask_b32 {v(lg+j)}, {v(vBig)}, {v(lg+j)}, vcc')
    A(f'v_max_f32 {v(vMx)}, {v(lg)}, {v(lg+1)}')
    for j in range(2, 8, 2): A(f'v_max3_f32 {v(vMx)}, {v(vMx)}, {v(lg+j)}, {v(lg+j+1)}')
    A(f'v_mul_f32 {v(vMx)}, {f32(-CA)}, {v(vMx)}')
    for j in range(8): A(f'v_fma_f32 {v(lg+j)}, {v(lg+j)}, {s(sC)}, {v(vMx)}')
    for j in range(8): A(f'v_exp_f32 {v(lg+j)}, {v(lg+j)}')
    A(f'v_add_f32 {v(vSum)}, {v(lg)}, {v(lg+1)}')
    for j in range(2, 8): A(f'v_add_f32 {v(vSum)}, {v(vSum)}, {v(lg+j)}')
    A(f'v_rcp_f32 {v(vSum)}, {v(vSum)}')
    for j in range(8):
        A(f'''v_mul_f32 {v(lg+j)}, {v(lg+j)}, {v(vSum)}
        v_cvt_pk_bf16_f32 {v(pp+2*j)}, {v(lg+j)}, 0
        v_cvt_pk_bf16_f32 {v(pp+2*j+1)}, 0, {v(lg+j)}''')
    for j in range(8):
        if j < 7: rdk(j + 1, LV - LK)
        A(f's_waitcnt lgkmcnt({5 if j < 7 else 0})')
        for i in range(10):
            for h in range(2):
                A(f'v_dot2_f32_bf16 {v(o+2*i+h)}, {v(kk + 10*(j&1) + i)}, {v(pp+2*j+h)}, {v(o+2*i+h) if j else 0}')
    for i in range(10): A(f'v_cvt_pk_bf16_f32 {v(q+i)}, {v(o+2*i)}, {v(o+2*i+1)}')
    for i in range(5): A(f'ds_write_b64 {v(vAqs)}, {v(q+2*i,2)} offset:{8*i}')
    A(f'''s_waitcnt lgkmcnt(0)
    s_add_u32 {s(sIt)}, {s(sIt)}, 80
    s_cmp_lt_u32 {s(sIt)}, 160
    s_cbranch_scc1 L_pa_att''')
    G.tl(10)
    for hg in range(8):
        if hg < 7: A(f's_cmp_lg_u32 {s(sHG)}, {hg}\ns_cbranch_scc1 L_pa_o{hg+1}')
        K0 = 5 * (hg // 2)
        steps = [(K0, 32, None), (K0 + 1, 96, None), (K0 + 2, 160, 'lo')] if hg % 2 == 0 else [(K0 + 2, 0, 'hi'), (K0 + 3, 64, None), (K0 + 4, 128, None)]
        for K, off, part in steps:
            if part == 'lo': A('s_mov_b32 exec_hi, 0')
            if part == 'hi': A('s_mov_b32 exec_lo, 0')
            for rt in range(2):
                for half in range(2):
                    A(f'ds_read_b64 {oreg(rt, K, half)}, {v(vOr)} offset:{off + rt*16*RS + 8*half}')
            if part: A('s_mov_b64 exec, -1')
        if hg < 7: A(f's_branch L_pa_oe\nL_pa_o{hg+1}:')
    A(f'''L_pa_oe:
    s_waitcnt lgkmcnt(0)
    s_add_u32 {s(sHG)}, {s(sHG)}, 1
    s_and_b32 {s(sHG)}, {s(sHG)}, 7
    s_cmp_lg_u32 {s(sHG)}, {s(sG0)}
    s_cbranch_scc1 L_pa_grp''')
    dma_addr(1280)
    phase_start(R2, 1280, False, 40)
    A(f's_mul_i32 {s(sCol)}, {s(sG0)}, 160')
    G.tl(11)
    A.label('L_pa_oblk')
    block(R2, 1280, False, oreg)
    for ct in range(5):
        cvt(ct)
        A(f'''v_permlane16_swap_b32 {v(pk)}, {v(pk+2)}
        v_permlane16_swap_b32 {v(pk+1)}, {v(pk+3)}
        buffer_store_dwordx4 {v(pk,4)}, {v(vOst)}, {s(OUT,4)}, {s(sCol)} offen offset:{32*ct}{' sc1' if G.o.osc & 2 else ''}''')
    A(f'''s_add_u32 {s(sCol)}, {s(sCol)}, 160
    s_cmp_eq_u32 {s(sCol)}, 1280
    s_cselect_b32 {s(sCol)}, 0, {s(sCol)}
    s_add_u32 {s(sCnt)}, {s(sCnt)}, 1
    s_cmp_lt_u32 {s(sCnt)}, 8
    s_cbranch_scc1 L_pa_oblk''')
    A.label('L_pa_end')
    A('s_waitcnt vmcnt(0)')
    if G.o.wb & 1: A('buffer_wbl2 sc1\ns_waitcnt vmcnt(0)')
    G.hd(13); G.tl(7, True)
    A('s_endpgm')
```

```python
from asmlib import v, a, s
from gen import *

def px(self):
    A = self.A; t = self.tag; ST = self.st; o = self.o
    r = RA(10, 248)
    vHx, vHk, vH16, vXFa, vKFa, vPFa, vFlD, vFl, vMx, vMy, vSum, vBig, vXp = [r() for _ in range(13)]
    Q = r(48, 4); K = r(48, 4); KMo = r(24, 4); S = r(20, 4); P = r(12, 4)
    sRho, sXOff, sKmOff, sPxOff, sC = range(40, 45); sMask = 48
    A.label(f'L_px{t}')
    self.lanes()
    A(f'''s_mul_i32 {s(sT0)}, {s(sW)}, 12288
    v_lshl_add_u32 {v(vHx)}, v0, 4, {s(sT0)}
    s_mul_i32 {s(sT0)}, {s(sW)}, 3072
    v_lshl_add_u32 {v(vH16)}, v0, 4, {s(sT0)}
    v_lshrrev_b32 v3, 2, v1
    v_lshlrev_b32 v3, 1, v3
    v_and_b32 v4, 1, v1
    v_or_b32 v3, v3, v4
    v_lshl_add_u32 v3, v2, 3, v3
    v_lshl_add_u32 {v(vHk)}, v3, 4, {s(sT0)}
    s_lshl_b32 {s(sT0)}, {s(sW)}, 7
    v_min_u32 v3, 11, v0
    v_lshl_add_u32 v3, v3, 2, {s(sT0)}
    v_add_u32 {v(vXFa)}, {XF}, v3
    v_min_u32 v3, 2, v0
    v_lshl_add_u32 v3, v3, 2, {s(sT0)}
    v_add_u32 {v(vKFa)}, {KF}, v3
    v_add_u32 {v(vXp)}, {BF}, v3
    s_add_u32 {s(sT0)}, {s(sT0)}, {PF}
    v_mov_b32 {v(vPFa)}, {s(sT0)}''')
    self.oob_unless(vPFa, 'v_cmp_eq_u32 vcc, 0, v0')
    A(f'''s_nop 0
    v_mov_b32 {v(vBig)}, {f32(-1e9 * 192 ** 0.5)}
    s_mov_b32 {s(sC)}, {f32(CSM)}''')
    for i in range(4):
        A(f'v_lshl_add_u32 v3, v2, 2, {i}\nv_cmp_le_u32 {s(sMask+2*i,2)}, v3, v1')
    for i in (3, 7, 10, 11): A(f'v_mov_b32 {v(P+i)}, 0')
    A('s_waitcnt vmcnt(0)\ns_barrier')
    Lg = A.uid('L_xg')
    A(f's_mov_b32 {s(sS)}, 0\ns_or_b32 {s(sT0)}, {s(sG)}, {s(sW)}\ns_cbranch_scc1 {Lg}c')
    self.coordinate()
    A.label(Lg + 'c')
    A('s_barrier')
    self.gwait()
    A(f's_cmp_lg_u32 {s(sW)}, 0\ns_cbranch_scc1 {Lg}')
    if o.par < 0:
        Lq = A.uid('L_pr')
        A(f'''s_lshl_b32 {s(sT2)}, {s(sG)}, 14
        s_add_u32 {s(sT2)}, {s(sT2)}, {PROBE}
        s_add_u32 {s(sT3)}, {s(sT2)}, 8192
        v_lshlrev_b32 v3, 4, v0''')
        for k in range(4):
            A(f'''buffer_store_dwordx4 {v(Q,4)}, v3, {s(WS,4)}, {s(sT2)} offen offset:{1024*k} sc1
            buffer_store_dwordx4 {v(Q,4)}, v3, {s(WS,4)}, {s(sT3)} offen offset:{1024*k} sc1''')
        A(f'''v_mov_b32 v3, 0
        s_mov_b32 s56, -1
        s_mov_b32 s57, -1
        s_mov_b32 s62, 0
        s_mov_b32 s63, 0
        s_waitcnt vmcnt(0)''')
        A.label(Lq)
        for k in range(2):
            A(f'''s_memtime s[58:59]
            s_waitcnt lgkmcnt(0)
            buffer_load_dword v4, v3, {s(WS,4)}, {s((sT2, sT3)[k])} offen sc1
            s_waitcnt vmcnt(0)
            s_memtime s[60:61]
            s_waitcnt lgkmcnt(0)
            s_sub_u32 s60, s60, s58
            s_min_u32 s{56+k}, s{56+k}, s60''')
        A(f'''buffer_load_dword v4, {v(vXFa)}, {s(WS,4)}, {s(sXB)} offen sc1
        v_add_u32 v3, 128, v3
        s_add_u32 s62, s62, 1
        s_waitcnt vmcnt(0)
        v_cmp_eq_u32 vcc, 0, v4
        s_cmp_eq_u64 vcc, 0
        s_addc_u32 s63, s63, 0
        s_cmp_ge_u32 s63, {o.nq}
        s_cselect_b32 s62, 32, s62
        s_min_u32 s58, s56, s57
        s_max_u32 s59, s56, s57
        s_sub_u32 s59, s59, s58
        s_cmp_ge_u32 s59, 150
        s_cselect_b32 s58, s58, -1
        s_cmp_le_u32 s58, {o.qthr}
        s_cselect_b32 s62, 32, s62
        s_cmp_lt_u32 s62, 32
        s_cbranch_scc1 {Lq}
        s_cmp_lt_u32 s57, s56
        s_cselect_b32 s62, 2, 1''')
    else:
        A(f's_lshr_b32 s62, {s(sXCC)}, 2\ns_xor_b32 s62, s62, {o.par}\ns_and_b32 s62, s62, 1\ns_add_u32 s62, s62, 1')
    A(f'''s_nop 0
    v_mov_b32 v3, {PARF}
    v_mov_b32 v4, s62
    buffer_store_dword v4, v3, {s(WS,4)}, {s(sXB)} offen{ST}
    s_cmp_lg_u32 {s(sG)}, 0
    s_cbranch_scc1 {Lg}
    v_mov_b32 v3, {self.GO + (12 if self.slow else 8)}
    buffer_store_dword v4, v3, {s(DBG,4)}, 0 offen sc1''')
    A.label(Lg)
    A('s_barrier')
    def wait_flag(addr):
        self.spin(f'buffer_load_dword {v(vFlD)}, {v(addr)}, {s(WS,4)}, {s(sXB)} offen sc1', f'v_cmp_ge_u32 vcc, {s(sS)}, {v(vFlD)}', 3)
    def xloads(reg, off):
        x = []
        for k in range(12):
            if k % 4 == 0: x.append(f's_add_u32 {s(sT0)}, {s(sXOff)}, {off + k*1024}')
            x.append(f'buffer_load_dwordx4 {v(reg+4*k,4)}, {v(vHx)}, {s(WS,4)}, {s(sT0)} offen offset:{(k%4)*1024} sc1')
        return x
    if o.x & 32:
        A(f'v_mov_b32 {v(vFl)}, 99\nbuffer_store_dword {v(vFl)}, {v(vPFa)}, {s(WS,4)}, {s(sXB)} offen\ns_endpgm')
    A(f's_add_u32 {s(sXOff)}, {s(sXB)}, {S8B}')
    wait_flag(vXp)
    for x in xloads(K, KX) + xloads(Q, QX): A(x)
    A('s_waitcnt vmcnt(0)')
    LP = f'L_px_loop{t}'; A.label(LP)
    A(f'''s_and_b32 {s(sT0)}, {s(sS)}, 3
    s_mul_i32 {s(sT1)}, {s(sT0)}, {S4}
    s_add_u32 {s(sT1)}, {s(sT1)}, {s(sXB)}
    s_add_u32 {s(sKmOff)}, {s(sT1)}, {KM}
    s_add_u32 {s(sPxOff)}, {s(sT1)}, {PXB}
    s_add_u32 {s(sT0)}, {s(sS)}, 1
    v_mov_b32 {v(vFl)}, {s(sT0)}
    s_and_b32 {s(sT0)}, {s(sT0)}, 3
    s_mul_i32 {s(sT1)}, {s(sT0)}, {S8}
    s_add_u32 {s(sT1)}, {s(sT1)}, {S8B}
    s_add_u32 {s(sXOff)}, {s(sXB)}, {s(sT1)}''')
    for ks in range(6):
        for d, kt, rt in ((0, 0, 0), (8, 0, 1), (12, 1, 1)):
            A(f'v_mfma_f32_16x16x32_bf16 {v(S+d,4)}, {v(K+24*kt+4*ks,4)}, {v(Q+24*rt+4*ks,4)}, {v(S+d,4) if ks else 0}')
    for d in (0, 12):
        for i in range(4):
            A(f'v_cndmask_b32 {v(S+d+i)}, {v(vBig)}, {v(S+d+i)}, {s(sMask+2*i,2)}')
    wait_flag(vKFa)
    for k in range(6):
        A(f'buffer_load_dwordx4 {v(KMo+4*k,4)}, {v(vHk)}, {s(WS,4)}, {s(sKmOff)} offen offset:{k*512} sc1')
    for ks in range(6):
        A(f's_waitcnt vmcnt({5-ks})')
        for d, rt in ((4, 0), (16, 1)):
            A(f'v_mfma_f32_16x16x32_bf16 {v(S+d,4)}, {v(KMo+4*ks,4)}, {v(Q+24*rt+4*ks,4)}, {v(S+d,4) if ks else 0}')
    Lfin = A.uid('L_pxl')
    A(f's_cmp_eq_u32 {s(sS)}, {o.nsteps - 1}\ns_cbranch_scc1 {Lfin}')
    real = A; nxt = xloads(K, KX) + xloads(Q, QX); body = []
    A = lambda txt: body.extend(x.strip() for x in txt.split('\n') if x.strip())
    def allred(op, x, y):
        A(f'''v_mov_b32 {v(y)}, {v(x)}
        v_permlane16_swap_b32 {v(x)}, {v(y)}
        {op} {v(x)}, {v(x)}, {v(y)}
        v_mov_b32 {v(y)}, {v(x)}
        v_permlane32_swap_b32 {v(x)}, {v(y)}
        {op} {v(x)}, {v(x)}, {v(y)}''')
    for regs, outs in (([0,1,2,3,4,5], [0,1,2]), ([8,9,10,11,16,17,12,13,14,15], [4,5,6,8,9])):
        R = [S + x for x in regs]
        A(f'v_max_f32 {v(vMx)}, {v(R[0])}, {v(R[1])}')
        for i in range(2, len(R), 2): A(f'v_max3_f32 {v(vMx)}, {v(vMx)}, {v(R[i])}, {v(R[i+1])}')
        allred('v_max_f32', vMx, vMy)
        A(f'v_mul_f32 {v(vMx)}, {f32(-CSM)}, {v(vMx)}')
        for x in R: A(f'v_fma_f32 {v(x)}, {v(x)}, {s(sC)}, {v(vMx)}')
        for x in R: A(f'v_exp_f32 {v(x)}, {v(x)}')
        A(f'v_add_f32 {v(vSum)}, {v(R[0])}, {v(R[1])}')
        for x in R[2:]: A(f'v_add_f32 {v(vSum)}, {v(vSum)}, {v(x)}')
        allred('v_add_f32', vSum, vMy)
        A(f'v_rcp_f32 {v(vSum)}, {v(vSum)}')
        for x in R: A(f'v_mul_f32 {v(x)}, {v(x)}, {v(vSum)}')
        for i, oo in enumerate(outs): A(f'v_cvt_pk_bf16_f32 {v(P+oo)}, {v(R[2*i])}, {v(R[2*i+1])}')
    A = real
    def finish():
        for k in range(3):
            A(f'buffer_store_dwordx4 {v(P+4*k,4)}, {v(vH16)}, {s(WS,4)}, {s(sPxOff)} offen offset:{k*1024}{ST}')
        A(f's_waitcnt vmcnt(0)\nbuffer_store_dword {v(vFl)}, {v(vPFa)}, {s(WS,4)}, {s(sXB)} offen{ST}')
    for n, x in enumerate(body):
        if n % 4 == 0 and nxt: A(nxt.pop(0))
        A(x)
    for x in nxt: A(x)
    finish()
    A(f's_add_u32 {s(sS)}, {s(sS)}, 1\ns_branch {LP}')
    A.label(Lfin)
    for x in body: A(x)
    finish()
    A('s_endpgm')
```

```python
from asmlib import v, a, s
from gen import *

def proj(self, QK):
    A = self.A; t = self.tag; ST = self.st; o = self.o
    role = 'qkv' if QK else 'v'
    LA = 2 if QK else 3
    LX0, LX1, LS2, LMISC = 0, 40960, 81920, 122880
    LMEM = LMISC; LT = LMEM + 10240; LKX = LT + 2048
    r = RA(10, 240)
    vXdma, vXb0, vXb1, vMd4, vMd1, vProbe, vA0, vIdx, vPr, vXst, vFl, vBF, vNeg, vTW, vTR0, vPrA = [r() for _ in range(16)]
    Aop = r(40, 4); acc = r(8, 4); Z = r(8, 4); xf = r(24, 4); xacc = r(16, 4); pk = r(8, 4); tq = r(2, 2)
    if QK:
        (vTR1, vSCst, vKMst, vKxW, vKxR, vKF, vKxWs, vKxRs, vPl0, vPl1, vPl2, vPl3, vTrig, vTrD, vMst, vMclr, vSclr, vMx, vMy) = [r() for _ in range(19)]
        Kx = r(8, 4); S = r(4, 4); PB = r(16, 4); racc = r(8, 4); rp = r(4, 4); SELB = r(6, 2); SELA = SELB + 2
    else:
        vVMst, vVclr, vXF, vXp, vTrig, vTrD, vEf, vEn, vBa, vOst, vOl, vOut, vOloc = [r() for _ in range(13)]
        fw = r(8, 4); fin = r(8, 4); ft = r(8, 4); SEL2 = 160
    sB, sCur, sClr, sKmOff, sX0, sX1, sXSeg, sXbuf, sMm0, sDelta, sF0, sF1, sMark, sPart, sThr, sW0, sD1, sXp = range(40, 58)
    sLo8 = 58; sFwL, sFwS, sFinL, sFinR = sKmOff, sPart, sThr, 60
    A.label(f'L_{role}{t}')
    if QK:
        self.srd(R0, P_WQ, 640 * 6144 * 2); self.srd(R1, P_WK, 640 * 6144 * 2)
        A(f's_mov_b32 {s(sB)}, {s(sR)}')
    else:
        self.srd(R0, P_WV, 640 * 6144 * 2)
        A(f's_sub_u32 {s(sB)}, {s(sR)}, {R_V}\ns_lshl_b32 {s(sB)}, {s(sB)}, 1')
    self.srd(R3, P_BX, 2048 * 640 * 2)
    self.lanes()
    vWdma = pk; vWr = pk + 1
    A(f'''v_lshrrev_b32 v3, 3, v0              ; r8
    v_and_b32 v4, 7, v0                        ; pp
    s_lshl_b32 {s(sT0)}, {s(sW)}, 3
    v_add_u32 v5, {s(sT0)}, v3
    s_and_b32 {s(sT1)}, {s(sW)}, 1
    s_lshl_b32 {s(sT1)}, {s(sT1)}, 2
    v_and_b32 v6, 2, v3
    v_or_b32 v6, {s(sT1)}, v6
    v_xor_b32 v6, v6, v4
    v_lshlrev_b32 v6, 4, v6
    v_mul_u32_u24 v7, 12288, v5
    s_mul_i32 {s(sT2)}, {s(sG)}, 1536
    s_lshl_b32 {s(sT3)}, {s(sB)}, 7
    s_add_u32 {s(sT2)}, {s(sT2)}, {s(sT3)}
    v_add3_u32 {v(vWdma)}, v6, v7, {s(sT2)}
    v_lshrrev_b32 v6, 1, v3
    v_or_b32 v6, {s(sT1)}, v6
    v_xor_b32 v6, v6, v4
    v_lshlrev_b32 v6, 4, v6
    v_mul_u32_u24 v7, 1280, v5
    v_add_u32 {v(vXdma)}, v6, v7''')
    def xdma_begin(buf_s_or_imm):
        A(f's_lshl_b32 {s(sT0)}, {s(sW)}, 10\ns_add_u32 m0, {s(sT0)}, {buf_s_or_imm}')
    def xdma(ln):
        A(f'buffer_load_dwordx4 {v(vXdma)}, {s(R3,4)}, {s(sXSeg)} offen offset:{ln*128} lds')
        if ln < 9: A('s_add_u32 m0, m0, 3968')
    stages = [(0, 0), (1, 0), (0, 1), (1, 1)]
    bufs = [LS2, LX1, LMISC]
    def wdma(i):
        m, half = stages[i]
        srd = (R0, R1)[m] if QK else R0
        A(f's_lshl_b32 {s(sT0)}, {s(sW)}, 10\ns_add_u32 m0, {s(sT0)}, {bufs[i%3]}\ns_mov_b32 {s(sT1)}, {half*320*12288 + (0 if QK else 128*m)}')
        for k in range(10):
            A(f'buffer_load_dwordx4 {v(vWdma)}, {s(srd,4)}, {s(sT1)} offen{" nt" if o.nt & 2 else ""} lds')
            if k < 9: A(f's_add_u32 m0, m0, 4096\ns_add_u32 {s(sT1)}, {s(sT1)}, {32*12288}')
    self.tl(4)
    wdma(0); wdma(1); wdma(2)
    A(f's_mov_b32 {s(sXSeg)}, 0'); xdma_begin(LX0)
    for ln in range(10): xdma(ln)
    if not QK and o.touch:
        A(f'''s_lshl_b32 {s(sT3)}, {s(sB)}, 1
        s_add_u32 {s(sT3)}, {s(sT3)}, {s(sW)}
        s_mul_i32 {s(sT3)}, {s(sT3)}, 7168
        s_add_u32 {s(sT3)}, {s(sT3)}, {OL}
        s_add_u32 s61, {s(sT3)}, {s(sXB)}''')
    self.tl(5)

    def head_part(b, hl, p):
        A(f's_mul_i32 {s(hl)}, {s(b)}, 86\ns_lshr_b32 {s(hl)}, {s(hl)}, 8\ns_mul_i32 {s(p)}, {s(hl)}, 3\ns_sub_u32 {s(p)}, {s(b)}, {s(p)}')
    sHl, sP, sHl1, sP1 = 60, 59, 62, 63
    head_part(sB, sHl, sP)
    A(f's_add_u32 {s(sT0)}, {s(sB)}, 1'); head_part(sT0, sHl1, sP1)
    A(f'''v_lshrrev_b32 v3, 1, v2
    v_and_b32 v5, 1, v2
    s_lshl_b32 {s(sT0)}, {s(sW)}, 9
    v_lshlrev_b32 v6, 4, v1
    v_lshl_add_u32 v6, v3, 8, v6
    v_add_u32 v6, {s(sT0)}, v6
    s_mul_i32 {s(sT0)}, {s(sHl)}, 12288
    s_lshl_b32 {s(sT1)}, {s(sP)}, 11
    s_add_u32 {s(sT0)}, {s(sT0)}, {s(sT1)}
    v_mul_u32_u24 v7, 6144, v5
    v_add3_u32 {v(vXst)}, v6, v7, {s(sT0)}
    v_mov_b32 {v(vNeg)}, -1''')
    if QK:
        A(f'''s_mov_b32 {s(sD1)}, {KX - QX}
        v_lshl_add_u32 {v(vKxW)}, v5, 11, v6
        v_add_u32 {v(vKxW)}, {LKX}, {v(vKxW)}''')
        A(f'''s_mul_i32 {s(sT0)}, {s(sB)}, 1280
        s_add_u32 {s(sT0)}, {s(sT0)}, {SC}
        v_lshlrev_b32 v6, 1, v5
        v_or_b32 v7, v6, v3                        ; bitswap(g)
        v_lshl_add_u32 v7, v7, 4, v1
        v_lshlrev_b32 v7, 2, v7
        v_add_u32 v7, 1024, v7
        v_or_b32 v6, v6, v1
        v_lshl_add_u32 v6, v3, 4, v6
        v_lshlrev_b32 v6, 4, v6
        s_sub_u32 {s(sT1)}, {s(sW)}, 1
        s_lshl_b32 {s(sT1)}, {s(sT1)}, 9
        v_add_u32 v6, {s(sT1)}, v6
        s_cmp_eq_u32 {s(sW)}, 0
        s_cselect_b64 vcc, -1, 0
        v_cndmask_b32 v6, v6, v7, vcc
        v_add_u32 {v(vSCst)}, {s(sT0)}, v6
        s_lshl_b32 {s(sT1)}, {s(sW)}, 8
        s_add_u32 {s(sT1)}, {s(sT1)}, {s(sT0)}
        v_lshl_add_u32 {v(vSclr)}, v0, 2, {s(sT1)}
        v_and_b32 v4, 2, v1''')
        self.oob_unless(vSCst, 'v_cmp_eq_u32 vcc, 0, v4')
        A(f'''s_lshl_b32 {s(sT0)}, {s(sB)}, 10
        v_lshrrev_b32 v3, 2, v1
        v_lshlrev_b32 v3, 1, v3
        v_and_b32 v6, 1, v1
        v_or_b32 v3, v3, v6
        v_lshl_add_u32 v3, v2, 3, v3
        v_lshl_add_u32 {v(vKMst)}, v3, 4, {s(sT0)}''')
        self.oob_unless(vKMst, 'v_cmp_ne_u32 vcc, 0, v4')
        A(f'''v_and_b32 v6, 9, v1
        v_lshl_or_b32 v6, v4, 1, v6
        v_and_b32 v7, 4, v1
        v_lshrrev_b32 v7, 1, v7
        v_or_b32 v6, v6, v7
        v_lshlrev_b32 v6, 4, v6
        v_lshl_add_u32 v6, v2, 8, v6
        s_cmp_eq_u32 {s(sW)}, 2
        s_cselect_b32 {s(sT0)}, 2048, 0
        s_add_u32 {s(sT0)}, {s(sT0)}, {LKX}
        v_add_u32 {v(vKxR)}, {s(sT0)}, v6''')
        A(f'''s_lshl_b32 {s(sT0)}, {s(sHl)}, 7
        s_lshl_b32 {s(sT1)}, {s(sP)}, 2
        s_add_u32 {s(sT1)}, {s(sT1)}, {s(sT0)}
        s_add_u32 {s(sT1)}, {s(sT1)}, {KF}
        s_cmp_eq_u32 {s(sW)}, 3
        s_cselect_b32 {s(sT1)}, {s(sT1)}, {OOB}
        s_cselect_b32 {s(sW0)}, -1, {0 if o.onep else -1}
        v_mov_b32 {v(vKF)}, {s(sT1)}''')
        self.oob_unless(vKF, 'v_cmp_eq_u32 vcc, 0, v0')
        A(f'v_add_u32 {v(vBF)}, {BF - KF}, {v(vKF)}')
        A(f'''s_mul_i32 {s(sT0)}, {s(sR)}, {PBLK}
        {'s_lshl_b32 %s, %s, 11' % (s(sT1), s(sW)) if not o.lay else 's_and_b32 %s, %s, 1' % (s(sT1), s(sW)) + chr(10) + 's_mul_i32 %s, %s, %d' % (s(sT1), s(sT1), o.lay & 0xffff) + chr(10) + 's_add_u32 %s, %s, %s' % (s(sT0), s(sT0), s(sT1)) + chr(10) + 's_lshr_b32 %s, %s, 1' % (s(sT1), s(sW)) + chr(10) + 's_mul_i32 %s, %s, %d' % (s(sT1), s(sT1), o.lay >> 16)}
        s_add_u32 {s(sT0)}, {s(sT0)}, {s(sT1)}
        s_lshl_b32 {s(sT2)}, {s(sR)}, 10
        s_lshl_b32 {s(sT1)}, {s(sW)}, 8
        s_add_u32 {s(sT2)}, {s(sT2)}, {s(sT1)}
        s_cmp_lt_u32 {s(sR)}, 10
        s_cselect_b32 {s(sT0)}, {s(sT0)}, {OOB}
        s_cselect_b32 {s(sT2)}, {s(sT2)}, {OOB}
        s_lshl_b32 {s(sT1)}, {s(sG)}, 8
        v_lshlrev_b32 v3, 4, v0
        v_xor_b32 v3, {s(sT1)}, v3
        v_add_u32 {v(vPl0)}, {s(sT0)}, v3
        v_xor_b32 v3, 1024, v3
        v_add_u32 {v(vPl1)}, {s(sT0)}, v3
        s_min_u32 {s(sT0)}, {s(sR)}, 9
        s_lshl_b32 {s(sT0)}, {s(sT0)}, 7
        s_add_u32 {s(sT0)}, {s(sT0)}, {TF}
        s_add_u32 {s(sT0)}, {s(sT0)}, {s(sXB)}
        v_and_b32 v3, {0 if o.tone else 3}, v0
        v_lshl_add_u32 {v(vTrig)}, v3, 2, {s(sT0)}
        v_lshl_add_u32 {v(vMclr)}, v0, 2, {s(sT2)}
        v_lshl_add_u32 {v(vMst)}, v1, 4, {s(sT2)}''')
        self.oob_unless(vMst, 'v_cmp_eq_u32 vcc, 0, v2')
        self.sel_consts(SELB)
    else:
        A(f'''s_mul_i32 {s(sD1)}, {s(sHl1)}, 12288
        s_lshl_b32 {s(sT1)}, {s(sP1)}, 11
        s_add_u32 {s(sD1)}, {s(sD1)}, {s(sT1)}
        s_sub_u32 {s(sD1)}, {s(sD1)}, {s(sT0)}
        s_lshl_b32 {s(sT0)}, {s(sB)}, 10
        s_lshl_b32 {s(sT1)}, {s(sW)}, 8
        s_add_u32 {s(sT1)}, {s(sT1)}, {s(sT0)}
        s_add_u32 {s(sT1)}, {s(sT1)}, {VM}
        v_lshl_add_u32 {v(vVclr)}, v0, 2, {s(sT1)}
        v_and_b32 v6, 60, v0
        v_bfe_u32 v7, v0, 1, 1
        v_or_b32 v6, v6, v7
        v_and_b32 v7, 1, v0
        v_lshl_or_b32 v6, v7, 1, v6
        s_and_b32 {s(sT0)}, {s(sW)}, 1
        s_lshl_b32 {s(sT0)}, {s(sT0)}, 3
        v_xor_b32 v6, {s(sT0)}, v6
        v_lshl_add_u32 {v(vVMst)}, v6, 2, {s(sT1)}''')
        A(f'''s_lshl_b32 {s(sT0)}, {s(sHl)}, 5
        s_lshl_b32 {s(sT1)}, {s(sHl1)}, 5
        v_mov_b32 v3, {s(sT0)}
        v_mov_b32 v4, {s(sT1)}
        v_mov_b32 v6, {s(sP)}
        v_mov_b32 v7, {s(sP1)}
        v_cmp_eq_u32 vcc, 0, v0
        v_cndmask_b32 v3, v4, v3, vcc
        v_cndmask_b32 v6, v7, v6, vcc
        v_add_u32 v4, v3, v6
        s_cmp_eq_u32 {s(sW)}, 3
        s_cselect_b32 {s(sT1)}, 0, {OOB}
        s_add_u32 {s(sT1)}, {s(sT1)}, {BF + 12}
        v_lshl_add_u32 {v(vBF)}, v4, 2, {s(sT1)}
        v_lshl_add_u32 v4, v6, 2, v3
        s_lshl_b32 {s(sT1)}, {s(sW)}, 2
        s_add_u32 {s(sT1)}, {s(sT1)}, {XF}
        v_lshl_add_u32 {v(vXF)}, v4, 2, {s(sT1)}''')
        self.oob_unless(vBF, 'v_cmp_gt_u32 vcc, 2, v0')
        A(f'''v_cndmask_b32 {v(vXF)}, v9, {v(vXF)}, vcc
        s_lshl_b32 {s(sT0)}, {s(sB)}, 1
        s_add_u32 {s(sT0)}, {s(sT0)}, {s(sW)}
        s_sub_u32 {s(sT0)}, {s(sT0)}, 4
        s_lshl_b32 {s(sT0)}, {s(sT0)}, 11
        s_cmp_eq_u32 {s(sB)}, 0
        s_cselect_b32 {s(sT0)}, {OOB}, {s(sT0)}
        v_lshl_add_u32 {v(vXp)}, v0, 4, {s(sT0)}
        v_mov_b32 {v(vTrig)}, {TF}''')
    A(f'''v_lshrrev_b32 v3, 2, v1              ; r = c>>2
    v_and_b32 v4, 3, v1                        ; cc
    v_and_b32 v5, 1, v2                        ; g&1
    v_lshl_add_u32 v6, v2, 3, v3
    v_lshlrev_b32 v6, 7, v6                    ; (8g+r)*128
    v_and_b32 v7, 2, v3
    v_lshl_or_b32 v7, v5, 2, v7                ; f
    v_lshrrev_b32 v8, 1, v4
    s_lshl_b32 {s(sT0)}, {s(sW)}, 1
    v_or_b32 v8, {s(sT0)}, v8
    v_xor_b32 v7, v7, v8
    v_lshl_add_u32 v6, v7, 4, v6
    v_and_b32 v7, 1, v4
    v_lshl_add_u32 v6, v7, 3, v6''')
    for i in range(3): A(f'v_add_u32 {v(vWr+i)}, {bufs[i]}, v6')
    A(f's_lshl_b32 {s(sT0)}, {s(sW)}, 9\ns_add_u32 {s(sT0)}, {s(sT0)}, {LT}')
    if QK:
        for eh, reg in ((0, vTR0), (1, vTR1)):
            A(f'''v_xor_b32 v6, {eh}, v5
            v_lshl_add_u32 v6, v6, 2, v3
            v_lshl_add_u32 v6, v2, 3, v6
            v_lshlrev_b32 v6, 5, v6
            v_lshl_or_b32 v7, v5, 1, {eh}
            v_xor_b32 v7, v7, v4
            v_lshl_add_u32 v6, v7, 3, v6
            v_add_u32 {v(reg)}, {LT}, v6''')
        A(f'''v_lshrrev_b32 v6, 3, v1
        v_lshlrev_b32 v6, 2, v6
        v_xor_b32 v6, v6, v1
        v_lshlrev_b32 v6, 5, v6
        v_xor_b32 v7, v2, v3
        v_lshl_add_u32 v6, v7, 3, v6
        v_add_u32 {v(vTW)}, {s(sT0)}, v6''')
    A(f'''v_and_b32 v7, 2, v1
    v_cmp_ne_u32 vcc, 0, v7
    v_mov_b32 v6, 0x4444
    v_mov_b32 v8, 0xeeee
    v_cndmask_b32 {v(vIdx)}, v6, v8, vcc
    v_lshlrev_b32 v6, 4, v0
    v_add_u32 {v(vA0)}, {LMEM}, v6
    s_mul_i32 {s(sT0)}, {s(sW)}, 2560
    v_lshl_add_u32 {v(vMd4)}, v0, 4, {s(sT0)}
    v_lshl_add_u32 {v(vMd1)}, v0, 2, {s(sT0)}
    s_add_u32 {s(sMm0)}, {s(sT0)}, {LMEM}
    v_mul_u32_u24 v6, {0 if o.noprobe else 40}, v0
    v_add_u32 {v(vProbe)}, {s(sMm0)}, v6
    v_mul_u32_u24 v6, {0 if o.noprobe else 164}, v0
    v_min_u32 v6, 10236, v6
    v_add_u32 {v(vPrA)}, {LMEM}, v6
    v_lshrrev_b32 v6, 3, v1
    v_lshlrev_b32 v6, 10, v6
    v_and_b32 v7, 7, v1
    v_lshl_add_u32 v6, v7, 7, v6
    v_lshrrev_b32 v7, 1, v1
    v_xor_b32 v7, v7, v2
    v_lshl_add_u32 {v(vXb0)}, v7, 4, v6
    v_xor_b32 {v(vXb1)}, 64, {v(vXb0)}''')
    waits = [30, 30, 30, 10]
    self.tl(6)
    for i in range(4):
        m, half = stages[i]
        A(f's_waitcnt vmcnt({waits[i]})\ns_barrier')
        for ks in range(10):
            for eh in range(2):
                A(f'ds_read_b64_tr_b16 {a(80*m + 4*(half*10+ks) + 2*eh, 2)}, {v(vWr + i%3)} offset:{ks*4096 + eh*512}')
        A('s_waitcnt lgkmcnt(0)')
        if i < 2: A('s_barrier')
        if i == 0: wdma(3)
        if i == 1:
            A(f's_mov_b32 {s(sXSeg)}, 40960'); xdma_begin(LX1)
            for ln in range(10): xdma(ln)
        if i == 3 and not QK and o.touch in (1, 2):
            A('v_lshlrev_b32 v3, 4, v0')
            for k in range(7): A(f'buffer_load_dwordx4 v[248:251], v3, {s(WS,4)}, s61 offen sc1\ns_add_u32 s61, s61, 1024')
        self.tl(8 + i)

    XD = 3
    TD = o.edep if o.epos else 4
    def xrd1(ks, rt):
        A(f'ds_read_b128 {v(xf + 8*(ks%XD) + 4*rt, 4)}, {v(vXb1 if ks & 1 else vXb0)} offset:{(ks>>1)*4096 + rt*2048}')
    def xrd(ks):
        for rt in range(2): xrd1(ks, rt)
    def xstores():
        if o.x & 16: return
        for m in range(2): A(f'buffer_store_dwordx4 {v(pk+4*m,4)}, {v(vXst)}, {s(WS,4)}, {s((sX0, sX1)[m])} offen{ST}')
    def mem_dma():
        A(f'''buffer_load_dwordx4 {v(vMd4)}, {s(WS,4)}, {s(sCur)} offen sc1 lds
        buffer_load_dwordx4 {v(vMd4)}, {s(WS,4)}, {s(sCur)} offen offset:1024 sc1 lds
        buffer_load_dword {v(vMd1)}, {s(WS,4)}, {s(sCur)} offen offset:2048 sc1 lds
        buffer_load_dword {v(vMd1)}, {s(WS,4)}, {s(sCur)} offen offset:2304 sc1 lds''')
    trig = f'buffer_load_dword {v(vTrD)}, {v(vTrig)}, {s(WS,4)}, 0 offen sc1'
    def trig_load(): A(trig)
    def part_loads(cp, dst):
        A(f'''buffer_load_dwordx4 {v(PB+8*dst,4)}, {v((vPl0, vPl2)[cp])}, {s(WS,4)}, {s(sPart)} offen sc1
        buffer_load_dwordx4 {v(PB+8*dst+4,4)}, {v((vPl1, vPl3)[cp])}, {s(WS,4)}, {s(sPart)} offen sc1''')
    def red_wait():
        self.stamp(role, 't0')
        self.spin(trig, f'v_cmp_gt_u32 vcc, {s(sThr)}, {v(vTrD)}', TD, True)
        A('s_barrier')
    def red_try(b, younger, Lfail):
        A(f'''s_waitcnt vmcnt({younger + 1})
        v_mfma_f32_16x16x32_bf16 {v(racc,4)}, {v(SELA,4)}, {v(b,4)}, 0
        v_mfma_f32_16x16x32_bf16 {v(racc+4,4)}, {v(SELB,4)}, {v(b,4)}, 0
        s_waitcnt vmcnt({younger})
        v_mfma_f32_16x16x32_bf16 {v(racc,4)}, {v(SELA,4)}, {v(b+4,4)}, {v(racc,4)}
        v_mfma_f32_16x16x32_bf16 {v(racc+4,4)}, {v(SELB,4)}, {v(b+4,4)}, {v(racc+4,4)}
        v_cmp_u_f32 vcc, {v(racc)}, {v(racc)}''')
        for q in range(4): A(f'v_cvt_pk_bf16_f32 {v(rp+q)}, {v(racc+2*q)}, {v(racc+2*q+1)}')
        A(f's_cbranch_vccnz {Lfail}')
    def red_sum(order):
        Lp, Lc = A.uid('L_pp'), A.uid('L_pc')
        self.stamp(role, 'gi')
        red_try(PB, 2 * (len(order) - 1), Lp)
        A.label(Lc)
        A(f'buffer_store_dwordx4 {v(rp,4)}, {v(vMst)}, {s(WS,4)}, {s(sCur)} offen{ST}')
        self.stamp(role, 'mp')
        if o.dump:
            A(f'''s_and_b32 {s(sT1)}, {s(sG)}, 6
            s_mul_i32 {s(sT0)}, {s(sS)}, {2*MEM_SLOT}
            s_and_b32 {s(sT2)}, {s(sG)}, 1
            s_mul_i32 {s(sT2)}, {s(sT2)}, {MEM_SLOT}
            s_add_u32 {s(sT0)}, {s(sT0)}, {s(sT2)}
            s_add_u32 {s(sT0)}, {s(sT0)}, {DUMP + (2<<20) - 2*MEM_SLOT}
            s_cmp_eq_u32 {s(sT1)}, 0
            s_cselect_b32 {s(sT0)}, {s(sT0)}, {DUMP}
            buffer_store_dwordx4 {v(rp,4)}, {v(vMst)}, {s(WS,4)}, {s(sT0)} offen''')
        def cold():
            for k in range(2):
                b = PB + 8*k
                if k: A.label(f'{Lp}_1')
                part_loads(k ^ 1, k ^ 1)
                self.count(1 if k == 0 else 1000); self.budget()
                A(f'v_max_u32 {v(vMx)}, {v(b)}, {v(b+1)}')
                for i in range(1, 4): A(f'v_max3_u32 {v(vMx)}, {v(vMx)}, {v(b+2*i)}, {v(b+2*i+1)}')
                A(f'v_cmp_eq_u32 vcc, -1, {v(vMx)}\ns_cbranch_vccz {Lc}')
                red_try(PB + 8*(k ^ 1), 0, f'{Lp}_1' if k == 0 else Lp)
                A(f's_branch {Lc}')
        self.cold.append((Lp, cold))

    def fin_loads():
        A(f's_cmp_lt_i32 {s(sFinR)}, 0\ns_cselect_b32 {s(sFinL)}, {s(sXB)}, {s(sFinL)}')
        for k in range(2): A(f'buffer_load_dwordx4 {v(fin+4*k,4)}, {v(vOl)}, {s(WS,4)}, {s(sFinL)} offen offset:{1024*k} sc1')
    def fin_out():
        Lf = A.uid('L_fin')
        A(f's_cmp_lt_i32 {s(sFinR)}, 0\ns_cbranch_scc1 {Lf}')
        a0, a1 = [self.fin_rows(fin + 4*k, ft + 4*k, vOut, sFinR, sLo8, SEL2, 32*k) for k in range(2)]
        for x, y in zip(a0, a1): A(x); A(y)
        A.label(Lf)
    def forward(younger):
        Lf = A.uid('L_fw')
        A(f's_waitcnt vmcnt({younger})\ns_cmp_lt_i32 {s(sFinR)}, {-3*32*2560}\ns_cbranch_scc1 {Lf}c')
        A.label(Lf)
        for k in range(2): A(f'buffer_store_dwordx4 {v(fw+4*k,4)}, {v(vOst)}, {s(WS,4)}, {s(sFwS)} offen offset:{1024*k} sc1')
        def cold():
            for i in range(8): A(f'v_mov_b32 {v(fw+i)}, -1')
            A(f's_add_u32 {s(sFwS)}, {s(sFwS)}, {7*OUTP_SLOT}')
            for k in range(2): A(f'buffer_store_dwordx4 {v(fw+4*k,4)}, {v(vOst)}, {s(WS,4)}, {s(sFwS)} offen offset:{1024*k} sc1')
            A(f's_sub_u32 {s(sFwS)}, {s(sFwS)}, {3*OUTP_SLOT}\ns_branch {Lf}')
        self.cold.append((Lf + 'c', cold))

    def gemm(dma, fill=(), loop=False):
        fill = list(fill)
        if not loop: xrd(0); xrd(1)
        vm = []
        st = {'flag': not (loop and QK), 'ta': (200 if QK else 64) if loop else 0, 'n': 0, 'clr': 0}
        def clr(reg, off):
            A(f'buffer_store_dword {v(vNeg)}, {v(reg)}, {s(WS,4)}, {s(sClr)} offen offset:{off}{ST}'); st['clr'] -= 1
        if loop and not QK:
            vm.append((128, lambda: [A(f'buffer_load_dwordx4 {v(fw+4*k,4)}, {v(vOloc)}, {s(WS,4)}, {s(sFwL)} offen offset:{1024*k} sc1') for k in range(2)]))
            vm.append((128, fin_loads))
            vm.append((128, lambda: [A(f'buffer_load_dwordx4 v[248:251], {v(vXp)}, {s(R3,4)}, {s(sXp)} offen offset:{1024*k}') for k in range(2)]))
            vm.append((128, lambda: forward(4)))
        if loop:
            for reg, off in (((vSclr, 0), (vMclr, 0), (vSclr, 256)) if QK else ((vVclr, 0), (vVclr, 1024))):
                vm.append((24, lambda reg=reg, off=off: clr(reg, off))); st['clr'] += 1
        if dma:
            xdma_begin(s(sXbuf))
            vm += [(64, lambda k=k: xdma(k) if not (loop and o.x & 256) else None) for k in range(10)]
        if loop and QK:
            vm.insert(o.fp, (24, lambda: (A(f's_waitcnt vmcnt({o.fp})\nbuffer_store_dword {v(vFl)}, {v(vKF)}, {s(WS,4)}, {s(sXB)} offen{ST}'), st.update(flag=True))))
        ev = []; order = []
        if loop and QK:
            ev = [(o.k1 - d, trig_load) for d in range(o.esp*(TD - 1), 0, -o.esp)] + [(o.k1, red_wait)]
            half = lambda h: A(f'buffer_load_dwordx4 {v(PB+4*h,4)}, {v((vPl0, vPl1)[h])}, {s(WS,4)}, {s(sPart)} offen sc1')
            ev.append((o.k1 + o.ka, lambda: half(0)))
            ev.append((o.k1 + o.ka + o.ksplit, lambda: (half(1), self.stamp(role, 't1'), order.append('A'))))
            assert [e[0] for e in ev] == sorted(e[0] for e in ev)
        if loop and not QK and o.epos:
            ev = [(o.epos + d, lambda reg=reg: A(f'buffer_store_dword {v(vFl)}, {v(reg)}, {s(WS,4)}, 0 offen sc1')) for reg, d in ((vEf, 0), (vEn, o.enear))]
        def events(n):
            k = 0
            while ev and ev[0][0] <= n:
                if ev[0][1] is red_wait: assert not vm and not fill, (len(vm), len(fill))
                ev.pop(0)[1](); k += 1
            return k
        def mf(m, ks, rt):
            d = v(xacc + 8*m + 4*rt, 4)
            A('s_nop 3' if (loop and o.x & 64 and ks) else f'v_mfma_f32_16x16x32_bf16 {d}, {a(80*m + 4*ks, 4)}, {v(xf + 8*(ks%XD) + 4*rt, 4)}, {d if ks else 0}')
            st['n'] += 1
            return 2 * events(st['n'])
        A('s_waitcnt lgkmcnt(2)')
        for ks in range(18):
            for n in range(4):
                used = mf(n // 2, ks, n & 1)
                if n < 2 and not (loop and o.x & 128 and ks > 0): xrd1(ks + 2, n); used += 1
                if n == 2 and vm and st['ta'] <= 16 * st['n'] + ((o.tslack if QK else o.tslackv) if loop else 0):
                    c, f = vm.pop(0); f(); st['ta'] += c; used += 2
                    if c < 64 and vm and vm[0][0] < 64 and st['clr']: c, f = vm.pop(0); f(); st['ta'] += c
                if n == 3: A(f's_waitcnt lgkmcnt({2 if ks < 17 else 0})'); used += 1
                for _ in range(o.fd - used):
                    if fill: A(fill.pop(0))
        assert not fill and (not QK or not vm)
        while vm: vm.pop(0)[1]()
        def epi(m):
            x = []
            for rt in range(2):
                for i in range(2):
                    b = xacc + 8*m + 4*rt + 2*i
                    x.append(f'v_cvt_pk_bf16_f32 {v(pk + 4*m + 2*rt + i)}, {v(b)}, {v(b+1)}')
            x.append(f'v_permlane16_swap_b32 {v(pk+4*m)}, {v(pk+4*m+2)}')
            x.append(f'v_permlane16_swap_b32 {v(pk+4*m+1)}, {v(pk+4*m+3)}')
            if m == 1 and QK: x.append(f'ds_write_b128 {v(vKxWs)}, {v(pk+4,4)}')
            return x
        tog = [f'v_add_u32 {v(vXb0)}, {s(sDelta)}, {v(vXb0)}', f'v_add_u32 {v(vXb1)}, {s(sDelta)}, {v(vXb1)}',
               f's_sub_u32 {s(sXbuf)}, {s(sXbuf)}, {s(sDelta)}', f's_sub_u32 {s(sDelta)}, 0, {s(sDelta)}']
        for m in range(2):
            for ks in (18, 19):
                for rt in range(2):
                    mf(m, ks, rt)
                    if tog: A(tog.pop(0))
        for x in epi(0) + epi(1): A(x)
        if loop and QK:
            while 'A' not in order: ev.pop(0)[1]()
            events(81)
            xstores(); order.append('X')
            A(f's_mov_b32 m0, {s(sMm0)}')
            events(999)
            red_sum(order)
            A('s_barrier')
        else:
            xstores()
            if loop: A('s_waitcnt vmcnt(18)'); fin_out()
    def set_x(seg):
        A(f'''s_add_u32 {s(sX0)}, {s(sXB)}, {S8B + seg*S8 + QX if QK else seg*S4 + VX}
        s_add_u32 {s(sX1)}, {s(sX0)}, {s(sD1)}
        s_mov_b32 {s(sXSeg)}, {40960*(seg+1)}''')
        if QK: A(f'v_add_u32 {v(vKxWs)}, {4096*seg}, {v(vKxW)}')
    L = lambda txt: [x.strip() for x in txt.split('\n') if x.strip()]
    setup = L(f'''s_and_b32 {s(sF0)}, {s(sS)}, 3
    s_mul_i32 {s(sPart)}, {s(sF0)}, {PART_SLOT}''') if QK else []
    setup += L(f'''s_add_u32 {s(sF1)}, {s(sS)}, {LA}
    s_and_b32 {s(sF0)}, {s(sF1)}, 3
    s_mul_i32 {s(sF0)}, {s(sF0)}, {S8 if QK else S4}
    s_add_u32 {s(sF0)}, {s(sF0)}, {S8B + QX if QK else VX}
    s_add_u32 {s(sX0)}, {s(sXB)}, {s(sF0)}
    s_add_u32 {s(sX1)}, {s(sX0)}, {s(sD1)}''')
    if QK: setup += L(f'''s_and_b32 {s(sF0)}, {s(sF1)}, 3
    s_lshl_b32 {s(sF0)}, {s(sF0)}, 12
    v_add_u32 {v(vKxWs)}, {s(sF0)}, {v(vKxW)}''')
    setup += L(f'''s_add_u32 {s(sS)}, {s(sS)}, 1
    s_mov_b32 {s(sMark)}, 0
    s_and_b32 {s(sF0)}, {s(sS)}, 3
    s_mul_i32 {s(sF1)}, {s(sF0)}, {S4}
    s_add_u32 {s(sCur)}, {s(sXB)}, {s(sF1)}
''')
    if QK: setup += L(f'''s_and_b32 {s(sThr)}, {s(sS)}, {s(sW0)}
    s_lshl_b32 {s(sF0)}, {s(sF0)}, 12
    v_add_u32 {v(vKxRs)}, {s(sF0)}, {v(vKxR)}
    s_add_u32 {s(sKmOff)}, {s(sCur)}, {KM}''')
    late = L(f'''s_add_u32 {s(sF0)}, {s(sS)}, 2
    s_and_b32 {s(sF0)}, {s(sF0)}, 3
    s_mul_i32 {s(sF0)}, {s(sF0)}, {S4}
    s_add_u32 {s(sClr)}, {s(sXB)}, {s(sF0)}
    s_add_u32 {s(sF0)}, {s(sS)}, {LA + 1}
    s_min_u32 {s(sF0)}, {s(sF0)}, 63
    s_mul_i32 {s(sXSeg)}, {s(sF0)}, 40960
    s_add_u32 {s(sF1)}, {s(sS)}, 1
    v_mov_b32 {v(vFl)}, {s(sF1)}
    s_mov_b32 m0, {s(sMm0)}''') + [f'v_mov_b32 {v(acc+i)}, 0' for i in range(8)]
    if not QK: late += L(f'''s_add_u32 {s(sF0)}, {s(sS)}, 6
    s_min_u32 {s(sF0)}, {s(sF0)}, 63
    s_mul_i32 {s(sXp)}, {s(sF0)}, 40960
    s_and_b32 {s(sF0)}, {s(sS)}, 3
    s_mul_i32 {s(sF1)}, {s(sF0)}, {OL_SLOT}
    s_add_u32 {s(sFwL)}, {s(sF1)}, {s(sXB)}
    s_mul_i32 {s(sF1)}, {s(sF0)}, {OUTP_SLOT}
    s_add_u32 {s(sFwS)}, {s(sF1)}, {OUTP}
    s_xor_b32 {s(sF0)}, {s(sF0)}, 2
    s_mul_i32 {s(sF1)}, {s(sF0)}, {OUTP_SLOT}
    s_add_u32 {s(sFinL)}, {s(sF1)}, {OUTP}
    s_sub_u32 {s(sF1)}, {s(sS)}, 6
    s_mul_i32 {s(sFinR)}, {s(sF1)}, {32*2560}''')

    A(f's_mov_b32 {s(sDelta)}, 40960\ns_mov_b32 {s(sXbuf)}, {LX1}\ns_mov_b32 {s(sS)}, -1')
    set_x(0)
    gemm(False)
    self.tl(2); self.hd(8)
    self.gwait()
    self.tl(3)
    for seg in range(1, LA):
        A('s_waitcnt vmcnt(0) lgkmcnt(0)')
        if not QK: A(f'v_mov_b32 {v(vFl)}, {seg}\nbuffer_store_dword {v(vFl)}, {v(vXF)}, {s(WS,4)}, {s(sXB)} offen{ST}')
        A('s_barrier')
        set_x(seg)
        gemm(True, setup if seg == LA - 1 else ())
    self.tl(12)
    if QK:
        Lpf = A.uid('L_pf')
        A(f'v_mov_b32 v3, {PARF}')
        A.label(Lpf)
        A(f'buffer_load_dword v4, v3, {s(WS,4)}, {s(sXB)} offen sc1')
        self.budget()
        A(f'''s_waitcnt vmcnt(0)
        v_readfirstlane_b32 {s(sT0)}, v4
        s_cmp_eq_u32 {s(sT0)}, 0
        s_cbranch_scc1 {Lpf}
        s_and_b32 {s(sT0)}, {s(sT0)}, 2
        s_lshl_b32 {s(sT0)}, {s(sT0)}, 12
        v_mov_b32 v3, {s(sT0)}
        v_mov_b32 v4, {16384 if o.loc else 'v3'}
        v_cmp_gt_u32 vcc, 16, v0
        v_cndmask_b32 v3, v3, v4, vcc
        v_add_u32 {v(vPl0)}, v3, {v(vPl0)}
        v_add_u32 {v(vPl1)}, {s(sT0)}, {v(vPl1)}
        v_add_u32 {v(vPl2)}, {16384 if o.ncopy == 4 else 0}, {v(vPl0)}
        v_add_u32 {v(vPl3)}, {16384 if o.ncopy == 4 else 0}, {v(vPl1)}
        s_mov_b32 m0, {s(sMm0)}''')
        if o.tl: A(f'v_writelane_b32 v255, {s(sT0)}, 20')
        if o.x & 512: A(f'v_mov_b32 {v(vPl0)}, {OOB}\nv_mov_b32 {v(vPl2)}, {OOB}')
        if o.epos:
            self.side0()
            A(f'''s_and_b32 {s(sT1)}, {s(sG)}, 1
            s_lshl_b32 {s(sT1)}, {s(sT1)}, 12
            s_lshr_b32 {s(sT2)}, {s(sG)}, 2
            s_lshl_b32 {s(sT2)}, {s(sT2)}, 13
            s_add_u32 {s(sT1)}, {s(sT1)}, {s(sT2)}
            s_and_b32 {s(sT2)}, {s(sG)}, 2
            s_lshl_b32 {s(sT2)}, {s(sT2)}, 13
            s_add_u32 {s(sT1)}, {s(sT1)}, {s(sT2)}
            s_xor_b32 {s(sT1)}, {s(sT1)}, {s(sT0)}
            s_add_u32 {s(sT1)}, {s(sT1)}, {EF}
            v_lshrrev_b32 v4, 2, v0
            v_lshl_add_u32 v3, v4, 9, {s(sT1)}
            v_cmp_ne_u32 {s(sT2,2)}, {s(sG)}, v4
            v_cmp_gt_u32 vcc, 32, v0
            s_and_b64 vcc, vcc, {s(sT2,2)}
            s_and_b32 vcc_lo, vcc_lo, {s(sW0)}
            v_cndmask_b32 {v(vTrig)}, {v(vTrig)}, v3, vcc''')
        self.hd(9)

    elif o.epos:
        self.side0()
        A(f'''v_and_b32 v3, 1, v0
        v_lshlrev_b32 v3, 12, v3
        v_bfe_u32 v5, v0, 2, 1
        v_lshl_add_u32 v3, v5, 13, v3
        v_bfe_u32 v4, v0, 1, 1
        v_lshl_add_u32 v3, v4, 14, v3
        v_xor_b32 v3, {s(sT0)}, v3
        s_lshl_b32 {s(sT1)}, {s(sG)}, 9
        s_add_u32 {s(sT1)}, {s(sT1)}, {EF}
        s_xor_b32 {s(sW0)}, {s(sW)}, 3
        s_or_b32 {s(sW0)}, {s(sW0)}, {s(sB)}
        s_cselect_b32 {s(sT1)}, {OOB}, {s(sT1)}
        v_add_u32 {v(vEf)}, {s(sT1)}, v3''')
        self.oob_unless(vEf, 'v_cmp_gt_u32 vcc, 8, v0')
        self.oob_unless(vEf, f'v_cmp_ne_u32 vcc, {s(sG)}, v0')
        A(f'''s_lshr_b32 {s(sT1)}, {s(sG)}, 2
        v_cmp_eq_u32 vcc, {s(sT1)}, v5
        v_cndmask_b32 {v(vEn)}, v9, {v(vEf)}, vcc
        v_cndmask_b32 {v(vEf)}, {v(vEf)}, v9, vcc
        v_and_b32 v3, 7, v0
        v_min_u32 v3, 5, v3
        v_bfe_u32 v4, v0, 3, 2
        v_lshlrev_b32 v4, 7, v4
        v_lshl_add_u32 v3, v3, 2, v4
        v_add_u32 {v(vBa)}, {BF + 32}, v3
        s_mov_b32 s61, {s(sT0)}
        s_lshl_b32 {s(sT3)}, {s(sB)}, 1
        s_add_u32 {s(sT3)}, {s(sT3)}, {s(sW)}
        s_lshl_b32 {s(sT3)}, {s(sT3)}, 1
        s_sub_u32 {s(sT3)}, {s(sT3)}, 8''')
        self.lanes()
        self.out_addr(sT3, vOst, vOl, vOut, vOloc, sLo8, SEL2)
        A(f'v_xor_b32 {v(vOst)}, s61, {v(vOst)}\nv_xor_b32 {v(vOl)}, s61, {v(vOl)}\ns_cmp_lg_u32 {s(sB)}, 0\ns_cselect_b64 vcc, -1, 0\nv_mov_b32 v9, {OOB}')
        for reg in (vOst, vOl, vOut, vOloc): A(f'v_cndmask_b32 {v(reg)}, v9, {v(reg)}, vcc')

    self.tl(13)
    LP = f'L_{role}_loop{t}'
    A.label(LP)
    if not QK:
        for x in late: A(x)
        if o.vgate:
            Lv = A.uid('L_vg')
            A.label(Lv); A(f'buffer_load_dword {v(vTrD)}, {v(vTrig)}, {s(WS,4)}, {s(sXB)} offen sc1'); self.budget()
            A(f's_waitcnt vmcnt(0)\nv_cmp_gt_u32 vcc, {s(sS)}, {v(vTrD)}\ns_cbranch_vccnz {Lv}')
    Lredo, Lpoll, Lnan, Lcont = A.uid('L_redo'), A.uid('L_poll'), A.uid('L_nan'), A.uid('L_cont')
    if QK:
        late += [f'ds_read_b128 {v(Kx,4)}, {v(vKxRs)}', f'ds_read_b128 {v(Kx+4,4)}, {v(vKxRs)} offset:1024']
        for x in late[:o.nl]: A(x)
    mem_dma()
    if QK:
        for x in late[o.nl:]: A(x)
        for _ in range(o.dly): A('s_nop 3')
    self.stamp(role, 'p0')
    A.label(Lpoll)
    mem_dma()
    self.budget(); self.count(1, 'mem')
    A(f'''s_waitcnt vmcnt(4)
    ds_read_b32 {v(vPr)}, {v(vProbe)}
    s_waitcnt lgkmcnt(0)
    v_cmp_eq_u32 vcc, -1, {v(vPr)}
    s_cbranch_vccnz {Lpoll}''')
    self.stamp(role, 'p1')
    A('s_barrier')
    self.stamp(role, 'b1')
    def rdA(tt):
        A(f'ds_read_b128 {v(Aop+4*tt,4)}, {v(vA0)} offset:{tt*1024}')
    def sm(m, tt):
        A(f'v_smfmac_f32_16x16x64_bf16 {v(acc+4*m,4)}, {v(Aop+4*tt,4)}, {a(80*m+8*tt,8)}, {v(vIdx)}')
    NI = o.ni if QK else 5
    seq = [(m, tt) for tt in range(NI) for m in range(2)] + [(0, tt) for tt in range(NI, 10)] + [(1, tt) for tt in range(NI, 10)]
    e0 = 10 + NI
    PRE = o.pre0 if QK else 4; issued = PRE; waited = -1
    for tt in range(PRE): rdA(tt)
    bpos = o.bpos if QK else o.bposv
    bfl = lambda off=0: A(f'buffer_store_dword {v(vFl)}, {v(vBF)}, {s(WS,4)}, {s(sXB)} offen offset:{off}{ST}')
    def zrd(u): A(f'ds_read_b64_tr_b16 {v(Z+4*u,2)}, {v(vTR0)} offset:{u*1024}\nds_read_b64_tr_b16 {v(Z+4*u+2,2)}, {v(vTR1)} offset:{u*1024}')
    def scores(src, y=0):
        A(f'''s_waitcnt lgkmcnt({2+y})
        v_mfma_f32_16x16x32_bf16 {v(S,4)}, {v(src,4)}, {v(Z,4)}, 0
        s_waitcnt lgkmcnt({y})
        v_mfma_f32_16x16x32_bf16 {v(S,4)}, {v(src+4,4)}, {v(Z+4,4)}, {v(S,4)}''')
    vst = lambda m: A(f'buffer_store_dword {v(tq+m)}, {v(vVMst)}, {s(WS,4)}, {s(sCur)} offen offset:{1024*m}{ST}')
    cvt = lambda m: A(f'v_cvt_pk_bf16_f32 {v(tq+m)}, {v(acc+4*m)}, {v(acc+4*m+1)}')
    cmpu = lambda: A(f'v_cmp_u_f32 vcc, {v(acc)}, {v(acc+1)}')
    brn = lambda: A(f's_cbranch_vccnz {Lnan}\n{Lcont}:')
    side = {e0 + 2: [lambda: A(f'v_add_f32 {v(acc)}, {v(acc)}, {v(acc+2)}\nv_add_f32 {v(acc+1)}, {v(acc+1)}, {v(acc+3)}')]}
    if QK:
        side.update({e0 + 3: [lambda: cvt(0), lambda: A(f'ds_write_b32 {v(vTW)}, {v(tq)}')], e0 + 4: [cmpu], e0 + 6: [brn],
                     e0 + 7: [lambda: A('s_waitcnt lgkmcnt(0)\ns_barrier'), lambda: self.stamp(role, 'ba'), lambda: zrd(0)], e0 + 8: [lambda: zrd(1)]})
    else:
        side.update({e0 + 3: [cmpu, lambda: cvt(0)], e0 + 5: [brn, lambda: vst(0)]})
    for n, (m, tt) in enumerate(seq):
        if n == e0: self.stamp(role, 'qe'); A.label(Lredo)
        if n == 1: self.stamp(role, 's1')
        if tt > waited: A(f's_waitcnt lgkmcnt({issued - 1 - tt})'); waited = tt
        sm(m, tt)
        if issued < 10: rdA(issued); issued += 1
        if n == bpos: bfl()
        for f in side.pop(n, []): f()
    for n in sorted(side):
        for f in side[n]: f()
    def post1():
        A(f'v_pk_add_f32 {v(acc+4,2)}, {v(acc+4,2)}, {v(acc+6,2)}')
        cvt(1)
    if QK:
        Lw0, Lw3, Ljoin = A.uid('L_w0'), A.uid('L_w3'), A.uid('L_join')
        A(f'''s_cmp_eq_u32 {s(sW)}, 0
        s_cbranch_scc1 {Lw0}
        s_cmp_eq_u32 {s(sW)}, 3
        s_cbranch_scc1 {Lw3}''')
        def tphase(wave):
            xs = lambda: (A(f'buffer_store_dwordx4 {v(S,4)}, {v(vSCst)}, {s(WS,4)}, {s(sCur)} offen{ST}'), self.stamp(role, 'sc'))
            if wave == 1 and o.xo == 2: scores(Kx)
            post1()
            A(f'ds_write_b32 {v(vTW)}, {v(tq+1)} offset:4')
            if wave == 1 and o.xo < 2: scores(Kx, 1)
            if wave == 1 and o.xo: xs()
            A('s_waitcnt lgkmcnt(0)\ns_barrier')
            if wave == 1 and not o.xo: xs()
            self.stamp(role, 'b2')
            if wave != 1: zrd(0); zrd(1)
            if wave == 3:
                bfl(32)
                A('s_waitcnt lgkmcnt(0)')
                xrd(0); xrd(1)
                A(f'''s_waitcnt lgkmcnt(0)
                buffer_store_dwordx4 {v(Z,4)}, {v(vKMst)}, {s(WS,4)}, {s(sKmOff)} offen{ST}
                buffer_store_dwordx4 {v(Z+4,4)}, {v(vKMst)}, {s(WS,4)}, {s(sKmOff)} offen offset:512{ST}''')
            else:
                if wave == 0: scores(Z)
                xrd(0); xrd(1)
                if wave == 0:
                    A(f'buffer_store_dword {v(S+2)}, {v(vSCst)}, {s(WS,4)}, {s(sCur)} offen{ST}')
                    A(f'buffer_store_dword {v(S+3)}, {v(vSCst)}, {s(WS,4)}, {s(sCur)} offen offset:8{ST}')
            if wave != 1: self.stamp(role, 'sc')
        tphase(1); A(f's_branch {Ljoin}')
        A.label(Lw0); tphase(0); A(f's_branch {Ljoin}')
        A.label(Lw3); tphase(3)
        A.label(Ljoin)
    else:
        post1(); vst(1)
        self.stamp(role, 'vm')
        bfl(32)
        xrd(0); xrd(1)
    Lend = A.uid('L_end')
    A(f's_cmp_eq_u32 {s(sS)}, {o.nsteps - 1}\ns_cbranch_scc1 {Lend}')
    if QK: self.tr_flush(role, 1)
    if QK and o.hd >= 14 and not self.slow:
        Lh = A.uid('L_h'); A(f's_cmp_lg_u32 {s(sS)}, {o.hd - 14}\ns_cbranch_scc1 {Lh}'); self.hd(o.hd); A.label(Lh)
    if not QK and o.epos:
        La = A.uid('L_an'); bl = f'buffer_load_dword {v(vTrD)}, {v(vBa)}, {s(WS,4)}, {s(sXB)} offen sc1'
        A(f's_cmp_lg_u32 {s(sW0)}, 0\ns_cbranch_scc1 {La}x')
        self.spin(bl, f'v_cmp_ge_u32 vcc, {s(sS)}, {v(vTrD)}', 7 if o.fpoll else 4)
        A.label(La + 'x')
        A('s_barrier')
    gemm(True, setup, True)
    self.stamp(role, 'ge')
    if not QK: self.tr_flush(role)
    A(f's_branch {LP}')
    A.label(Lend)
    if not QK: fin_loads()
    A('s_waitcnt vmcnt(0) lgkmcnt(0)')
    if not QK: fin_out(); A('s_waitcnt vmcnt(0)')
    if QK:
        A(f'buffer_store_dword {v(vFl)}, {v(vKF)}, {s(WS,4)}, {s(sXB)} offen{ST}')
        self.hd(10)
    if not QK and o.wb & 2:
        Lw = A.uid('L_wb')
        A(f's_cmp_lg_u32 {s(sW0)}, 0\ns_cbranch_scc1 {Lw}\nbuffer_wbl2 sc1\ns_waitcnt vmcnt(0)\n{Lw}:')
    self.stamp_out(role); self.tl(7, True)
    A('s_endpgm')
    A.label(Lnan)
    A(f's_cmp_eq_u32 {s(sMark)}, 1\ns_cbranch_scc1 {Lcont}\nv_lshlrev_b32 v1, 4, v0')
    A.label(Lnan + 'r')
    A(f's_mov_b32 {s(sT0)}, {s(sCur)}\nv_mov_b32 v2, 0')
    for k in range(10):
        A(f'buffer_load_dwordx4 {v(Aop+4*k,4)}, v1, {s(WS,4)}, {s(sT0)} offen sc1\ns_add_u32 {s(sT0)}, {s(sT0)}, 1024')
    self.budget()
    A('s_waitcnt vmcnt(0) lgkmcnt(0)')
    for k in range(20): A(f'v_max3_u32 v2, v2, {v(Aop+2*k)}, {v(Aop+2*k+1)}')
    A(f'v_cmp_eq_u32 vcc, -1, v2\ns_cbranch_vccnz {Lnan}r\ns_mov_b32 {s(sMark)}, 1')
    for i in range(8): A(f'v_mov_b32 {v(acc+i)}, 0')
    for m, tt in seq[:e0]: sm(m, tt)
    A(f's_branch {Lredo}')
```

```python
from asmlib import v, a, s
from gen import *

def wo(self):
    A = self.A; t = self.tag; ST = self.st; o = self.o
    LY = 0; YS = 24576; LPX = 98304; LE = 122880; ES = 1152; LVM = LE + 8192
    r = RA(10, 248)
    (vIdxU, vIdxP, vL16, vL4, vPst0, vOloc, vVr0, vMst, vEW, vER, vYW, vYW2, vYR, vYR2, vYWs, vYW2s, vYRs, vYR2s,
     vPXR, vPXRs, vOst, vOl, vOut, vFlA, vFlT, vFlTs, vFlD, vH16, vHsc, vHscm, vHvx, vMx, vMy, vPk, vHvm, vEf, vPclr, vYUs) = [r() for _ in range(38)]
    Y = r(32, 4); PA = r(4, 4); ONES = r(8, 4); SX = r(12, 4); SM = r(4, 2); SELB = r(6, 2); SELA = SELB + 2; vTfD = SM + 3; Dsum = r(4, 4); D = r(16, 4)
    VMo = r(12, 4); Yacc = r(16, 4); PB = r(8, 4); acc = r(8, 4); vM0 = PB; vN4 = PB + 4
    Pop = r(24, 4); Yop = r(16, 4); oacc = r(8, 4); fin = r(8, 4); ep = r(4, 2); Eop = PA; cc2 = r(2, 2); mm2 = r(2, 2); vTf = r(); vBFa = r(); vVr1 = vL4
    Uacc = Yacc
    WOr = 0; VXs = 96
    sJ, sPartOff, sPartClr, sCur, sNext, sVx0, sVx1, sVx2, sPxOff, sOst, sOst2, sOl, sOutRow, sVmM0, sPxM0, sF0, sF1, sPartClr2 = range(40, 58); sLo8 = 58; sCl = 60; SEL2 = 144
    A.label(f'L_wo{t}')
    self.srd(R0, P_WO, 6144 * 640 * 2); self.srd(R1, P_M0, 8 * 640 * 2)
    A(f's_sub_u32 {s(sJ)}, {s(sR)}, {R_WO}')
    self.lanes()
    vWdma0, vWdma1, vWr = Pop, Pop + 1, Pop + 2
    A(f'''v_lshrrev_b32 v3, 3, v0
    v_and_b32 v4, 7, v0
    v_and_b32 v6, 2, v3
    v_xor_b32 v6, v6, v4
    v_lshlrev_b32 v6, 4, v6
    v_mul_u32_u24 v7, 1280, v3
    s_lshl_b32 {s(sT0)}, {s(sG)}, 2
    s_add_u32 {s(sT0)}, {s(sT0)}, {s(sW)}
    s_mul_i32 {s(sT0)}, {s(sT0)}, {192*1280}
    s_lshl_b32 {s(sT1)}, {s(sJ)}, 7
    s_add_u32 {s(sT0)}, {s(sT0)}, {s(sT1)}
    v_add3_u32 {v(vWdma0)}, v6, v7, {s(sT0)}
    v_xor_b32 {v(vWdma1)}, 64, {v(vWdma0)}''')
    A(f'''s_mul_i32 {s(sT0)}, {s(sJ)}, {PBLK}
    {'s_lshl_b32 %s, %s, 11' % (s(sT1), s(sW)) if not o.lay else 's_and_b32 %s, %s, 1' % (s(sT1), s(sW)) + chr(10) + 's_mul_i32 %s, %s, %d' % (s(sT1), s(sT1), o.lay & 0xffff) + chr(10) + 's_add_u32 %s, %s, %s' % (s(sT0), s(sT0), s(sT1)) + chr(10) + 's_lshr_b32 %s, %s, 1' % (s(sT1), s(sW)) + chr(10) + 's_mul_i32 %s, %s, %d' % (s(sT1), s(sT1), o.lay >> 16)}
    s_add_u32 {s(sT0)}, {s(sT0)}, {s(sT1)}
    s_lshr_b32 {s(sT1)}, {s(sW)}, 1
    s_mul_i32 {s(sT1)}, {s(sT1)}, {o.rot & 1}
    s_xor_b32 {s(sT1)}, {s(sT1)}, {s(sG)}      ; the source position varies so that a workgroup's writes spread over all channels
    v_mul_u32_u24 v7, {2*(o.rot & 1)}, v2
    v_xor_b32 v7, {s(sT1)}, v7
    v_lshlrev_b32 v6, 4, v1
    v_lshl_add_u32 v7, v7, 8, v6
    v_lshl_add_u32 v7, v2, 13, v7
    v_add_u32 {v(vPst0)}, {s(sT0)}, v7
    v_lshlrev_b32 {v(vL16)}, 4, v0
    v_lshlrev_b32 {v(vL4)}, 2, v0
    v_add_u32 {v(vPclr)}, {s(sT0)}, {v(vL4)}''')
    for k in range(4):
        A(f's_xor_b32 {s(sT2)}, {s(sT1)}, {2*k*(o.rot & 1)}\ns_lshl_b32 {s(sT2)}, {s(sT2)}, 8\ns_add_u32 {s(sCl+k)}, {s(sT2)}, {8192*k}')
    if o.loc:
        assert o.ncopy == 2 and not o.rot & 1
        A(f'v_mov_b32 {v(vEf)}, {v(vPst0)}')
        self.oob_unless(vEf, 'v_cmp_eq_u32 vcc, 2, v2')
    if o.ncopy < 4: self.oob_unless(vPst0, f'v_cmp_gt_u32 vcc, {o.ncopy}, v2')
    A(f'''s_lshl_b32 {s(sT2)}, {s(sJ)}, 7
    s_lshl_b32 {s(sT3)}, {s(sW)}, 2
    s_add_u32 {s(sT2)}, {s(sT2)}, {s(sT3)}
    s_add_u32 {s(sT2)}, {s(sT2)}, {TF}
    v_mov_b32 {v(vTf)}, {s(sT2)}''')
    self.oob_unless(vTf, 'v_cmp_eq_u32 vcc, 0, v0')
    A(f'''s_lshl_b32 {s(sT2)}, {s(sW)}, 7
    s_add_u32 {s(sT2)}, {s(sT2)}, {BF}
    v_min_u32 v3, 5, v0
    v_lshl_add_u32 {v(vBFa)}, v3, 2, {s(sT2)}''')
    A(f'''s_lshl_b32 {s(sT0)}, {s(sJ)}, 2
    s_add_u32 {s(sT0)}, {s(sT0)}, {s(sW)}     ; tile
    s_lshl_b32 {s(sT1)}, {s(sT0)}, 8
    v_add_u32 {v(vMst)}, {s(sT1)}, v6''')
    self.oob_unless(vMst, 'v_cmp_eq_u32 vcc, 0, v2')
    A(f'''v_lshrrev_b32 v3, 2, v1
    v_and_b32 v7, 1, v1
    v_lshl_or_b32 v4, v3, 1, v7                ; row
    v_mul_u32_u24 v4, 1280, v4
    v_and_b32 v5, 2, v1
    v_lshl_add_u32 v4, v5, 1, v4
    s_lshl_b32 {s(sT1)}, {s(sT0)}, 5
    v_add_u32 v4, {s(sT1)}, v4
    v_lshlrev_b32 v6, 6, v3
    v_lshl_add_u32 v6, v7, 5, v6
    v_lshl_add_u32 v6, v2, 3, v6
    v_lshl_add_u32 v6, v5, 1, v6               ; Q*64 + j*32 + g*8 + kh*4
    s_mul_i32 {s(sT2)}, {s(sW)}, {ES}
    s_add_u32 {s(sT2)}, {s(sT2)}, {LE}
    v_add_u32 {v(vEW)}, {s(sT2)}, v6''')
    for q in range(4):
        A(f'buffer_load_dword {v(vM0+q)}, v4, {s(R1,4)}, 0 offen offset:{8*q}')
    for q in range(4): A(f'v_mov_b32 {v(vN4+q)}, -1')
    A(f's_mul_i32 {s(sT0)}, {s(sW)}, {YS}\ns_mov_b32 m0, {s(sT0)}\ns_mov_b32 {s(sT1)}, 0')
    for k in range(24):
        A(f'buffer_load_dwordx4 {v(vWdma1 if k & 1 else vWdma0)}, {s(R0,4)}, {s(sT1)} offen{" nt" if o.nt & 4 else ""} lds')
        if k < 23: A(f's_add_u32 m0, m0, 1024\ns_add_u32 {s(sT1)}, {s(sT1)}, {8*1280}')
    A('s_waitcnt vmcnt(24)')
    for q in range(4): A(f'v_min_u32 {v(vM0+q)}, -2, {v(vM0+q)}')
    A(f'''v_and_b32 v7, 2, v1
    v_cmp_ne_u32 vcc, 0, v7                    ; half
    v_mov_b32 v5, 0x4444
    v_mov_b32 v6, 0xeeee
    v_cndmask_b32 {v(vIdxU)}, v5, v6, vcc
    v_mov_b32 v5, 0xe484
    v_mov_b32 v6, 0xee9e
    v_cndmask_b32 v7, v5, v6, vcc
    v_mov_b32 v5, 0x84e4
    v_mov_b32 v6, 0x9eee
    v_cndmask_b32 v8, v5, v6, vcc
    v_cmp_gt_u32 vcc, 2, v2
    v_cndmask_b32 {v(vIdxP)}, v8, v7, vcc''')
    for i in range(8): A(f'v_mov_b32 {v(ONES+i)}, {0 if i in (3,7) else 0x3f803f80}')
    for ct in range(4): A(f'v_mov_b32 {v(Y+8*ct+3)}, 0\nv_mov_b32 {v(Y+8*ct+7)}, 0')
    for hb in range(2): A(f'v_mov_b32 {v(Yop+8*hb+6)}, 0\nv_mov_b32 {v(Yop+8*hb+7)}, 0')
    self.sel_consts(SELB)
    A(f'''v_mov_b32 {v(cc2)}, {f32(CSM)}
    v_mov_b32 {v(cc2+1)}, {f32(CSM)}
    s_lshl_b32 {s(sT0)}, {s(sW)}, 8
    s_add_u32 {s(sT0)}, {s(sT0)}, {LE}
    v_mul_u32_u24 v6, {ES}, v2
    v_lshl_add_u32 v6, v1, 3, v6
    v_add_u32 {v(vER)}, {s(sT0)}, v6
    s_mul_i32 {s(sT0)}, {s(sW)}, 1536
    v_add_u32 {v(vYW)}, {s(sT0)}, {v(vL16)}
    s_add_u32 {s(sT0)}, {s(sT0)}, 1024
    v_lshl_add_u32 {v(vYW2)}, v0, 3, {s(sT0)}
    s_mul_i32 {s(sT0)}, {s(sW)}, 6144
    v_add_u32 {v(vYR)}, {s(sT0)}, {v(vL16)}
    s_add_u32 {s(sT0)}, {s(sT0)}, 1024
    v_lshl_add_u32 {v(vYR2)}, v0, 3, {s(sT0)}
    v_add_u32 {v(vPXR)}, {LPX}, {v(vL16)}
    s_mul_i32 {s(sT0)}, {s(sW)}, 3072
    v_add_u32 {v(vH16)}, {s(sT0)}, {v(vL16)}
    v_add_u32 {v(vHvm)}, {VM}, {v(vH16)}
    s_add_u32 {s(sPxM0)}, {s(sT0)}, {LPX}
    s_mul_i32 {s(sT0)}, {s(sW)}, 3840
    s_add_u32 {s(sT0)}, {s(sT0)}, {SC}
    v_add_u32 {v(vHsc)}, {s(sT0)}, {v(vL16)}
    s_add_u32 {s(sT0)}, {s(sT0)}, 1024
    v_add_u32 {v(vHscm)}, {s(sT0)}, {v(vL4)}
    s_mul_i32 {s(sT0)}, {s(sW)}, 12288
    v_add_u32 {v(vHvx)}, {s(sT0)}, {v(vL16)}
    s_lshl_b32 {s(sT3)}, {s(sJ)}, 2
    s_add_u32 {s(sT3)}, {s(sT3)}, {s(sW)}''')
    self.out_addr(sT3, vOst, vOl, vOut, vOloc, sLo8, SEL2)
    A(f'''s_lshl_b32 {s(sT0)}, {s(sW)}, 7
    v_add_u32 v5, {s(sT0)}, {v(vL4)}
    v_add_u32 v6, {XF}, v5
    v_add_u32 v7, {PF - 48}, v5
    v_cmp_gt_u32 vcc, 12, v0
    v_cndmask_b32 {v(vFlA)}, v7, v6, vcc
    v_mov_b32 v5, -2
    v_cndmask_b32 {v(vFlT)}, v5, 3, vcc''')
    self.oob_unless(vFlA, 'v_cmp_gt_u32 vcc, 14, v0')
    A(f'v_mov_b32 v5, -1000\nv_cndmask_b32 {v(vFlT)}, v5, {v(vFlT)}, vcc')
    A(f'''v_and_b32 v4, 3, v1
    v_lshlrev_b32 v6, 6, v4
    v_lshl_add_u32 v6, v3, 3, v6
    v_lshl_add_u32 v6, v2, 8, v6
    v_and_b32 v5, 1, v2
    v_lshl_add_u32 v6, v5, 5, v6
    s_mul_i32 {s(sT0)}, {s(sW)}, 3072
    s_add_u32 {s(sVmM0)}, {s(sT0)}, {LVM}
    v_add_u32 {v(vVr0)}, {s(sVmM0)}, v6
    v_xor_b32 {v(vVr1)}, 32, {v(vVr0)}''')
    A(f'''v_and_b32 v4, 3, v1
    v_and_b32 v5, 1, v2
    v_lshl_add_u32 v6, v2, 3, v3
    v_lshlrev_b32 v6, 7, v6
    v_and_b32 v7, 2, v3
    v_lshl_or_b32 v7, v5, 2, v7
    v_lshrrev_b32 v8, 1, v4
    v_xor_b32 v7, v7, v8
    v_lshl_add_u32 v6, v7, 4, v6
    v_and_b32 v7, 1, v4
    v_lshl_add_u32 v6, v7, 3, v6
    s_mul_i32 {s(sT0)}, {s(sW)}, {YS}
    v_add_u32 v6, {s(sT0)}, v6''')
    for ct in range(4): A(f'v_xor_b32 {v(vWr+ct)}, {32*ct}, v6')
    A('s_waitcnt vmcnt(0)')
    for ct in range(4):
        for ks in range(6):
            for eh in range(2):
                A(f'ds_read_b64_tr_b16 {a(WOr + 24*ct + 4*ks + 2*eh, 2)}, {v(vWr+ct)} offset:{ks*4096 + eh*512}')
    A('s_waitcnt lgkmcnt(0)\ns_barrier')
    self.tl(8)
    self.tl(2)
    self.gwait()
    self.tl(3)
    A(f'buffer_store_dwordx4 {v(vM0,4)}, {v(vMst)}, {s(WS,4)}, {s(sXB)} offen{ST}')
    if o.touch in (1, 2) and not self.slow:
        self.srd(R3, P_BX, 2048 * 640 * 2)
        A(f'''s_lshl_b32 {s(sT3)}, {s(sJ)}, 2
        s_add_u32 {s(sT3)}, {s(sT3)}, {s(sW)}
        s_lshl_b32 {s(sT3)}, {s(sT3)}, 10
        s_add_u32 {s(sT2)}, {s(sT3)}, 81920
        s_add_u32 {s(sT3)}, {s(sT3)}, {s(sXB)}''')
        for k in range(4):
            A(f'buffer_load_dwordx4 v[248:251], {v(vL16)}, {s(R3,4)}, {s(sT2)} offen\ns_add_u32 {s(sT2)}, {s(sT2)}, 40960')
        if o.loc:
            for k in range(4): A(f's_mov_b32 {s(sT2)}, {k*PART_SLOT}\nbuffer_load_dwordx4 v[248:251], {v(vEf)}, {s(WS,4)}, {s(sT2)} offen sc1')
        for k in range(12 if o.touch == 1 else 22):
            A(f'buffer_load_dwordx4 v[248:251], {v(vL16)}, {s(WS,4)}, {s(sT3)} offen sc1\ns_add_u32 {s(sT3)}, {s(sT3)}, 40960')

    def flag_issue():
        A(f'buffer_load_dword {v(vFlD)}, {v(vFlA)}, {s(WS,4)}, {s(sXB)} offen sc1')
    def flag_wait(cnt):
        Lw, Lok = A.uid('L_fw'), A.uid('L_fok')
        if cnt is not None: A(f's_waitcnt vmcnt({cnt})')
        A(f'v_cmp_lt_i32 vcc, {v(vFlD)}, {v(vFlTs)}\ns_cbranch_vccz {Lok}')
        A.label(Lw); flag_issue(); self.budget()
        A(f's_waitcnt vmcnt(0)\nv_cmp_lt_i32 vcc, {v(vFlD)}, {v(vFlTs)}\ns_cbranch_vccnz {Lw}')
        A.label(Lok)
    def vx_loads(k0=0, k1=12):
        for k in range(k0, k1):
            A(f'buffer_load_dwordx4 {a(VXs+4*k,4)}, {v(vHvx)}, {s(WS,4)}, {s((sVx0, sVx1, sVx2)[k//4])} offen offset:{(k%4)*1024} sc1')
    def px_dma():
        for k in range(3):
            A(f'buffer_load_dwordx4 {v(vH16)}, {s(WS,4)}, {s(sPxOff)} offen offset:{k*1024} sc1 lds')
    def yx(hook=None):
        ya = lambda ct: (Yacc + 8*ct) if ct < 2 else (Pop + 8*(ct - 2))
        n = 0
        for ks in range(6):
            for ct in range(4):
                for rt in range(2):
                    d = v(ya(ct) + 4*rt, 4)
                    A(f'v_mfma_f32_16x16x32_bf16 {d}, {a(VXs + 24*rt + 4*ks, 4)}, {a(WOr + 24*ct + 4*ks, 4)}, {d if ks else 0}')
                    n += 1
                    if hook: hook(n)
        post = []
        for ct in (2, 3, 0, 1):
            b = ya(ct); y = Y + 8*ct
            post += [f'v_cvt_pk_bf16_f32 {v(y)}, {v(b)}, {v(b+1)}', f'v_cvt_pk_bf16_f32 {v(y+1)}, {v(b+2)}, {v(b+3)}',
                     f'ds_write_b64 {v(vYWs)}, {v(y,2)} offset:{ct*6144}',
                     f'v_cvt_pk_bf16_f32 {v(y+4)}, {v(b+4)}, {v(b+5)}', f'v_cvt_pk_bf16_f32 {v(y+5)}, {v(b+6)}, {v(b+7)}',
                     f'ds_write_b64 {v(vYW2s)}, {v(y+4,2)} offset:{ct*6144}']
        return post
    def out_store(src=None):
        A(f'buffer_store_dwordx4 {v(oacc if src is None else src,4)}, {v(vOst)}, {s(WS,4)}, {s(sOst)} offen sc1')
    opack = [f'v_cvt_pk_bf16_f32 {v(oacc+q)}, {v(oacc+2*q)}, {v(oacc+2*q+1)}' for q in range(4)]
    opack += [f'v_mov_b32 {v(oacc+4+i)}, {v(oacc+i)}' for i in range(2)]
    opack += [f'v_mov_b32_dpp {v(oacc+i)}, {v(oacc+2+i)} row_ror:8 row_mask:0xf bank_mask:0xc' for i in range(2)]
    opack += [f'v_mov_b32_dpp {v(oacc+2+i)}, {v(oacc+4+i)} row_ror:8 row_mask:0xf bank_mask:0x3' for i in range(2)]
    def outpart(hook=None):
        def rd(h):
            pb = Pop + 12*(h & 1); yb = Yop + 8*(h & 1)
            A(f'ds_read_b128 {v(yb,4)}, {v(vYRs)} offset:{h*1536}')
            for k in range(2): A(f'ds_read_b128 {v(pb+4*k,4)}, {v(vPXRs)} offset:{h*3072 + k*1024}')
            A(f'ds_read_b64 {v(yb+4,2)}, {v(vYR2s)} offset:{h*1536}')
            A(f'ds_read_b128 {v(pb+8,4)}, {v(vPXRs)} offset:{h*3072 + 2048}')
        rd(0); rd(1)
        for h in range(4):
            pb = Pop + 12*(h & 1); yb = Yop + 8*(h & 1)
            if hook: hook(h)
            A(f's_waitcnt lgkmcnt({5 if h < 3 else 0})')
            A(f'''v_mfma_f32_16x16x32_bf16 {v(oacc,4)}, {v(pb,4)}, {v(yb,4)}, {v(oacc,4) if h else 0}
            v_mfma_f32_16x16x32_bf16 {v(oacc+4,4)}, {v(pb+4,4)}, {v(yb,4)}, {v(oacc+4,4) if h else 0}
            v_mfma_f32_16x16x32_bf16 {v(oacc+4,4)}, {v(pb+8,4)}, {v(yb+4,4)}, {v(oacc+4,4)}''')
            if h + 2 < 4: rd(h + 2)
    def L(txt): return [x.strip() for x in txt.split('\n') if x.strip()]
    def set_outpart(d):
        return L(f'''s_add_u32 {s(sF1)}, {s(sS)}, {d}
        s_and_b32 {s(sF0)}, {s(sF1)}, 3
        s_mul_i32 {s(sF0)}, {s(sF0)}, {YS}
        v_add_u32 {v(vYRs)}, {s(sF0)}, {v(vYR)}
        v_add_u32 {v(vYR2s)}, {s(sF0)}, {v(vYR2)}
        s_and_b32 {s(sF0)}, {s(sF1)}, 1
        s_mul_i32 {s(sF0)}, {s(sF0)}, 12288
        v_add_u32 {v(vPXRs)}, {s(sF0)}, {v(vPXR)}''')
    def set_ost(d):
        return L(f'''s_add_u32 {s(sF1)}, {s(sS)}, {d}
        s_and_b32 {s(sF0)}, {s(sF1)}, 3
        s_mul_i32 {s(sF0)}, {s(sF0)}, {OL_SLOT}
        s_add_u32 {s(sOst)}, {s(sF0)}, {s(sXB)}''')
    def set_px(d, xf=False):
        return L(f'''s_add_u32 {s(sF1)}, {s(sS)}, {d}
        s_and_b32 {s(sF0)}, {s(sF1)}, 3
        s_mul_i32 {s(sF0)}, {s(sF0)}, {S4}
        s_add_u32 {s(sF0)}, {s(sF0)}, {PXB}
        s_add_u32 {s(sPxOff)}, {s(sXB)}, {s(sF0)}
        s_and_b32 {s(sF0)}, {s(sF1)}, 1
        s_add_u32 {s(sF1)}, {s(sF1)}, 1
        {f'v_add_u32 {v(vFlTs)}, {s(sS)}, {v(vFlT)}' if xf else f'v_mov_b32 {v(vFlTs)}, -16'}
        v_writelane_b32 {v(vFlTs)}, {s(sF1)}, 12
        s_mul_i32 {s(sF0)}, {s(sF0)}, 12288
        s_add_u32 m0, {s(sPxM0)}, {s(sF0)}''')
    def fin_issue(dst=None):
        A(f'buffer_load_dwordx4 {v(fin if dst is None else dst,4)}, {v(vOl)}, {s(WS,4)}, {s(sOl)} offen sc1')
    def fin_done(src):
        for x in self.fin_rows(src, fin + 4, vOut, sOutRow, sLo8, SEL2): A(x)
    assert PART == 0
    nxtA = L(f'''s_mov_b32 {s(sOst2)}, {s(sPartClr)}
    s_add_u32 {s(sF1)}, {s(sS)}, 1
    v_mov_b32 {v(vYUs)}, {v(vYWs)}
    s_and_b32 {s(sF0)}, {s(sF1)}, 3
    s_mul_i32 {s(sPartOff)}, {s(sF0)}, {PART_SLOT}
    s_mul_i32 {s(sF1)}, {s(sF0)}, {S4}
    s_add_u32 {s(sCur)}, {s(sXB)}, {s(sF1)}
    s_xor_b32 {s(sF0)}, {s(sF0)}, 2
    s_mul_i32 {s(sPartClr)}, {s(sF0)}, {PART_SLOT}
    s_add_u32 {s(sF1)}, {s(sS)}, 2
    v_mov_b32 {v(vTfD)}, {s(sF1)}
    s_and_b32 {s(sF0)}, {s(sF1)}, 3
    s_mul_i32 {s(sNext)}, {s(sF0)}, {YS}''') + set_ost(-1) + set_outpart(-1)
    nxtB = L(f'''s_add_u32 {s(sS)}, {s(sS)}, 1
    s_mov_b32 m0, {s(sVmM0)}
    v_add_u32 {v(vYWs)}, {s(sNext)}, {v(vYW)}
    v_add_u32 {v(vYW2s)}, {s(sNext)}, {v(vYW2)}''')
    nxt2 = L(f'''s_add_u32 {s(sF1)}, {s(sS)}, 2
    s_and_b32 {s(sF0)}, {s(sF1)}, 3
    s_mul_i32 {s(sF0)}, {s(sF0)}, {S4}
    s_add_u32 {s(sF0)}, {s(sF0)}, {VX}
    s_add_u32 {s(sVx0)}, {s(sXB)}, {s(sF0)}
    s_add_u32 {s(sVx1)}, {s(sVx0)}, 4096
    s_add_u32 {s(sVx2)}, {s(sVx0)}, 8192''') + set_px(-1)
    nxtB += [f'v_pk_mul_f32 {v(x,2)}, {v(Yop+6,2)}, {v(Yop+6,2)}' for x in range(Uacc, Uacc+16, 2)]

    A(f'''s_mov_b32 {s(sS)}, -1
    v_add_u32 {v(vFlTs)}, -2, {v(vFlT)}
    s_add_u32 {s(sVx0)}, {s(sXB)}, {VX}
    s_add_u32 {s(sVx1)}, {s(sVx0)}, 4096
    s_add_u32 {s(sVx2)}, {s(sVx0)}, 8192
    v_mov_b32 {v(vYWs)}, {v(vYW)}
    v_mov_b32 {v(vYW2s)}, {v(vYW2)}''')
    flag_issue(); flag_wait(0); vx_loads(); A('s_waitcnt vmcnt(0)')
    for x in yx() + nxt2: A(x)
    A(f'v_add_u32 {v(vFlTs)}, -1, {v(vFlT)}')
    flag_issue(); flag_wait(0); vx_loads()
    for x in nxtA + nxtB: A(x)
    for x in list(range(D, D+16)) + list(range(Dsum, Dsum+4)): A(f'v_mov_b32 {v(x)}, 0')
    self.tl(4)

    LP = f'L_wo_loop{t}'
    A.label(LP)
    Lb, Lv, Lu = A.uid('L_bf'), A.uid('L_vm'), A.uid('L_u')
    bfl = f'buffer_load_dword {v(vMx)}, {v(vBFa)}, {s(WS,4)}, {s(sXB)} offen sc1'
    if o.tr or 'dr' in o.stamp: A(bfl + '\ns_waitcnt vmcnt(0)'); self.stamp('wo', 'dr')
    self.spin(bfl, f'v_cmp_ge_u32 vcc, {s(sS)}, {v(vMx)}', 7 if o.fpoll else 4)
    def vm_loads():
        for k in range(3):
            A(f'buffer_load_dwordx4 {v(vHvm)}, {s(WS,4)}, {s(sCur)} offen offset:{k*1024} sc1 lds')
    vm_loads()
    self.stamp('wo', 'bf')
    sxl = [f'buffer_load_dwordx4 {v(SX+4*p,4)}, {v(vHsc)}, {s(WS,4)}, {s(sCur)} offen offset:{p*1280} sc1' for p in range(3)]
    sml = [f'buffer_load_dword {v(SM+p)}, {v(vHscm)}, {s(WS,4)}, {s(sCur)} offen offset:{p*1280} sc1' for p in range(3)]
    def sc_loads():
        for x in sxl + sml: A(x)
    vrd = lambda tt: f'ds_read_b64_tr_b16 {v(VMo+4*tt,2)}, {v(vVr0)} offset:{tt*1024}\nds_read_b64_tr_b16 {v(VMo+4*tt+2,2)}, {v(vVr1)} offset:{tt*1024}'
    usm = [f'v_smfmac_f32_16x16x64_bf16 {v(Uacc+4*ct,4)}, {v(VMo+4*tt,4)}, {a(WOr+24*ct+8*tt,8)}, {v(vIdxU)}' for tt in range(3) for ct in range(4)]
    upost = []
    for ct in range(4):
        u = Uacc + 4*ct
        upost += [f'v_pk_add_f32 {v(u,2)}, {v(u,2)}, {v(u+2,2)}'] + ([f'v_cmp_u_f32 vcc, {v(u)}, {v(u+1)}'] if ct == 0 else [])
        upost += [f'v_cvt_pk_bf16_f32 {v(Y+8*ct+2)}, {v(u)}, {v(u+1)}', f'v_cvt_pk_bf16_f32 {v(Y+8*ct+6)}, {v(u)}, {v(u+1)}']
    uw = [f'ds_write_b32 {v(vYUs)}, {v(Y+8*ct+2)} offset:{ct*6144 + 8}' for ct in range(4)]
    seq = usm + upost
    for tt in range(3):
        A(f's_waitcnt vmcnt({2 - tt + (3 if tt > o.spos else 0)})'); A(vrd(tt))
        if tt == o.spos:
            for x in sxl: A(x)
    self.stamp('wo', 'vm')
    Ltail = f'L_wo_tail{t}'; last = f's_cmp_eq_u32 {s(sS)}, {o.nsteps-1}'
    A(last)
    for n, x in enumerate(seq):
        if n in (0, 4, 8): A(f's_waitcnt lgkmcnt({4 - n//2})')
        A(x)
        if 0 <= n - o.mpos < 3: A(sml[n - o.mpos])
    A(f's_cbranch_vccnz {Lv}')
    A.label(Lu)
    def cold_vm():
        self.count(1, 'wo')
        vm_loads(); self.budget()
        A(f'v_add_u32 v5, {s(sVmM0)}, {v(vL16)}\ns_waitcnt vmcnt(0)')
        for k in range(3): A(f'ds_read_b128 {v(VMo+4*k,4)}, v5 offset:{1024*k}')
        A(f's_waitcnt lgkmcnt(0)\nv_max_u32 v4, {v(VMo)}, {v(VMo+1)}')
        for i in range(1, 6): A(f'v_max3_u32 v4, v4, {v(VMo+2*i)}, {v(VMo+2*i+1)}')
        A(f'v_cmp_eq_u32 vcc, -1, v4\ns_cbranch_vccnz {Lv}')
        sc_loads()
        for tt in range(3): A(vrd(tt))
        for i in range(16): A(f'v_mov_b32 {v(Uacc+i)}, 0')
        A('s_waitcnt lgkmcnt(0)')
        for x in seq: A(x)
        A(f'{last}\ns_branch {Lu}')
    self.cold.append((Lv, cold_vm))
    self.stamp('wo', 'u')
    A(f's_cbranch_scc1 {Ltail}')
    Lsc, Lsp, Lsg = A.uid('L_sc'), A.uid('L_sp'), A.uid('L_sg')
    s0 = ep
    A.label(Lsc)
    A(f'''s_waitcnt vmcnt(4)
    v_pk_add_f32 {v(s0,2)}, {v(SX,2)}, {v(SX+4,2)}
    v_pk_add_f32 {v(s0+2,2)}, {v(SX+2,2)}, {v(SX+6,2)}
    s_waitcnt vmcnt(3)
    v_pk_add_f32 {v(s0,2)}, {v(s0,2)}, {v(SX+8,2)}
    v_pk_add_f32 {v(s0+2,2)}, {v(s0+2,2)}, {v(SX+10,2)}
    v_max3_f32 {v(vMx)}, {v(s0)}, {v(s0+1)}, {v(s0+2)}
    v_pk_add_f32 {v(mm2,2)}, {v(s0,2)}, {v(s0+2,2)}
    s_waitcnt vmcnt(0)
    v_add_f32 {v(vPk)}, {v(SM)}, {v(SM+1)}
    v_add_f32 {v(vPk)}, {v(vPk)}, {v(SM+2)}
    v_max3_f32 {v(vMx)}, {v(vMx)}, {v(s0+3)}, {v(vPk)}
    v_add_f32 {v(mm2)}, {v(mm2)}, {v(vPk)}
    v_max_f32_dpp {v(vMy)}, {v(vMx)}, {v(vMx)} quad_perm:[2,3,0,1] row_mask:0xf bank_mask:0xf
    v_max_f32_dpp {v(vMx)}, {v(vMx)}, {v(vMx)} quad_perm:[2,3,0,1] row_mask:0xf bank_mask:0xf
    v_cmp_u_f32 vcc, {v(mm2)}, {v(mm2+1)}
    v_permlane16_swap_b32 {v(vMx)}, {v(vMy)}
    v_max_f32 {v(vMx)}, {v(vMx)}, {v(vMy)}
    v_mov_b32 {v(vMy)}, {v(vMx)}
    s_cbranch_vccnz {Lsp}''')
    A.label(Lsg)
    self.stamp('wo', 'sc')
    tflag = f'buffer_store_dword {v(vTfD)}, {v(vTf)}, {s(WS,4)}, {s(sXB)} offen{ST}'
    if o.tpos == 'sc': A(tflag)
    A(f'''v_permlane32_swap_b32 {v(vMx)}, {v(vMy)}
    v_max_f32 {v(vMx)}, {v(vMx)}, {v(vMy)}
    v_mul_f32 {v(mm2)}, {f32(-CSM)}, {v(vMx)}
    v_pk_fma_f32 {v(s0,2)}, {v(s0,2)}, {v(cc2,2)}, {v(mm2,2)} op_sel_hi:[1,1,0]
    v_pk_fma_f32 {v(s0+2,2)}, {v(s0+2,2)}, {v(cc2,2)}, {v(mm2,2)} op_sel_hi:[1,1,0]
    v_fma_f32 {v(vPk)}, {v(vPk)}, {v(cc2)}, {v(mm2)}
    v_exp_f32 {v(s0)}, {v(s0)}
    v_exp_f32 {v(s0+1)}, {v(s0+1)}
    v_exp_f32 {v(s0+2)}, {v(s0+2)}
    v_exp_f32 {v(s0+3)}, {v(s0+3)}
    v_exp_f32 {v(vPk)}, {v(vPk)}
    v_cvt_pk_bf16_f32 {v(PA)}, {v(s0)}, {v(s0+1)}
    v_cvt_pk_bf16_f32 {v(PA+2)}, {v(s0+2)}, {v(s0+3)}
    v_cvt_pk_bf16_f32 {v(PA+1)}, {v(vPk)}, 0
    v_cvt_pk_bf16_f32 {v(PA+3)}, {v(vPk)}, 0
    v_smfmac_f32_16x16x64_bf16 {v(Dsum,4)}, {v(PA,4)}, {v(ONES,8)}, {v(vIdxP)}''')
    for ct in range(4):
        A(f'v_smfmac_f32_16x16x64_bf16 {v(D+4*ct,4)}, {v(PA,4)}, {v(Y+8*ct,8)}, {v(vIdxP)}')
        if ct == 2: A(f'v_add_f32 {v(Dsum)}, {v(Dsum)}, {v(Dsum+2)}\nv_add_f32 {v(Dsum+1)}, {v(Dsum+1)}, {v(Dsum+3)}')
    if o.tpos == 'm': A(tflag)
    A(f'''v_rcp_f32 {v(Dsum)}, {v(Dsum)}
    v_rcp_f32 {v(Dsum+1)}, {v(Dsum+1)}''')
    for ct in range(4):
        A(f'v_pk_add_f32 {v(D+4*ct,2)}, {v(D+4*ct,2)}, {v(D+4*ct+2,2)}')
        A(f'v_pk_mul_f32 {v(D+4*ct,2)}, {v(D+4*ct,2)}, {v(Dsum,2)}')
        A(f'v_cvt_pk_bf16_f32 {v(ep+ct)}, {v(D+4*ct)}, {v(D+4*ct+1)}')
        if ct & 1: A(f'ds_write2st64_b32 {v(vEW)}, {v(ep+ct-1)}, {v(ep+ct)} offset0:{ct-1} offset1:{ct}')
    self.stamp('wo', 'e')
    if o.tpos == 'e': A(tflag)
    if o.flpos == 'e': flag_issue()
    zr = [f'v_mov_b32 {v(x)}, 0' for x in list(range(D, D+16)) + list(range(Dsum, Dsum+4))]
    for x in zr[:10]: A(x)
    A(f'''s_waitcnt lgkmcnt(0)
    s_barrier
    ds_read_b64_tr_b16 {v(Eop,2)}, {v(vER)}
    ds_read_b64_tr_b16 {v(Eop+2,2)}, {v(vER)} offset:128''')
    if o.tpos == 'b': A(tflag)
    for x in zr[10:]: A(x)
    A(f'''s_waitcnt lgkmcnt(0)
    v_mfma_f32_16x16x32_bf16 {v(acc,4)}, {v(SELA,4)}, {v(Eop,4)}, 0
    v_mfma_f32_16x16x32_bf16 {v(acc+4,4)}, {v(SELB,4)}, {v(Eop,4)}, 0''')
    def pack(src):
        for q in range(4): A(f'v_cvt_pk_bf16_f32 {v(ep+q)}, {v(src+2*q)}, {v(src+2*q+1)}')
    if o.tpos == 'r': A(tflag)
    if o.flpos == 'r': flag_issue()
    pack(acc)
    lst = f'buffer_store_dwordx4 {v(ep,4)}, {v(vEf)}, {s(WS,4)}, {s(sPartOff)} offen{ST}'
    if o.loc == 2: A(lst)
    A(f'buffer_store_dwordx4 {v(ep,4)}, {v(vPst0)}, {s(WS,4)}, {s(sPartOff)} offen sc1')
    if o.loc == 1: A(lst)
    if o.tpos == 'pp': A(tflag)
    self.stamp('wo', 'pp')
    def cold_sc():
        A(f'v_max3_u32 v4, {v(SM)}, {v(SM+1)}, {v(SM+2)}')
        for i in range(6): A(f'v_max3_u32 v4, v4, {v(SX+2*i)}, {v(SX+2*i+1)}')
        A(f'v_cmp_eq_u32 vcc, -1, v4\ns_cbranch_vccz {Lsg}')
        sc_loads(); self.budget(); self.count(1000, 'wo'); A(f's_branch {Lsc}')
    self.cold.append((Lsp, cold_sc))
    b = o.slowpos
    def clr(k):
        return lambda: A(f's_add_u32 {s(sF0)}, {s(sOst2 if o.clate else sPartClr)}, {s(sCl+k)}\nbuffer_store_dword {v(vN4)}, {v(vPclr)}, {s(WS,4)}, {s(sF0)} offen{" sc1" if k < o.ncopy else ST}')
    ncl = o.ncopy + (1 if o.loc else 0)
    clears = [clr(k) for k in range(ncl)]
    slow = clears if o.clate else []
    ny = 1 + (1 if o.loc else 0) + (0 if o.clate else ncl) + (1 if o.tpos == 'pp' or (o.tpos in 'rb' and o.flpos == 'e') else 0)
    L1 = A.uid('L_g')
    def ohook(h):
        if h == 0 and not o.clate:
            for f in clears: f()
        if h == 1:
            for x in nxt2: A(x)
    for x in uw: A(x)
    outpart(ohook)
    flag_wait(ny)
    if not o.x & 1: px_dma()
    for x in opack: A(x)
    A(f'buffer_store_dwordx4 {v(oacc,4)}, {v(vOloc)}, {s(WS,4)}, {s(sOst)} offen{ST}')
    self.stamp('wo', 'op')
    fl = list(nxtA)
    lq = [0, 6, 1, 7, 2, 8, 3, 9, 4, 10, 5, 11]
    st = {'i': 0, 'last': 0}
    def yhook(n):
        if st['i'] < o.nvx and n >= 8 * (st['i'] // 2 + 1) and n >= o.vx0 and n - st['last'] >= 2:
            if not o.x & 1: vx_loads(lq[st['i']], lq[st['i']] + 1)
            st['i'] += 1; st['last'] = n
            return
        if not fl and slow and n >= o.slowpos: slow.pop(0)(); return
        for _ in range(3):
            if fl: A(fl.pop(0))
    post = yx(yhook)
    if not o.x & 1:
        for k in lq[st['i']:o.nvx]: vx_loads(k, k + 1)
    for f in slow: f()
    self.stamp('wo', 'yx')
    for x in post + nxtB: A(x)
    if not o.x & 1:
        for k in lq[o.nvx:]: vx_loads(k, k + 1)
    self.stamp('wo', 'g1'); self.tr_flush('wo')
    A(f's_branch {LP}')
    A.label(Ltail)
    self.tl(5)
    for x in uw: A(x)
    n = o.nsteps
    tslot = lambda d: 4 - d
    for k, d in enumerate((-5, -4)):
        A(f's_add_u32 {s(sT1)}, {s(sXB)}, {((n - 1 + d) & 3) * OL_SLOT}\nbuffer_load_dwordx4 {v(D+4*k,4)}, {v(vOloc)}, {s(WS,4)}, {s(sT1)} offen sc1')
    for x in set_px(-1): A(x)
    flag_issue()
    self.side0()
    A(f'v_xor_b32 {v(vOst)}, {s(sT0)}, {v(vOst)}\nv_xor_b32 {v(vOl)}, {s(sT0)}, {v(vOl)}\ns_waitcnt lgkmcnt(0)\ns_barrier')
    flag_wait(None); px_dma()
    def keep(dst):
        for i in range(4): A(f'v_mov_b32 {v(dst+i)}, {v(oacc+i)}')
    def part(d):
        for x in set_outpart(d): A(x)
        outpart()
        for x in opack: A(x)
    keep(D + 8); part(-2); keep(D + 12)
    A('s_waitcnt vmcnt(0)\ns_barrier')
    part(-1); keep(PA)
    older = ((-5, D), (-4, D + 4), (-3, D + 8), (-2, D + 12), (-1, PA))
    def stores(lst):
        for d, src in lst:
            A(f's_mov_b32 {s(sOst)}, {OUTP + tslot(d)*OUTP_SLOT}'); out_store(src)
    def loads(lst):
        for d, r_ in lst:
            A(f's_mov_b32 {s(sOl)}, {OUTP + tslot(d)*OUTP_SLOT}'); fin_issue(r_)
    def gather(lst, younger=None):
        Lc = A.uid('L_fp')
        if younger is not None: A(f's_waitcnt vmcnt({younger})\ns_branch {Lc}c')
        A.label(Lc)
        loads(lst); self.budget()
        A('s_waitcnt vmcnt(0)')
        A.label(Lc + 'c')
        A(f'v_mov_b32 {v(vMx)}, 0')
        for _, r_ in lst:
            for i in (0, 2): A(f'v_max3_u32 {v(vMx)}, {v(vMx)}, {v(r_+i)}, {v(r_+i+1)}')
        A(f'v_cmp_eq_u32 vcc, -1, {v(vMx)}\ns_cbranch_vccnz {Lc}')
        for d, r_ in lst:
            A(f's_mov_b32 {s(sOutRow)}, {(n-1+d)*32*2560}'); fin_done(r_)
    got = ((-5, Yacc), (-4, Yacc + 4), (-3, Yacc + 8), (-2, Yacc + 12), (-1, SX))
    if o.tw: stores(older)
    self.tl(9)
    for x in set_px(0) + set_outpart(0): A(x)
    self.spin(f'buffer_load_dword {v(vFlD)}, {v(vFlA)}, {s(WS,4)}, {s(sXB)} offen sc1', f'v_cmp_lt_i32 vcc, {v(vFlD)}, {v(vFlTs)}', 6)
    px_dma()
    self.tl(6)
    A('s_waitcnt vmcnt(0)\ns_barrier')
    if o.tw: loads(got)
    else: stores(older)
    outpart()
    for x in opack: A(x)
    stores(((0, oacc),))
    if o.tw:
        gather(got, 1)
        A('s_waitcnt vmcnt(5)')
        gather(((0, SX + 4),))
    else:
        A('s_waitcnt vmcnt(0)')
        gather(((0, SX + 4),) + got)
    self.hd(11); self.stamp_out('wo'); self.tl(7, True)
    A('s_endpgm')
```

```python
from asmlib import v, a, s
from gen import *

def proj(self, QK):
    A = self.A; t = self.tag; ST = self.st; o = self.o
    role = 'qkv' if QK else 'v'
    LA = 2 if QK else 3
    LX0, LX1, LS2, LMISC = 0, 40960, 81920, 122880
    LMEM = LMISC; LT = LMEM + 10240; LKX = LT + 2048
    r = RA(10, 240)
    vXdma, vXb0, vXb1, vMd4, vMd1, vProbe, vA0, vIdx, vPr, vXst, vFl, vBF, vNeg, vTW, vTR0, vPrA = [r() for _ in range(16)]
    Aop = r(40, 4); acc = r(8, 4); Z = r(8, 4); xf = r(24, 4); xacc = r(16, 4); pk = r(8, 4); tq = r(2, 2)
    if QK:
        (vTR1, vSCst, vKMst, vKxW, vKxR, vKF, vKxWs, vKxRs, vPl0, vPl1, vPl2, vPl3, vTrig, vTrD, vMst, vMclr, vSclr, vMx, vMy) = [r() for _ in range(19)]
        Kx = r(8, 4); S = r(4, 4); PB = r(16, 4); racc = r(8, 4); rp = r(4, 4); SELB = r(6, 2); SELA = SELB + 2
    else:
        vVMst, vVclr, vXF, vXp, vTrig, vTrD, vEf, vEn, vBa, vOst, vOl, vOut, vOloc = [r() for _ in range(13)]
        fw = r(8, 4); fin = r(8, 4); ft = r(8, 4); SEL2 = 160
    sB, sCur, sClr, sKmOff, sX0, sX1, sXSeg, sXbuf, sMm0, sDelta, sF0, sF1, sMark, sPart, sThr, sW0, sD1, sXp = range(40, 58)
    sLo8 = 58; sFwL, sFwS, sFinL, sFinR = sKmOff, sPart, sThr, 60
    A.label(f'L_{role}{t}')
    if QK:
        self.srd(R0, P_WQ, 640 * 6144 * 2); self.srd(R1, P_WK, 640 * 6144 * 2)
        A(f's_mov_b32 {s(sB)}, {s(sR)}')
    else:
        self.srd(R0, P_WV, 640 * 6144 * 2)
        A(f's_sub_u32 {s(sB)}, {s(sR)}, {R_V}\ns_lshl_b32 {s(sB)}, {s(sB)}, 1')
    self.srd(R3, P_BX, 2048 * 640 * 2)
    self.lanes()
    vWdma = pk; vWr = pk + 1
    A(f'''v_lshrrev_b32 v3, 3, v0              ; r8
    v_and_b32 v4, 7, v0                        ; pp
    s_lshl_b32 {s(sT0)}, {s(sW)}, 3
    v_add_u32 v5, {s(sT0)}, v3
    s_and_b32 {s(sT1)}, {s(sW)}, 1
    s_lshl_b32 {s(sT1)}, {s(sT1)}, 2
    v_and_b32 v6, 2, v3
    v_or_b32 v6, {s(sT1)}, v6
    v_xor_b32 v6, v6, v4
    v_lshlrev_b32 v6, 4, v6
    v_mul_u32_u24 v7, 12288, v5
    s_mul_i32 {s(sT2)}, {s(sG)}, 1536
    s_lshl_b32 {s(sT3)}, {s(sB)}, 7
    s_add_u32 {s(sT2)}, {s(sT2)}, {s(sT3)}
    v_add3_u32 {v(vWdma)}, v6, v7, {s(sT2)}
    v_lshrrev_b32 v6, 1, v3
    v_or_b32 v6, {s(sT1)}, v6
    v_xor_b32 v6, v6, v4
    v_lshlrev_b32 v6, 4, v6
    v_mul_u32_u24 v7, 1280, v5
    v_add_u32 {v(vXdma)}, v6, v7''')
    def xdma_begin(buf_s_or_imm):
        A(f's_lshl_b32 {s(sT0)}, {s(sW)}, 10\ns_add_u32 m0, {s(sT0)}, {buf_s_or_imm}')
    def xdma(ln):
        A(f'buffer_load_dwordx4 {v(vXdma)}, {s(R3,4)}, {s(sXSeg)} offen offset:{ln*128} lds')
        if ln < 9: A('s_add_u32 m0, m0, 3968')
    stages = [(0, 0), (1, 0), (0, 1), (1, 1)]
    bufs = [LS2, LX1, LMISC]
    def wdma(i):
        m, half = stages[i]
        srd = (R0, R1)[m] if QK else R0
        A(f's_lshl_b32 {s(sT0)}, {s(sW)}, 10\ns_add_u32 m0, {s(sT0)}, {bufs[i%3]}\ns_mov_b32 {s(sT1)}, {half*320*12288 + (0 if QK else 128*m)}')
        for k in range(10):
            A(f'buffer_load_dwordx4 {v(vWdma)}, {s(srd,4)}, {s(sT1)} offen{" nt" if o.nt & 2 else ""} lds')
            if k < 9: A(f's_add_u32 m0, m0, 4096\ns_add_u32 {s(sT1)}, {s(sT1)}, {32*12288}')
    self.tl(4)
    wdma(0)

    def head_part(b, hl, p):
        A(f's_mul_i32 {s(hl)}, {s(b)}, 86\ns_lshr_b32 {s(hl)}, {s(hl)}, 8\ns_mul_i32 {s(p)}, {s(hl)}, 3\ns_sub_u32 {s(p)}, {s(b)}, {s(p)}')
    sHl, sP, sHl1, sP1 = 60, 59, 62, 63
    head_part(sB, sHl, sP)
    A(f's_add_u32 {s(sT0)}, {s(sB)}, 1'); head_part(sT0, sHl1, sP1)
    A(f'''v_lshrrev_b32 v3, 1, v2
    v_and_b32 v5, 1, v2
    s_lshl_b32 {s(sT0)}, {s(sW)}, 9
    v_lshlrev_b32 v6, 4, v1
    v_lshl_add_u32 v6, v3, 8, v6
    v_add_u32 v6, {s(sT0)}, v6
    s_mul_i32 {s(sT0)}, {s(sHl)}, 12288
    s_lshl_b32 {s(sT1)}, {s(sP)}, 11
    s_add_u32 {s(sT0)}, {s(sT0)}, {s(sT1)}
    v_mul_u32_u24 v7, 6144, v5
    v_add3_u32 {v(vXst)}, v6, v7, {s(sT0)}
    v_mov_b32 {v(vNeg)}, -1''')
    if QK:
        A(f'''s_mov_b32 {s(sD1)}, {KX - QX}
        v_lshl_add_u32 {v(vKxW)}, v5, 11, v6
        v_add_u32 {v(vKxW)}, {LKX}, {v(vKxW)}''')
        A(f'''s_mul_i32 {s(sT0)}, {s(sB)}, 1280
        s_add_u32 {s(sT0)}, {s(sT0)}, {SC}
        v_lshlrev_b32 v6, 1, v5
        v_or_b32 v7, v6, v3                        ; bitswap(g)
        v_lshl_add_u32 v7, v7, 4, v1
        v_lshlrev_b32 v7, 2, v7
        v_add_u32 v7, 1024, v7
        v_or_b32 v6, v6, v1
        v_lshl_add_u32 v6, v3, 4, v6
        v_lshlrev_b32 v6, 4, v6
        s_sub_u32 {s(sT1)}, {s(sW)}, 1
        s_lshl_b32 {s(sT1)}, {s(sT1)}, 9
        v_add_u32 v6, {s(sT1)}, v6
        s_cmp_eq_u32 {s(sW)}, 0
        s_cselect_b64 vcc, -1, 0
        v_cndmask_b32 v6, v6, v7, vcc
        v_add_u32 {v(vSCst)}, {s(sT0)}, v6
        s_lshl_b32 {s(sT1)}, {s(sW)}, 8
        s_add_u32 {s(sT1)}, {s(sT1)}, {s(sT0)}
        v_lshl_add_u32 {v(vSclr)}, v0, 2, {s(sT1)}
        v_and_b32 v4, 2, v1''')
        self.oob_unless(vSCst, 'v_cmp_eq_u32 vcc, 0, v4')
        A(f'''s_lshl_b32 {s(sT0)}, {s(sB)}, 10
        v_lshrrev_b32 v3, 2, v1
        v_lshlrev_b32 v3, 1, v3
        v_and_b32 v6, 1, v1
        v_or_b32 v3, v3, v6
        v_lshl_add_u32 v3, v2, 3, v3
        v_lshl_add_u32 {v(vKMst)}, v3, 4, {s(sT0)}''')
        self.oob_unless(vKMst, 'v_cmp_ne_u32 vcc, 0, v4')
        A(f'''v_and_b32 v6, 9, v1
        v_lshl_or_b32 v6, v4, 1, v6
        v_and_b32 v7, 4, v1
        v_lshrrev_b32 v7, 1, v7
        v_or_b32 v6, v6, v7
        v_lshlrev_b32 v6, 4, v6
        v_lshl_add_u32 v6, v2, 8, v6
        s_cmp_eq_u32 {s(sW)}, 2
        s_cselect_b32 {s(sT0)}, 2048, 0
        s_add_u32 {s(sT0)}, {s(sT0)}, {LKX}
        v_add_u32 {v(vKxR)}, {s(sT0)}, v6''')
        A(f'''s_lshl_b32 {s(sT0)}, {s(sHl)}, 7
        s_lshl_b32 {s(sT1)}, {s(sP)}, 2
        s_add_u32 {s(sT1)}, {s(sT1)}, {s(sT0)}
        s_add_u32 {s(sT1)}, {s(sT1)}, {KF}
        s_cmp_eq_u32 {s(sW)}, 3
        s_cselect_b32 {s(sT1)}, {s(sT1)}, {OOB}
        s_cselect_b32 {s(sW0)}, -1, {0 if o.onep else -1}
        v_mov_b32 {v(vKF)}, {s(sT1)}''')
        self.oob_unless(vKF, 'v_cmp_eq_u32 vcc, 0, v0')
        A(f'v_add_u32 {v(vBF)}, {BF - KF}, {v(vKF)}')
        A(f'''s_mul_i32 {s(sT0)}, {s(sR)}, {PBLK}
        {'s_lshl_b32 %s, %s, 11' % (s(sT1), s(sW)) if not o.lay else 's_and_b32 %s, %s, 1' % (s(sT1), s(sW)) + chr(10) + 's_mul_i32 %s, %s, %d' % (s(sT1), s(sT1), o.lay & 0xffff) + chr(10) + 's_add_u32 %s, %s, %s' % (s(sT0), s(sT0), s(sT1)) + chr(10) + 's_lshr_b32 %s, %s, 1' % (s(sT1), s(sW)) + chr(10) + 's_mul_i32 %s, %s, %d' % (s(sT1), s(sT1), o.lay >> 16)}
        s_add_u32 {s(sT0)}, {s(sT0)}, {s(sT1)}
        s_lshl_b32 {s(sT2)}, {s(sR)}, 10
        s_lshl_b32 {s(sT1)}, {s(sW)}, 8
        s_add_u32 {s(sT2)}, {s(sT2)}, {s(sT1)}
        s_cmp_lt_u32 {s(sR)}, 10
        s_cselect_b32 {s(sT0)}, {s(sT0)}, {OOB}
        s_cselect_b32 {s(sT2)}, {s(sT2)}, {OOB}
        s_lshl_b32 {s(sT1)}, {s(sG)}, 8
        v_lshlrev_b32 v3, 4, v0
        v_xor_b32 v3, {s(sT1)}, v3
        v_add_u32 {v(vPl0)}, {s(sT0)}, v3
        v_xor_b32 v3, 1024, v3
        v_add_u32 {v(vPl1)}, {s(sT0)}, v3
        s_min_u32 {s(sT0)}, {s(sR)}, 9
        s_lshl_b32 {s(sT0)}, {s(sT0)}, 7
        s_add_u32 {s(sT0)}, {s(sT0)}, {TF}
        s_add_u32 {s(sT0)}, {s(sT0)}, {s(sXB)}
        v_and_b32 v3, {0 if o.tone else 3}, v0
        v_lshl_add_u32 {v(vTrig)}, v3, 2, {s(sT0)}
        v_lshl_add_u32 {v(vMclr)}, v0, 2, {s(sT2)}
        v_lshl_add_u32 {v(vMst)}, v1, 4, {s(sT2)}''')
        self.oob_unless(vMst, 'v_cmp_eq_u32 vcc, 0, v2')
        self.sel_consts(SELB)
    else:
        A(f'''s_mul_i32 {s(sD1)}, {s(sHl1)}, 12288
        s_lshl_b32 {s(sT1)}, {s(sP1)}, 11
        s_add_u32 {s(sD1)}, {s(sD1)}, {s(sT1)}
        s_sub_u32 {s(sD1)}, {s(sD1)}, {s(sT0)}
        s_lshl_b32 {s(sT0)}, {s(sB)}, 10
        s_lshl_b32 {s(sT1)}, {s(sW)}, 8
        s_add_u32 {s(sT1)}, {s(sT1)}, {s(sT0)}
        s_add_u32 {s(sT1)}, {s(sT1)}, {VM}
        v_lshl_add_u32 {v(vVclr)}, v0, 2, {s(sT1)}
        v_and_b32 v6, 60, v0
        v_bfe_u32 v7, v0, 1, 1
        v_or_b32 v6, v6, v7
        v_and_b32 v7, 1, v0
        v_lshl_or_b32 v6, v7, 1, v6
        s_and_b32 {s(sT0)}, {s(sW)}, 1
        s_lshl_b32 {s(sT0)}, {s(sT0)}, 3
        v_xor_b32 v6, {s(sT0)}, v6
        v_lshl_add_u32 {v(vVMst)}, v6, 2, {s(sT1)}''')
        A(f'''s_lshl_b32 {s(sT0)}, {s(sHl)}, 5
        s_lshl_b32 {s(sT1)}, {s(sHl1)}, 5
        v_mov_b32 v3, {s(sT0)}
        v_mov_b32 v4, {s(sT1)}
        v_mov_b32 v6, {s(sP)}
        v_mov_b32 v7, {s(sP1)}
        v_cmp_eq_u32 vcc, 0, v0
        v_cndmask_b32 v3, v4, v3, vcc
        v_cndmask_b32 v6, v7, v6, vcc
        v_add_u32 v4, v3, v6
        s_cmp_eq_u32 {s(sW)}, 3
        s_cselect_b32 {s(sT1)}, 0, {OOB}
        s_add_u32 {s(sT1)}, {s(sT1)}, {BF + 12}
        v_lshl_add_u32 {v(vBF)}, v4, 2, {s(sT1)}
        v_lshl_add_u32 v4, v6, 2, v3
        s_lshl_b32 {s(sT1)}, {s(sW)}, 2
        s_add_u32 {s(sT1)}, {s(sT1)}, {XF}
        v_lshl_add_u32 {v(vXF)}, v4, 2, {s(sT1)}''')
        self.oob_unless(vBF, 'v_cmp_gt_u32 vcc, 2, v0')
        A(f'''v_cndmask_b32 {v(vXF)}, v9, {v(vXF)}, vcc
        s_lshl_b32 {s(sT0)}, {s(sB)}, 1
        s_add_u32 {s(sT0)}, {s(sT0)}, {s(sW)}
        s_sub_u32 {s(sT0)}, {s(sT0)}, 4
        s_lshl_b32 {s(sT0)}, {s(sT0)}, 11
        s_cmp_eq_u32 {s(sB)}, 0
        s_cselect_b32 {s(sT0)}, {OOB}, {s(sT0)}
        v_lshl_add_u32 {v(vXp)}, v0, 4, {s(sT0)}
        v_mov_b32 {v(vTrig)}, {TF}''')
    A(f'''v_lshrrev_b32 v3, 2, v1              ; r = c>>2
    v_and_b32 v4, 3, v1                        ; cc
    v_and_b32 v5, 1, v2                        ; g&1
    v_lshl_add_u32 v6, v2, 3, v3
    v_lshlrev_b32 v6, 7, v6                    ; (8g+r)*128
    v_and_b32 v7, 2, v3
    v_lshl_or_b32 v7, v5, 2, v7                ; f
    v_lshrrev_b32 v8, 1, v4
    s_lshl_b32 {s(sT0)}, {s(sW)}, 1
    v_or_b32 v8, {s(sT0)}, v8
    v_xor_b32 v7, v7, v8
    v_lshl_add_u32 v6, v7, 4, v6
    v_and_b32 v7, 1, v4
    v_lshl_add_u32 v6, v7, 3, v6''')
    for i in range(3): A(f'v_add_u32 {v(vWr+i)}, {bufs[i]}, v6')
    A(f's_lshl_b32 {s(sT0)}, {s(sW)}, 9\ns_add_u32 {s(sT0)}, {s(sT0)}, {LT}')
    if QK:
        for eh, reg in ((0, vTR0), (1, vTR1)):
            A(f'''v_xor_b32 v6, {eh}, v5
            v_lshl_add_u32 v6, v6, 2, v3
            v_lshl_add_u32 v6, v2, 3, v6
            v_lshlrev_b32 v6, 5, v6
            v_lshl_or_b32 v7, v5, 1, {eh}
            v_xor_b32 v7, v7, v4
            v_lshl_add_u32 v6, v7, 3, v6
            v_add_u32 {v(reg)}, {LT}, v6''')
        A(f'''v_lshrrev_b32 v6, 3, v1
        v_lshlrev_b32 v6, 2, v6
        v_xor_b32 v6, v6, v1
        v_lshlrev_b32 v6, 5, v6
        v_xor_b32 v7, v2, v3
        v_lshl_add_u32 v6, v7, 3, v6
        v_add_u32 {v(vTW)}, {s(sT0)}, v6''')
    A(f'''v_and_b32 v7, 2, v1
    v_cmp_ne_u32 vcc, 0, v7
    v_mov_b32 v6, 0x4444
    v_mov_b32 v8, 0xeeee
    v_cndmask_b32 {v(vIdx)}, v6, v8, vcc
    v_lshlrev_b32 v6, 4, v0
    v_add_u32 {v(vA0)}, {LMEM}, v6
    s_mul_i32 {s(sT0)}, {s(sW)}, 2560
    v_lshl_add_u32 {v(vMd4)}, v0, 4, {s(sT0)}
    v_lshl_add_u32 {v(vMd1)}, v0, 2, {s(sT0)}
    s_add_u32 {s(sMm0)}, {s(sT0)}, {LMEM}
    v_mul_u32_u24 v6, {0 if o.noprobe else 40}, v0
    v_add_u32 {v(vProbe)}, {s(sMm0)}, v6
    v_mul_u32_u24 v6, {0 if o.noprobe else 164}, v0
    v_min_u32 v6, 10236, v6
    v_add_u32 {v(vPrA)}, {LMEM}, v6
    v_lshrrev_b32 v6, 3, v1
    v_lshlrev_b32 v6, 10, v6
    v_and_b32 v7, 7, v1
    v_lshl_add_u32 v6, v7, 7, v6
    v_lshrrev_b32 v7, 1, v1
    v_xor_b32 v7, v7, v2
    v_lshl_add_u32 {v(vXb0)}, v7, 4, v6
    v_xor_b32 {v(vXb1)}, 64, {v(vXb0)}''')
    if QK:
        A(f'''s_and_b32 {s(sT1)}, {s(sG)}, 1
        s_lshl_b32 {s(sT1)}, {s(sT1)}, 12
        s_lshr_b32 {s(sT2)}, {s(sG)}, 2
        s_lshl_b32 {s(sT2)}, {s(sT2)}, 13
        s_add_u32 {s(sT1)}, {s(sT1)}, {s(sT2)}
        s_and_b32 {s(sT2)}, {s(sG)}, 2
        s_lshl_b32 {s(sT2)}, {s(sT2)}, 13
        s_add_u32 {s(sT1)}, {s(sT1)}, {s(sT2)}
        s_add_u32 {s(sT1)}, {s(sT1)}, {EF}
        v_lshrrev_b32 v4, 2, v0
        v_lshl_add_u32 v3, v4, 9, {s(sT1)}
        v_cmp_ne_u32 {s(sT2,2)}, {s(sG)}, v4
        v_cmp_gt_u32 vcc, 32, v0
        s_and_b64 vcc, vcc, {s(sT2,2)}
        s_and_b32 vcc_lo, vcc_lo, {s(sW0)}
        v_cndmask_b32 {v(vTrig)}, {v(vTrig)}, v3, vcc
        v_cndmask_b32 {v(vMy)}, 0, -1, vcc''')
    else:
        A(f'''v_and_b32 v3, 1, v0
        v_lshlrev_b32 v3, 12, v3
        v_bfe_u32 v5, v0, 2, 1
        v_lshl_add_u32 v3, v5, 13, v3
        v_bfe_u32 v4, v0, 1, 1
        v_lshl_add_u32 v3, v4, 14, v3
        s_lshl_b32 {s(sT1)}, {s(sG)}, 9
        s_add_u32 {s(sT1)}, {s(sT1)}, {EF}
        s_xor_b32 {s(sW0)}, {s(sW)}, 3
        s_or_b32 {s(sW0)}, {s(sW0)}, {s(sB)}
        s_cselect_b32 {s(sT1)}, {OOB}, {s(sT1)}
        v_add_u32 {v(vEf)}, {s(sT1)}, v3''')
        self.oob_unless(vEf, 'v_cmp_gt_u32 vcc, 8, v0')
        self.oob_unless(vEf, f'v_cmp_ne_u32 vcc, {s(sG)}, v0')
        A(f'''s_lshr_b32 {s(sT1)}, {s(sG)}, 2
        v_cmp_eq_u32 vcc, {s(sT1)}, v5
        v_cndmask_b32 {v(vEn)}, v9, {v(vEf)}, vcc
        v_cndmask_b32 {v(vEf)}, {v(vEf)}, v9, vcc
        v_and_b32 v3, 7, v0
        v_min_u32 v3, 5, v3
        v_bfe_u32 v4, v0, 3, 2
        v_lshlrev_b32 v4, 7, v4
        v_lshl_add_u32 v3, v3, 2, v4
        v_add_u32 {v(vBa)}, {BF + 32}, v3
        s_lshl_b32 {s(sT3)}, {s(sB)}, 1
        s_add_u32 {s(sT3)}, {s(sT3)}, {s(sW)}
        s_lshl_b32 {s(sT3)}, {s(sT3)}, 1
        s_sub_u32 {s(sT3)}, {s(sT3)}, 8''')
        self.out_addr(sT3, vOst, vOl, vOut, vOloc, sLo8, SEL2)
        A(f's_cmp_lg_u32 {s(sB)}, 0\ns_cselect_b64 vcc, -1, 0')
        for reg in (vOst, vOl, vOut, vOloc): A(f'v_cndmask_b32 {v(reg)}, v9, {v(reg)}, vcc')
    def sides():
        if QK:
            Lpf = A.uid('L_pf')
            A(f'v_mov_b32 v5, {PARF}')
            A.label(Lpf)
            A(f'buffer_load_dword v6, v5, {s(WS,4)}, {s(sXB)} offen sc1')
            self.side0()
            A(f'''v_readfirstlane_b32 {s(sT1)}, v6
            s_cmp_eq_u32 {s(sT1)}, 0
            s_cbranch_scc1 {Lpf}
            s_and_b32 {s(sT1)}, {s(sT1)}, 2
            s_lshl_b32 {s(sT1)}, {s(sT1)}, 12
            v_add_u32 {v(vPl0)}, {s(sT1)}, {v(vPl0)}
            v_add_u32 {v(vPl1)}, {s(sT1)}, {v(vPl1)}
            v_and_b32 v3, {s(sT0)}, {v(vMy)}
            v_xor_b32 {v(vTrig)}, v3, {v(vTrig)}''')
            if o.tl: A(f'v_writelane_b32 v255, {s(sT1)}, 20')
        else:
            self.side0()
            for reg in (vEf, vEn, vOst, vOl): A(f'v_xor_b32 {v(reg)}, {s(sT0)}, {v(reg)}')
    wdma(1); wdma(2)
    A(f's_mov_b32 {s(sXSeg)}, 0'); xdma_begin(LX0)
    for ln in range(10): xdma(ln)
    self.tl(5)
    waits = [30, 30, 30, 10]
    self.tl(6)
    for i in range(4):
        m, half = stages[i]
        A(f's_waitcnt vmcnt({waits[i]})\ns_barrier')
        for ks in range(10):
            for eh in range(2):
                A(f'ds_read_b64_tr_b16 {a(80*m + 4*(half*10+ks) + 2*eh, 2)}, {v(vWr + i%3)} offset:{ks*4096 + eh*512}')
        A('s_waitcnt lgkmcnt(0)')
        if i < 2: A('s_barrier')
        if i == 0: wdma(3)
        if i == 1:
            A(f's_mov_b32 {s(sXSeg)}, 40960'); xdma_begin(LX1)
            for ln in range(10): xdma(ln)
        if i == 3 and not QK and o.touch in (1, 2):
            A('v_lshlrev_b32 v3, 4, v0')
            for k in range(7): A(f'buffer_load_dwordx4 v[248:251], v3, {s(WS,4)}, s61 offen sc1\ns_add_u32 s61, s61, 1024')
        self.tl(8 + i)

    XD = 3
    TD = o.edep if o.epos else 4
    def xrd1(ks, rt):
        A(f'ds_read_b128 {v(xf + 8*(ks%XD) + 4*rt, 4)}, {v(vXb1 if ks & 1 else vXb0)} offset:{(ks>>1)*4096 + rt*2048}')
    def xrd(ks):
        for rt in range(2): xrd1(ks, rt)
    def xstores():
        if o.x & 16: return
        for m in range(2): A(f'buffer_store_dwordx4 {v(pk+4*m,4)}, {v(vXst)}, {s(WS,4)}, {s((sX0, sX1)[m])} offen{ST}')
    def mem_dma():
        A(f'''buffer_load_dwordx4 {v(vMd4)}, {s(WS,4)}, {s(sCur)} offen sc1 lds
        buffer_load_dwordx4 {v(vMd4)}, {s(WS,4)}, {s(sCur)} offen offset:1024 sc1 lds
        buffer_load_dword {v(vMd1)}, {s(WS,4)}, {s(sCur)} offen offset:2048 sc1 lds
        buffer_load_dword {v(vMd1)}, {s(WS,4)}, {s(sCur)} offen offset:2304 sc1 lds''')
    trig = f'buffer_load_dword {v(vTrD)}, {v(vTrig)}, {s(WS,4)}, 0 offen sc1'
    def trig_load(): A(trig)
    def part_loads(cp, dst):
        A(f'''buffer_load_dwordx4 {v(PB+8*dst,4)}, {v((vPl0, vPl2)[cp])}, {s(WS,4)}, {s(sPart)} offen sc1
        buffer_load_dwordx4 {v(PB+8*dst+4,4)}, {v((vPl1, vPl3)[cp])}, {s(WS,4)}, {s(sPart)} offen sc1''')
    def red_wait():
        self.stamp(role, 't0')
        self.spin(trig, f'v_cmp_gt_u32 vcc, {s(sThr)}, {v(vTrD)}', TD, True)
        A('s_barrier')
    def red_try(b, younger, Lfail):
        A(f'''s_waitcnt vmcnt({younger + 1})
        v_mfma_f32_16x16x32_bf16 {v(racc,4)}, {v(SELA,4)}, {v(b,4)}, 0
        v_mfma_f32_16x16x32_bf16 {v(racc+4,4)}, {v(SELB,4)}, {v(b,4)}, 0
        s_waitcnt vmcnt({younger})
        v_mfma_f32_16x16x32_bf16 {v(racc,4)}, {v(SELA,4)}, {v(b+4,4)}, {v(racc,4)}
        v_mfma_f32_16x16x32_bf16 {v(racc+4,4)}, {v(SELB,4)}, {v(b+4,4)}, {v(racc+4,4)}
        v_cmp_u_f32 vcc, {v(racc)}, {v(racc)}''')
        for q in range(4): A(f'v_cvt_pk_bf16_f32 {v(rp+q)}, {v(racc+2*q)}, {v(racc+2*q+1)}')
        A(f's_cbranch_vccnz {Lfail}')
    def red_sum(order):
        Lp, Lc = A.uid('L_pp'), A.uid('L_pc')
        self.stamp(role, 'gi')
        red_try(PB, 2 * (len(order) - 1), Lp)
        A.label(Lc)
        A(f'buffer_store_dwordx4 {v(rp,4)}, {v(vMst)}, {s(WS,4)}, {s(sCur)} offen{ST}')
        self.stamp(role, 'mp')
        if o.dump:
            A(f'''s_and_b32 {s(sT1)}, {s(sG)}, 6
            s_mul_i32 {s(sT0)}, {s(sS)}, {2*MEM_SLOT}
            s_and_b32 {s(sT2)}, {s(sG)}, 1
            s_mul_i32 {s(sT2)}, {s(sT2)}, {MEM_SLOT}
            s_add_u32 {s(sT0)}, {s(sT0)}, {s(sT2)}
            s_add_u32 {s(sT0)}, {s(sT0)}, {DUMP + (2<<20) - 2*MEM_SLOT}
            s_cmp_eq_u32 {s(sT1)}, 0
            s_cselect_b32 {s(sT0)}, {s(sT0)}, {DUMP}
            buffer_store_dwordx4 {v(rp,4)}, {v(vMst)}, {s(WS,4)}, {s(sT0)} offen''')
        def cold():
            for k in range(2):
                b = PB + 8*k
                if k: A.label(f'{Lp}_1')
                part_loads(k ^ 1, k ^ 1)
                self.count(1 if k == 0 else 1000); self.budget()
                A(f'v_max_u32 {v(vMx)}, {v(b)}, {v(b+1)}')
                for i in range(1, 4): A(f'v_max3_u32 {v(vMx)}, {v(vMx)}, {v(b+2*i)}, {v(b+2*i+1)}')
                A(f'v_cmp_eq_u32 vcc, -1, {v(vMx)}\ns_cbranch_vccz {Lc}')
                red_try(PB + 8*(k ^ 1), 0, f'{Lp}_1' if k == 0 else Lp)
                A(f's_branch {Lc}')
        self.cold.append((Lp, cold))

    def fin_loads():
        A(f's_cmp_lt_i32 {s(sFinR)}, 0\ns_cselect_b32 {s(sFinL)}, {s(sXB)}, {s(sFinL)}')
        for k in range(2): A(f'buffer_load_dwordx4 {v(fin+4*k,4)}, {v(vOl)}, {s(WS,4)}, {s(sFinL)} offen offset:{1024*k} sc1')
    def fin_out():
        Lf = A.uid('L_fin')
        A(f's_cmp_lt_i32 {s(sFinR)}, 0\ns_cbranch_scc1 {Lf}')
        a0, a1 = [self.fin_rows(fin + 4*k, ft + 4*k, vOut, sFinR, sLo8, SEL2, 32*k) for k in range(2)]
        for x, y in zip(a0, a1): A(x); A(y)
        A.label(Lf)
    def forward(younger):
        Lf = A.uid('L_fw')
        A(f's_waitcnt vmcnt({younger})\ns_cmp_lt_i32 {s(sFinR)}, {-3*32*2560}\ns_cbranch_scc1 {Lf}c')
        A.label(Lf)
        for k in range(2): A(f'buffer_store_dwordx4 {v(fw+4*k,4)}, {v(vOst)}, {s(WS,4)}, {s(sFwS)} offen offset:{1024*k} sc1')
        def cold():
            for i in range(8): A(f'v_mov_b32 {v(fw+i)}, -1')
            A(f's_add_u32 {s(sFwS)}, {s(sFwS)}, {7*OUTP_SLOT}')
            for k in range(2): A(f'buffer_store_dwordx4 {v(fw+4*k,4)}, {v(vOst)}, {s(WS,4)}, {s(sFwS)} offen offset:{1024*k} sc1')
            A(f's_sub_u32 {s(sFwS)}, {s(sFwS)}, {3*OUTP_SLOT}\ns_branch {Lf}')
        self.cold.append((Lf + 'c', cold))

    def gemm(dma, fill=(), loop=False):
        fill = list(fill)
        if not loop: xrd(0); xrd(1)
        vm = []
        st = {'flag': not (loop and QK), 'ta': (200 if QK else 64) if loop else 0, 'n': 0, 'clr': 0}
        def clr(reg, off):
            A(f'buffer_store_dword {v(vNeg)}, {v(reg)}, {s(WS,4)}, {s(sClr)} offen offset:{off}{ST}'); st['clr'] -= 1
        if loop and not QK:
            vm.append((128, lambda: [A(f'buffer_load_dwordx4 {v(fw+4*k,4)}, {v(vOloc)}, {s(WS,4)}, {s(sFwL)} offen offset:{1024*k} sc1') for k in range(2)]))
            vm.append((128, fin_loads))
            vm.append((128, lambda: [A(f'buffer_load_dwordx4 v[248:251], {v(vXp)}, {s(R3,4)}, {s(sXp)} offen offset:{1024*k}') for k in range(2)]))
            vm.append((128, lambda: forward(4)))
        if loop:
            for reg, off in (((vSclr, 0), (vMclr, 0), (vSclr, 256)) if QK else ((vVclr, 0), (vVclr, 1024))):
                vm.append((24, lambda reg=reg, off=off: clr(reg, off))); st['clr'] += 1
        if dma:
            xdma_begin(s(sXbuf))
            vm += [(64, lambda k=k: xdma(k) if not (loop and o.x & 256) else None) for k in range(10)]
        if loop and QK:
            vm.insert(o.fp, (24, lambda: (A(f's_waitcnt vmcnt({o.fp})\nbuffer_store_dword {v(vFl)}, {v(vKF)}, {s(WS,4)}, {s(sXB)} offen{ST}'), st.update(flag=True))))
        ev = []; order = []
        if loop and QK:
            ev = [(o.k1 - d, trig_load) for d in range(o.esp*(TD - 1), 0, -o.esp)] + [(o.k1, red_wait)]
            half = lambda h: A(f'buffer_load_dwordx4 {v(PB+4*h,4)}, {v((vPl0, vPl1)[h])}, {s(WS,4)}, {s(sPart)} offen sc1')
            ev.append((o.k1 + o.ka, lambda: half(0)))
            ev.append((o.k1 + o.ka + o.ksplit, lambda: (half(1), self.stamp(role, 't1'), order.append('A'))))
            assert [e[0] for e in ev] == sorted(e[0] for e in ev)
        if loop and not QK and o.epos:
            ev = [(o.epos + d, lambda reg=reg: A(f'buffer_store_dword {v(vFl)}, {v(reg)}, {s(WS,4)}, 0 offen sc1')) for reg, d in ((vEf, 0), (vEn, o.enear))]
        def events(n):
            k = 0
            while ev and ev[0][0] <= n:
                if ev[0][1] is red_wait: assert not vm and not fill, (len(vm), len(fill))
                ev.pop(0)[1](); k += 1
            return k
        def mf(m, ks, rt):
            d = v(xacc + 8*m + 4*rt, 4)
            A('s_nop 3' if (loop and o.x & 64 and ks) else f'v_mfma_f32_16x16x32_bf16 {d}, {a(80*m + 4*ks, 4)}, {v(xf + 8*(ks%XD) + 4*rt, 4)}, {d if ks else 0}')
            st['n'] += 1
            return 2 * events(st['n'])
        A('s_waitcnt lgkmcnt(2)')
        for ks in range(18):
            for n in range(4):
                used = mf(n // 2, ks, n & 1)
                if n < 2 and not (loop and o.x & 128 and ks > 0): xrd1(ks + 2, n); used += 1
                if n == 2 and vm and st['ta'] <= 16 * st['n'] + ((o.tslack if QK else o.tslackv) if loop else 0):
                    c, f = vm.pop(0); f(); st['ta'] += c; used += 2
                    if c < 64 and vm and vm[0][0] < 64 and st['clr']: c, f = vm.pop(0); f(); st['ta'] += c
                if n == 3: A(f's_waitcnt lgkmcnt({2 if ks < 17 else 0})'); used += 1
                for _ in range(o.fd - used):
                    if fill: A(fill.pop(0))
        assert not fill and (not QK or not vm)
        while vm: vm.pop(0)[1]()
        def epi(m):
            x = []
            for rt in range(2):
                for i in range(2):
                    b = xacc + 8*m + 4*rt + 2*i
                    x.append(f'v_cvt_pk_bf16_f32 {v(pk + 4*m + 2*rt + i)}, {v(b)}, {v(b+1)}')
            x.append(f'v_permlane16_swap_b32 {v(pk+4*m)}, {v(pk+4*m+2)}')
            x.append(f'v_permlane16_swap_b32 {v(pk+4*m+1)}, {v(pk+4*m+3)}')
            if m == 1 and QK: x.append(f'ds_write_b128 {v(vKxWs)}, {v(pk+4,4)}')
            return x
        tog = [f'v_add_u32 {v(vXb0)}, {s(sDelta)}, {v(vXb0)}', f'v_add_u32 {v(vXb1)}, {s(sDelta)}, {v(vXb1)}',
               f's_sub_u32 {s(sXbuf)}, {s(sXbuf)}, {s(sDelta)}', f's_sub_u32 {s(sDelta)}, 0, {s(sDelta)}']
        for m in range(2):
            for ks in (18, 19):
                for rt in range(2):
                    mf(m, ks, rt)
                    if tog: A(tog.pop(0))
        for x in epi(0) + epi(1): A(x)
        if loop and QK:
            while 'A' not in order: ev.pop(0)[1]()
            events(81)
            xstores(); order.append('X')
            A(f's_mov_b32 m0, {s(sMm0)}')
            events(999)
            red_sum(order)
            A('s_barrier')
        else:
            xstores()
            if loop: A('s_waitcnt vmcnt(18)'); fin_out()
    def set_x(seg):
        A(f'''s_add_u32 {s(sX0)}, {s(sXB)}, {S8B + seg*S8 + QX if QK else seg*S4 + VX}
        s_add_u32 {s(sX1)}, {s(sX0)}, {s(sD1)}
        s_mov_b32 {s(sXSeg)}, {40960*(seg+1)}''')
        if QK: A(f'v_add_u32 {v(vKxWs)}, {4096*seg}, {v(vKxW)}')
    L = lambda txt: [x.strip() for x in txt.split('\n') if x.strip()]
    setup = L(f'''s_and_b32 {s(sF0)}, {s(sS)}, 3
    s_mul_i32 {s(sPart)}, {s(sF0)}, {PART_SLOT}''') if QK else []
    setup += L(f'''s_add_u32 {s(sF1)}, {s(sS)}, {LA}
    s_and_b32 {s(sF0)}, {s(sF1)}, 3
    s_mul_i32 {s(sF0)}, {s(sF0)}, {S8 if QK else S4}
    s_add_u32 {s(sF0)}, {s(sF0)}, {S8B + QX if QK else VX}
    s_add_u32 {s(sX0)}, {s(sXB)}, {s(sF0)}
    s_add_u32 {s(sX1)}, {s(sX0)}, {s(sD1)}''')
    if QK: setup += L(f'''s_and_b32 {s(sF0)}, {s(sF1)}, 3
    s_lshl_b32 {s(sF0)}, {s(sF0)}, 12
    v_add_u32 {v(vKxWs)}, {s(sF0)}, {v(vKxW)}''')
    setup += L(f'''s_add_u32 {s(sS)}, {s(sS)}, 1
    s_mov_b32 {s(sMark)}, 0
    s_and_b32 {s(sF0)}, {s(sS)}, 3
    s_mul_i32 {s(sF1)}, {s(sF0)}, {S4}
    s_add_u32 {s(sCur)}, {s(sXB)}, {s(sF1)}
''')
    if QK: setup += L(f'''s_and_b32 {s(sThr)}, {s(sS)}, {s(sW0)}
    s_lshl_b32 {s(sF0)}, {s(sF0)}, 12
    v_add_u32 {v(vKxRs)}, {s(sF0)}, {v(vKxR)}
    s_add_u32 {s(sKmOff)}, {s(sCur)}, {KM}''')
    late = L(f'''s_add_u32 {s(sF0)}, {s(sS)}, 2
    s_and_b32 {s(sF0)}, {s(sF0)}, 3
    s_mul_i32 {s(sF0)}, {s(sF0)}, {S4}
    s_add_u32 {s(sClr)}, {s(sXB)}, {s(sF0)}
    s_add_u32 {s(sF0)}, {s(sS)}, {LA + 1}
    s_min_u32 {s(sF0)}, {s(sF0)}, 63
    s_mul_i32 {s(sXSeg)}, {s(sF0)}, 40960
    s_add_u32 {s(sF1)}, {s(sS)}, 1
    v_mov_b32 {v(vFl)}, {s(sF1)}
    s_mov_b32 m0, {s(sMm0)}''') + [f'v_mov_b32 {v(acc+i)}, 0' for i in range(8)]
    if not QK: late += L(f'''s_add_u32 {s(sF0)}, {s(sS)}, 6
    s_min_u32 {s(sF0)}, {s(sF0)}, 63
    s_mul_i32 {s(sXp)}, {s(sF0)}, 40960
    s_and_b32 {s(sF0)}, {s(sS)}, 3
    s_mul_i32 {s(sF1)}, {s(sF0)}, {OL_SLOT}
    s_add_u32 {s(sFwL)}, {s(sF1)}, {s(sXB)}
    s_mul_i32 {s(sF1)}, {s(sF0)}, {OUTP_SLOT}
    s_add_u32 {s(sFwS)}, {s(sF1)}, {OUTP}
    s_xor_b32 {s(sF0)}, {s(sF0)}, 2
    s_mul_i32 {s(sF1)}, {s(sF0)}, {OUTP_SLOT}
    s_add_u32 {s(sFinL)}, {s(sF1)}, {OUTP}
    s_sub_u32 {s(sF1)}, {s(sS)}, 6
    s_mul_i32 {s(sFinR)}, {s(sF1)}, {32*2560}''')

    A(f's_mov_b32 {s(sDelta)}, 40960\ns_mov_b32 {s(sXbuf)}, {LX1}\ns_mov_b32 {s(sS)}, -1')
    set_x(0)
    gemm(False)
    self.tl(2); self.hd(8)
    self.gwait()
    self.tl(3)
    for seg in range(1, LA):
        A('s_waitcnt vmcnt(0) lgkmcnt(0)')
        if not QK: A(f'v_mov_b32 {v(vFl)}, {seg}\nbuffer_store_dword {v(vFl)}, {v(vXF)}, {s(WS,4)}, {s(sXB)} offen{ST}')
        A('s_barrier')
        set_x(seg)
        gemm(True, setup if seg == LA - 1 else ())
    if QK: A(f's_mov_b32 m0, {s(sMm0)}'); self.hd(9)
    self.tl(13)
    LP = f'L_{role}_loop{t}'
    A.label(LP)
    if not QK:
        for x in late: A(x)
        if o.vgate:
            Lv = A.uid('L_vg')
            A.label(Lv); A(f'buffer_load_dword {v(vTrD)}, {v(vTrig)}, {s(WS,4)}, {s(sXB)} offen sc1'); self.budget()
            A(f's_waitcnt vmcnt(0)\nv_cmp_gt_u32 vcc, {s(sS)}, {v(vTrD)}\ns_cbranch_vccnz {Lv}')
    Lredo, Lpoll, Lnan, Lcont = A.uid('L_redo'), A.uid('L_poll'), A.uid('L_nan'), A.uid('L_cont')
    if QK:
        late += [f'ds_read_b128 {v(Kx,4)}, {v(vKxRs)}', f'ds_read_b128 {v(Kx+4,4)}, {v(vKxRs)} offset:1024']
        for x in late[:o.nl]: A(x)
    mem_dma()
    if QK:
        for x in late[o.nl:]: A(x)
        for _ in range(o.dly): A('s_nop 3')
    self.stamp(role, 'p0')
    A.label(Lpoll)
    mem_dma()
    self.budget(); self.count(1, 'mem')
    A(f'''s_waitcnt vmcnt(4)
    ds_read_b32 {v(vPr)}, {v(vProbe)}
    s_waitcnt lgkmcnt(0)
    v_cmp_eq_u32 vcc, -1, {v(vPr)}
    s_cbranch_vccnz {Lpoll}''')
    self.stamp(role, 'p1')
    A('s_barrier')
    self.stamp(role, 'b1')
    def rdA(tt):
        A(f'ds_read_b128 {v(Aop+4*tt,4)}, {v(vA0)} offset:{tt*1024}')
    def sm(m, tt):
        A(f'v_smfmac_f32_16x16x64_bf16 {v(acc+4*m,4)}, {v(Aop+4*tt,4)}, {a(80*m+8*tt,8)}, {v(vIdx)}')
    NI = o.ni if QK else 5
    seq = [(m, tt) for tt in range(NI) for m in range(2)] + [(0, tt) for tt in range(NI, 10)] + [(1, tt) for tt in range(NI, 10)]
    e0 = 10 + NI
    PRE = o.pre0 if QK else 4; issued = PRE; waited = -1
    for tt in range(PRE): rdA(tt)
    bpos = o.bpos if QK else o.bposv
    bfl = lambda off=0: A(f'buffer_store_dword {v(vFl)}, {v(vBF)}, {s(WS,4)}, {s(sXB)} offen offset:{off}{ST}')
    def zrd(u): A(f'ds_read_b64_tr_b16 {v(Z+4*u,2)}, {v(vTR0)} offset:{u*1024}\nds_read_b64_tr_b16 {v(Z+4*u+2,2)}, {v(vTR1)} offset:{u*1024}')
    def scores(src, y=0):
        A(f'''s_waitcnt lgkmcnt({2+y})
        v_mfma_f32_16x16x32_bf16 {v(S,4)}, {v(src,4)}, {v(Z,4)}, 0
        s_waitcnt lgkmcnt({y})
        v_mfma_f32_16x16x32_bf16 {v(S,4)}, {v(src+4,4)}, {v(Z+4,4)}, {v(S,4)}''')
    vst = lambda m: A(f'buffer_store_dword {v(tq+m)}, {v(vVMst)}, {s(WS,4)}, {s(sCur)} offen offset:{1024*m}{ST}')
    cvt = lambda m: A(f'v_cvt_pk_bf16_f32 {v(tq+m)}, {v(acc+4*m)}, {v(acc+4*m+1)}')
    cmpu = lambda: A(f'v_cmp_u_f32 vcc, {v(acc)}, {v(acc+1)}')
    brn = lambda: A(f's_cbranch_vccnz {Lnan}\n{Lcont}:')
    side = {e0 + 2: [lambda: A(f'v_add_f32 {v(acc)}, {v(acc)}, {v(acc+2)}\nv_add_f32 {v(acc+1)}, {v(acc+1)}, {v(acc+3)}')]}
    if QK:
        side.update({e0 + 3: [lambda: cvt(0), lambda: A(f'ds_write_b32 {v(vTW)}, {v(tq)}')], e0 + 4: [cmpu], e0 + 6: [brn],
                     e0 + 7: [lambda: A('s_waitcnt lgkmcnt(0)\ns_barrier'), lambda: self.stamp(role, 'ba'), lambda: zrd(0)], e0 + 8: [lambda: zrd(1)]})
    else:
        side.update({e0 + 3: [cmpu, lambda: cvt(0)], e0 + 5: [brn, lambda: vst(0)]})
    for n, (m, tt) in enumerate(seq):
        if n == e0: self.stamp(role, 'qe'); A.label(Lredo)
        if n == 1: self.stamp(role, 's1')
        if tt > waited: A(f's_waitcnt lgkmcnt({issued - 1 - tt})'); waited = tt
        sm(m, tt)
        if issued < 10: rdA(issued); issued += 1
        if n == bpos: bfl()
        for f in side.pop(n, []): f()
    for n in sorted(side):
        for f in side[n]: f()
    def post1():
        A(f'v_pk_add_f32 {v(acc+4,2)}, {v(acc+4,2)}, {v(acc+6,2)}')
        cvt(1)
    if QK:
        Lw0, Lw3, Ljoin = A.uid('L_w0'), A.uid('L_w3'), A.uid('L_join')
        A(f'''s_cmp_eq_u32 {s(sW)}, 0
        s_cbranch_scc1 {Lw0}
        s_cmp_eq_u32 {s(sW)}, 3
        s_cbranch_scc1 {Lw3}''')
        def tphase(wave):
            xs = lambda: (A(f'buffer_store_dwordx4 {v(S,4)}, {v(vSCst)}, {s(WS,4)}, {s(sCur)} offen{ST}'), self.stamp(role, 'sc'))
            if wave == 1 and o.xo == 2: scores(Kx)
            post1()
            A(f'ds_write_b32 {v(vTW)}, {v(tq+1)} offset:4')
            if wave == 1 and o.xo < 2: scores(Kx, 1)
            if wave == 1 and o.xo: xs()
            A('s_waitcnt lgkmcnt(0)\ns_barrier')
            if wave == 1 and not o.xo: xs()
            self.stamp(role, 'b2')
            if wave != 1: zrd(0); zrd(1)
            if wave == 3:
                bfl(32)
                A('s_waitcnt lgkmcnt(0)')
                xrd(0); xrd(1)
                A(f'''s_waitcnt lgkmcnt(0)
                buffer_store_dwordx4 {v(Z,4)}, {v(vKMst)}, {s(WS,4)}, {s(sKmOff)} offen{ST}
                buffer_store_dwordx4 {v(Z+4,4)}, {v(vKMst)}, {s(WS,4)}, {s(sKmOff)} offen offset:512{ST}''')
            else:
                if wave == 0: scores(Z)
                xrd(0); xrd(1)
                if wave == 0:
                    A(f'buffer_store_dword {v(S+2)}, {v(vSCst)}, {s(WS,4)}, {s(sCur)} offen{ST}')
                    A(f'buffer_store_dword {v(S+3)}, {v(vSCst)}, {s(WS,4)}, {s(sCur)} offen offset:8{ST}')
            if wave != 1: self.stamp(role, 'sc')
        tphase(1); A(f's_branch {Ljoin}')
        A.label(Lw0); tphase(0); A(f's_branch {Ljoin}')
        A.label(Lw3); tphase(3)
        A.label(Ljoin)
    else:
        post1(); vst(1)
        self.stamp(role, 'vm')
        bfl(32)
        xrd(0); xrd(1)
    Lend = A.uid('L_end')
    A(f's_cmp_eq_u32 {s(sS)}, {o.nsteps - 1}\ns_cbranch_scc1 {Lend}')
    if QK: self.tr_flush(role, 1)
    if QK and o.hd >= 14 and not self.slow:
        Lh = A.uid('L_h'); A(f's_cmp_lg_u32 {s(sS)}, {o.hd - 14}\ns_cbranch_scc1 {Lh}'); self.hd(o.hd); A.label(Lh)
    if not QK and o.epos:
        La = A.uid('L_an'); bl = f'buffer_load_dword {v(vTrD)}, {v(vBa)}, {s(WS,4)}, {s(sXB)} offen sc1'
        A(f's_cmp_lg_u32 {s(sW0)}, 0\ns_cbranch_scc1 {La}x')
        self.spin(bl, f'v_cmp_ge_u32 vcc, {s(sS)}, {v(vTrD)}', 7 if o.fpoll else 4)
        A.label(La + 'x')
        A('s_barrier')
    gemm(True, setup, True)
    self.stamp(role, 'ge')
    if not QK: self.tr_flush(role)
    A(f's_branch {LP}')
    A.label(Lend)
    if not QK: fin_loads()
    A('s_waitcnt vmcnt(0) lgkmcnt(0)')
    if not QK: fin_out(); A('s_waitcnt vmcnt(0)')
    if QK:
        A(f'buffer_store_dword {v(vFl)}, {v(vKF)}, {s(WS,4)}, {s(sXB)} offen{ST}')
        self.hd(10)
    if not QK and o.wb & 2:
        Lw = A.uid('L_wb')
        A(f's_cmp_lg_u32 {s(sW0)}, 0\ns_cbranch_scc1 {Lw}\nbuffer_wbl2 sc1\ns_waitcnt vmcnt(0)\n{Lw}:')
    self.stamp_out(role); self.tl(7, True)
    A('s_endpgm')
    A.label(Lnan)
    A(f's_cmp_eq_u32 {s(sMark)}, 1\ns_cbranch_scc1 {Lcont}\nv_lshlrev_b32 v1, 4, v0')
    A.label(Lnan + 'r')
    A(f's_mov_b32 {s(sT0)}, {s(sCur)}\nv_mov_b32 v2, 0')
    for k in range(10):
        A(f'buffer_load_dwordx4 {v(Aop+4*k,4)}, v1, {s(WS,4)}, {s(sT0)} offen sc1\ns_add_u32 {s(sT0)}, {s(sT0)}, 1024')
    self.budget()
    A('s_waitcnt vmcnt(0) lgkmcnt(0)')
    for k in range(20): A(f'v_max3_u32 v2, v2, {v(Aop+2*k)}, {v(Aop+2*k+1)}')
    A(f'v_cmp_eq_u32 vcc, -1, v2\ns_cbranch_vccnz {Lnan}r\ns_mov_b32 {s(sMark)}, 1')
    for i in range(8): A(f'v_mov_b32 {v(acc+i)}, 0')
    for m, tt in seq[:e0]: sm(m, tt)
    A(f's_branch {Lredo}')
```

```python
import math
from asmlib import v, a, s

def part_a(G):
    import gen as g
    from gen import RA, f32, sW, sG, sR, sT0, sT1, sT2, sT3, R0, R1, R2, OUT, P_AX, P_AW, P_AWO, OOB
    A = G.A
    CH = 20480; NB = 4
    RS = 168
    LQ = NB * CH; LK = LQ + 128 * RS; LV = LK + 128 * RS
    CA = 20 ** -0.5 * math.log2(math.e)
    r = RA(10, 248)
    vD = r(5, 1)
    vRd, vRds, vWq, vWs, vOst, vAq, vAk, vAqs, vAks, vPos, vMx, vSum, vBig, vOr = [r() for _ in range(14)]
    OV = r(64, 4)
    bf = r(40, 4); acc = r(40, 4); pk = r(16, 4)
    t = RA(bf + 20, pk + 16)
    q = t(10, 2); kk = t(20, 2); lg = t(8, 2); pp = t(16, 2); o = t(20, 2)
    sRow0, sM, sCol, sNcol, sNkc, sNm, sBufR, sBufW, sHG, sC, sIt, sLeft, sG0, sCnt, sBlk = range(40, 55)
    xfrag = lambda rt, K: a(80*rt + 4*K, 4)
    def oreg(rt, K, half=None):
        i = 4 * (20*rt + K); n = 4
        if half is not None: i += 2*half; n = 2
        return a(160 + i, n) if i < 96 else v(OV + i - 96, n)

    A.label('L_pa_body')
    G.tl(3)
    A(f'''s_sub_u32 {s(sT0)}, {s(sR)}, {g.R_PA}
    s_cmp_ge_u32 {s(sT0)}, 3
    s_cbranch_scc1 L_pa_end
    s_mul_i32 {s(sG0)}, {s(sT0)}, {3 if G.o.arot == 1 else 0}
    s_add_u32 {s(sG0)}, {s(sG0)}, {s(sG)}
    s_and_b32 {s(sG0)}, {s(sG0)}, {7 if G.o.arot else 0}
    s_cmp_eq_u32 {s(sT0)}, 0
    s_cselect_b32 {s(sT1)}, 0x76543210, 0
    s_cmp_eq_u32 {s(sT0)}, 1
    s_cselect_b32 {s(sT1)}, {'0x54c321b0' if G.o.amap else '0x76543210'}, {s(sT1)}
    s_cmp_eq_u32 {s(sT0)}, 2
    s_cselect_b32 {s(sT1)}, {'0xf9ea87d6' if G.o.amap else '0xfedcba98'}, {s(sT1)}
    s_lshl_b32 {s(sT2)}, {s(sG)}, 2
    s_lshr_b32 {s(sT1)}, {s(sT1)}, {s(sT2)}
    s_and_b32 {s(sT1)}, {s(sT1)}, 15
    s_min_u32 {s(sT0)}, {s(sT0)}, 1
    s_lshl_b32 {s(sT0)}, {s(sT0)}, 3
    s_add_u32 {s(sBlk)}, {s(sT0)}, {s(sT1)}
    s_mul_i32 {s(sRow0)}, {s(sBlk)}, 112
    s_lshl_b32 {s(sT0)}, {s(sW)}, 5
    s_add_u32 {s(sRow0)}, {s(sRow0)}, {s(sT0)}
    s_sub_u32 {s(sRow0)}, {s(sRow0)}, 16        ; first row of this wave''')
    G.srd(R0, P_AX, 2048 * 640 * 2); G.srd(R1, P_AW, 640 * 1920 * 2); G.srd(R2, P_AWO, 640 * 640 * 2)
    G.lanes()
    for rt in range(2):
        A(f'''s_add_u32 {s(sT0)}, {s(sRow0)}, {16*rt}
        v_add_u32 v3, {s(sT0)}, v1
        v_cmp_gt_u32 vcc, 2048, v3
        v_mul_u32_u24 v3, 1280, v3
        v_lshl_add_u32 v3, v2, 4, v3
        v_mov_b32 v4, {OOB}
        v_cndmask_b32 v3, v4, v3, vcc''')
        for ks in range(20):
            A(f'buffer_load_dwordx4 {xfrag(rt, ks)}, v3, {s(R0,4)}, 0 offen offset:{64*ks}')
    def dma_addr(stride):
        for n in range(5):
            A(f'''v_add_u32 v3, {64*n}, v0
            v_mul_u32_u24 v4, 6554, v3
            v_lshrrev_b32 v4, 16, v4
            v_mul_u32_u24 v5, 10, v4
            v_sub_u32 v5, v3, v5
            v_and_b32 v6, 19, v4
            v_and_b32 v7, 4, v4
            v_lshl_or_b32 v6, v7, 1, v6
            v_and_b32 v7, 8, v4
            v_lshrrev_b32 v7, 1, v7
            v_or_b32 v6, v6, v7
            s_lshl_b32 {s(sT0)}, {s(sW)}, 5
            v_add_u32 v6, {s(sT0)}, v6
            v_mul_u32_u24 v6, {stride}, v6
            v_lshl_add_u32 {v(vD+n)}, v5, 4, v6''')
    dma_addr(3840)
    A(f'''v_lshrrev_b32 v3, 2, v1                 ; r
    v_and_b32 v4, 3, v1                           ; cc
    v_and_b32 v5, 1, v2
    v_lshl_add_u32 v3, v5, 2, v3
    v_lshrrev_b32 v6, 1, v2
    v_lshl_add_u32 v3, v6, 4, v3
    v_mul_u32_u24 v3, 160, v3
    v_lshl_add_u32 {v(vRd)}, v4, 3, v3
    s_lshl_b32 {s(sT0)}, {s(sW)}, 5
    v_add_u32 v3, {s(sT0)}, v1
    v_mul_u32_u24 v3, {RS}, v3
    v_add_u32 v3, {LQ}, v3
    v_lshl_add_u32 {v(vWq)}, v2, 3, v3
    v_lshl_add_u32 {v(vOr)}, v2, 4, v3
    v_add_u32 {v(vOr)}, -32, {v(vOr)}
    v_lshl_add_u32 v3, v5, 4, v1
    v_add_u32 v4, {s(sT0)}, v3
    v_add_u32 v3, {s(sRow0)}, v3
    v_cmp_le_u32 {s(sT2,2)}, 16, v4
    v_cmp_gt_u32 vcc, 2048, v3
    s_and_b64 vcc, vcc, {s(sT2,2)}
    v_mul_u32_u24 v3, 2560, v3
    v_lshl_add_u32 v3, v6, 4, v3
    v_mov_b32 v4, {OOB}
    v_cndmask_b32 {v(vOst)}, v4, v3, vcc
    v_and_b32 v3, 31, v0
    v_add_u32 {v(vPos)}, {s(sRow0)}, v3
    v_add_u32 v3, {s(sT0)}, v3
    v_mul_u32_u24 v3, {RS}, v3
    v_lshrrev_b32 v4, 5, v0
    v_mul_u32_u24 v4, 40, v4
    v_add_u32 v3, v3, v4
    v_add_u32 {v(vAq)}, {LQ}, v3
    v_add_u32 {v(vAk)}, {LK - 14*RS}, v3
    v_mov_b32 {v(vBig)}, {f32(-1e9 * 20 ** 0.5)}
    s_mov_b32 {s(sC)}, {f32(CA)}''')

    def rot(reg):
        return [f's_add_u32 {s(reg)}, {s(reg)}, {CH}', f's_cmp_eq_u32 {s(reg)}, {NB*CH}', f's_cselect_b32 {s(reg)}, 0, {s(reg)}']
    def dma(srd, stride, qkv, lds=True):
        x = [f's_mul_i32 {s(sT0)}, {s(sW)}, 5120', f's_add_u32 m0, {s(sT0)}, {s(sBufW)}',
             f's_mul_i32 {s(sT1)}, {s(sNkc)}, {128*stride}', f's_add_u32 {s(sT1)}, {s(sT1)}, {s(sNcol)}']
        for n in range(5):
            x.append(f'buffer_load_dwordx4 {v(vD+n)}, {s(srd,4)}, {s(sT1)} offen{" nt" if G.o.nt & 8 else ""} lds' if lds else f'buffer_load_dwordx4 v[248:251], {v(vD+n)}, {s(srd,4)}, {s(sT1)} offen')
            if n < 4: x.append('s_add_u32 m0, m0, 1024')
        y = x; x = []
        x += rot(sBufW)
        x += [f's_cmp_lg_u32 {s(sLeft)}, 0', f's_cselect_b32 {s(sT0)}, 1, 0', f's_sub_u32 {s(sLeft)}, {s(sLeft)}, {s(sT0)}',
              f's_add_u32 {s(sNkc)}, {s(sNkc)}, {s(sT0)}', f's_cmp_eq_u32 {s(sNkc)}, 5', f's_cselect_b32 {s(sNkc)}, 0, {s(sNkc)}']
        if qkv:
            x += [f's_cselect_b32 {s(sT0)}, 1280, 0', f's_addc_u32 {s(sNm)}, {s(sNm)}, 0', f's_add_u32 {s(sNcol)}, {s(sNcol)}, {s(sT0)}',
                  f's_cmp_eq_u32 {s(sNm)}, 3', f's_cselect_b32 {s(sNm)}, 0, {s(sNm)}', f's_cselect_b32 {s(sT0)}, {3840 - 160}, 0',
                  f's_cmp_eq_u32 {s(sNcol)}, {3840 + 1120}', f's_cselect_b32 {s(sT0)}, {s(sNcol)}, {s(sT0)}',
                  f's_sub_u32 {s(sNcol)}, {s(sNcol)}, {s(sT0)}']
        else:
            x += [f's_cselect_b32 {s(sT0)}, 160, 0', f's_add_u32 {s(sNcol)}, {s(sNcol)}, {s(sT0)}',
                  f's_cmp_eq_u32 {s(sNcol)}, 1280', f's_cselect_b32 {s(sNcol)}, 0, {s(sNcol)}']
        return y[:5] + x + y[5:]
    def rd(ks, ct):
        b = bf + 20*(ks & 1) + 4*ct
        return [f'ds_read_b64_tr_b16 {v(b + 2*eh, 2)}, {v(vRds)} offset:{ks*5120 + eh*1280 + ct*32}' for eh in range(2)]
    def next_chunk():
        A(f'v_add_u32 {v(vRds)}, {s(sBufR)}, {v(vRd)}\ns_waitcnt vmcnt(10) lgkmcnt(0)\ns_barrier')
        return [x for ct in range(5) for x in rd(0, ct)]
    def block(srd, stride, qkv, frag):
        for kc in range(5):
            fl = rot(sBufR) + dma(srd, stride, qkv)
            first = []; n = 0; last = -9
            for ks in range(4):
                for ct in range(5):
                    if ks == 3 and ct == 2:
                        assert not fl
                        first = next_chunk()
                    if ks < 3 or ct < 2: A(f's_waitcnt lgkmcnt({8 if ks < 3 else 8 - 2*ct})')
                    nx = rd(ks + 1, ct) if ks < 3 else []
                    for rt in range(2):
                        d = v(acc + 8*ct + 4*rt, 4); K = 4*kc + ks
                        A(f'v_mfma_f32_16x16x32_bf16 {d}, {v(bf + 20*(ks & 1) + 4*ct, 4)}, {frag(rt, K)}, {d if K else 0}')
                        n += 1
                        if nx: A(nx[rt])
                        for _ in range(2):
                            if first: A(first.pop(0))
                        for _ in range(2):
                            if fl and (not fl[0].startswith('buffer') or n - last >= 5):
                                if fl[0].startswith('buffer'): last = n
                                A(fl.pop(0))
    def stream_start(nchunks):
        A(f'''s_mov_b32 {s(sBufR)}, 0
        s_mov_b32 {s(sBufW)}, 0
        s_mul_i32 {s(sNcol)}, {s(sG0)}, 160
        s_mov_b32 {s(sNkc)}, 0
        s_mov_b32 {s(sNm)}, 0
        s_mov_b32 {s(sLeft)}, {nchunks - 1}
        s_mov_b32 {s(sHG)}, {s(sG0)}
        s_mov_b32 {s(sCnt)}, 0''')
    def phase_start(srd, stride, qkv, nchunks):
        if not qkv: A('s_waitcnt vmcnt(0) lgkmcnt(0)\ns_barrier')
        stream_start(nchunks)
        for _ in range(3):
            for x in dma(srd, stride, qkv): A(x)
        for x in next_chunk(): A(x)
    A(f's_cmp_lt_u32 {s(sBlk)}, 19\ns_cbranch_scc1 L_pa_rows')
    if G.o.xwarm:
        G.srd(g.R3, g.P_BX, 2048 * 640 * 2)
        A(f'''s_sub_u32 {s(sT0)}, {s(sBlk)}, 19
        s_lshl_b32 {s(sT0)}, {s(sT0)}, 2
        s_add_u32 {s(sT0)}, {s(sT0)}, {s(sW)}
        s_lshl_b32 {s(sT0)}, {s(sT0)}, 11
        v_lshl_add_u32 v3, v0, 4, {s(sT0)}
        s_mov_b32 {s(sT1)}, {6*40960}
        L_pa_xw:
        buffer_load_dwordx4 v[248:251], v3, {s(g.R3,4)}, {s(sT1)} offen{" nt" if G.o.xwarm == 2 else ""}
        buffer_load_dwordx4 v[248:251], v3, {s(g.R3,4)}, {s(sT1)} offen offset:1024{" nt" if G.o.xwarm == 2 else ""}
        s_add_u32 {s(sT1)}, {s(sT1)}, 40960
        s_waitcnt vmcnt(20)
        s_cmp_lt_u32 {s(sT1)}, {64*40960}
        s_cbranch_scc1 L_pa_xw''')
        if G.o.partA == 2 or G.o.nt & 16: A('s_branch L_pa_end')
    for srd, stride, qkv, n in ((R1, 3840, True, 46), (R2, 1280, False, 41)):
        if not qkv: dma_addr(1280)
        stream_start(n)
        L = A.uid('L_pa_pf'); A.label(L)
        for x in dma(srd, stride, qkv, False): A(x)
        A(f's_waitcnt vmcnt(20)\ns_cmp_lg_u32 {s(sLeft)}, 0\ns_cbranch_scc1 {L}')
    A('s_branch L_pa_end\nL_pa_rows:')
    if G.o.partA == 2: A('s_branch L_pa_end')
    def cvt(ct):
        for rt in range(2):
            for i in range(2):
                b = acc + 8*ct + 4*rt + 2*i
                A(f'v_cvt_pk_bf16_f32 {v(pk + 2*rt + i)}, {v(b)}, {v(b+1)}')

    phase_start(R1, 3840, True, 120)
    G.tl(4)
    A.label('L_pa_grp')
    G.tl(8)
    A(f's_mov_b32 {s(sM)}, 0')
    A.label('L_pa_blk')
    block(R1, 3840, True, xfrag)
    A(f'v_add_u32 {v(vWs)}, {s(sM)}, {v(vWq)}')
    for ct in range(5):
        cvt(ct)
        A(f'ds_write_b64 {v(vWs)}, {v(pk,2)} offset:{32*ct}\nds_write_b64 {v(vWs)}, {v(pk+2,2)} offset:{32*ct + 16*RS}')
    A(f'''s_waitcnt lgkmcnt(0)
    s_add_u32 {s(sM)}, {s(sM)}, {128*RS}
    s_cmp_lt_u32 {s(sM)}, {3*128*RS}
    s_cbranch_scc1 L_pa_blk
    s_barrier
    s_mov_b32 {s(sIt)}, 0''')
    G.tl(9)
    A.label('L_pa_att')
    A(f'v_add_u32 {v(vAks)}, {s(sIt)}, {v(vAk)}\nv_add_u32 {v(vAqs)}, {s(sIt)}, {v(vAq)}')
    for i in range(5): A(f'ds_read_b64 {v(q+2*i,2)}, {v(vAqs)} offset:{8*i}')
    def rdk(j, base):
        for i in range(5): A(f'ds_read_b64 {v(kk + 10*(j&1) + 2*i, 2)}, {v(vAks)} offset:{base + (14-2*j)*RS + 8*i}')
    rdk(0, 0)
    for j in range(8):
        if j < 7: rdk(j + 1, 0)
        else: rdk(0, LV - LK)
        A('s_waitcnt lgkmcnt(5)')
        for i in range(10):
            A(f'v_dot2_f32_bf16 {v(lg+j)}, {v(q+i)}, {v(kk + 10*(j&1) + i)}, {v(lg+j) if i else 0}')
    for j in range(1, 8):
        A(f'v_cmp_le_i32 vcc, {2*j}, {v(vPos)}\nv_cndmask_b32 {v(lg+j)}, {v(vBig)}, {v(lg+j)}, vcc')
    A(f'v_max_f32 {v(vMx)}, {v(lg)}, {v(lg+1)}')
    for j in range(2, 8, 2): A(f'v_max3_f32 {v(vMx)}, {v(vMx)}, {v(lg+j)}, {v(lg+j+1)}')
    for j in range(8): A(f'v_sub_f32 {v(lg+j)}, {v(lg+j)}, {v(vMx)}')
    for j in range(8): A(f'v_mul_f32 {v(lg+j)}, {s(sC)}, {v(lg+j)}')
    for j in range(8): A(f'v_exp_f32 {v(lg+j)}, {v(lg+j)}')
    A(f'v_add_f32 {v(vSum)}, {v(lg)}, {v(lg+1)}')
    for j in range(2, 8): A(f'v_add_f32 {v(vSum)}, {v(vSum)}, {v(lg+j)}')
    A(f'v_rcp_f32 {v(vSum)}, {v(vSum)}')
    for j in range(8):
        A(f'''v_mul_f32 {v(lg+j)}, {v(lg+j)}, {v(vSum)}
        v_cvt_pk_bf16_f32 {v(pp+2*j)}, {v(lg+j)}, 0
        v_cvt_pk_bf16_f32 {v(pp+2*j+1)}, 0, {v(lg+j)}''')
    for j in range(8):
        if j < 7: rdk(j + 1, LV - LK)
        A(f's_waitcnt lgkmcnt({5 if j < 7 else 0})')
        for i in range(10):
            for h in range(2):
                A(f'v_dot2_f32_bf16 {v(o+2*i+h)}, {v(kk + 10*(j&1) + i)}, {v(pp+2*j+h)}, {v(o+2*i+h) if j else 0}')
    for i in range(10): A(f'v_cvt_pk_bf16_f32 {v(q+i)}, {v(o+2*i)}, {v(o+2*i+1)}')
    for i in range(5): A(f'ds_write_b64 {v(vAqs)}, {v(q+2*i,2)} offset:{8*i}')
    A(f'''s_waitcnt lgkmcnt(0)
    s_add_u32 {s(sIt)}, {s(sIt)}, 80
    s_cmp_lt_u32 {s(sIt)}, 160
    s_cbranch_scc1 L_pa_att''')
    G.tl(10)
    for hg in range(8):
        if hg < 7: A(f's_cmp_lg_u32 {s(sHG)}, {hg}\ns_cbranch_scc1 L_pa_o{hg+1}')
        K0 = 5 * (hg // 2)
        steps = [(K0, 32, None), (K0 + 1, 96, None), (K0 + 2, 160, 'lo')] if hg % 2 == 0 else [(K0 + 2, 0, 'hi'), (K0 + 3, 64, None), (K0 + 4, 128, None)]
        for K, off, part in steps:
            if part == 'lo': A('s_mov_b32 exec_hi, 0')
            if part == 'hi': A('s_mov_b32 exec_lo, 0')
            for rt in range(2):
                for half in range(2):
                    A(f'ds_read_b64 {oreg(rt, K, half)}, {v(vOr)} offset:{off + rt*16*RS + 8*half}')
            if part: A('s_mov_b64 exec, -1')
        if hg < 7: A(f's_branch L_pa_oe\nL_pa_o{hg+1}:')
    A(f'''L_pa_oe:
    s_waitcnt lgkmcnt(0)
    s_add_u32 {s(sHG)}, {s(sHG)}, 1
    s_and_b32 {s(sHG)}, {s(sHG)}, 7
    s_cmp_lg_u32 {s(sHG)}, {s(sG0)}
    s_cbranch_scc1 L_pa_grp''')
    dma_addr(1280)
    phase_start(R2, 1280, False, 40)
    A(f's_mul_i32 {s(sCol)}, {s(sG0)}, 160')
    G.tl(11)
    A.label('L_pa_oblk')
    block(R2, 1280, False, oreg)
    for ct in range(5):
        cvt(ct)
        A(f'''v_permlane16_swap_b32 {v(pk)}, {v(pk+2)}
        v_permlane16_swap_b32 {v(pk+1)}, {v(pk+3)}
        buffer_store_dwordx4 {v(pk,4)}, {v(vOst)}, {s(OUT,4)}, {s(sCol)} offen offset:{32*ct}{' sc1' if G.o.osc & 2 else ''}''')
    A(f'''s_add_u32 {s(sCol)}, {s(sCol)}, 160
    s_cmp_eq_u32 {s(sCol)}, 1280
    s_cselect_b32 {s(sCol)}, 0, {s(sCol)}
    s_add_u32 {s(sCnt)}, {s(sCnt)}, 1
    s_cmp_lt_u32 {s(sCnt)}, 8
    s_cbranch_scc1 L_pa_oblk''')
    A.label('L_pa_end')
    A('s_waitcnt vmcnt(0)')
    if G.o.wb & 1: A('buffer_wbl2 sc1\ns_waitcnt vmcnt(0)')
    G.hd(13); G.tl(7, True)
    A('s_endpgm')
```

```python
from asmlib import v, a, s
from gen import *

def px(self):
    A = self.A; t = self.tag; ST = self.st; o = self.o
    r = RA(10, 248)
    vHx, vHk, vH16, vXFa, vKFa, vPFa, vFlD, vFl, vMx, vMy, vSum, vBig, vXp = [r() for _ in range(13)]
    Q = r(48, 4); K = r(48, 4); KMo = r(24, 4); S = r(20, 4); P = r(12, 4)
    sRho, sXOff, sKmOff, sPxOff, sC = range(40, 45); sMask = 48
    A.label(f'L_px{t}')
    self.lanes()
    A(f'''s_mul_i32 {s(sT0)}, {s(sW)}, 12288
    v_lshl_add_u32 {v(vHx)}, v0, 4, {s(sT0)}
    s_mul_i32 {s(sT0)}, {s(sW)}, 3072
    v_lshl_add_u32 {v(vH16)}, v0, 4, {s(sT0)}
    v_lshrrev_b32 v3, 2, v1
    v_lshlrev_b32 v3, 1, v3
    v_and_b32 v4, 1, v1
    v_or_b32 v3, v3, v4
    v_lshl_add_u32 v3, v2, 3, v3
    v_lshl_add_u32 {v(vHk)}, v3, 4, {s(sT0)}
    s_lshl_b32 {s(sT0)}, {s(sW)}, 7
    v_min_u32 v3, 11, v0
    v_lshl_add_u32 v3, v3, 2, {s(sT0)}
    v_add_u32 {v(vXFa)}, {XF}, v3
    v_min_u32 v3, 2, v0
    v_lshl_add_u32 v3, v3, 2, {s(sT0)}
    v_add_u32 {v(vKFa)}, {KF}, v3
    v_add_u32 {v(vXp)}, {BF}, v3
    s_add_u32 {s(sT0)}, {s(sT0)}, {PF}
    v_mov_b32 {v(vPFa)}, {s(sT0)}''')
    self.oob_unless(vPFa, 'v_cmp_eq_u32 vcc, 0, v0')
    A(f'''s_nop 0
    v_mov_b32 {v(vBig)}, {f32(-1e9 * 192 ** 0.5)}
    s_mov_b32 {s(sC)}, {f32(CSM)}''')
    for i in range(4):
        A(f'v_lshl_add_u32 v3, v2, 2, {i}\nv_cmp_le_u32 {s(sMask+2*i,2)}, v3, v1')
    for i in (3, 7, 10, 11): A(f'v_mov_b32 {v(P+i)}, 0')
    Lg = A.uid('L_xg')
    A(f's_mov_b32 {s(sS)}, 0')
    self.gwait()
    A(f's_cmp_lg_u32 {s(sW)}, 0\ns_cbranch_scc1 {Lg}')
    if o.par < 0:
        Lq = A.uid('L_pr')
        A(f'''s_lshl_b32 {s(sT2)}, {s(sG)}, 14
        s_add_u32 {s(sT2)}, {s(sT2)}, {PROBE}
        s_add_u32 {s(sT3)}, {s(sT2)}, 8192
        v_lshlrev_b32 v3, 4, v0''')
        for k in range(4):
            A(f'''buffer_store_dwordx4 {v(Q,4)}, v3, {s(WS,4)}, {s(sT2)} offen offset:{1024*k} sc1
            buffer_store_dwordx4 {v(Q,4)}, v3, {s(WS,4)}, {s(sT3)} offen offset:{1024*k} sc1''')
        A(f'''v_mov_b32 v3, 0
        s_mov_b32 s56, -1
        s_mov_b32 s57, -1
        s_mov_b32 s62, 0
        s_mov_b32 s63, 0
        s_waitcnt vmcnt(0)''')
        A.label(Lq)
        for k in range(2):
            A(f'''s_memtime s[58:59]
            s_waitcnt lgkmcnt(0)
            buffer_load_dword v4, v3, {s(WS,4)}, {s((sT2, sT3)[k])} offen sc1
            s_waitcnt vmcnt(0)
            s_memtime s[60:61]
            s_waitcnt lgkmcnt(0)
            s_sub_u32 s60, s60, s58
            s_min_u32 s{56+k}, s{56+k}, s60''')
        A(f'''buffer_load_dword v4, {v(vXFa)}, {s(WS,4)}, {s(sXB)} offen sc1
        v_add_u32 v3, 128, v3
        s_add_u32 s62, s62, 1
        s_waitcnt vmcnt(0)
        v_cmp_eq_u32 vcc, 0, v4
        s_cmp_eq_u64 vcc, 0
        s_addc_u32 s63, s63, 0
        s_cmp_ge_u32 s63, {o.nq}
        s_cselect_b32 s62, 32, s62
        s_min_u32 s58, s56, s57
        s_max_u32 s59, s56, s57
        s_sub_u32 s59, s59, s58
        s_cmp_ge_u32 s59, 150
        s_cselect_b32 s58, s58, -1
        s_cmp_le_u32 s58, {o.qthr}
        s_cselect_b32 s62, 32, s62
        s_cmp_lt_u32 s62, 32
        s_cbranch_scc1 {Lq}
        s_cmp_lt_u32 s57, s56
        s_cselect_b32 s62, 2, 1''')
    else:
        A(f's_lshr_b32 s62, {s(sXCC)}, 2\ns_xor_b32 s62, s62, {o.par}\ns_and_b32 s62, s62, 1\ns_add_u32 s62, s62, 1')
    A(f'''s_nop 0
    v_mov_b32 v3, {PARF}
    v_mov_b32 v4, s62
    buffer_store_dword v4, v3, {s(WS,4)}, {s(sXB)} offen{ST}
    s_cmp_lg_u32 {s(sG)}, 0
    s_cbranch_scc1 {Lg}
    v_mov_b32 v3, {self.GO + (12 if self.slow else 8)}
    buffer_store_dword v4, v3, {s(DBG,4)}, 0 offen sc1''')
    A.label(Lg)
    A('s_barrier')
    def wait_flag(addr):
        self.spin(f'buffer_load_dword {v(vFlD)}, {v(addr)}, {s(WS,4)}, {s(sXB)} offen sc1', f'v_cmp_ge_u32 vcc, {s(sS)}, {v(vFlD)}', o.pxdep)
    def xloads(reg, off):
        x = []
        for k in range(12):
            if k % 4 == 0: x.append(f's_add_u32 {s(sT0)}, {s(sXOff)}, {off + k*1024}')
            x.append(f'buffer_load_dwordx4 {v(reg+4*k,4)}, {v(vHx)}, {s(WS,4)}, {s(sT0)} offen offset:{(k%4)*1024} sc1')
        return x
    if o.x & 32:
        A(f'v_mov_b32 {v(vFl)}, 99\nbuffer_store_dword {v(vFl)}, {v(vPFa)}, {s(WS,4)}, {s(sXB)} offen\ns_endpgm')
    A(f's_add_u32 {s(sXOff)}, {s(sXB)}, {S8B}')
    wait_flag(vXp)
    for x in xloads(K, KX) + xloads(Q, QX): A(x)
    A('s_waitcnt vmcnt(0)')
    LP = f'L_px_loop{t}'; A.label(LP)
    A(f'''s_and_b32 {s(sT0)}, {s(sS)}, 3
    s_mul_i32 {s(sT1)}, {s(sT0)}, {S4}
    s_add_u32 {s(sT1)}, {s(sT1)}, {s(sXB)}
    s_add_u32 {s(sKmOff)}, {s(sT1)}, {KM}
    s_add_u32 {s(sPxOff)}, {s(sT1)}, {PXB}
    s_add_u32 {s(sT0)}, {s(sS)}, 1
    v_mov_b32 {v(vFl)}, {s(sT0)}
    s_and_b32 {s(sT0)}, {s(sT0)}, 3
    s_mul_i32 {s(sT1)}, {s(sT0)}, {S8}
    s_add_u32 {s(sT1)}, {s(sT1)}, {S8B}
    s_add_u32 {s(sXOff)}, {s(sXB)}, {s(sT1)}''')
    for ks in range(6):
        for d, kt, rt in ((0, 0, 0), (8, 0, 1), (12, 1, 1)):
            A(f'v_mfma_f32_16x16x32_bf16 {v(S+d,4)}, {v(K+24*kt+4*ks,4)}, {v(Q+24*rt+4*ks,4)}, {v(S+d,4) if ks else 0}')
    for d in (0, 12):
        for i in range(4):
            A(f'v_cndmask_b32 {v(S+d+i)}, {v(vBig)}, {v(S+d+i)}, {s(sMask+2*i,2)}')
    wait_flag(vKFa)
    for k in range(6):
        A(f'buffer_load_dwordx4 {v(KMo+4*k,4)}, {v(vHk)}, {s(WS,4)}, {s(sKmOff)} offen offset:{k*512} sc1')
    for ks in range(6):
        A(f's_waitcnt vmcnt({5-ks})')
        for d, rt in ((4, 0), (16, 1)):
            A(f'v_mfma_f32_16x16x32_bf16 {v(S+d,4)}, {v(KMo+4*ks,4)}, {v(Q+24*rt+4*ks,4)}, {v(S+d,4) if ks else 0}')
    Lfin = A.uid('L_pxl')
    A(f's_cmp_eq_u32 {s(sS)}, {o.nsteps - 1}\ns_cbranch_scc1 {Lfin}')
    real = A; nxt = xloads(K, KX) + xloads(Q, QX); body = []
    A = lambda txt: body.extend(x.strip() for x in txt.split('\n') if x.strip())
    def allred(op, x, y):
        A(f'''v_mov_b32 {v(y)}, {v(x)}
        v_permlane16_swap_b32 {v(x)}, {v(y)}
        {op} {v(x)}, {v(x)}, {v(y)}
        v_mov_b32 {v(y)}, {v(x)}
        v_permlane32_swap_b32 {v(x)}, {v(y)}
        {op} {v(x)}, {v(x)}, {v(y)}''')
    for regs, outs in (([0,1,2,3,4,5], [0,1,2]), ([8,9,10,11,16,17,12,13,14,15], [4,5,6,8,9])):
        R = [S + x for x in regs]
        A(f'v_max_f32 {v(vMx)}, {v(R[0])}, {v(R[1])}')
        for i in range(2, len(R), 2): A(f'v_max3_f32 {v(vMx)}, {v(vMx)}, {v(R[i])}, {v(R[i+1])}')
        allred('v_max_f32', vMx, vMy)
        for x in R: A(f'v_sub_f32 {v(x)}, {v(x)}, {v(vMx)}')
        for x in R: A(f'v_mul_f32 {v(x)}, {s(sC)}, {v(x)}')
        for x in R: A(f'v_exp_f32 {v(x)}, {v(x)}')
        A(f'v_add_f32 {v(vSum)}, {v(R[0])}, {v(R[1])}')
        for x in R[2:]: A(f'v_add_f32 {v(vSum)}, {v(vSum)}, {v(x)}')
        allred('v_add_f32', vSum, vMy)
        A(f'v_rcp_f32 {v(vSum)}, {v(vSum)}')
        for x in R: A(f'v_mul_f32 {v(x)}, {v(x)}, {v(vSum)}')
        for i, oo in enumerate(outs): A(f'v_cvt_pk_bf16_f32 {v(P+oo)}, {v(R[2*i])}, {v(R[2*i+1])}')
    A = real
    def finish():
        for k in range(3):
            A(f'buffer_store_dwordx4 {v(P+4*k,4)}, {v(vH16)}, {s(WS,4)}, {s(sPxOff)} offen offset:{k*1024}{ST}')
        A(f's_waitcnt vmcnt(0)\nbuffer_store_dword {v(vFl)}, {v(vPFa)}, {s(WS,4)}, {s(sXB)} offen{ST}')
    for n, x in enumerate(body):
        if n % 4 == 0 and nxt: A(nxt.pop(0))
        A(x)
    for x in nxt: A(x)
    finish()
    A(f's_add_u32 {s(sS)}, {s(sS)}, 1\ns_branch {LP}')
    A.label(Lfin)
    for x in body: A(x)
    finish()
    A('s_endpgm')
```

```python
from asmlib import v, a, s
from gen import *

def proj(self, QK):
    A = self.A; t = self.tag; ST = self.st; o = self.o
    role = 'qkv' if QK else 'v'
    LA = 2 if QK else 3
    LX0, LX1, LS2, LMISC = 0, 40960, 81920, 122880
    LMEM = LMISC; LT = LMEM + 10240; LKX = LT + 2048
    r = RA(10, 240)
    vXdma, vXb0, vXb1, vMd4, vMd1, vProbe, vA0, vIdx, vPr, vXst, vFl, vBF, vNeg, vTW, vTR0, vPrA = [r() for _ in range(16)]
    Aop = r(40, 4); acc = r(8, 4); Z = r(8, 4); xf = r(24, 4); xacc = r(16, 4); pk = r(8, 4); tq = r(2, 2)
    if QK:
        (vTR1, vSCst, vKMst, vKxW, vKxR, vKF, vKxWs, vKxRs, vPl0, vPl1, vPl2, vPl3, vTrig, vTrD, vMst, vMclr, vSclr, vMx, vMy) = [r() for _ in range(19)]
        Kx = r(8, 4); S = r(4, 4); PB = r(16, 4); racc = r(8, 4); rp = r(4, 4); SELB = r(6, 2); SELA = SELB + 2
    else:
        vVMst, vVclr, vXF, vXp, vTrig, vTrD, vEf, vEn, vBa, vOst, vOl, vOut, vOloc, vEo = [r() for _ in range(14)]
        fw = r(8, 4); fin = r(8, 4); ft = r(8, 4); SEL2 = 160
    sB, sCur, sClr, sKmOff, sX0, sX1, sXSeg, sXbuf, sMm0, sDelta, sF0, sF1, sMark, sPart, sThr, sW0, sD1, sXp = range(40, 58)
    sLo8 = 58; sFwL, sFwS, sFinL, sFinR = sKmOff, sPart, sThr, 60
    A.label(f'L_{role}{t}')
    if QK:
        self.srd(R0, P_WQ, 640 * 6144 * 2); self.srd(R1, P_WK, 640 * 6144 * 2)
        A(f's_mov_b32 {s(sB)}, {s(sR)}')
    else:
        self.srd(R0, P_WV, 640 * 6144 * 2)
        A(f's_sub_u32 {s(sB)}, {s(sR)}, {R_V}\ns_lshl_b32 {s(sB)}, {s(sB)}, 1')
    self.srd(R3, P_BX, 2048 * 640 * 2)
    self.lanes()
    vWdma = pk; vWr = pk + 1
    A(f'''v_lshrrev_b32 v3, 3, v0              ; r8
    v_and_b32 v4, 7, v0                        ; pp
    s_lshl_b32 {s(sT0)}, {s(sW)}, 3
    v_add_u32 v5, {s(sT0)}, v3
    s_and_b32 {s(sT1)}, {s(sW)}, 1
    s_lshl_b32 {s(sT1)}, {s(sT1)}, 2
    v_and_b32 v6, 2, v3
    v_or_b32 v6, {s(sT1)}, v6
    v_xor_b32 v6, v6, v4
    v_lshlrev_b32 v6, 4, v6
    v_mul_u32_u24 v7, 12288, v5
    s_mul_i32 {s(sT2)}, {s(sG)}, 1536
    s_lshl_b32 {s(sT3)}, {s(sB)}, 7
    s_add_u32 {s(sT2)}, {s(sT2)}, {s(sT3)}
    v_add3_u32 {v(vWdma)}, v6, v7, {s(sT2)}
    v_lshrrev_b32 v6, 1, v3
    v_or_b32 v6, {s(sT1)}, v6
    v_xor_b32 v6, v6, v4
    v_lshlrev_b32 v6, 4, v6
    v_mul_u32_u24 v7, 1280, v5
    v_add_u32 {v(vXdma)}, v6, v7''')
    def xdma_begin(buf_s_or_imm):
        A(f's_lshl_b32 {s(sT0)}, {s(sW)}, 10\ns_add_u32 m0, {s(sT0)}, {buf_s_or_imm}')
    def xdma(ln):
        A(f'buffer_load_dwordx4 {v(vXdma)}, {s(R3,4)}, {s(sXSeg)} offen offset:{ln*128}{" nt" if QK and o.nt & 32 else ""} lds')
        if ln < 9: A('s_add_u32 m0, m0, 3968')
    stages = [(1, 0), (0, 0), (1, 1), (0, 1)]
    bufs = [LS2, LX1, LMISC]
    def wdma(i):
        m, half = stages[i]
        srd = (R0, R1)[m] if QK else R0
        A(f's_lshl_b32 {s(sT0)}, {s(sW)}, 10\ns_add_u32 m0, {s(sT0)}, {bufs[i%3]}\ns_mov_b32 {s(sT1)}, {half*320*12288 + (0 if QK else 128*m)}')
        for k in range(10):
            A(f'buffer_load_dwordx4 {v(vWdma)}, {s(srd,4)}, {s(sT1)} offen{" nt" if o.nt & 2 else ""} lds')
            if k < 9: A(f's_add_u32 m0, m0, 4096\ns_add_u32 {s(sT1)}, {s(sT1)}, {32*12288}')
    self.tl(4)
    wdma(0)

    def head_part(b, hl, p):
        A(f's_mul_i32 {s(hl)}, {s(b)}, 86\ns_lshr_b32 {s(hl)}, {s(hl)}, 8\ns_mul_i32 {s(p)}, {s(hl)}, 3\ns_sub_u32 {s(p)}, {s(b)}, {s(p)}')
    sHl, sP, sHl1, sP1 = 60, 61, 62, 63
    head_part(sB, sHl, sP)
    A(f's_add_u32 {s(sT0)}, {s(sB)}, 1'); head_part(sT0, sHl1, sP1)
    A(f'''v_lshrrev_b32 v3, 1, v2
    v_and_b32 v5, 1, v2
    s_lshl_b32 {s(sT0)}, {s(sW)}, 9
    v_lshlrev_b32 v6, 4, v1
    v_lshl_add_u32 v6, v3, 8, v6
    v_add_u32 v6, {s(sT0)}, v6
    s_mul_i32 {s(sT0)}, {s(sHl)}, 12288
    s_lshl_b32 {s(sT1)}, {s(sP)}, 11
    s_add_u32 {s(sT0)}, {s(sT0)}, {s(sT1)}
    v_mul_u32_u24 v7, 6144, v5
    v_add3_u32 {v(vXst)}, v6, v7, {s(sT0)}
    v_mov_b32 {v(vNeg)}, -1''')
    if QK:
        A(f'''s_mov_b32 {s(sD1)}, {KX - QX}
        v_lshl_add_u32 {v(vKxW)}, v5, 11, v6
        v_add_u32 {v(vKxW)}, {LKX}, {v(vKxW)}''')
        A(f'''s_mul_i32 {s(sT0)}, {s(sB)}, 1280
        s_add_u32 {s(sT0)}, {s(sT0)}, {SC}
        v_lshlrev_b32 v6, 1, v5
        v_or_b32 v7, v6, v3                        ; bitswap(g)
        v_lshl_add_u32 v7, v7, 4, v1
        v_lshlrev_b32 v7, 2, v7
        v_add_u32 v7, 1024, v7
        v_or_b32 v6, v6, v1
        v_lshl_add_u32 v6, v3, 4, v6
        v_lshlrev_b32 v6, 4, v6
        s_sub_u32 {s(sT1)}, {s(sW)}, 1
        s_lshl_b32 {s(sT1)}, {s(sT1)}, 9
        v_add_u32 v6, {s(sT1)}, v6
        s_cmp_eq_u32 {s(sW)}, 0
        s_cselect_b64 vcc, -1, 0
        v_cndmask_b32 v6, v6, v7, vcc
        v_add_u32 {v(vSCst)}, {s(sT0)}, v6
        s_lshl_b32 {s(sT1)}, {s(sW)}, 8
        s_add_u32 {s(sT1)}, {s(sT1)}, {s(sT0)}
        v_lshl_add_u32 {v(vSclr)}, v0, 2, {s(sT1)}
        v_and_b32 v4, 2, v1''')
        self.oob_unless(vSCst, 'v_cmp_eq_u32 vcc, 0, v4')
        A(f'''s_lshl_b32 {s(sT0)}, {s(sB)}, 10
        v_lshrrev_b32 v3, 2, v1
        v_lshlrev_b32 v3, 1, v3
        v_and_b32 v6, 1, v1
        v_or_b32 v3, v3, v6
        v_lshl_add_u32 v3, v2, 3, v3
        v_lshl_add_u32 {v(vKMst)}, v3, 4, {s(sT0)}''')
        self.oob_unless(vKMst, 'v_cmp_ne_u32 vcc, 0, v4')
        A(f'''v_and_b32 v6, 9, v1
        v_lshl_or_b32 v6, v4, 1, v6
        v_and_b32 v7, 4, v1
        v_lshrrev_b32 v7, 1, v7
        v_or_b32 v6, v6, v7
        v_lshlrev_b32 v6, 4, v6
        v_lshl_add_u32 v6, v2, 8, v6
        s_cmp_eq_u32 {s(sW)}, 2
        s_cselect_b32 {s(sT0)}, 2048, 0
        s_add_u32 {s(sT0)}, {s(sT0)}, {LKX}
        v_add_u32 {v(vKxR)}, {s(sT0)}, v6''')
        A(f'''s_lshl_b32 {s(sT0)}, {s(sHl)}, 7
        s_lshl_b32 {s(sT1)}, {s(sP)}, 2
        s_add_u32 {s(sT1)}, {s(sT1)}, {s(sT0)}
        s_add_u32 {s(sT1)}, {s(sT1)}, {KF}
        s_cmp_eq_u32 {s(sW)}, 3
        s_cselect_b32 {s(sT1)}, {s(sT1)}, {OOB}
        s_cselect_b32 {s(sW0)}, -1, {0 if o.onep else -1}
        v_mov_b32 {v(vKF)}, {s(sT1)}''')
        self.oob_unless(vKF, 'v_cmp_eq_u32 vcc, 0, v0')
        A(f'v_add_u32 {v(vBF)}, {BF - KF}, {v(vKF)}')
        A(f'''s_mul_i32 {s(sT0)}, {s(sR)}, {PBLK}
        {'s_lshl_b32 %s, %s, 11' % (s(sT1), s(sW)) if not o.lay else 's_and_b32 %s, %s, 1' % (s(sT1), s(sW)) + chr(10) + 's_mul_i32 %s, %s, %d' % (s(sT1), s(sT1), o.lay & 0xffff) + chr(10) + 's_add_u32 %s, %s, %s' % (s(sT0), s(sT0), s(sT1)) + chr(10) + 's_lshr_b32 %s, %s, 1' % (s(sT1), s(sW)) + chr(10) + 's_mul_i32 %s, %s, %d' % (s(sT1), s(sT1), o.lay >> 16)}
        s_add_u32 {s(sT0)}, {s(sT0)}, {s(sT1)}
        s_lshl_b32 {s(sT2)}, {s(sR)}, 10
        s_lshl_b32 {s(sT1)}, {s(sW)}, 8
        s_add_u32 {s(sT2)}, {s(sT2)}, {s(sT1)}
        s_cmp_lt_u32 {s(sR)}, 10
        s_cselect_b32 {s(sT0)}, {s(sT0)}, {OOB}
        s_cselect_b32 {s(sT2)}, {s(sT2)}, {OOB}
        s_lshl_b32 {s(sT1)}, {s(sG)}, 8
        v_lshlrev_b32 v3, 4, v0
        v_xor_b32 v3, {s(sT1)}, v3
        v_add_u32 {v(vPl0)}, {s(sT0)}, v3
        v_xor_b32 v3, 1024, v3
        v_add_u32 {v(vPl1)}, {s(sT0)}, v3
        s_min_u32 {s(sT0)}, {s(sR)}, 9
        s_lshl_b32 {s(sT0)}, {s(sT0)}, 7
        s_add_u32 {s(sT0)}, {s(sT0)}, {TF}
        s_add_u32 {s(sT0)}, {s(sT0)}, {s(sXB)}
        v_and_b32 v3, {0 if o.tone else 3}, v0
        v_lshl_add_u32 {v(vTrig)}, v3, 2, {s(sT0)}
        {f's_add_u32 {s(sT0)}, {s(sXB)}, {GF}' + chr(10) + f'v_mov_b32 {v(vTrig)}, {s(sT0)}' if o.eown else ''}
        v_lshl_add_u32 {v(vMclr)}, v0, 2, {s(sT2)}
        v_lshlrev_b32 v3, 3, v1
        v_lshl_add_u32 v3, v2, 6, v3
        v_add_u32 {v(vMst)}, {s(sT2)}, v3''')
        self.oob_unless(vMst, 'v_cmp_gt_u32 vcc, 8, v1')
        self.sel_consts(SELB, 1 if o.w1 & 2 else 0)
        A(f's_mov_b32 s58, 0xaaaaaaaa\ns_mov_b32 s59, 0xaaaaaaaa')
    else:
        A(f'''s_mul_i32 {s(sD1)}, {s(sHl1)}, 12288
        s_lshl_b32 {s(sT1)}, {s(sP1)}, 11
        s_add_u32 {s(sD1)}, {s(sD1)}, {s(sT1)}
        s_sub_u32 {s(sD1)}, {s(sD1)}, {s(sT0)}
        s_lshl_b32 {s(sT0)}, {s(sB)}, 10
        s_lshl_b32 {s(sT1)}, {s(sW)}, 8
        s_add_u32 {s(sT1)}, {s(sT1)}, {s(sT0)}
        s_add_u32 {s(sT1)}, {s(sT1)}, {VM}
        v_lshl_add_u32 {v(vVclr)}, v0, 2, {s(sT1)}
        v_and_b32 v6, 60, v0
        v_bfe_u32 v7, v0, 1, 1
        v_or_b32 v6, v6, v7
        v_and_b32 v7, 1, v0
        v_lshl_or_b32 v6, v7, 1, v6
        s_and_b32 {s(sT0)}, {s(sW)}, 1
        s_lshl_b32 {s(sT0)}, {s(sT0)}, 3
        v_xor_b32 v6, {s(sT0)}, v6
        v_lshl_add_u32 {v(vVMst)}, v6, 2, {s(sT1)}''')
        A(f'''s_lshl_b32 {s(sT0)}, {s(sHl)}, 5
        s_lshl_b32 {s(sT1)}, {s(sHl1)}, 5
        v_mov_b32 v3, {s(sT0)}
        v_mov_b32 v4, {s(sT1)}
        v_mov_b32 v6, {s(sP)}
        v_mov_b32 v7, {s(sP1)}
        v_cmp_eq_u32 vcc, 0, v0
        v_cndmask_b32 v3, v4, v3, vcc
        v_cndmask_b32 v6, v7, v6, vcc
        v_add_u32 v4, v3, v6
        s_cmp_eq_u32 {s(sW)}, 3
        s_cselect_b32 {s(sT1)}, 0, {OOB}
        s_add_u32 {s(sT1)}, {s(sT1)}, {BF + 12}
        v_lshl_add_u32 {v(vBF)}, v4, 2, {s(sT1)}
        v_lshl_add_u32 v4, v6, 2, v3
        s_lshl_b32 {s(sT1)}, {s(sW)}, 2
        s_add_u32 {s(sT1)}, {s(sT1)}, {XF}
        v_lshl_add_u32 {v(vXF)}, v4, 2, {s(sT1)}''')
        self.oob_unless(vBF, 'v_cmp_gt_u32 vcc, 2, v0')
        A(f'''v_cndmask_b32 {v(vXF)}, v9, {v(vXF)}, vcc
        s_lshl_b32 {s(sT0)}, {s(sB)}, 1
        s_add_u32 {s(sT0)}, {s(sT0)}, {s(sW)}
        s_sub_u32 {s(sT0)}, {s(sT0)}, 4
        s_lshl_b32 {s(sT0)}, {s(sT0)}, 11
        s_cmp_eq_u32 {s(sB)}, 0
        s_cselect_b32 {s(sT0)}, {OOB}, {s(sT0)}
        v_lshl_add_u32 {v(vXp)}, v0, 4, {s(sT0)}
        v_mov_b32 {v(vTrig)}, {GF if o.eown else TF}''')
    A(f'''v_lshrrev_b32 v3, 2, v1              ; r = c>>2
    v_and_b32 v4, 3, v1                        ; cc
    v_and_b32 v5, 1, v2                        ; g&1
    v_lshl_add_u32 v6, v2, 3, v3
    v_lshlrev_b32 v6, 7, v6                    ; (8g+r)*128
    v_and_b32 v7, 2, v3
    v_lshl_or_b32 v7, v5, 2, v7                ; f
    v_lshrrev_b32 v8, 1, v4
    s_lshl_b32 {s(sT0)}, {s(sW)}, 1
    v_or_b32 v8, {s(sT0)}, v8
    v_xor_b32 v7, v7, v8
    v_lshl_add_u32 v6, v7, 4, v6
    v_and_b32 v7, 1, v4
    v_lshl_add_u32 v6, v7, 3, v6''')
    for i in range(3): A(f'v_add_u32 {v(vWr+i)}, {bufs[i]}, v6')
    A(f's_lshl_b32 {s(sT0)}, {s(sW)}, 9\ns_add_u32 {s(sT0)}, {s(sT0)}, {LT}')
    if QK:
        for eh, reg in ((0, vTR0), (1, vTR1)):
            A(f'''v_xor_b32 v6, {eh}, v5
            v_lshl_add_u32 v6, v6, 2, v3
            v_lshl_add_u32 v6, v2, 3, v6
            v_lshlrev_b32 v6, 5, v6
            v_lshl_or_b32 v7, v5, 1, {eh}
            v_xor_b32 v7, v7, v4
            v_lshl_add_u32 v6, v7, 3, v6
            v_add_u32 {v(reg)}, {LT}, v6''')
        A(f'''v_lshrrev_b32 v6, 3, v1
        v_lshlrev_b32 v6, 2, v6
        v_xor_b32 v6, v6, v1
        v_lshlrev_b32 v6, 5, v6
        v_xor_b32 v7, v2, v3
        v_lshl_add_u32 v6, v7, 3, v6
        v_add_u32 {v(vTW)}, {s(sT0)}, v6''')
    A(f'''v_and_b32 v7, 2, v1
    v_cmp_ne_u32 vcc, 0, v7
    v_mov_b32 v6, 0x4444
    v_mov_b32 v8, 0xeeee
    v_cndmask_b32 {v(vIdx)}, v6, v8, vcc
    v_lshlrev_b32 v6, 4, v0
    v_add_u32 {v(vA0)}, {LMEM}, v6
    s_mul_i32 {s(sT0)}, {s(sW)}, 2560
    v_lshl_add_u32 {v(vMd4)}, v0, 4, {s(sT0)}
    v_lshl_add_u32 {v(vMd1)}, v0, 2, {s(sT0)}
    s_add_u32 {s(sMm0)}, {s(sT0)}, {LMEM}
    v_mul_u32_u24 v6, {0 if o.noprobe else 40}, v0
    v_add_u32 {v(vProbe)}, {s(sMm0)}, v6
    v_mul_u32_u24 v6, {0 if o.noprobe else 164}, v0
    v_min_u32 v6, 10236, v6
    v_add_u32 {v(vPrA)}, {LMEM}, v6
    v_lshrrev_b32 v6, 3, v1
    v_lshlrev_b32 v6, 10, v6
    v_and_b32 v7, 7, v1
    v_lshl_add_u32 v6, v7, 7, v6
    v_lshrrev_b32 v7, 1, v1
    v_xor_b32 v7, v7, v2
    v_lshl_add_u32 {v(vXb0)}, v7, 4, v6
    v_xor_b32 {v(vXb1)}, 64, {v(vXb0)}''')
    if QK:
        A(f'''s_and_b32 {s(sT1)}, {s(sG)}, 1
        s_lshl_b32 {s(sT1)}, {s(sT1)}, 12
        s_lshr_b32 {s(sT2)}, {s(sG)}, 2
        s_lshl_b32 {s(sT2)}, {s(sT2)}, 13
        s_add_u32 {s(sT1)}, {s(sT1)}, {s(sT2)}
        s_and_b32 {s(sT2)}, {s(sG)}, 2
        s_lshl_b32 {s(sT2)}, {s(sT2)}, 13
        s_add_u32 {s(sT1)}, {s(sT1)}, {s(sT2)}
        s_add_u32 {s(sT1)}, {s(sT1)}, {EF}
        v_lshrrev_b32 v4, 2, v0
        v_lshl_add_u32 v3, v4, 9, {s(sT1)}
        v_cmp_ne_u32 {s(sT2,2)}, {s(sG)}, v4
        v_cmp_gt_u32 vcc, 32, v0
        s_and_b64 vcc, vcc, {s(sT2,2)}
        s_and_b32 vcc_lo, vcc_lo, {s(sW0)}
        v_cndmask_b32 {v(vTrig)}, {v(vTrig)}, v3, vcc
        v_cndmask_b32 {v(vMy)}, 0, -1, vcc''')
    else:
        A(f'''v_and_b32 v3, 1, v0
        v_lshlrev_b32 v3, 12, v3
        v_bfe_u32 v5, v0, 2, 1
        v_lshl_add_u32 v3, v5, 13, v3
        v_bfe_u32 v4, v0, 1, 1
        v_lshl_add_u32 v3, v4, 14, v3
        s_lshl_b32 {s(sT1)}, {s(sG)}, 9
        s_add_u32 {s(sT1)}, {s(sT1)}, {EF}
        s_xor_b32 {s(sW0)}, {s(sW)}, 3
        s_or_b32 {s(sW0)}, {s(sW0)}, {s(sB)}
        s_cselect_b32 {s(sT1)}, {OOB}, {s(sT1)}
        s_cselect_b32 {s(sT2)}, {OOB}, 0
        s_add_u32 {s(sT2)}, {s(sT2)}, {GF}
        v_mov_b32 {v(vEo)}, {s(sT2)}
        v_add_u32 {v(vEf)}, {s(sT1)}, v3''')
        self.oob_unless(vEo, 'v_cmp_eq_u32 vcc, 0, v0')
        self.oob_unless(vEf, 'v_cmp_gt_u32 vcc, 8, v0')
        self.oob_unless(vEf, f'v_cmp_ne_u32 vcc, {s(sG)}, v0')
        A(f'''s_lshr_b32 {s(sT1)}, {s(sG)}, 2
        v_cmp_eq_u32 vcc, {s(sT1)}, v5
        v_cndmask_b32 {v(vEn)}, v9, {v(vEf)}, vcc
        v_cndmask_b32 {v(vEf)}, {v(vEf)}, v9, vcc
        v_and_b32 v3, 7, v0
        v_min_u32 v3, 5, v3
        v_bfe_u32 v4, v0, 3, 2
        v_lshlrev_b32 v4, 7, v4
        v_lshl_add_u32 v3, v3, 2, v4
        v_add_u32 {v(vBa)}, {BF + 32}, v3
        {'v_min_u32 v3, 39, v0' + chr(10) + 'v_lshlrev_b32 v3, 2, v3' + chr(10) + f'v_add_u32 {v(vBa)}, {AF}, v3' if o.af else ''}
        s_lshl_b32 {s(sT3)}, {s(sB)}, 1
        s_add_u32 {s(sT3)}, {s(sT3)}, {s(sW)}
        s_lshl_b32 {s(sT3)}, {s(sT3)}, 1
        s_sub_u32 {s(sT3)}, {s(sT3)}, 8''')
        self.out_addr(sT3, vOst, vOl, vOut, vOloc, sLo8, SEL2)
        A(f's_cmp_lg_u32 {s(sB)}, 0\ns_cselect_b64 vcc, -1, 0')
        for reg in (vOst, vOl, vOut, vOloc): A(f'v_cndmask_b32 {v(reg)}, v9, {v(reg)}, vcc')
    def sides():
        if QK:
            Lpf = A.uid('L_pf')
            A(f'v_mov_b32 v5, {PARF}')
            A.label(Lpf)
            A(f'buffer_load_dword v6, v5, {s(WS,4)}, {s(sXB)} offen sc1')
            self.side0()
            A(f'''v_readfirstlane_b32 {s(sT1)}, v6
            s_cmp_eq_u32 {s(sT1)}, 0
            s_cbranch_scc1 {Lpf}
            s_and_b32 {s(sT1)}, {s(sT1)}, 2
            s_lshl_b32 {s(sT1)}, {s(sT1)}, 12
            v_add_u32 {v(vPl0)}, {s(sT1)}, {v(vPl0)}
            v_add_u32 {v(vPl1)}, {s(sT1)}, {v(vPl1)}
            v_and_b32 v3, {s(sT0)}, {v(vMy)}
            v_xor_b32 {v(vTrig)}, v3, {v(vTrig)}''')
            if o.tl: A(f'v_writelane_b32 v255, {s(sT1)}, 20')
        else:
            self.side0()
            for reg in (vEf, vEn, vOst, vOl): A(f'v_xor_b32 {v(reg)}, {s(sT0)}, {v(reg)}')
    wdma(1); wdma(2)
    A(f's_mov_b32 {s(sXSeg)}, 0'); xdma_begin(LX0)
    for ln in range(10): xdma(ln)
    self.tl(5)
    waits = [30, 30, 30, 10]
    self.tl(6)
    for i in range(4):
        m, half = stages[i]
        A(f's_waitcnt vmcnt({waits[i]})\ns_barrier')
        for ks in range(10):
            for eh in range(2):
                A(f'ds_read_b64_tr_b16 {a(80*m + 4*(half*10+ks) + 2*eh, 2)}, {v(vWr + i%3)} offset:{ks*4096 + eh*512}')
        A('s_waitcnt lgkmcnt(0)')
        if i < 2: A('s_barrier')
        if i == 0: wdma(3)
        if i == 1:
            A(f's_mov_b32 {s(sXSeg)}, 40960'); xdma_begin(LX1)
            for ln in range(10): xdma(ln)
        self.tl(8 + i)

    XD = 3
    TD = o.edep if o.epos else 4
    def xrd1(ks, rt):
        A(f'ds_read_b128 {v(xf + 8*(ks%XD) + 4*rt, 4)}, {v(vXb1 if ks & 1 else vXb0)} offset:{(ks>>1)*4096 + rt*2048}')
    def xrd(ks):
        for rt in range(2): xrd1(ks, rt)
    def xstores():
        if o.x & 16: return
        for m in range(2): A(f'buffer_store_dwordx4 {v(pk+4*m,4)}, {v(vXst)}, {s(WS,4)}, {s((sX0, sX1)[m])} offen{ST}')
    def mem_dma():
        A(f'''buffer_load_dwordx4 {v(vMd4)}, {s(WS,4)}, {s(sCur)} offen sc1 lds
        buffer_load_dwordx4 {v(vMd4)}, {s(WS,4)}, {s(sCur)} offen offset:1024 sc1 lds
        buffer_load_dword {v(vMd1)}, {s(WS,4)}, {s(sCur)} offen offset:2048 sc1 lds
        buffer_load_dword {v(vMd1)}, {s(WS,4)}, {s(sCur)} offen offset:2304 sc1 lds''')
    trig = f'buffer_load_dword {v(vTrD)}, {v(vTrig)}, {s(WS,4)}, 0 offen sc1'
    def trig_load(): A(trig)
    def part_loads(cp, dst):
        A(f'''buffer_load_dwordx4 {v(PB+8*dst,4)}, {v(vPl0)}, {s(WS,4)}, {s(sPart)} offen sc1
        buffer_load_dwordx4 {v(PB+8*dst+4,4)}, {v(vPl1)}, {s(WS,4)}, {s(sPart)} offen sc1''')
    def red_wait():
        self.stamp(role, 't0')
        self.spin(trig, f'v_cmp_gt_u32 vcc, {s(sThr)}, {v(vTrD)}', TD, True, fast=o.fpoll & 2)
        A('s_barrier')
    def red_try(b, younger, Lfail):
        A(f'''s_waitcnt vmcnt({younger + 1})
        v_mfma_f32_16x16x32_bf16 {v(racc,4)}, {v(b,4)}, {v(SELB,4)}, 0
        s_waitcnt vmcnt({younger})
        v_mfma_f32_16x16x32_bf16 {v(racc,4)}, {v(b+4,4)}, {v(SELB,4)}, {v(racc,4)}
        v_pk_add_f32 {v(racc+4,2)}, {v(racc,2)}, {v(racc+2,2)}
        v_cmp_u_f32 vcc, {v(racc+4)}, {v(racc+5)}''')
        for q in range(2): A(f'v_cvt_pk_bf16_f32 {v(rp+q)}, {v(racc+2*q)}, {v(racc+2*q+1)}')
        if o.w1 & 2: A(f'v_cndmask_b32 {v(rp)}, {v(rp)}, {v(rp+1)}, s[58:59]')
        A(f's_cbranch_vccnz {Lfail}')
    def red_sum(order):
        Lp, Lc = A.uid('L_pp'), A.uid('L_pc')
        self.stamp(role, 'gi')
        red_try(PB, sum({'X': 2, 'g': 1}.get(x, 0) for x in order), Lp)
        A.label(Lc)
        A(f'buffer_store_dword {v(rp)}, {v(vMclr)}, {s(WS,4)}, {s(sCur)} offen{ST}' if o.w1 & 2 else f'buffer_store_dwordx2 {v(rp,2)}, {v(vMst)}, {s(WS,4)}, {s(sCur)} offen{ST}')
        self.stamp(role, 'mp')
        if o.dump:
            A(f'''s_and_b32 {s(sT1)}, {s(sG)}, 6
            s_mul_i32 {s(sT0)}, {s(sS)}, {2*MEM_SLOT}
            s_and_b32 {s(sT2)}, {s(sG)}, 1
            s_mul_i32 {s(sT2)}, {s(sT2)}, {MEM_SLOT}
            s_add_u32 {s(sT0)}, {s(sT0)}, {s(sT2)}
            s_add_u32 {s(sT0)}, {s(sT0)}, {DUMP + (2<<20) - 2*MEM_SLOT}
            s_cmp_eq_u32 {s(sT1)}, 0
            s_cselect_b32 {s(sT0)}, {s(sT0)}, {DUMP}
            buffer_store_dwordx2 {v(rp,2)}, {v(vMst)}, {s(WS,4)}, {s(sT0)} offen''')
        def cold():
            for k in range(2):
                b = PB + 8*k
                if k: A.label(f'{Lp}_1')
                part_loads(k ^ 1, k ^ 1)
                self.count(1 if k == 0 else 1000); self.budget()
                A(f'v_max_u32 {v(vMx)}, {v(b)}, {v(b+1)}')
                for i in range(1, 4): A(f'v_max3_u32 {v(vMx)}, {v(vMx)}, {v(b+2*i)}, {v(b+2*i+1)}')
                A(f'v_cmp_eq_u32 vcc, -1, {v(vMx)}\ns_cbranch_vccz {Lc}')
                red_try(PB + 8*(k ^ 1), 0, f'{Lp}_1' if k == 0 else Lp)
                A(f's_branch {Lc}')
        self.cold.append((Lp, cold))

    def fin_loads():
        A(f's_cmp_lt_i32 {s(sFinR)}, 0\ns_cselect_b32 {s(sFinL)}, {s(sXB)}, {s(sFinL)}')
        for k in range(2): A(f'buffer_load_dwordx4 {v(fin+4*k,4)}, {v(vOl)}, {s(WS,4)}, {s(sFinL)} offen offset:{1024*k} sc1')
    def fin_out():
        Lf = A.uid('L_fin')
        A(f's_cmp_lt_i32 {s(sFinR)}, 0\ns_cbranch_scc1 {Lf}')
        a0, a1 = [self.fin_rows(fin + 4*k, ft + 4*k, vOut, sFinR, sLo8, SEL2, 32*k) for k in range(2)]
        for x, y in zip(a0, a1): A(x); A(y)
        A.label(Lf)
    def forward(younger):
        Lf = A.uid('L_fw')
        A(f's_waitcnt vmcnt({younger})\ns_cmp_lt_i32 {s(sFinR)}, {-3*32*2560}\ns_cbranch_scc1 {Lf}c')
        A.label(Lf)
        for k in range(2): A(f'buffer_store_dwordx4 {v(fw+4*k,4)}, {v(vOst)}, {s(WS,4)}, {s(sFwS)} offen offset:{1024*k} sc1')
        def cold():
            for i in range(8): A(f'v_mov_b32 {v(fw+i)}, -1')
            A(f's_add_u32 {s(sFwS)}, {s(sFwS)}, {7*OUTP_SLOT}')
            for k in range(2): A(f'buffer_store_dwordx4 {v(fw+4*k,4)}, {v(vOst)}, {s(WS,4)}, {s(sFwS)} offen offset:{1024*k} sc1')
            A(f's_sub_u32 {s(sFwS)}, {s(sFwS)}, {3*OUTP_SLOT}\ns_branch {Lf}')
        self.cold.append((Lf + 'c', cold))

    def gemm(dma, fill=(), loop=False, xflag=False, ann=False):
        fill = list(fill)
        if not loop: xrd(0); xrd(1)
        vm = []
        st = {'flag': not (loop and QK), 'ta': (200 if QK else 64) if loop else 0, 'n': 0, 'clr': 0}
        def clr(reg, off):
            A(f'buffer_store_dword {v(vNeg)}, {v(reg)}, {s(WS,4)}, {s(sClr)} offen offset:{off}{ST}'); st['clr'] -= 1
        if loop and not QK and not ann:
            vm.append((128, lambda: [A(f'buffer_load_dwordx4 {v(fw+4*k,4)}, {v(vOloc)}, {s(WS,4)}, {s(sFwL)} offen offset:{1024*k} sc1') for k in range(2)]))
            vm.append((128, fin_loads))
            vm.append((128, lambda: [A(f'buffer_load_dwordx4 v[248:251], {v(vXp)}, {s(R3,4)}, {s(sXp)} offen offset:{1024*k}') for k in range(2)]))
            vm.append((128, lambda: forward(4)))
        if loop:
            for reg, off in (((vSclr, 0), (vMclr, 0), (vSclr, 256)) if QK else ((vVclr, 0), (vVclr, 1024))):
                vm.append((24, lambda reg=reg, off=off: clr(reg, off))); st['clr'] += 1
        if dma:
            xdma_begin(s(sXbuf))
            vm += [(64, lambda k=k: xdma(k) if not (loop and o.x & 256) else None) for k in range(10)]
        if xflag: vm.insert(5, (24, lambda: A(f's_waitcnt vmcnt(5)\nbuffer_store_dword {v(vFl)}, {v(vXF)}, {s(WS,4)}, {s(sXB)} offen{ST}')))
        if loop and QK:
            vm.insert(o.fp, (24, lambda: (A(f's_waitcnt vmcnt({o.fp})\nbuffer_store_dword {v(vFl)}, {v(vKF)}, {s(WS,4)}, {s(sXB)} offen{ST}'), st.update(flag=True))))
        ev = []; order = []
        if loop and QK:
            ev = [(o.k1 - d, trig_load) for d in range(o.esp*(TD - 1), 0, -o.esp)] + [(o.k1, red_wait)]
            half = lambda h: A(f'buffer_load_dwordx4 {v(PB+4*h,4)}, {v((vPl0, vPl1)[h])}, {s(WS,4)}, {s(sPart)} offen sc1')
            ev.append((o.k1 + o.ka, lambda: half(0)))
            ev.append((o.k1 + o.ka + o.ksplit, lambda: (half(1), self.stamp(role, 't1'), order.append('A'))))
            assert [e[0] for e in ev] == sorted(e[0] for e in ev)
        if ann:
            ev = [(o.epos + d, lambda reg=reg: A(f'buffer_store_dword {v(vFl)}, {v(reg)}, {s(WS,4)}, 0 offen sc1')) for reg, d in ((vEf, 0), (vEn, o.enear))]
            if o.eown: ev.append((o.epos + o.eown, lambda: A(f'buffer_store_dword {v(vFl)}, {v(vEo)}, {s(WS,4)}, {s(sXB)} offen{ST}')))
        def events(n):
            k = 0
            while ev and ev[0][0] <= n:
                if ev[0][1] is red_wait: assert not vm and not fill, (len(vm), len(fill))
                ev.pop(0)[1](); k += 1
            return k
        def mf(m, ks, rt):
            d = v(xacc + 8*m + 4*rt, 4)
            A('s_nop 3' if (loop and o.x & 64 and ks) else f'v_mfma_f32_16x16x32_bf16 {d}, {a(80*m + 4*ks, 4)}, {v(xf + 8*(ks%XD) + 4*rt, 4)}, {d if ks else 0}')
            st['n'] += 1
            return 2 * events(st['n'])
        A('s_waitcnt lgkmcnt(2)')
        for ks in range(18):
            for n in range(4):
                used = mf(n // 2, ks, n & 1)
                if n < 2 and not (loop and o.x & 128 and ks > 0): xrd1(ks + 2, n); used += 1
                if n == 2 and vm and not (ann and o.eown and ev) and st['ta'] <= 16 * st['n'] + ((o.tslack if QK else o.tslackv) if loop else 0):
                    c, f = vm.pop(0); f(); st['ta'] += c; used += 2
                    if c < 64 and vm and vm[0][0] < 64 and st['clr']: c, f = vm.pop(0); f(); st['ta'] += c
                if n == 3: A(f's_waitcnt lgkmcnt({2 if ks < 17 else 0})'); used += 1
                for _ in range(o.fd - used):
                    if fill: A(fill.pop(0))
        assert not fill and (not QK or not vm)
        while vm: vm.pop(0)[1]()
        def epi(m):
            x = []
            for rt in range(2):
                for i in range(2):
                    b = xacc + 8*m + 4*rt + 2*i
                    x.append(f'v_cvt_pk_bf16_f32 {v(pk + 4*m + 2*rt + i)}, {v(b)}, {v(b+1)}')
            x.append(f'v_permlane16_swap_b32 {v(pk+4*m)}, {v(pk+4*m+2)}')
            x.append(f'v_permlane16_swap_b32 {v(pk+4*m+1)}, {v(pk+4*m+3)}')
            if m == 1 and QK: x.append(f'ds_write_b128 {v(vKxWs)}, {v(pk+4,4)}')
            return x
        tog = [f'v_add_u32 {v(vXb0)}, {s(sDelta)}, {v(vXb0)}', f'v_add_u32 {v(vXb1)}, {s(sDelta)}, {v(vXb1)}',
               f's_sub_u32 {s(sXbuf)}, {s(sXbuf)}, {s(sDelta)}', f's_sub_u32 {s(sDelta)}, 0, {s(sDelta)}']
        for m in range(2):
            for ks in (18, 19):
                for rt in range(2):
                    mf(m, ks, rt)
                    if tog: A(tog.pop(0))
        for x in epi(0) + epi(1): A(x)
        if loop and QK:
            while 'A' not in order: ev.pop(0)[1]()
            events(81)
            xstores(); order.append('X')
            A(f's_mov_b32 m0, {s(sMm0)}')
            events(999)
            red_sum(order)
            A('s_barrier')
        else:
            xstores()
            if loop and not ann: A('s_waitcnt vmcnt(18)'); fin_out()
    def set_x(seg):
        A(f'''s_add_u32 {s(sX0)}, {s(sXB)}, {S8B + seg*S8 + QX if QK else seg*S4 + VX}
        s_add_u32 {s(sX1)}, {s(sX0)}, {s(sD1)}
        s_mov_b32 {s(sXSeg)}, {40960*(seg+1)}''')
        if QK: A(f'v_add_u32 {v(vKxWs)}, {4096*seg}, {v(vKxW)}')
    L = lambda txt: [x.strip() for x in txt.split('\n') if x.strip()]
    setup = L(f'''s_and_b32 {s(sF0)}, {s(sS)}, 3
    s_mul_i32 {s(sPart)}, {s(sF0)}, {PART_SLOT}''') if QK else []
    setup += L(f'''s_add_u32 {s(sF1)}, {s(sS)}, {LA}
    s_and_b32 {s(sF0)}, {s(sF1)}, 3
    s_mul_i32 {s(sF0)}, {s(sF0)}, {S8 if QK else S4}
    s_add_u32 {s(sF0)}, {s(sF0)}, {S8B + QX if QK else VX}
    s_add_u32 {s(sX0)}, {s(sXB)}, {s(sF0)}
    s_add_u32 {s(sX1)}, {s(sX0)}, {s(sD1)}''')
    if QK: setup += L(f'''s_and_b32 {s(sF0)}, {s(sF1)}, 3
    s_lshl_b32 {s(sF0)}, {s(sF0)}, 12
    v_add_u32 {v(vKxWs)}, {s(sF0)}, {v(vKxW)}''')
    setup += L(f'''s_add_u32 {s(sS)}, {s(sS)}, 1
    s_mov_b32 {s(sMark)}, 0
    s_and_b32 {s(sF0)}, {s(sS)}, 3
    s_mul_i32 {s(sF1)}, {s(sF0)}, {S4}
    s_add_u32 {s(sCur)}, {s(sXB)}, {s(sF1)}
''')
    if QK: setup += L(f'''s_and_b32 {s(sThr)}, {s(sS)}, {s(sW0)}
    s_lshl_b32 {s(sF0)}, {s(sF0)}, 12
    v_add_u32 {v(vKxRs)}, {s(sF0)}, {v(vKxR)}
    s_add_u32 {s(sKmOff)}, {s(sCur)}, {KM}''')
    late = L(f'''s_add_u32 {s(sF0)}, {s(sS)}, 2
    s_and_b32 {s(sF0)}, {s(sF0)}, 3
    s_mul_i32 {s(sF0)}, {s(sF0)}, {S4}
    s_add_u32 {s(sClr)}, {s(sXB)}, {s(sF0)}
    s_add_u32 {s(sF0)}, {s(sS)}, {LA + 1}
    s_min_u32 {s(sF0)}, {s(sF0)}, 63
    s_mul_i32 {s(sXSeg)}, {s(sF0)}, 40960
    s_add_u32 {s(sF1)}, {s(sS)}, 1
    v_mov_b32 {v(vFl)}, {s(sF1)}
    s_mov_b32 m0, {s(sMm0)}''') + [f'v_mov_b32 {v(acc+i)}, 0' for i in range(8)]
    if not QK: late += L(f'''s_add_u32 {s(sF0)}, {s(sS)}, 6
    s_min_u32 {s(sF0)}, {s(sF0)}, 63
    s_mul_i32 {s(sXp)}, {s(sF0)}, 40960
    s_and_b32 {s(sF0)}, {s(sS)}, 3
    s_mul_i32 {s(sF1)}, {s(sF0)}, {OL_SLOT}
    s_add_u32 {s(sFwL)}, {s(sF1)}, {s(sXB)}
    s_mul_i32 {s(sF1)}, {s(sF0)}, {OUTP_SLOT}
    s_add_u32 {s(sFwS)}, {s(sF1)}, {OUTP}
    s_xor_b32 {s(sF0)}, {s(sF0)}, 2
    s_mul_i32 {s(sF1)}, {s(sF0)}, {OUTP_SLOT}
    s_add_u32 {s(sFinL)}, {s(sF1)}, {OUTP}
    s_sub_u32 {s(sF1)}, {s(sS)}, 6
    s_mul_i32 {s(sFinR)}, {s(sF1)}, {32*2560}''')

    A(f's_mov_b32 {s(sDelta)}, 40960\ns_mov_b32 {s(sXbuf)}, {LX1}\ns_mov_b32 {s(sS)}, -1')
    set_x(0)
    A(f'v_mov_b32 v1, {self.GO + (4 if self.slow else 0)}\nbuffer_load_dword v2, v1, {s(DBG,4)}, 0 offen sc1')
    gemm(False)
    self.tl(2); self.hd(8)
    self.gwait(2)
    self.tl(3)
    for seg in range(1, LA):
        A('s_waitcnt vmcnt(2) lgkmcnt(0)\ns_barrier')
        set_x(seg)
        if not QK: A(f'v_mov_b32 {v(vFl)}, {seg}')
        gemm(True, setup if seg == LA - 1 else (), xflag=not QK)
    if not QK:
        for x in late: A(x)
        A(f's_branch L_{role}_first{t}')
    if QK: A(f's_mov_b32 m0, {s(sMm0)}'); self.hd(9)
    self.tl(13)
    LP = f'L_{role}_loop{t}'
    A.label(LP)
    if not QK:
        for x in late: A(x)
        if o.vgate:
            Lv = A.uid('L_vg')
            A.label(Lv); A(f'buffer_load_dword {v(vTrD)}, {v(vTrig)}, {s(WS,4)}, {s(sXB)} offen sc1'); self.budget()
            A(f's_waitcnt vmcnt(0)\nv_cmp_gt_u32 vcc, {s(sS)}, {v(vTrD)}\ns_cbranch_vccnz {Lv}')
    if not QK: A.label(f'L_{role}_first{t}')
    Lredo, Lpoll, Lnan, Lcont = A.uid('L_redo'), A.uid('L_poll'), A.uid('L_nan'), A.uid('L_cont')
    if QK:
        late += [f'ds_read_b128 {v(Kx,4)}, {v(vKxRs)}', f'ds_read_b128 {v(Kx+4,4)}, {v(vKxRs)} offset:1024']
        for x in late[:o.nl]: A(x)
        for _ in range(o.dly): A('s_nop 3')
    mem_dma()
    if QK:
        for x in late[o.nl:]: A(x)
    self.stamp(role, 'p0')
    md = o.mq if QK else o.mv
    chk = lambda n, tgt: A(f'''s_waitcnt vmcnt({n})
    ds_read_b32 {v(vPr)}, {v(vProbe)}
    s_waitcnt lgkmcnt(0)
    v_cmp_eq_u32 vcc, -1, {v(vPr)}
    s_cbranch_vccnz {tgt}''')
    def ploop(n):
        A.label(Lpoll); mem_dma(); self.budget(); self.count(1, 'mem'); chk(n, Lpoll)
    if md == 2: ploop(4)
    else:
        chk(0, Lpoll + 'c'); A.label(Lpoll + 'x')
        self.cold.append((Lpoll + 'c', lambda: (mem_dma() if md == 3 else None, ploop(4 if md == 3 else 0), A(f's_branch {Lpoll}x'))))
    self.stamp(role, 'p1')
    A('s_barrier')
    self.stamp(role, 'b1'); self.tl0(14); self.tl0(15, 1)
    def rdA(tt):
        A(f'ds_read_b128 {v(Aop+4*tt,4)}, {v(vA0)} offset:{tt*1024}')
    def sm(m, tt):
        A(f'v_smfmac_f32_16x16x64_bf16 {v(acc+4*m,4)}, {v(Aop+4*tt,4)}, {a(80*m+8*tt,8)}, {v(vIdx)}')
    NI = o.ni if QK else 5
    seq = [(m, tt) for tt in range(NI) for m in range(2)] + [(0, tt) for tt in range(NI, 10)] + [(1, tt) for tt in range(NI, 10)]
    e0 = 10 + NI
    PRE = o.pre0 if QK else 4; issued = PRE; waited = -1
    for tt in range(PRE): rdA(tt)
    bpos = o.bpos if QK else o.bposv
    bfl = lambda off=0: A(f'buffer_store_dword {v(vFl)}, {v(vBF)}, {s(WS,4)}, {s(sXB)} offen offset:{off}{ST}')
    def zrd(u): A(f'ds_read_b64_tr_b16 {v(Z+4*u,2)}, {v(vTR0)} offset:{u*1024}\nds_read_b64_tr_b16 {v(Z+4*u+2,2)}, {v(vTR1)} offset:{u*1024}')
    def scores(src, y=0):
        A(f'''s_waitcnt lgkmcnt({2+y})
        v_mfma_f32_16x16x32_bf16 {v(S,4)}, {v(src,4)}, {v(Z,4)}, 0
        s_waitcnt lgkmcnt({y})
        v_mfma_f32_16x16x32_bf16 {v(S,4)}, {v(src+4,4)}, {v(Z+4,4)}, {v(S,4)}''')
    vst = lambda m: A(f'buffer_store_dword {v(tq+m)}, {v(vVMst)}, {s(WS,4)}, {s(sCur)} offen offset:{1024*m}{ST}')
    cvt = lambda m: A(f'v_cvt_pk_bf16_f32 {v(tq+m)}, {v(acc+4*m)}, {v(acc+4*m+1)}')
    cmpu = lambda: A(f'v_cmp_u_f32 vcc, {v(acc)}, {v(acc+1)}')
    brn = lambda: A(f's_cbranch_vccnz {Lnan}\n{Lcont}:')
    side = {e0 + 2: [lambda: A(f'v_add_f32 {v(acc)}, {v(acc)}, {v(acc+2)}\nv_add_f32 {v(acc+1)}, {v(acc+1)}, {v(acc+3)}')]}
    if QK:
        side.update({e0 + 3: [lambda: cvt(0), lambda: A(f'ds_write_b32 {v(vTW)}, {v(tq)}')], e0 + 4: [cmpu], e0 + 6: [brn],
                     e0 + 7: [lambda: A('s_waitcnt lgkmcnt(0)\ns_barrier'), lambda: self.stamp(role, 'ba'), lambda: zrd(0)], e0 + 8: [lambda: zrd(1)]})
    else:
        side.update({e0 + 3: [cmpu, lambda: cvt(0)], e0 + 5: [brn, lambda: vst(0)]})
    for n, (m, tt) in enumerate(seq):
        if n == e0: self.stamp(role, 'qe'); A.label(Lredo)
        if n == 1: self.stamp(role, 's1')
        if tt > waited: A(f's_waitcnt lgkmcnt({issued - 1 - tt})'); waited = tt
        sm(m, tt)
        if issued < 10: rdA(issued); issued += 1
        if n == bpos: bfl()
        for f in side.pop(n, []): f()
    for n in sorted(side):
        for f in side[n]: f()
    def post1():
        A(f'v_pk_add_f32 {v(acc+4,2)}, {v(acc+4,2)}, {v(acc+6,2)}')
        cvt(1)
    if QK:
        Lw0, Lw3, Ljoin = A.uid('L_w0'), A.uid('L_w3'), A.uid('L_join')
        A(f'''s_cmp_eq_u32 {s(sW)}, 0
        s_cbranch_scc1 {Lw0}
        s_cmp_eq_u32 {s(sW)}, 3
        s_cbranch_scc1 {Lw3}''')
        def tphase(wave):
            xs = lambda: (A(f'buffer_store_dwordx4 {v(S,4)}, {v(vSCst)}, {s(WS,4)}, {s(sCur)} offen{ST}'), self.stamp(role, 'sc'))
            if wave == 1 and o.xo == 2: scores(Kx)
            post1()
            A(f'ds_write_b32 {v(vTW)}, {v(tq+1)} offset:4')
            if wave == 1 and o.xo < 2: scores(Kx, 1)
            if wave == 1 and o.xo: xs()
            A('s_waitcnt lgkmcnt(0)\ns_barrier')
            if wave == 1 and not o.xo: xs()
            self.stamp(role, 'b2')
            if wave != 1: zrd(0); zrd(1)
            if wave == 3:
                if not o.af: bfl(32)
                A('s_waitcnt lgkmcnt(0)')
                xrd(0); xrd(1)
                A(f'''s_waitcnt lgkmcnt(0)
                buffer_store_dwordx4 {v(Z,4)}, {v(vKMst)}, {s(WS,4)}, {s(sKmOff)} offen{ST}
                buffer_store_dwordx4 {v(Z+4,4)}, {v(vKMst)}, {s(WS,4)}, {s(sKmOff)} offen offset:512{ST}''')
            else:
                if wave == 0: scores(Z)
                xrd(0); xrd(1)
                if wave == 0:
                    A(f'buffer_store_dword {v(S+2)}, {v(vSCst)}, {s(WS,4)}, {s(sCur)} offen{ST}')
                    A(f'buffer_store_dword {v(S+3)}, {v(vSCst)}, {s(WS,4)}, {s(sCur)} offen offset:8{ST}')
            if wave != 1: self.stamp(role, 'sc')
        tphase(1); A(f's_branch {Ljoin}')
        A.label(Lw0); tphase(0); A(f's_branch {Ljoin}')
        A.label(Lw3); tphase(3)
        A.label(Ljoin)
    else:
        post1(); vst(1)
        self.stamp(role, 'vm')
        if not o.af: bfl(32)
        xrd(0); xrd(1)
    Lend = A.uid('L_end')
    A(f's_cmp_eq_u32 {s(sS)}, {o.nsteps - 1}\ns_cbranch_scc1 {Lend}')
    Ls = A.uid('L_sd')
    A(f's_cmp_eq_u32 {s(sS)}, 0\ns_cbranch_scc1 {Ls}c\n{Ls}:')
    self.cold.append((Ls + 'c', lambda: (sides(), A(f's_branch {Ls}'))))
    if QK: self.tr_flush(role, 1)
    if QK and o.hd >= 14 and not self.slow:
        Lh = A.uid('L_h'); A(f's_cmp_lg_u32 {s(sS)}, {o.hd - 14}\ns_cbranch_scc1 {Lh}'); self.hd(o.hd); A.label(Lh)
    if not QK:
        La = A.uid('L_an'); bl = f'buffer_load_dword {v(vTrD)}, {v(vBa)}, {s(WS,4)}, {s(sXB)} offen sc1'
        A(f's_cmp_eq_u32 {s(sB)}, 0\ns_cbranch_scc1 {La}\ns_barrier')
        def announcer():
            A(f's_cmp_lg_u32 {s(sW0)}, 0\ns_cbranch_scc1 {La}x')
            self.spin(bl, f'v_cmp_ge_u32 vcc, {s(sS)}, {v(vTrD)}', 7 if o.fpoll & 4 else 4, fast=o.fpoll & 4)
            A.label(La + 'x')
            A('s_barrier')
            gemm(True, setup, True, ann=True)
            self.stamp(role, 'ge'); self.tr_flush(role)
            A(f's_branch {LP}')
        self.cold.append((La, announcer))
    gemm(True, setup, True)
    self.stamp(role, 'ge')
    if not QK: self.tr_flush(role)
    A(f's_branch {LP}')
    A.label(Lend)
    if not QK: fin_loads()
    A('s_waitcnt vmcnt(0) lgkmcnt(0)')
    if not QK: fin_out(); A('s_waitcnt vmcnt(0)')
    if QK:
        A(f'buffer_store_dword {v(vFl)}, {v(vKF)}, {s(WS,4)}, {s(sXB)} offen{ST}')
        self.hd(10)
    if not QK and o.wb & 2:
        Lw = A.uid('L_wb')
        A(f's_cmp_lg_u32 {s(sW0)}, 0\ns_cbranch_scc1 {Lw}\nbuffer_wbl2 sc1\ns_waitcnt vmcnt(0)\n{Lw}:')
    self.stamp_out(role); self.tl(7, True)
    A('s_endpgm')
    A.label(Lnan)
    A(f's_cmp_eq_u32 {s(sMark)}, 1\ns_cbranch_scc1 {Lcont}\nv_lshlrev_b32 v1, 4, v0')
    A.label(Lnan + 'r')
    A(f's_mov_b32 {s(sT0)}, {s(sCur)}\nv_mov_b32 v2, 0')
    for k in range(10):
        A(f'buffer_load_dwordx4 {v(Aop+4*k,4)}, v1, {s(WS,4)}, {s(sT0)} offen sc1\ns_add_u32 {s(sT0)}, {s(sT0)}, 1024')
    self.budget()
    A('s_waitcnt vmcnt(0) lgkmcnt(0)')
    for k in range(20): A(f'v_max3_u32 v2, v2, {v(Aop+2*k)}, {v(Aop+2*k+1)}')
    A(f'v_cmp_eq_u32 vcc, -1, v2\ns_cbranch_vccnz {Lnan}r\ns_mov_b32 {s(sMark)}, 1')
    for i in range(8): A(f'v_mov_b32 {v(acc+i)}, 0')
    for m, tt in seq[:e0]: sm(m, tt)
    A(f's_branch {Lredo}')
```

```python
from asmlib import v, a, s
from gen import *

def wo(self):
    A = self.A; t = self.tag; ST = self.st; o = self.o
    LY = 0; YS = 24576; LPX = 98304; LE = 122880; ES = 1152; LVM = LE + 8192
    r = RA(10, 248)
    (vIdxU, vIdxP, vL16, vL4, vPst0, vOloc, vVr0, vMst, vEW, vER, vYW, vYW2, vYR, vYR2, vYWs, vYW2s, vYRs, vYR2s,
     vPXR, vPXRs, vOst, vOl, vOut, vFlA, vFlT, vFlTs, vFlD, vH16, vHsc, vHscm, vHvx, vMx, vMy, vPk, vHvm, vEf, vPclr, vYUs) = [r() for _ in range(38)]
    Y = r(32, 4); PA = r(4, 4); ONES = r(8, 4); SX = r(12, 4); SM = r(4, 2); SELB = r(6, 2); SELA = SELB + 2; vTfD = SM + 3; Dsum = r(4, 4); D = r(16, 4)
    VMo = r(12, 4); Yacc = r(16, 4); PB = r(8, 4); acc = r(8, 4); vM0 = PB; vN4 = PB + 4
    Pop = r(24, 4); Yop = r(16, 4); oacc = r(8, 4); fin = r(8, 4); ep = r(4, 2); Eop = PA; cc2 = r(2, 2); mm2 = r(2, 2); vTf = r(); vBFa = r(); vVr1 = vL4
    Uacc = Yacc
    WOr = 0; VXs = 96
    sJ, sPartOff, sPartClr, sCur, sNext, sVx0, sVx1, sVx2, sPxOff, sOst, sOst2, sOl, sOutRow, sVmM0, sPxM0, sF0, sF1, sPartClr2 = range(40, 58); sLo8 = 58; sCl = 60; SEL2 = 144
    A.label(f'L_wo{t}')
    self.srd(R0, P_WO, 6144 * 640 * 2); self.srd(R1, P_M0, 8 * 640 * 2)
    A(f's_sub_u32 {s(sJ)}, {s(sR)}, {R_WO}')
    self.lanes()
    vWdma0, vWdma1, vWr = Pop, Pop + 1, Pop + 2
    A(f'''v_lshrrev_b32 v3, 3, v0
    v_and_b32 v4, 7, v0
    v_and_b32 v6, 2, v3
    v_xor_b32 v6, v6, v4
    v_lshlrev_b32 v6, 4, v6
    v_mul_u32_u24 v7, 1280, v3
    s_lshl_b32 {s(sT0)}, {s(sG)}, 2
    s_add_u32 {s(sT0)}, {s(sT0)}, {s(sW)}
    s_mul_i32 {s(sT0)}, {s(sT0)}, {192*1280}
    s_lshl_b32 {s(sT1)}, {s(sJ)}, 7
    s_add_u32 {s(sT0)}, {s(sT0)}, {s(sT1)}
    v_add3_u32 {v(vWdma0)}, v6, v7, {s(sT0)}
    v_xor_b32 {v(vWdma1)}, 64, {v(vWdma0)}''')
    A(f'''s_mul_i32 {s(sT0)}, {s(sJ)}, {PBLK}
    {'s_lshl_b32 %s, %s, 11' % (s(sT1), s(sW)) if not o.lay else 's_and_b32 %s, %s, 1' % (s(sT1), s(sW)) + chr(10) + 's_mul_i32 %s, %s, %d' % (s(sT1), s(sT1), o.lay & 0xffff) + chr(10) + 's_add_u32 %s, %s, %s' % (s(sT0), s(sT0), s(sT1)) + chr(10) + 's_lshr_b32 %s, %s, 1' % (s(sT1), s(sW)) + chr(10) + 's_mul_i32 %s, %s, %d' % (s(sT1), s(sT1), o.lay >> 16)}
    s_add_u32 {s(sT0)}, {s(sT0)}, {s(sT1)}
    s_lshl_b32 {s(sT1)}, {s(sG)}, 8
    s_add_u32 {s(sT0)}, {s(sT0)}, {s(sT1)}
    v_and_b32 v7, 7, v1
    v_lshlrev_b32 v7, 3, v7
    v_lshl_add_u32 v7, v2, 6, v7
    v_lshrrev_b32 v6, 3, v1
    v_lshl_add_u32 v7, v6, 13, v7
    v_add_u32 {v(vPst0)}, {s(sT0)}, v7
    v_lshlrev_b32 v6, 4, v1
    v_lshlrev_b32 {v(vL16)}, 4, v0
    v_lshlrev_b32 {v(vL4)}, 2, v0
    v_add_u32 {v(vPclr)}, {s(sT0)}, {v(vL4)}''')
    A(f'''s_lshl_b32 {s(sT2)}, {s(sJ)}, 7
    s_lshl_b32 {s(sT3)}, {s(sW)}, 2
    s_add_u32 {s(sT2)}, {s(sT2)}, {s(sT3)}
    s_add_u32 {s(sT2)}, {s(sT2)}, {TF}
    v_mov_b32 {v(vTf)}, {s(sT2)}''')
    self.oob_unless(vTf, 'v_cmp_eq_u32 vcc, 0, v0')
    A(f'''s_lshl_b32 {s(sT2)}, {s(sJ)}, 4
    s_add_u32 {s(sT2)}, {s(sT2)}, {s(sT3)}
    s_add_u32 {s(sT2)}, {s(sT2)}, {AF}
    v_mov_b32 {v(vEf)}, {s(sT2)}
    v_cndmask_b32 {v(vEf)}, v9, {v(vEf)}, vcc''')
    A(f'''s_lshl_b32 {s(sT2)}, {s(sW)}, 7
    s_add_u32 {s(sT2)}, {s(sT2)}, {BF}
    v_min_u32 v3, 5, v0
    v_lshl_add_u32 {v(vBFa)}, v3, 2, {s(sT2)}''')
    A(f'''s_lshl_b32 {s(sT0)}, {s(sJ)}, 2
    s_add_u32 {s(sT0)}, {s(sT0)}, {s(sW)}     ; tile
    s_lshl_b32 {s(sT1)}, {s(sT0)}, 8
    v_add_u32 {v(vMst)}, {s(sT1)}, v6''')
    self.oob_unless(vMst, 'v_cmp_eq_u32 vcc, 0, v2')
    A(f'''v_lshrrev_b32 v3, 2, v1
    v_and_b32 v7, 1, v1
    v_lshl_or_b32 v4, v3, 1, v7                ; row
    v_mul_u32_u24 v4, 1280, v4
    v_and_b32 v5, 2, v1
    v_lshl_add_u32 v4, v5, 1, v4
    s_lshl_b32 {s(sT1)}, {s(sT0)}, 5
    v_add_u32 v4, {s(sT1)}, v4
    v_lshlrev_b32 v6, 6, v3
    v_lshl_add_u32 v6, v7, 5, v6
    v_lshl_add_u32 v6, v2, 3, v6
    v_lshl_add_u32 v6, v5, 1, v6               ; Q*64 + j*32 + g*8 + kh*4
    s_mul_i32 {s(sT2)}, {s(sW)}, {ES}
    s_add_u32 {s(sT2)}, {s(sT2)}, {LE}
    v_add_u32 {v(vEW)}, {s(sT2)}, v6''')
    for q in range(4):
        A(f'buffer_load_dword {v(vM0+q)}, v4, {s(R1,4)}, 0 offen offset:{8*q}')
    for q in range(4): A(f'v_mov_b32 {v(vN4+q)}, -1')
    A(f's_mul_i32 {s(sT0)}, {s(sW)}, {YS}\ns_mov_b32 m0, {s(sT0)}\ns_mov_b32 {s(sT1)}, 0')
    for k in range(24):
        A(f'buffer_load_dwordx4 {v(vWdma1 if k & 1 else vWdma0)}, {s(R0,4)}, {s(sT1)} offen{" nt" if o.nt & 4 else ""} lds')
        if k < 23: A(f's_add_u32 m0, m0, 1024\ns_add_u32 {s(sT1)}, {s(sT1)}, {8*1280}')
    A('s_waitcnt vmcnt(24)')
    for q in range(4): A(f'v_min_u32 {v(vM0+q)}, -2, {v(vM0+q)}')
    A(f'''v_and_b32 v7, 2, v1
    v_cmp_ne_u32 vcc, 0, v7                    ; half
    v_mov_b32 v5, 0x4444
    v_mov_b32 v6, 0xeeee
    v_cndmask_b32 {v(vIdxU)}, v5, v6, vcc
    v_mov_b32 v5, 0xe484
    v_mov_b32 v6, 0xee9e
    v_cndmask_b32 v7, v5, v6, vcc
    v_mov_b32 v5, 0x84e4
    v_mov_b32 v6, 0x9eee
    v_cndmask_b32 v8, v5, v6, vcc
    v_cmp_gt_u32 vcc, 2, v2
    v_cndmask_b32 {v(vIdxP)}, v8, v7, vcc''')
    for i in range(8): A(f'v_mov_b32 {v(ONES+i)}, {0 if i in (3,7) else 0x3f803f80}')
    for ct in range(4): A(f'v_mov_b32 {v(Y+8*ct+3)}, 0\nv_mov_b32 {v(Y+8*ct+7)}, 0')
    for hb in range(2): A(f'v_mov_b32 {v(Yop+8*hb+6)}, 0\nv_mov_b32 {v(Yop+8*hb+7)}, 0')
    self.sel_consts(SELB, 1 if o.w1 & 1 else 0)
    A(f's_mov_b32 s60, 0xaaaaaaaa\ns_mov_b32 s61, 0xaaaaaaaa')
    if o.w1 & 1: A(f'v_add_u32 {v(vPst0)}, 8192, {v(vPclr)}')
    A(f'''v_mov_b32 {v(cc2)}, {f32(CSM)}
    v_mov_b32 {v(cc2+1)}, {f32(CSM)}
    s_lshl_b32 {s(sT0)}, {s(sW)}, 8
    s_add_u32 {s(sT0)}, {s(sT0)}, {LE}
    v_mul_u32_u24 v6, {ES}, v2
    v_lshl_add_u32 v6, v1, 3, v6
    v_add_u32 {v(vER)}, {s(sT0)}, v6
    s_mul_i32 {s(sT0)}, {s(sW)}, 1536
    v_add_u32 {v(vYW)}, {s(sT0)}, {v(vL16)}
    s_add_u32 {s(sT0)}, {s(sT0)}, 1024
    v_lshl_add_u32 {v(vYW2)}, v0, 3, {s(sT0)}
    s_mul_i32 {s(sT0)}, {s(sW)}, 6144
    v_add_u32 {v(vYR)}, {s(sT0)}, {v(vL16)}
    s_add_u32 {s(sT0)}, {s(sT0)}, 1024
    v_lshl_add_u32 {v(vYR2)}, v0, 3, {s(sT0)}
    v_add_u32 {v(vPXR)}, {LPX}, {v(vL16)}
    s_mul_i32 {s(sT0)}, {s(sW)}, 3072
    v_add_u32 {v(vH16)}, {s(sT0)}, {v(vL16)}
    v_add_u32 {v(vHvm)}, {VM}, {v(vH16)}
    s_add_u32 {s(sPxM0)}, {s(sT0)}, {LPX}
    s_mul_i32 {s(sT0)}, {s(sW)}, 3840
    s_add_u32 {s(sT0)}, {s(sT0)}, {SC}
    v_add_u32 {v(vHsc)}, {s(sT0)}, {v(vL16)}
    s_add_u32 {s(sT0)}, {s(sT0)}, 1024
    v_add_u32 {v(vHscm)}, {s(sT0)}, {v(vL4)}
    s_mul_i32 {s(sT0)}, {s(sW)}, 12288
    v_add_u32 {v(vHvx)}, {s(sT0)}, {v(vL16)}
    s_lshl_b32 {s(sT3)}, {s(sJ)}, 2
    s_add_u32 {s(sT3)}, {s(sT3)}, {s(sW)}''')
    self.out_addr(sT3, vOst, vOl, vOut, vOloc, sLo8, SEL2)
    A(f'''s_lshl_b32 {s(sT0)}, {s(sW)}, 7
    v_add_u32 v5, {s(sT0)}, {v(vL4)}
    v_add_u32 v6, {XF}, v5
    v_add_u32 v7, {PF - 48}, v5
    v_cmp_gt_u32 vcc, 12, v0
    v_cndmask_b32 {v(vFlA)}, v7, v6, vcc
    v_mov_b32 v5, -2
    v_cndmask_b32 {v(vFlT)}, v5, 3, vcc''')
    self.oob_unless(vFlA, 'v_cmp_gt_u32 vcc, 14, v0')
    A(f'v_mov_b32 v5, -1000\nv_cndmask_b32 {v(vFlT)}, v5, {v(vFlT)}, vcc')
    A(f'''v_and_b32 v4, 3, v1
    v_lshlrev_b32 v6, 6, v4
    v_lshl_add_u32 v6, v3, 3, v6
    v_lshl_add_u32 v6, v2, 8, v6
    v_and_b32 v5, 1, v2
    v_lshl_add_u32 v6, v5, 5, v6
    s_mul_i32 {s(sT0)}, {s(sW)}, 3072
    s_add_u32 {s(sVmM0)}, {s(sT0)}, {LVM}
    v_add_u32 {v(vVr0)}, {s(sVmM0)}, v6
    v_xor_b32 {v(vVr1)}, 32, {v(vVr0)}''')
    A(f'''v_and_b32 v4, 3, v1
    v_and_b32 v5, 1, v2
    v_lshl_add_u32 v6, v2, 3, v3
    v_lshlrev_b32 v6, 7, v6
    v_and_b32 v7, 2, v3
    v_lshl_or_b32 v7, v5, 2, v7
    v_lshrrev_b32 v8, 1, v4
    v_xor_b32 v7, v7, v8
    v_lshl_add_u32 v6, v7, 4, v6
    v_and_b32 v7, 1, v4
    v_lshl_add_u32 v6, v7, 3, v6
    s_mul_i32 {s(sT0)}, {s(sW)}, {YS}
    v_add_u32 v6, {s(sT0)}, v6''')
    for ct in range(4): A(f'v_xor_b32 {v(vWr+ct)}, {32*ct}, v6')
    A('s_waitcnt vmcnt(0)')
    for ct in range(4):
        for ks in range(6):
            for eh in range(2):
                A(f'ds_read_b64_tr_b16 {a(WOr + 24*ct + 4*ks + 2*eh, 2)}, {v(vWr+ct)} offset:{ks*4096 + eh*512}')
    A('s_waitcnt lgkmcnt(0)\ns_barrier')
    self.tl(8)
    self.tl(2)
    self.gwait()
    self.tl(3)
    A(f'buffer_store_dwordx4 {v(vM0,4)}, {v(vMst)}, {s(WS,4)}, {s(sXB)} offen{ST}')
    if o.touch in (1, 2) and not self.slow:
        self.srd(R3, P_BX, 2048 * 640 * 2)
        A(f'''s_lshl_b32 {s(sT3)}, {s(sJ)}, 2
        s_add_u32 {s(sT3)}, {s(sT3)}, {s(sW)}
        s_lshl_b32 {s(sT3)}, {s(sT3)}, 10
        s_add_u32 {s(sT2)}, {s(sT3)}, 81920
        s_add_u32 {s(sT3)}, {s(sT3)}, {s(sXB)}''')
        for k in range(4):
            A(f'buffer_load_dwordx4 v[248:251], {v(vL16)}, {s(R3,4)}, {s(sT2)} offen\ns_add_u32 {s(sT2)}, {s(sT2)}, 40960')
        if o.loc:
            for k in range(4): A(f's_mov_b32 {s(sT2)}, {k*PART_SLOT}\nbuffer_load_dwordx4 v[248:251], {v(vEf)}, {s(WS,4)}, {s(sT2)} offen sc1')
        for k in range(12 if o.touch == 1 else 22):
            A(f'buffer_load_dwordx4 v[248:251], {v(vL16)}, {s(WS,4)}, {s(sT3)} offen sc1\ns_add_u32 {s(sT3)}, {s(sT3)}, 40960')

    def flag_issue():
        A(f'buffer_load_dword {v(vFlD)}, {v(vFlA)}, {s(WS,4)}, {s(sXB)} offen sc1')
    def flag_wait(cnt):
        Lw, Lok = A.uid('L_fw'), A.uid('L_fok')
        if cnt is not None: A(f's_waitcnt vmcnt({cnt})')
        A(f'v_cmp_lt_i32 vcc, {v(vFlD)}, {v(vFlTs)}\ns_cbranch_vccz {Lok}')
        A.label(Lw); flag_issue(); self.budget()
        A(f's_waitcnt vmcnt(0)\nv_cmp_lt_i32 vcc, {v(vFlD)}, {v(vFlTs)}\ns_cbranch_vccnz {Lw}')
        A.label(Lok)
    def vx_loads(k0=0, k1=12):
        for k in range(k0, k1):
            A(f'buffer_load_dwordx4 {a(VXs+4*k,4)}, {v(vHvx)}, {s(WS,4)}, {s((sVx0, sVx1, sVx2)[k//4])} offen offset:{(k%4)*1024} {o.vxf}')
    def px_dma():
        for k in range(3):
            A(f'buffer_load_dwordx4 {v(vH16)}, {s(WS,4)}, {s(sPxOff)} offen offset:{k*1024} sc1 lds')
    def yx(hook=None):
        ya = lambda ct: (Yacc + 8*ct) if ct < 2 else (Pop + 8*(ct - 2))
        n = 0
        for ks in range(6):
            for ct in range(4):
                for rt in range(2):
                    d = v(ya(ct) + 4*rt, 4)
                    A(f'v_mfma_f32_16x16x32_bf16 {d}, {a(VXs + 24*rt + 4*ks, 4)}, {a(WOr + 24*ct + 4*ks, 4)}, {d if ks else 0}')
                    n += 1
                    if hook: hook(n)
        post = []
        for ct in (2, 3, 0, 1):
            b = ya(ct); y = Y + 8*ct
            post += [f'v_cvt_pk_bf16_f32 {v(y)}, {v(b)}, {v(b+1)}', f'v_cvt_pk_bf16_f32 {v(y+1)}, {v(b+2)}, {v(b+3)}',
                     f'ds_write_b64 {v(vYWs)}, {v(y,2)} offset:{ct*6144}',
                     f'v_cvt_pk_bf16_f32 {v(y+4)}, {v(b+4)}, {v(b+5)}', f'v_cvt_pk_bf16_f32 {v(y+5)}, {v(b+6)}, {v(b+7)}',
                     f'ds_write_b64 {v(vYW2s)}, {v(y+4,2)} offset:{ct*6144}']
        return post
    def out_store(src=None):
        A(f'buffer_store_dwordx4 {v(oacc if src is None else src,4)}, {v(vOst)}, {s(WS,4)}, {s(sOst)} offen sc1')
    opack = [f'v_cvt_pk_bf16_f32 {v(oacc+q)}, {v(oacc+2*q)}, {v(oacc+2*q+1)}' for q in range(4)]
    opack += [f'v_mov_b32 {v(oacc+4+i)}, {v(oacc+i)}' for i in range(2)]
    opack += [f'v_mov_b32_dpp {v(oacc+i)}, {v(oacc+2+i)} row_ror:8 row_mask:0xf bank_mask:0xc' for i in range(2)]
    opack += [f'v_mov_b32_dpp {v(oacc+2+i)}, {v(oacc+4+i)} row_ror:8 row_mask:0xf bank_mask:0x3' for i in range(2)]
    def outpart(hook=None):
        def rd(h):
            pb = Pop + 12*(h & 1); yb = Yop + 8*(h & 1)
            A(f'ds_read_b128 {v(yb,4)}, {v(vYRs)} offset:{h*1536}')
            for k in range(2): A(f'ds_read_b128 {v(pb+4*k,4)}, {v(vPXRs)} offset:{h*3072 + k*1024}')
            A(f'ds_read_b64 {v(yb+4,2)}, {v(vYR2s)} offset:{h*1536}')
            A(f'ds_read_b128 {v(pb+8,4)}, {v(vPXRs)} offset:{h*3072 + 2048}')
        rd(0); rd(1)
        for h in range(4):
            pb = Pop + 12*(h & 1); yb = Yop + 8*(h & 1)
            if hook: hook(h)
            A(f's_waitcnt lgkmcnt({5 if h < 3 else 0})')
            A(f'''v_mfma_f32_16x16x32_bf16 {v(oacc,4)}, {v(pb,4)}, {v(yb,4)}, {v(oacc,4) if h else 0}
            v_mfma_f32_16x16x32_bf16 {v(oacc+4,4)}, {v(pb+4,4)}, {v(yb,4)}, {v(oacc+4,4) if h else 0}
            v_mfma_f32_16x16x32_bf16 {v(oacc+4,4)}, {v(pb+8,4)}, {v(yb+4,4)}, {v(oacc+4,4)}''')
            if h + 2 < 4: rd(h + 2)
    def L(txt): return [x.strip() for x in txt.split('\n') if x.strip()]
    def set_outpart(d):
        return L(f'''s_add_u32 {s(sF1)}, {s(sS)}, {d}
        s_and_b32 {s(sF0)}, {s(sF1)}, 3
        s_mul_i32 {s(sF0)}, {s(sF0)}, {YS}
        v_add_u32 {v(vYRs)}, {s(sF0)}, {v(vYR)}
        v_add_u32 {v(vYR2s)}, {s(sF0)}, {v(vYR2)}
        s_and_b32 {s(sF0)}, {s(sF1)}, 1
        s_mul_i32 {s(sF0)}, {s(sF0)}, 12288
        v_add_u32 {v(vPXRs)}, {s(sF0)}, {v(vPXR)}''')
    def set_ost(d):
        return L(f'''s_add_u32 {s(sF1)}, {s(sS)}, {d}
        s_and_b32 {s(sF0)}, {s(sF1)}, 3
        s_mul_i32 {s(sF0)}, {s(sF0)}, {OL_SLOT}
        s_add_u32 {s(sOst)}, {s(sF0)}, {s(sXB)}''')
    def set_px(d, xf=False):
        return L(f'''s_add_u32 {s(sF1)}, {s(sS)}, {d}
        s_and_b32 {s(sF0)}, {s(sF1)}, 3
        s_mul_i32 {s(sF0)}, {s(sF0)}, {S4}
        s_add_u32 {s(sF0)}, {s(sF0)}, {PXB}
        s_add_u32 {s(sPxOff)}, {s(sXB)}, {s(sF0)}
        s_and_b32 {s(sF0)}, {s(sF1)}, 1
        s_add_u32 {s(sF1)}, {s(sF1)}, 1
        {f'v_add_u32 {v(vFlTs)}, {s(sS)}, {v(vFlT)}' if xf else f'v_mov_b32 {v(vFlTs)}, -16'}
        v_writelane_b32 {v(vFlTs)}, {s(sF1)}, 12
        s_mul_i32 {s(sF0)}, {s(sF0)}, 12288
        s_add_u32 m0, {s(sPxM0)}, {s(sF0)}''')
    def fin_issue(dst=None):
        A(f'buffer_load_dwordx4 {v(fin if dst is None else dst,4)}, {v(vOl)}, {s(WS,4)}, {s(sOl)} offen sc1')
    def fin_done(src):
        for x in self.fin_rows(src, fin + 4, vOut, sOutRow, sLo8, SEL2): A(x)
    assert PART == 0
    nxtA = L(f'''s_mov_b32 {s(sOst2)}, {s(sPartClr)}
    s_add_u32 {s(sF1)}, {s(sS)}, 1
    v_mov_b32 {v(vYUs)}, {v(vYWs)}
    s_and_b32 {s(sF0)}, {s(sF1)}, 3
    s_mul_i32 {s(sPartOff)}, {s(sF0)}, {PART_SLOT}
    s_mul_i32 {s(sF1)}, {s(sF0)}, {S4}
    s_add_u32 {s(sCur)}, {s(sXB)}, {s(sF1)}
    s_xor_b32 {s(sF0)}, {s(sF0)}, 2
    s_mul_i32 {s(sPartClr)}, {s(sF0)}, {PART_SLOT}
    s_add_u32 {s(sF1)}, {s(sS)}, 2
    v_mov_b32 {v(vTfD)}, {s(sF1)}
    s_and_b32 {s(sF0)}, {s(sF1)}, 3
    s_mul_i32 {s(sNext)}, {s(sF0)}, {YS}''') + set_ost(-1) + set_outpart(-1)
    nxtB = L(f'''s_add_u32 {s(sS)}, {s(sS)}, 1
    s_mov_b32 m0, {s(sVmM0)}
    v_add_u32 {v(vYWs)}, {s(sNext)}, {v(vYW)}
    v_add_u32 {v(vYW2s)}, {s(sNext)}, {v(vYW2)}''')
    nxt2 = L(f'''s_add_u32 {s(sF1)}, {s(sS)}, 2
    s_and_b32 {s(sF0)}, {s(sF1)}, 3
    s_mul_i32 {s(sF0)}, {s(sF0)}, {S4}
    s_add_u32 {s(sF0)}, {s(sF0)}, {VX}
    s_add_u32 {s(sVx0)}, {s(sXB)}, {s(sF0)}
    s_add_u32 {s(sVx1)}, {s(sVx0)}, 4096
    s_add_u32 {s(sVx2)}, {s(sVx0)}, 8192''') + set_px(-1)
    nxtB += [f'v_pk_mul_f32 {v(x,2)}, {v(Yop+6,2)}, {v(Yop+6,2)}' for x in range(Uacc, Uacc+16, 2)]

    A(f'''s_mov_b32 {s(sS)}, -1
    v_add_u32 {v(vFlTs)}, -2, {v(vFlT)}
    s_add_u32 {s(sVx0)}, {s(sXB)}, {VX}
    s_add_u32 {s(sVx1)}, {s(sVx0)}, 4096
    s_add_u32 {s(sVx2)}, {s(sVx0)}, 8192
    v_mov_b32 {v(vYWs)}, {v(vYW)}
    v_mov_b32 {v(vYW2s)}, {v(vYW2)}''')
    flag_issue(); flag_wait(0); self.tl(14); vx_loads(); A('s_waitcnt vmcnt(0)'); self.tl(15)
    for x in yx() + nxt2: A(x)
    A(f'v_add_u32 {v(vFlTs)}, -1, {v(vFlT)}')
    flag_issue(); flag_wait(0); vx_loads()
    for x in nxtA + nxtB: A(x)
    for x in list(range(D, D+16)) + list(range(Dsum, Dsum+4)): A(f'v_mov_b32 {v(x)}, 0')
    self.tl(4)

    if o.x & 1024: A(f'v_mov_b32 {v(vHvx)}, {OOB}')
    if o.x & 2048: A(f'v_mov_b32 {v(vH16)}, {OOB}')
    LP = f'L_wo_loop{t}'
    A.label(LP)
    Lb, Lv, Lu = A.uid('L_bf'), A.uid('L_vm'), A.uid('L_u')
    bfl = f'buffer_load_dword {v(vMx)}, {v(vBFa)}, {s(WS,4)}, {s(sXB)} offen sc1'
    if o.tr or 'dr' in o.stamp: A(bfl + '\ns_waitcnt vmcnt(0)'); self.stamp('wo', 'dr')
    self.spin(bfl, f'v_cmp_ge_u32 vcc, {s(sS)}, {v(vMx)}', 7 if o.fpoll & 1 else o.wdep, fast=o.fpoll & 1)
    def vm_loads(rr=0):
        for k in range(3):
            if rr and k: A('s_barrier')
            A(f'buffer_load_dwordx4 {v(vHvm)}, {s(WS,4)}, {s(sCur)} offen offset:{k*1024} sc1 lds')
    afl = f'buffer_store_dword {v(vTfD)}, {v(vEf)}, {s(WS,4)}, {s(sXB)} offen{ST}'
    if o.af == 1: A(afl)
    vm_loads(o.rr & 1)
    self.stamp('wo', 'bf'); self.tl0(10); self.tl0(12, 1)
    sxl = [f'buffer_load_dwordx4 {v(SX+4*p,4)}, {v(vHsc)}, {s(WS,4)}, {s(sCur)} offen offset:{p*1280} sc1' for p in range(3)]
    sml = [f'buffer_load_dword {v(SM+p)}, {v(vHscm)}, {s(WS,4)}, {s(sCur)} offen offset:{p*1280} sc1' for p in range(3)]
    def sc_loads():
        for x in sxl + sml: A(x)
    vrd = lambda tt: f'ds_read_b64_tr_b16 {v(VMo+4*tt,2)}, {v(vVr0)} offset:{tt*1024}\nds_read_b64_tr_b16 {v(VMo+4*tt+2,2)}, {v(vVr1)} offset:{tt*1024}'
    usm = [f'v_smfmac_f32_16x16x64_bf16 {v(Uacc+4*ct,4)}, {v(VMo+4*tt,4)}, {a(WOr+24*ct+8*tt,8)}, {v(vIdxU)}' for tt in range(3) for ct in range(4)]
    upost = []
    for ct in range(4):
        u = Uacc + 4*ct
        upost += [f'v_pk_add_f32 {v(u,2)}, {v(u,2)}, {v(u+2,2)}'] + ([f'v_cmp_u_f32 vcc, {v(u)}, {v(u+1)}'] if ct == 0 else [])
        upost += [f'v_cvt_pk_bf16_f32 {v(Y+8*ct+2)}, {v(u)}, {v(u+1)}', f'v_cvt_pk_bf16_f32 {v(Y+8*ct+6)}, {v(u)}, {v(u+1)}']
    uw = [f'ds_write_b32 {v(vYUs)}, {v(Y+8*ct+2)} offset:{ct*6144 + 8}' for ct in range(4)]
    seq = usm + upost
    Ltail = f'L_wo_tail{t}'; last = f's_cmp_eq_u32 {s(sS)}, {o.nsteps-1}'
    def arrive(tt):
        A(f's_waitcnt vmcnt({2 - tt + (3 if tt > o.spos else 0)})'); A(vrd(tt))
        if tt == o.spos:
            for x in sxl: A(x)
    A(last)
    if o.rr & 2:
        arrive(0); arrive(1)
        assert o.mpos >= 4
        for n, x in enumerate(seq):
            if n == 0: A('s_waitcnt lgkmcnt(2)')
            if n == 4: arrive(2); self.stamp('wo', 'vm'); A('s_waitcnt lgkmcnt(2)')
            if n == 8: A('s_waitcnt lgkmcnt(0)')
            A(x)
            if 0 <= n - o.mpos < 3: A(sml[n - o.mpos])
    else:
        for tt in range(3): arrive(tt)
        self.stamp('wo', 'vm')
        for n, x in enumerate(seq):
            if n in (0, 4, 8): A(f's_waitcnt lgkmcnt({4 - n//2})')
            A(x)
            if 0 <= n - o.mpos < 3: A(sml[n - o.mpos])
    A(f's_cbranch_vccnz {Lv}')
    A.label(Lu)
    def cold_vm():
        self.count(1, 'wo')
        vm_loads(); self.budget()
        A(f'v_add_u32 v5, {s(sVmM0)}, {v(vL16)}\ns_waitcnt vmcnt(0)')
        for k in range(3): A(f'ds_read_b128 {v(VMo+4*k,4)}, v5 offset:{1024*k}')
        A(f's_waitcnt lgkmcnt(0)\nv_max_u32 v4, {v(VMo)}, {v(VMo+1)}')
        for i in range(1, 6): A(f'v_max3_u32 v4, v4, {v(VMo+2*i)}, {v(VMo+2*i+1)}')
        A(f'v_cmp_eq_u32 vcc, -1, v4\ns_cbranch_vccnz {Lv}')
        sc_loads()
        for tt in range(3): A(vrd(tt))
        for i in range(16): A(f'v_mov_b32 {v(Uacc+i)}, 0')
        A('s_waitcnt lgkmcnt(0)')
        for x in seq: A(x)
        A(f'{last}\ns_branch {Lu}')
    self.cold.append((Lv, cold_vm))
    self.stamp('wo', 'u')
    A(f's_cbranch_scc1 {Ltail}')
    Lsc, Lsp, Lsg = A.uid('L_sc'), A.uid('L_sp'), A.uid('L_sg')
    s0 = ep
    A.label(Lsc)
    A(f'''s_waitcnt vmcnt(4)
    v_pk_add_f32 {v(s0,2)}, {v(SX,2)}, {v(SX+4,2)}
    v_pk_add_f32 {v(s0+2,2)}, {v(SX+2,2)}, {v(SX+6,2)}
    s_waitcnt vmcnt(3)
    v_pk_add_f32 {v(s0,2)}, {v(s0,2)}, {v(SX+8,2)}
    v_pk_add_f32 {v(s0+2,2)}, {v(s0+2,2)}, {v(SX+10,2)}
    v_pk_mul_f32 {v(s0,2)}, {v(s0,2)}, {v(cc2,2)}
    v_pk_mul_f32 {v(s0+2,2)}, {v(s0+2,2)}, {v(cc2,2)}
    v_max3_f32 {v(vMx)}, {v(s0)}, {v(s0+1)}, {v(s0+2)}
    v_pk_add_f32 {v(mm2,2)}, {v(s0,2)}, {v(s0+2,2)}
    s_waitcnt vmcnt(0)
    v_add_f32 {v(vPk)}, {v(SM)}, {v(SM+1)}
    v_add_f32 {v(vPk)}, {v(vPk)}, {v(SM+2)}
    v_mul_f32 {v(vPk)}, {v(vPk)}, {v(cc2)}
    v_max3_f32 {v(vMx)}, {v(vMx)}, {v(s0+3)}, {v(vPk)}
    v_add_f32 {v(mm2)}, {v(mm2)}, {v(vPk)}
    v_max_f32_dpp {v(vMy)}, {v(vMx)}, {v(vMx)} quad_perm:[2,3,0,1] row_mask:0xf bank_mask:0xf
    v_max_f32_dpp {v(vMx)}, {v(vMx)}, {v(vMx)} quad_perm:[2,3,0,1] row_mask:0xf bank_mask:0xf
    v_cmp_u_f32 vcc, {v(mm2)}, {v(mm2+1)}
    v_permlane16_swap_b32 {v(vMx)}, {v(vMy)}
    v_max_f32 {v(vMx)}, {v(vMx)}, {v(vMy)}
    v_mov_b32 {v(vMy)}, {v(vMx)}
    s_cbranch_vccnz {Lsp}''')
    A.label(Lsg)
    self.stamp('wo', 'sc')
    tflag = f'buffer_store_dword {v(vTfD)}, {v(vTf)}, {s(WS,4)}, {s(sXB)} offen{ST}'
    if o.eown: assert o.tpos == 'e'; tflag = ''
    lq = [0, 6, 1, 7, 2, 8, 3, 9, 4, 10, 5, 11]
    smq = lq[12 - o.nsm:]; lq = lq[:12 - o.nsm]
    def vx1(n=1):
        for _ in range(n):
            if smq: k = smq.pop(0); vx_loads(k, k + 1)
    vx1(2)
    if o.tpos == 'sc': A(tflag)
    A(f'''v_permlane32_swap_b32 {v(vMx)}, {v(vMy)}
    v_max_f32 {v(mm2)}, {v(vMx)}, {v(vMy)}
    v_pk_add_f32 {v(s0,2)}, {v(s0,2)}, {v(mm2,2)} op_sel_hi:[1,0] neg_lo:[0,1] neg_hi:[0,1]
    v_pk_add_f32 {v(s0+2,2)}, {v(s0+2,2)}, {v(mm2,2)} op_sel_hi:[1,0] neg_lo:[0,1] neg_hi:[0,1]
    v_sub_f32 {v(vPk)}, {v(vPk)}, {v(mm2)}
    v_exp_f32 {v(s0)}, {v(s0)}
    v_exp_f32 {v(s0+1)}, {v(s0+1)}
    v_exp_f32 {v(s0+2)}, {v(s0+2)}
    v_exp_f32 {v(s0+3)}, {v(s0+3)}
    v_exp_f32 {v(vPk)}, {v(vPk)}
    v_cvt_pk_bf16_f32 {v(PA)}, {v(s0)}, {v(s0+1)}
    v_cvt_pk_bf16_f32 {v(PA+2)}, {v(s0+2)}, {v(s0+3)}
    v_cvt_pk_bf16_f32 {v(PA+1)}, {v(vPk)}, 0
    v_cvt_pk_bf16_f32 {v(PA+3)}, {v(vPk)}, 0''')
    vx1(2)
    A(f'v_smfmac_f32_16x16x64_bf16 {v(Dsum,4)}, {v(PA,4)}, {v(ONES,8)}, {v(vIdxP)}')
    vx1(2)
    for ct in range(4):
        A(f'v_smfmac_f32_16x16x64_bf16 {v(D+4*ct,4)}, {v(PA,4)}, {v(Y+8*ct,8)}, {v(vIdxP)}')
        if ct < 2: vx1(2)
        if ct == 2: A(f'v_add_f32 {v(Dsum)}, {v(Dsum)}, {v(Dsum+2)}\nv_add_f32 {v(Dsum+1)}, {v(Dsum+1)}, {v(Dsum+3)}')
    if o.tpos == 'm': A(tflag)
    A(f'''v_rcp_f32 {v(Dsum)}, {v(Dsum)}
    v_rcp_f32 {v(Dsum+1)}, {v(Dsum+1)}''')
    for ct in range(4):
        A(f'v_pk_add_f32 {v(D+4*ct,2)}, {v(D+4*ct,2)}, {v(D+4*ct+2,2)}')
        A(f'v_pk_mul_f32 {v(D+4*ct,2)}, {v(D+4*ct,2)}, {v(Dsum,2)}')
        A(f'v_cvt_pk_bf16_f32 {v(ep+ct)}, {v(D+4*ct)}, {v(D+4*ct+1)}')
        if ct & 1: A(f'ds_write2st64_b32 {v(vEW)}, {v(ep+ct-1)}, {v(ep+ct)} offset0:{ct-1} offset1:{ct}')
    self.stamp('wo', 'e')
    if o.tpos == 'e': A(tflag)
    if o.flpos == 'e': flag_issue()
    zr = [f'v_mov_b32 {v(x)}, 0' for x in list(range(D, D+16)) + list(range(Dsum, Dsum+4))]
    for x in zr[:10]: A(x)
    A(f'''s_waitcnt lgkmcnt(0)
    s_barrier
    ds_read_b64_tr_b16 {v(Eop,2)}, {v(vER)}
    ds_read_b64_tr_b16 {v(Eop+2,2)}, {v(vER)} offset:128''')
    if o.tpos == 'b': A(tflag)
    for x in zr[10:]: A(x)
    A(f'''s_waitcnt lgkmcnt(0)
    v_mfma_f32_16x16x32_bf16 {v(acc,4)}, {v(Eop,4)}, {v(SELB,4)}, 0''')
    if o.tpos == 'r': A(tflag)
    if o.flpos == 'r': flag_issue()
    for q in range(2): A(f'v_cvt_pk_bf16_f32 {v(ep+q)}, {v(acc+2*q)}, {v(acc+2*q+1)}')
    if o.w1 & 1:
        A(f'''v_cndmask_b32 {v(ep)}, {v(ep)}, {v(ep+1)}, s[60:61]
        buffer_store_dword {v(ep)}, {v(vPclr)}, {s(WS,4)}, {s(sPartOff)} offen sc1
        buffer_store_dword {v(ep)}, {v(vPst0)}, {s(WS,4)}, {s(sPartOff)} offen sc1''')
    else: A(f'buffer_store_dwordx2 {v(ep,2)}, {v(vPst0)}, {s(WS,4)}, {s(sPartOff)} offen sc1')
    if o.tpos == 'pp': A(tflag)
    self.stamp('wo', 'pp'); self.tl0(11); self.tl0(13, 1)
    def cold_sc():
        A(f'v_max3_u32 v4, {v(SM)}, {v(SM+1)}, {v(SM+2)}')
        for i in range(6): A(f'v_max3_u32 v4, v4, {v(SX+2*i)}, {v(SX+2*i+1)}')
        A(f'v_cmp_eq_u32 vcc, -1, v4\ns_cbranch_vccz {Lsg}')
        sc_loads(); self.budget(); self.count(1000, 'wo'); A(f's_branch {Lsc}')
    self.cold.append((Lsp, cold_sc))
    b = o.slowpos
    def clr(k):
        return lambda: A(f's_add_u32 {s(sF0)}, {s(sOst2 if o.clate else sPartClr)}, {8192*k}\nbuffer_store_dword {v(vN4)}, {v(vPclr)}, {s(WS,4)}, {s(sF0)} offen{" sc1" if k < o.ncopy else ST}')
    ncl = o.ncopy + (1 if o.loc else 0)
    clears = [clr(k) for k in range(ncl)]
    slow = clears if o.clate else []
    ny = 1 + (o.w1 & 1) + (0 if o.clate else ncl) + (1 if o.tpos == 'pp' or (o.tpos in 'rb' and o.flpos == 'e') else 0)
    L1 = A.uid('L_g')
    def ohook(h):
        if h == 0 and not o.clate:
            for f in clears: f()
        if h == 1:
            for x in nxt2: A(x)
    for x in uw: A(x)
    outpart(ohook)
    flag_wait(ny)
    if not o.x & 1: px_dma()
    for x in opack: A(x)
    A(f'buffer_store_dwordx4 {v(oacc,4)}, {v(vOloc)}, {s(WS,4)}, {s(sOst)} offen{ST}')
    self.stamp('wo', 'op')
    fl = list(nxtA)
    assert not smq
    st = {'i': 0, 'last': 0}
    def yhook(n):
        if st['i'] < min(o.nvx, len(lq)) and n >= 8 * (st['i'] // 2 + 1) and n >= o.vx0 and n - st['last'] >= 2:
            if not o.x & 1: vx_loads(lq[st['i']], lq[st['i']] + 1)
            st['i'] += 1; st['last'] = n
            return
        if not fl and slow and n >= o.slowpos: slow.pop(0)(); return
        for _ in range(3):
            if fl: A(fl.pop(0))
    post = yx(yhook)
    if not o.x & 1:
        for k in lq[st['i']:o.nvx]: vx_loads(k, k + 1)
    for f in slow: f()
    self.stamp('wo', 'yx')
    for x in post + nxtB: A(x)
    if not o.x & 1:
        for k in lq[o.nvx:]: vx_loads(k, k + 1)
    self.stamp('wo', 'g1'); self.tr_flush('wo')
    A(f's_branch {LP}')
    A.label(Ltail)
    self.tl(5)
    for x in uw: A(x)
    n = o.nsteps
    tslot = lambda d: 4 - d
    for k, d in enumerate((-5, -4)):
        A(f's_add_u32 {s(sT1)}, {s(sXB)}, {((n - 1 + d) & 3) * OL_SLOT}\nbuffer_load_dwordx4 {v(D+4*k,4)}, {v(vOloc)}, {s(WS,4)}, {s(sT1)} offen sc1')
    for x in set_px(-1): A(x)
    flag_issue()
    self.side0()
    A(f'v_xor_b32 {v(vOst)}, {s(sT0)}, {v(vOst)}\nv_xor_b32 {v(vOl)}, {s(sT0)}, {v(vOl)}\ns_waitcnt lgkmcnt(0)\ns_barrier')
    flag_wait(None); px_dma()
    def keep(dst):
        for i in range(4): A(f'v_mov_b32 {v(dst+i)}, {v(oacc+i)}')
    def part(d):
        for x in set_outpart(d): A(x)
        outpart()
        for x in opack: A(x)
    keep(D + 8); part(-2); keep(D + 12)
    A('s_waitcnt vmcnt(0)\ns_barrier')
    part(-1); keep(PA)
    older = ((-5, D), (-4, D + 4), (-3, D + 8), (-2, D + 12), (-1, PA))
    def stores(lst):
        for d, src in lst:
            A(f's_mov_b32 {s(sOst)}, {OUTP + tslot(d)*OUTP_SLOT}'); out_store(src)
    def loads(lst):
        for d, r_ in lst:
            A(f's_mov_b32 {s(sOl)}, {OUTP + tslot(d)*OUTP_SLOT}'); fin_issue(r_)
    def gather(lst, younger=None):
        Lc = A.uid('L_fp')
        if younger is not None: A(f's_waitcnt vmcnt({younger})\ns_branch {Lc}c')
        A.label(Lc)
        loads(lst); self.budget()
        A('s_waitcnt vmcnt(0)')
        A.label(Lc + 'c')
        A(f'v_mov_b32 {v(vMx)}, 0')
        for _, r_ in lst:
            for i in (0, 2): A(f'v_max3_u32 {v(vMx)}, {v(vMx)}, {v(r_+i)}, {v(r_+i+1)}')
        A(f'v_cmp_eq_u32 vcc, -1, {v(vMx)}\ns_cbranch_vccnz {Lc}')
        for d, r_ in lst:
            A(f's_mov_b32 {s(sOutRow)}, {(n-1+d)*32*2560}'); fin_done(r_)
    got = ((-5, Yacc), (-4, Yacc + 4), (-3, Yacc + 8), (-2, Yacc + 12), (-1, SX))
    if o.tw: stores(older)
    self.tl(9)
    for x in set_px(0) + set_outpart(0): A(x)
    self.spin(f'buffer_load_dword {v(vFlD)}, {v(vFlA)}, {s(WS,4)}, {s(sXB)} offen sc1', f'v_cmp_lt_i32 vcc, {v(vFlD)}, {v(vFlTs)}', 6, fast=True)
    px_dma()
    self.tl(6)
    A('s_waitcnt vmcnt(0)\ns_barrier')
    if o.tw: loads(got)
    else: stores(older)
    outpart()
    for x in opack: A(x)
    stores(((0, oacc),))
    if o.tw:
        gather(got, 1)
        A('s_waitcnt vmcnt(5)')
        gather(((0, SX + 4),))
    else:
        A('s_waitcnt vmcnt(0)')
        gather(((0, SX + 4),) + got)
    self.hd(11); self.stamp_out('wo'); self.tl(7, True)
    A('s_endpgm')
```

```python
from asmlib import v, a, s
from gen import *

def wo(self):
    A = self.A; t = self.tag; ST = self.st; o = self.o
    LY = 0; YS = 24576; LPX = 98304; LE = 122880; ES = 1152; LVM = LE + 8192
    r = RA(10, 248)
    (vIdxU, vIdxP, vL16, vL4, vPst0, vOloc, vVr0, vMst, vEW, vER, vYW, vYW2, vYR, vYR2, vYWs, vYW2s, vYRs, vYR2s,
     vPXR, vPXRs, vOst, vOl, vOut, vFlA, vFlT, vFlTs, vFlD, vH16, vHsc, vHscm, vHvx, vMx, vMy, vPk, vHvm, vEf, vPclr, vYUs) = [r() for _ in range(38)]
    Y = r(32, 4); PA = r(4, 4); ONES = r(8, 4); SX = r(12, 4); SM = r(4, 2); SELB = r(6, 2); SELA = SELB + 2; vTfD = SM + 3; Dsum = r(4, 4); D = r(16, 4)
    VMo = r(12, 4); Yacc = r(16, 4); PB = r(8, 4); acc = r(8, 4); vM0 = PB; vN4 = PB + 4
    Pop = r(24, 4); Yop = r(16, 4); oacc = r(8, 4); fin = r(8, 4); ep = r(4, 2); Eop = PA; cc2 = r(2, 2); mm2 = r(2, 2); vTf = r(); vBFa = r(); vVr1 = vL4
    Uacc = Yacc
    WOr = 0; VXs = 96
    sJ, sPartOff, sPartClr, sCur, sNext, sVx0, sVx1, sVx2, sPxOff, sOst, sOst2, sOl, sOutRow, sVmM0, sPxM0, sF0, sF1, sMk = range(40, 58); sLo8 = 58; sCl = 60; SEL2 = 144
    A.label(f'L_wo{t}')
    self.srd(R0, P_WO, 6144 * 640 * 2); self.srd(R1, P_M0, 8 * 640 * 2)
    A(f's_sub_u32 {s(sJ)}, {s(sR)}, {R_WO}')
    self.lanes()
    vWdma0, vWdma1, vWr = Pop, Pop + 1, Pop + 2
    A(f'''v_lshrrev_b32 v3, 3, v0
    v_and_b32 v4, 7, v0
    v_and_b32 v6, 2, v3
    v_xor_b32 v6, v6, v4
    v_lshlrev_b32 v6, 4, v6
    v_mul_u32_u24 v7, 1280, v3
    s_lshl_b32 {s(sT0)}, {s(sG)}, 2
    s_add_u32 {s(sT0)}, {s(sT0)}, {s(sW)}
    s_mul_i32 {s(sT0)}, {s(sT0)}, {192*1280}
    s_lshl_b32 {s(sT1)}, {s(sJ)}, 7
    s_add_u32 {s(sT0)}, {s(sT0)}, {s(sT1)}
    v_add3_u32 {v(vWdma0)}, v6, v7, {s(sT0)}
    v_xor_b32 {v(vWdma1)}, 64, {v(vWdma0)}''')
    A(f'''s_mul_i32 {s(sT0)}, {s(sJ)}, {PBLK}
    {'s_lshl_b32 %s, %s, 11' % (s(sT1), s(sW)) if not o.lay else 's_and_b32 %s, %s, 1' % (s(sT1), s(sW)) + chr(10) + 's_mul_i32 %s, %s, %d' % (s(sT1), s(sT1), o.lay & 0xffff) + chr(10) + 's_add_u32 %s, %s, %s' % (s(sT0), s(sT0), s(sT1)) + chr(10) + 's_lshr_b32 %s, %s, 1' % (s(sT1), s(sW)) + chr(10) + 's_mul_i32 %s, %s, %d' % (s(sT1), s(sT1), o.lay >> 16)}
    s_add_u32 {s(sT0)}, {s(sT0)}, {s(sT1)}
    s_lshl_b32 {s(sT1)}, {s(sG)}, 8
    s_add_u32 {s(sT0)}, {s(sT0)}, {s(sT1)}
    v_and_b32 v7, 7, v1
    v_lshlrev_b32 v7, 3, v7
    v_lshl_add_u32 v7, v2, 6, v7
    v_lshrrev_b32 v6, 3, v1
    v_lshl_add_u32 v7, v6, 13, v7
    v_add_u32 {v(vPst0)}, {s(sT0)}, v7
    v_lshlrev_b32 v6, 4, v1
    v_lshlrev_b32 {v(vL16)}, 4, v0
    v_lshlrev_b32 {v(vL4)}, 2, v0
    v_add_u32 {v(vPclr)}, {s(sT0)}, {v(vL4)}''')
    A(f'''s_lshl_b32 {s(sT2)}, {s(sJ)}, 7
    s_lshl_b32 {s(sT3)}, {s(sW)}, 2
    s_add_u32 {s(sT2)}, {s(sT2)}, {s(sT3)}
    s_add_u32 {s(sT2)}, {s(sT2)}, {TF}
    v_mov_b32 {v(vTf)}, {s(sT2)}''')
    self.oob_unless(vTf, 'v_cmp_eq_u32 vcc, 0, v0')
    A(f'''s_lshl_b32 {s(sT2)}, {s(sJ)}, 4
    s_add_u32 {s(sT2)}, {s(sT2)}, {s(sT3)}
    s_add_u32 {s(sT2)}, {s(sT2)}, {AF}
    v_mov_b32 {v(vEf)}, {s(sT2)}
    v_cndmask_b32 {v(vEf)}, v9, {v(vEf)}, vcc''')
    A(f'''s_lshl_b32 {s(sT2)}, {s(sW)}, 7
    s_add_u32 {s(sT2)}, {s(sT2)}, {BF}
    v_min_u32 v3, 5, v0
    v_lshl_add_u32 {v(vBFa)}, v3, 2, {s(sT2)}''')
    A(f'''s_lshl_b32 {s(sT0)}, {s(sJ)}, 2
    s_add_u32 {s(sT0)}, {s(sT0)}, {s(sW)}     ; tile
    s_lshl_b32 {s(sT1)}, {s(sT0)}, 8
    v_add_u32 {v(vMst)}, {s(sT1)}, v6''')
    self.oob_unless(vMst, 'v_cmp_eq_u32 vcc, 0, v2')
    A(f'''v_lshrrev_b32 v3, 2, v1
    v_and_b32 v7, 1, v1
    v_lshl_or_b32 v4, v3, 1, v7                ; row
    v_mul_u32_u24 v4, 1280, v4
    v_and_b32 v5, 2, v1
    v_lshl_add_u32 v4, v5, 1, v4
    s_lshl_b32 {s(sT1)}, {s(sT0)}, 5
    v_add_u32 v4, {s(sT1)}, v4
    v_lshlrev_b32 v6, 6, v3
    v_lshl_add_u32 v6, v7, 5, v6
    v_lshl_add_u32 v6, v2, 3, v6
    v_lshl_add_u32 v6, v5, 1, v6               ; Q*64 + j*32 + g*8 + kh*4
    s_mul_i32 {s(sT2)}, {s(sW)}, {ES}
    s_add_u32 {s(sT2)}, {s(sT2)}, {LE}
    v_add_u32 {v(vEW)}, {s(sT2)}, v6''')
    for q in range(4):
        A(f'buffer_load_dword {v(vM0+q)}, v4, {s(R1,4)}, 0 offen offset:{8*q}')
    for q in range(4): A(f'v_mov_b32 {v(vN4+q)}, -1')
    A(f's_mul_i32 {s(sT0)}, {s(sW)}, {YS}\ns_mov_b32 m0, {s(sT0)}\ns_mov_b32 {s(sT1)}, 0')
    for k in range(24):
        A(f'buffer_load_dwordx4 {v(vWdma1 if k & 1 else vWdma0)}, {s(R0,4)}, {s(sT1)} offen{" nt" if o.nt & 4 else ""} lds')
        if k < 23: A(f's_add_u32 m0, m0, 1024\ns_add_u32 {s(sT1)}, {s(sT1)}, {8*1280}')
    A('s_waitcnt vmcnt(24)')
    for q in range(4): A(f'v_min_u32 {v(vM0+q)}, -2, {v(vM0+q)}')
    A(f'''v_and_b32 v7, 2, v1
    v_cmp_ne_u32 vcc, 0, v7                    ; half
    v_mov_b32 v5, 0x4444
    v_mov_b32 v6, 0xeeee
    v_cndmask_b32 {v(vIdxU)}, v5, v6, vcc
    v_mov_b32 v5, 0xe484
    v_mov_b32 v6, 0xee9e
    v_cndmask_b32 v7, v5, v6, vcc
    v_mov_b32 v5, 0x84e4
    v_mov_b32 v6, 0x9eee
    v_cndmask_b32 v8, v5, v6, vcc
    v_cmp_gt_u32 vcc, 2, v2
    v_cndmask_b32 {v(vIdxP)}, v8, v7, vcc''')
    for i in range(8): A(f'v_mov_b32 {v(ONES+i)}, {0 if i in (3,7) else 0x3f803f80}')
    for ct in range(4): A(f'v_mov_b32 {v(Y+8*ct+3)}, 0\nv_mov_b32 {v(Y+8*ct+7)}, 0')
    for hb in range(2): A(f'v_mov_b32 {v(Yop+8*hb+6)}, 0\nv_mov_b32 {v(Yop+8*hb+7)}, 0')
    self.sel_consts(SELB, 1 if o.w1 & 1 else 0)
    A(f's_mov_b32 s60, 0xaaaaaaaa\ns_mov_b32 s61, 0xaaaaaaaa')
    if o.w1 & 1: A(f'v_add_u32 {v(vPst0)}, 8192, {v(vPclr)}')
    A(f'''v_mov_b32 {v(cc2)}, {f32(CSM)}
    v_mov_b32 {v(cc2+1)}, {f32(CSM)}
    s_lshl_b32 {s(sT0)}, {s(sW)}, 8
    s_add_u32 {s(sT0)}, {s(sT0)}, {LE}
    v_mul_u32_u24 v6, {ES}, v2
    v_lshl_add_u32 v6, v1, 3, v6
    v_add_u32 {v(vER)}, {s(sT0)}, v6
    s_mul_i32 {s(sT0)}, {s(sW)}, 1536
    v_add_u32 {v(vYW)}, {s(sT0)}, {v(vL16)}
    s_add_u32 {s(sT0)}, {s(sT0)}, 1024
    v_lshl_add_u32 {v(vYW2)}, v0, 3, {s(sT0)}
    s_mul_i32 {s(sT0)}, {s(sW)}, 6144
    v_add_u32 {v(vYR)}, {s(sT0)}, {v(vL16)}
    s_add_u32 {s(sT0)}, {s(sT0)}, 1024
    v_lshl_add_u32 {v(vYR2)}, v0, 3, {s(sT0)}
    v_add_u32 {v(vPXR)}, {LPX}, {v(vL16)}
    s_mul_i32 {s(sT0)}, {s(sW)}, 3072
    v_add_u32 {v(vH16)}, {s(sT0)}, {v(vL16)}
    v_add_u32 {v(vHvm)}, {VM}, {v(vH16)}
    s_add_u32 {s(sPxM0)}, {s(sT0)}, {LPX}
    s_mul_i32 {s(sT0)}, {s(sW)}, 3840
    s_add_u32 {s(sT0)}, {s(sT0)}, {SC}
    v_add_u32 {v(vHsc)}, {s(sT0)}, {v(vL16)}
    s_add_u32 {s(sT0)}, {s(sT0)}, 1024
    v_add_u32 {v(vHscm)}, {s(sT0)}, {v(vL4)}
    s_mul_i32 {s(sT0)}, {s(sW)}, 12288
    v_add_u32 {v(vHvx)}, {s(sT0)}, {v(vL16)}
    s_lshl_b32 {s(sT3)}, {s(sJ)}, 2
    s_add_u32 {s(sT3)}, {s(sT3)}, {s(sW)}''')
    self.out_addr(sT3, vOst, vOl, vOut, vOloc, sLo8, SEL2)
    A(f'''s_lshl_b32 {s(sT0)}, {s(sW)}, 7
    v_add_u32 v5, {s(sT0)}, {v(vL4)}
    v_add_u32 v6, {XF}, v5
    v_add_u32 v7, {PF - 48}, v5
    v_cmp_gt_u32 vcc, 12, v0
    v_cndmask_b32 {v(vFlA)}, v7, v6, vcc
    v_mov_b32 v5, -2
    v_cndmask_b32 {v(vFlT)}, v5, 3, vcc''')
    self.oob_unless(vFlA, 'v_cmp_gt_u32 vcc, 14, v0')
    A(f'v_mov_b32 v5, -1000\nv_cndmask_b32 {v(vFlT)}, v5, {v(vFlT)}, vcc')
    A(f'''v_and_b32 v4, 3, v1
    v_lshlrev_b32 v6, 6, v4
    v_lshl_add_u32 v6, v3, 3, v6
    v_lshl_add_u32 v6, v2, 8, v6
    v_and_b32 v5, 1, v2
    v_lshl_add_u32 v6, v5, 5, v6
    s_mul_i32 {s(sT0)}, {s(sW)}, 3072
    s_add_u32 {s(sVmM0)}, {s(sT0)}, {LVM}
    v_add_u32 {v(vVr0)}, {s(sVmM0)}, v6
    v_xor_b32 {v(vVr1)}, 32, {v(vVr0)}''')
    A(f'''v_and_b32 v4, 3, v1
    v_and_b32 v5, 1, v2
    v_lshl_add_u32 v6, v2, 3, v3
    v_lshlrev_b32 v6, 7, v6
    v_and_b32 v7, 2, v3
    v_lshl_or_b32 v7, v5, 2, v7
    v_lshrrev_b32 v8, 1, v4
    v_xor_b32 v7, v7, v8
    v_lshl_add_u32 v6, v7, 4, v6
    v_and_b32 v7, 1, v4
    v_lshl_add_u32 v6, v7, 3, v6
    s_mul_i32 {s(sT0)}, {s(sW)}, {YS}
    v_add_u32 v6, {s(sT0)}, v6''')
    for ct in range(4): A(f'v_xor_b32 {v(vWr+ct)}, {32*ct}, v6')
    A('s_waitcnt vmcnt(0)')
    for ct in range(4):
        for ks in range(6):
            for eh in range(2):
                A(f'ds_read_b64_tr_b16 {a(WOr + 24*ct + 4*ks + 2*eh, 2)}, {v(vWr+ct)} offset:{ks*4096 + eh*512}')
    A('s_waitcnt lgkmcnt(0)\ns_barrier')
    self.tl(8)
    self.tl(2)
    self.gwait()
    self.tl(3)
    A(f'buffer_store_dwordx4 {v(vM0,4)}, {v(vMst)}, {s(WS,4)}, {s(sXB)} offen{ST}')
    if o.touch in (1, 2) and not self.slow:
        self.srd(R3, P_BX, 2048 * 640 * 2)
        A(f'''s_lshl_b32 {s(sT3)}, {s(sJ)}, 2
        s_add_u32 {s(sT3)}, {s(sT3)}, {s(sW)}
        s_lshl_b32 {s(sT3)}, {s(sT3)}, 10
        s_add_u32 {s(sT2)}, {s(sT3)}, 81920
        s_add_u32 {s(sT3)}, {s(sT3)}, {s(sXB)}''')
        for k in range(4):
            A(f'buffer_load_dwordx4 v[248:251], {v(vL16)}, {s(R3,4)}, {s(sT2)} offen\ns_add_u32 {s(sT2)}, {s(sT2)}, 40960')
        if o.loc:
            for k in range(4): A(f's_mov_b32 {s(sT2)}, {k*PART_SLOT}\nbuffer_load_dwordx4 v[248:251], {v(vEf)}, {s(WS,4)}, {s(sT2)} offen sc1')
        for k in range(12 if o.touch == 1 else 22):
            A(f'buffer_load_dwordx4 v[248:251], {v(vL16)}, {s(WS,4)}, {s(sT3)} offen sc1\ns_add_u32 {s(sT3)}, {s(sT3)}, 40960')

    def flag_issue():
        A(f'buffer_load_dword {v(vFlD)}, {v(vFlA)}, {s(WS,4)}, {s(sXB)} offen sc1')
    def flag_wait(cnt):
        Lw, Lok = A.uid('L_fw'), A.uid('L_fok')
        if cnt is not None: A(f's_waitcnt vmcnt({cnt})')
        A(f'v_cmp_lt_i32 vcc, {v(vFlD)}, {v(vFlTs)}\ns_cbranch_vccz {Lok}')
        A.label(Lw); flag_issue(); self.budget()
        A(f's_waitcnt vmcnt(0)\nv_cmp_lt_i32 vcc, {v(vFlD)}, {v(vFlTs)}\ns_cbranch_vccnz {Lw}')
        A.label(Lok)
    def vx_loads(k0=0, k1=12):
        for k in range(k0, k1):
            A(f'buffer_load_dwordx4 {a(VXs+4*k,4)}, {v(vHvx)}, {s(WS,4)}, {s((sVx0, sVx1, sVx2)[k//4])} offen offset:{(k%4)*1024} {o.vxf}')
    def px_dma():
        for k in range(3):
            A(f'buffer_load_dwordx4 {v(vH16)}, {s(WS,4)}, {s(sPxOff)} offen offset:{k*1024} sc1 lds')
    def yx(hook=None):
        ya = lambda ct: (Yacc + 8*ct) if ct < 2 else (Pop + 8*(ct - 2))
        n = 0
        for ks in range(6):
            for ct in range(4):
                for rt in range(2):
                    d = v(ya(ct) + 4*rt, 4)
                    A(f'v_mfma_f32_16x16x32_bf16 {d}, {a(VXs + 24*rt + 4*ks, 4)}, {a(WOr + 24*ct + 4*ks, 4)}, {d if ks else 0}')
                    n += 1
                    if hook: hook(n)
        post = []
        for ct in (2, 3, 0, 1):
            b = ya(ct); y = Y + 8*ct
            post += [f'v_cvt_pk_bf16_f32 {v(y)}, {v(b)}, {v(b+1)}', f'v_cvt_pk_bf16_f32 {v(y+1)}, {v(b+2)}, {v(b+3)}',
                     f'ds_write_b64 {v(vYWs)}, {v(y,2)} offset:{ct*6144}',
                     f'v_cvt_pk_bf16_f32 {v(y+4)}, {v(b+4)}, {v(b+5)}', f'v_cvt_pk_bf16_f32 {v(y+5)}, {v(b+6)}, {v(b+7)}',
                     f'ds_write_b64 {v(vYW2s)}, {v(y+4,2)} offset:{ct*6144}']
        return post
    def out_store(src=None):
        A(f'buffer_store_dwordx4 {v(oacc if src is None else src,4)}, {v(vOst)}, {s(WS,4)}, {s(sOst)} offen sc1')
    opack = [f'v_cvt_pk_bf16_f32 {v(oacc+q)}, {v(oacc+2*q)}, {v(oacc+2*q+1)}' for q in range(4)]
    opack += [f'v_mov_b32 {v(oacc+4+i)}, {v(oacc+i)}' for i in range(2)]
    opack += [f'v_mov_b32_dpp {v(oacc+i)}, {v(oacc+2+i)} row_ror:8 row_mask:0xf bank_mask:0xc' for i in range(2)]
    opack += [f'v_mov_b32_dpp {v(oacc+2+i)}, {v(oacc+4+i)} row_ror:8 row_mask:0xf bank_mask:0x3' for i in range(2)]
    def outpart(hook=None):
        def rd(h):
            pb = Pop + 12*(h & 1); yb = Yop + 8*(h & 1)
            A(f'ds_read_b128 {v(yb,4)}, {v(vYRs)} offset:{h*1536}')
            for k in range(2): A(f'ds_read_b128 {v(pb+4*k,4)}, {v(vPXRs)} offset:{h*3072 + k*1024}')
            A(f'ds_read_b64 {v(yb+4,2)}, {v(vYR2s)} offset:{h*1536}')
            A(f'ds_read_b128 {v(pb+8,4)}, {v(vPXRs)} offset:{h*3072 + 2048}')
        rd(0); rd(1)
        for h in range(4):
            pb = Pop + 12*(h & 1); yb = Yop + 8*(h & 1)
            if hook: hook(h)
            A(f's_waitcnt lgkmcnt({5 if h < 3 else 0})')
            A(f'''v_mfma_f32_16x16x32_bf16 {v(oacc,4)}, {v(pb,4)}, {v(yb,4)}, {v(oacc,4) if h else 0}
            v_mfma_f32_16x16x32_bf16 {v(oacc+4,4)}, {v(pb+4,4)}, {v(yb,4)}, {v(oacc+4,4) if h else 0}
            v_mfma_f32_16x16x32_bf16 {v(oacc+4,4)}, {v(pb+8,4)}, {v(yb+4,4)}, {v(oacc+4,4)}''')
            if h + 2 < 4: rd(h + 2)
    def L(txt): return [x.strip() for x in txt.split('\n') if x.strip()]
    def set_outpart(d):
        return L(f'''s_add_u32 {s(sF1)}, {s(sS)}, {d}
        s_and_b32 {s(sF0)}, {s(sF1)}, 3
        s_mul_i32 {s(sF0)}, {s(sF0)}, {YS}
        v_add_u32 {v(vYRs)}, {s(sF0)}, {v(vYR)}
        v_add_u32 {v(vYR2s)}, {s(sF0)}, {v(vYR2)}
        s_and_b32 {s(sF0)}, {s(sF1)}, 1
        s_mul_i32 {s(sF0)}, {s(sF0)}, 12288
        v_add_u32 {v(vPXRs)}, {s(sF0)}, {v(vPXR)}''')
    def set_ost(d):
        return L(f'''s_add_u32 {s(sF1)}, {s(sS)}, {d}
        s_and_b32 {s(sF0)}, {s(sF1)}, 3
        s_mul_i32 {s(sF0)}, {s(sF0)}, {OL_SLOT}
        s_add_u32 {s(sOst)}, {s(sF0)}, {s(sXB)}''')
    def set_px(d, xf=False):
        return L(f'''s_add_u32 {s(sF1)}, {s(sS)}, {d}
        s_and_b32 {s(sF0)}, {s(sF1)}, 3
        s_mul_i32 {s(sF0)}, {s(sF0)}, {S4}
        s_add_u32 {s(sF0)}, {s(sF0)}, {PXB}
        s_add_u32 {s(sPxOff)}, {s(sXB)}, {s(sF0)}
        s_and_b32 {s(sF0)}, {s(sF1)}, 1
        s_add_u32 {s(sF1)}, {s(sF1)}, 1
        {f'v_add_u32 {v(vFlTs)}, {s(sS)}, {v(vFlT)}' if xf else f'v_mov_b32 {v(vFlTs)}, -16'}
        v_writelane_b32 {v(vFlTs)}, {s(sF1)}, 12
        s_mul_i32 {s(sF0)}, {s(sF0)}, 12288
        s_add_u32 m0, {s(sPxM0)}, {s(sF0)}''')
    def fin_issue(dst=None):
        A(f'buffer_load_dwordx4 {v(fin if dst is None else dst,4)}, {v(vOl)}, {s(WS,4)}, {s(sOl)} offen sc1')
    def fin_done(src):
        for x in self.fin_rows(src, fin + 4, vOut, sOutRow, sLo8, SEL2): A(x)
    assert PART == 0
    nxtA = L(f'''s_mov_b32 {s(sOst2)}, {s(sPartClr)}
    s_add_u32 {s(sF1)}, {s(sS)}, 1
    v_mov_b32 {v(vYUs)}, {v(vYWs)}
    s_and_b32 {s(sF0)}, {s(sF1)}, 3
    s_mul_i32 {s(sPartOff)}, {s(sF0)}, {PART_SLOT}
    s_mul_i32 {s(sF1)}, {s(sF0)}, {S4}
    s_add_u32 {s(sCur)}, {s(sXB)}, {s(sF1)}
    s_xor_b32 {s(sF0)}, {s(sF0)}, 2
    s_mul_i32 {s(sPartClr)}, {s(sF0)}, {PART_SLOT}
    s_add_u32 {s(sF1)}, {s(sS)}, 2
    v_mov_b32 {v(vTfD)}, {s(sF1)}
    s_and_b32 {s(sF0)}, {s(sF1)}, 3
    s_mul_i32 {s(sNext)}, {s(sF0)}, {YS}''') + set_ost(-1) + set_outpart(-1)
    nxtB = L(f'''s_add_u32 {s(sS)}, {s(sS)}, 1
    s_mov_b32 m0, {s(sVmM0)}
    v_add_u32 {v(vYWs)}, {s(sNext)}, {v(vYW)}
    v_add_u32 {v(vYW2s)}, {s(sNext)}, {v(vYW2)}''')
    nxt2 = L(f'''s_add_u32 {s(sF1)}, {s(sS)}, 2
    s_and_b32 {s(sF0)}, {s(sF1)}, 3
    s_mul_i32 {s(sF0)}, {s(sF0)}, {S4}
    s_add_u32 {s(sF0)}, {s(sF0)}, {VX}
    s_add_u32 {s(sVx0)}, {s(sXB)}, {s(sF0)}
    s_add_u32 {s(sVx1)}, {s(sVx0)}, 4096
    s_add_u32 {s(sVx2)}, {s(sVx0)}, 8192''') + set_px(-1)
    nxtB += [f'v_pk_mul_f32 {v(x,2)}, {v(Yop+6,2)}, {v(Yop+6,2)}' for x in range(Uacc, Uacc+16, 2)]

    A(f's_mov_b32 {s(sMk)}, -1')
    A(f'''s_mov_b32 {s(sS)}, -1
    v_add_u32 {v(vFlTs)}, -2, {v(vFlT)}
    s_add_u32 {s(sVx0)}, {s(sXB)}, {VX}
    s_add_u32 {s(sVx1)}, {s(sVx0)}, 4096
    s_add_u32 {s(sVx2)}, {s(sVx0)}, 8192
    v_mov_b32 {v(vYWs)}, {v(vYW)}
    v_mov_b32 {v(vYW2s)}, {v(vYW2)}''')
    flag_issue(); flag_wait(0); self.tl(14); vx_loads(); A('s_waitcnt vmcnt(0)'); self.tl(15)
    for x in yx() + nxt2: A(x)
    A(f'v_add_u32 {v(vFlTs)}, -1, {v(vFlT)}')
    flag_issue(); flag_wait(0); vx_loads()
    for x in nxtA + nxtB: A(x)
    for x in list(range(D, D+16)) + list(range(Dsum, Dsum+4)): A(f'v_mov_b32 {v(x)}, 0')
    self.tl(4)

    if o.x & 1024: A(f'v_mov_b32 {v(vHvx)}, {OOB}')
    if o.x & 2048: A(f'v_mov_b32 {v(vH16)}, {OOB}')
    LP = f'L_wo_loop{t}'
    A.label(LP)
    Lb, Lv, Lu = A.uid('L_bf'), A.uid('L_vm'), A.uid('L_u')
    bfl = f'buffer_load_dword {v(vMx)}, {v(vBFa)}, {s(WS,4)}, {s(sXB)} offen sc1'
    if o.tr or 'dr' in o.stamp: A(bfl + '\ns_waitcnt vmcnt(0)'); self.stamp('wo', 'dr')
    self.spin(bfl, f'v_cmp_ge_u32 vcc, {s(sS)}, {v(vMx)}', 7 if o.fpoll & 1 else o.wdep, fast=o.fpoll & 1)
    def vm_loads():
        for k in range(3):
            A(f'buffer_load_dwordx4 {v(vHvm)}, {s(WS,4)}, {s(sCur)} offen offset:{k*1024} sc1 lds')
    afl = f'buffer_store_dword {v(vTfD)}, {v(vEf)}, {s(WS,4)}, {s(sXB)} offen{ST}'
    if o.af == 1: A(afl)
    vm_loads()
    if o.af == 2: A(afl)
    self.stamp('wo', 'bf'); self.tl0(10); self.tl0(12, 1)
    sxl = [f'buffer_load_dwordx4 {v(SX+4*p,4)}, {v(vHsc)}, {s(WS,4)}, {s(sCur)} offen offset:{p*1280} sc1' for p in range(3)]
    sml = [f'buffer_load_dword {v(SM+p)}, {v(vHscm)}, {s(WS,4)}, {s(sCur)} offen offset:{p*1280} sc1' for p in range(3)]
    vrd = lambda tt: f'ds_read_b64_tr_b16 {v(VMo+4*tt,2)}, {v(vVr0)} offset:{tt*1024}\nds_read_b64_tr_b16 {v(VMo+4*tt+2,2)}, {v(vVr1)} offset:{tt*1024}'
    usm = [f'v_smfmac_f32_16x16x64_bf16 {v(Uacc+4*ct,4)}, {v(VMo+4*tt,4)}, {a(WOr+24*ct+8*tt,8)}, {v(vIdxU)}' for tt in range(3) for ct in range(4)]
    upost = []
    for ct in range(4):
        u = Uacc + 4*ct
        upost += [f'v_pk_add_f32 {v(u,2)}, {v(u,2)}, {v(u+2,2)}',
                  f'v_cvt_pk_bf16_f32 {v(Y+8*ct+2)}, {v(u)}, {v(u+1)}', f'v_cvt_pk_bf16_f32 {v(Y+8*ct+6)}, {v(u)}, {v(u+1)}']
    uw = [f'ds_write_b32 {v(vYUs)}, {v(Y+8*ct+2)} offset:{ct*6144 + 8}' for ct in range(4)]
    Ltail = f'L_wo_tail{t}'
    A(f's_cmp_eq_u32 {s(sS)}, {o.nsteps-1}\ns_cbranch_scc1 {Ltail}')
    y = 1 if o.af == 2 else 0
    for tt in range(3):
        A(f's_waitcnt vmcnt({2 - tt + y})'); A(vrd(tt))
        if tt == 0 and o.af == 3: A(afl); y += 1
        if tt == o.spos:
            for x in sxl: A(x)
            y += 3
            if o.af == 4: A(afl); y += 1
    if o.mpos < 0:
        for x in sml: A(x)
    self.stamp('wo', 'vm')
    for n, x in enumerate(usm):
        if n in (0, 4, 8): A(f's_waitcnt lgkmcnt({4 - n//2})')
        A(x)
        if o.mpos >= 0 and 0 <= n - o.mpos < 3: A(sml[n - o.mpos])
    def vm_exact(L_):
        A.label(L_)
        vm_loads(); self.budget()
        A(f'v_add_u32 v5, {s(sVmM0)}, {v(vL16)}\ns_waitcnt vmcnt(0)')
        for k in range(3): A(f'ds_read_b128 {v(VMo+4*k,4)}, v5 offset:{1024*k}')
        A(f's_waitcnt lgkmcnt(0)\nv_max_u32 v4, {v(VMo)}, {v(VMo+1)}')
        for i in range(1, 6): A(f'v_max3_u32 v4, v4, {v(VMo+2*i)}, {v(VMo+2*i+1)}')
        A(f'v_cmp_eq_u32 vcc, -1, v4\ns_cbranch_vccnz {L_}')
        for tt in range(3): A(vrd(tt))
        for i in range(16): A(f'v_mov_b32 {v(Uacc+i)}, 0')
        A('s_waitcnt lgkmcnt(0)')
        for x in usm: A(x)
    self.stamp('wo', 'u')
    Lsc, Lsp, Lsg = A.uid('L_sc'), A.uid('L_sp'), A.uid('L_sg')
    s0 = ep
    A.label(Lsc)
    up = list(upost)
    def U(n=2): return '\n'.join(up.pop(0) for _ in range(min(n, len(up))))
    ya = 1 if o.af == 4 else 0
    A(f'''{U(o.un)}
    s_waitcnt vmcnt({4 + ya})
    v_pk_add_f32 {v(s0,2)}, {v(SX,2)}, {v(SX+4,2)}
    v_pk_add_f32 {v(s0+2,2)}, {v(SX+2,2)}, {v(SX+6,2)}
    s_waitcnt vmcnt({3 + ya})
    v_pk_add_f32 {v(s0,2)}, {v(s0,2)}, {v(SX+8,2)}
    v_pk_add_f32 {v(s0+2,2)}, {v(s0+2,2)}, {v(SX+10,2)}
    v_pk_mul_f32 {v(s0,2)}, {v(s0,2)}, {v(cc2,2)}
    v_pk_mul_f32 {v(s0+2,2)}, {v(s0+2,2)}, {v(cc2,2)}
    v_max3_f32 {v(vMx)}, {v(s0)}, {v(s0+1)}, {v(s0+2)}
    s_waitcnt vmcnt(0)
    v_add_f32 {v(vPk)}, {v(SM)}, {v(SM+1)}
    v_add_f32 {v(vPk)}, {v(vPk)}, {v(SM+2)}
    v_mul_f32 {v(vPk)}, {v(vPk)}, {v(cc2)}
    v_max3_f32 {v(vMx)}, {v(vMx)}, {v(s0+3)}, {v(vPk)}
    {U()}
    v_max_f32_dpp {v(vMy)}, {v(vMx)}, {v(vMx)} quad_perm:[2,3,0,1] row_mask:0xf bank_mask:0xf
    v_max_f32_dpp {v(vMx)}, {v(vMx)}, {v(vMx)} quad_perm:[2,3,0,1] row_mask:0xf bank_mask:0xf
    {U()}
    v_permlane16_swap_b32 {v(vMx)}, {v(vMy)}
    v_max_f32 {v(vMx)}, {v(vMx)}, {v(vMy)}
    v_mov_b32 {v(vMy)}, {v(vMx)}
    {U()}''')
    self.stamp('wo', 'sc')
    lq = [0, 6, 1, 7, 2, 8, 3, 9, 4, 10, 5, 11]
    A(f'''v_permlane32_swap_b32 {v(vMx)}, {v(vMy)}
    v_max_f32 {v(mm2)}, {v(vMx)}, {v(vMy)}
    v_pk_add_f32 {v(s0,2)}, {v(s0,2)}, {v(mm2,2)} op_sel_hi:[1,0] neg_lo:[0,1] neg_hi:[0,1]
    v_pk_add_f32 {v(s0+2,2)}, {v(s0+2,2)}, {v(mm2,2)} op_sel_hi:[1,0] neg_lo:[0,1] neg_hi:[0,1]
    v_sub_f32 {v(vPk)}, {v(vPk)}, {v(mm2)}
    v_exp_f32 {v(s0)}, {v(s0)}
    v_exp_f32 {v(s0+1)}, {v(s0+1)}
    v_exp_f32 {v(s0+2)}, {v(s0+2)}
    v_exp_f32 {v(s0+3)}, {v(s0+3)}
    v_exp_f32 {v(vPk)}, {v(vPk)}
    v_cvt_pk_bf16_f32 {v(PA)}, {v(s0)}, {v(s0+1)}
    v_cvt_pk_bf16_f32 {v(PA+2)}, {v(s0+2)}, {v(s0+3)}
    v_cvt_pk_bf16_f32 {v(PA+1)}, {v(vPk)}, 0
    v_cvt_pk_bf16_f32 {v(PA+3)}, {v(vPk)}, 0
    {U()}
    v_smfmac_f32_16x16x64_bf16 {v(Dsum,4)}, {v(PA,4)}, {v(ONES,8)}, {v(vIdxP)}
    {U()}''')
    for ct in range(4):
        A(f'v_smfmac_f32_16x16x64_bf16 {v(D+4*ct,4)}, {v(PA,4)}, {v(Y+8*ct,8)}, {v(vIdxP)}')
        if ct == 0: A(U())
        if ct == 2: A(f'v_add_f32 {v(Dsum)}, {v(Dsum)}, {v(Dsum+2)}\nv_add_f32 {v(Dsum+1)}, {v(Dsum+1)}, {v(Dsum+3)}')
    assert not up
    A(f'''v_rcp_f32 {v(Dsum)}, {v(Dsum)}
    v_rcp_f32 {v(Dsum+1)}, {v(Dsum+1)}''')
    for ct in range(4):
        A(f'v_pk_add_f32 {v(D+4*ct,2)}, {v(D+4*ct,2)}, {v(D+4*ct+2,2)}')
        A(f'v_pk_mul_f32 {v(D+4*ct,2)}, {v(D+4*ct,2)}, {v(Dsum,2)}')
        A(f'v_cvt_pk_bf16_f32 {v(ep+ct)}, {v(D+4*ct)}, {v(D+4*ct+1)}')
        if ct & 1: A(f'ds_write2st64_b32 {v(vEW)}, {v(ep+ct-1)}, {v(ep+ct)} offset0:{ct-1} offset1:{ct}')
    self.stamp('wo', 'e')
    A(f'v_cmp_u_f32 vcc, {v(D)}, {v(D+1)}')
    if o.flpos == 'e': flag_issue()
    zr = [f'v_mov_b32 {v(x)}, 0' for x in list(range(D, D+16)) + list(range(Dsum, Dsum+4))]
    for x in zr[:9]: A(x)
    A(f's_cbranch_vccnz {Lsp}')
    A.label(Lsg)
    A(f'''s_waitcnt lgkmcnt(0)
    s_barrier
    ds_read_b64_tr_b16 {v(Eop,2)}, {v(vER)}
    ds_read_b64_tr_b16 {v(Eop+2,2)}, {v(vER)} offset:128''')
    for x in zr[9:]: A(x)
    A(f'''s_waitcnt lgkmcnt(0)
    v_mfma_f32_16x16x32_bf16 {v(acc,4)}, {v(Eop,4)}, {v(SELB,4)}, 0''')
    if o.flpos == 'r': flag_issue()
    for q in range(2): A(f'v_cvt_pk_bf16_f32 {v(ep+q)}, {v(acc+2*q)}, {v(acc+2*q+1)}')
    if o.w1 & 1:
        A(f'''v_cndmask_b32 {v(ep)}, {v(ep)}, {v(ep+1)}, s[60:61]
        buffer_store_dword {v(ep)}, {v(vPclr)}, {s(WS,4)}, {s(sPartOff)} offen sc1
        buffer_store_dword {v(ep)}, {v(vPst0)}, {s(WS,4)}, {s(sPartOff)} offen sc1''')
    else: A(f'buffer_store_dwordx2 {v(ep,2)}, {v(vPst0)}, {s(WS,4)}, {s(sPartOff)} offen sc1')
    self.stamp('wo', 'pp'); self.tl0(11); self.tl0(13, 1)
    def cold_sc():
        A(f's_cmp_eq_u32 {s(sMk)}, {s(sS)}\ns_cbranch_scc1 {Lsg}\ns_mov_b32 {s(sMk)}, {s(sS)}')
        self.count(1, 'wo')
        A.label(Lsp + 's')
        for x in sxl + sml: A(x)
        self.budget()
        A(f's_waitcnt vmcnt(0)\nv_max3_u32 v4, {v(SM)}, {v(SM+1)}, {v(SM+2)}')
        for i in range(6): A(f'v_max3_u32 v4, v4, {v(SX+2*i)}, {v(SX+2*i+1)}')
        A(f'v_cmp_eq_u32 vcc, -1, v4\ns_cbranch_vccnz {Lsp}s')
        for x in zr[9:]: A(x)
        vm_exact(Lsp + 'v')
        A(f's_branch {Lsc}')
    self.cold.append((Lsp, cold_sc))
    b = o.slowpos
    def clr(k):
        return lambda: A(f's_add_u32 {s(sF0)}, {s(sOst2 if o.clate else sPartClr)}, {8192*k}\nbuffer_store_dword {v(vN4)}, {v(vPclr)}, {s(WS,4)}, {s(sF0)} offen{" sc1" if k < o.ncopy else ST}')
    ncl = o.ncopy + (1 if o.loc else 0)
    clears = [clr(k) for k in range(ncl)]
    slow = clears if o.clate else []
    ny = 1 + (o.w1 & 1) + (0 if o.clate else ncl)
    L1 = A.uid('L_g')
    def ohook(h):
        if h == 0 and not o.clate:
            for f in clears: f()
        if h == 1:
            for x in nxt2: A(x)
    for x in uw: A(x)
    outpart(ohook)
    flag_wait(ny)
    if not o.x & 1: px_dma()
    for x in opack: A(x)
    A(f'buffer_store_dwordx4 {v(oacc,4)}, {v(vOloc)}, {s(WS,4)}, {s(sOst)} offen{ST}')
    self.stamp('wo', 'op')
    fl = list(nxtA)
    st = {'i': 0, 'last': 0}
    def yhook(n):
        if st['i'] < min(o.nvx, len(lq)) and n >= 8 * (st['i'] // 2 + 1) and n >= o.vx0 and n - st['last'] >= 2:
            if not o.x & 1: vx_loads(lq[st['i']], lq[st['i']] + 1)
            st['i'] += 1; st['last'] = n
            return
        if not fl and slow and n >= o.slowpos: slow.pop(0)(); return
        for _ in range(3):
            if fl: A(fl.pop(0))
    post = yx(yhook)
    if not o.x & 1:
        for k in lq[st['i']:o.nvx]: vx_loads(k, k + 1)
    for f in slow: f()
    self.stamp('wo', 'yx')
    for x in post + nxtB: A(x)
    if not o.x & 1:
        for k in lq[o.nvx:]: vx_loads(k, k + 1)
    self.stamp('wo', 'g1'); self.tr_flush('wo')
    A(f's_branch {LP}')
    A.label(Ltail)
    self.tl(5)
    vm_exact(A.uid('L_tv'))
    for x in upost + uw: A(x)
    n = o.nsteps
    tslot = lambda d: 4 - d
    for k, d in enumerate((-5, -4)):
        A(f's_add_u32 {s(sT1)}, {s(sXB)}, {((n - 1 + d) & 3) * OL_SLOT}\nbuffer_load_dwordx4 {v(D+4*k,4)}, {v(vOloc)}, {s(WS,4)}, {s(sT1)} offen sc1')
    for x in set_px(-1): A(x)
    flag_issue()
    self.side0()
    A(f'v_xor_b32 {v(vOst)}, {s(sT0)}, {v(vOst)}\nv_xor_b32 {v(vOl)}, {s(sT0)}, {v(vOl)}\ns_waitcnt lgkmcnt(0)\ns_barrier')
    flag_wait(None); px_dma()
    def keep(dst):
        for i in range(4): A(f'v_mov_b32 {v(dst+i)}, {v(oacc+i)}')
    def part(d):
        for x in set_outpart(d): A(x)
        outpart()
        for x in opack: A(x)
    keep(D + 8); part(-2); keep(D + 12)
    A('s_waitcnt vmcnt(0)\ns_barrier')
    part(-1); keep(PA)
    older = ((-5, D), (-4, D + 4), (-3, D + 8), (-2, D + 12), (-1, PA))
    def stores(lst):
        for d, src in lst:
            A(f's_mov_b32 {s(sOst)}, {OUTP + tslot(d)*OUTP_SLOT}'); out_store(src)
    def loads(lst):
        for d, r_ in lst:
            A(f's_mov_b32 {s(sOl)}, {OUTP + tslot(d)*OUTP_SLOT}'); fin_issue(r_)
    def gather(lst, younger=None):
        Lc = A.uid('L_fp')
        if younger is not None: A(f's_waitcnt vmcnt({younger})\ns_branch {Lc}c')
        A.label(Lc)
        loads(lst); self.budget()
        A('s_waitcnt vmcnt(0)')
        A.label(Lc + 'c')
        A(f'v_mov_b32 {v(vMx)}, 0')
        for _, r_ in lst:
            for i in (0, 2): A(f'v_max3_u32 {v(vMx)}, {v(vMx)}, {v(r_+i)}, {v(r_+i+1)}')
        A(f'v_cmp_eq_u32 vcc, -1, {v(vMx)}\ns_cbranch_vccnz {Lc}')
        for d, r_ in lst:
            A(f's_mov_b32 {s(sOutRow)}, {(n-1+d)*32*2560}'); fin_done(r_)
    got = ((-5, Yacc), (-4, Yacc + 4), (-3, Yacc + 8), (-2, Yacc + 12), (-1, SX))
    if o.tw: stores(older)
    self.tl(9)
    for x in set_px(0) + set_outpart(0): A(x)
    self.spin(f'buffer_load_dword {v(vFlD)}, {v(vFlA)}, {s(WS,4)}, {s(sXB)} offen sc1', f'v_cmp_lt_i32 vcc, {v(vFlD)}, {v(vFlTs)}', 6, fast=True)
    px_dma()
    self.tl(6)
    A('s_waitcnt vmcnt(0)\ns_barrier')
    if o.tw: loads(got)
    else: stores(older)
    outpart()
    for x in opack: A(x)
    stores(((0, oacc),))
    if o.tw:
        gather(got, 1)
        A('s_waitcnt vmcnt(5)')
        gather(((0, SX + 4),))
    else:
        A('s_waitcnt vmcnt(0)')
        gather(((0, SX + 4),) + got)
    self.hd(11); self.stamp_out('wo'); self.tl(7, True)
    A('s_endpgm')
```

```python
import math
from asmlib import v, a, s

def part_a(G):
    import gen as g
    from gen import RA, f32, sW, sG, sR, sT0, sT1, sT2, sT3, R0, R1, R2, OUT, P_AX, P_AW, P_AWO, OOB
    A = G.A
    CH = 20480; NB = 4
    RS = 168
    LQ = NB * CH; LK = LQ + 128 * RS; LV = LK + 128 * RS
    CA = 20 ** -0.5 * math.log2(math.e)
    r = RA(10, 248)
    vD = r(5, 1)
    vRd, vRds, vWq, vWs, vOst, vAq, vAk, vAqs, vAks, vPos, vMx, vSum, vBig, vOr = [r() for _ in range(14)]
    OV = r(64, 4)
    bf = r(40, 4); acc = r(40, 4); pk = r(16, 4)
    t = RA(bf + 20, pk + 16)
    q = t(10, 2); kk = t(20, 2); lg = t(8, 2); pp = t(16, 2); o = t(20, 2)
    sRow0, sM, sCol, sNcol, sNkc, sNm, sBufR, sBufW, sHG, sC, sIt, sLeft, sG0, sCnt, sBlk = range(40, 55)
    xfrag = lambda rt, K: a(80*rt + 4*K, 4)
    def oreg(rt, K, half=None):
        i = 4 * (20*rt + K); n = 4
        if half is not None: i += 2*half; n = 2
        return a(160 + i, n) if i < 96 else v(OV + i - 96, n)

    A.label('L_pa_body')
    G.tl(3)
    A(f'''s_sub_u32 {s(sT0)}, {s(sR)}, {g.R_PA}
    s_cmp_ge_u32 {s(sT0)}, 3
    s_cbranch_scc1 L_pa_end
    s_mul_i32 {s(sG0)}, {s(sT0)}, {3 if G.o.arot == 1 else 0}
    s_add_u32 {s(sG0)}, {s(sG0)}, {s(sG)}
    s_and_b32 {s(sG0)}, {s(sG0)}, {7 if G.o.arot else 0}
    s_cmp_eq_u32 {s(sT0)}, 0
    s_cselect_b32 {s(sT1)}, 0x76543210, 0
    s_cmp_eq_u32 {s(sT0)}, 1
    s_cselect_b32 {s(sT1)}, {'0x54c321b0' if G.o.amap else '0x76543210'}, {s(sT1)}
    s_cmp_eq_u32 {s(sT0)}, 2
    s_cselect_b32 {s(sT1)}, {'0xf9ea87d6' if G.o.amap else '0xfedcba98'}, {s(sT1)}
    s_lshl_b32 {s(sT2)}, {s(sG)}, 2
    s_lshr_b32 {s(sT1)}, {s(sT1)}, {s(sT2)}
    s_and_b32 {s(sT1)}, {s(sT1)}, 15
    s_min_u32 {s(sT0)}, {s(sT0)}, 1
    s_lshl_b32 {s(sT0)}, {s(sT0)}, 3
    s_add_u32 {s(sBlk)}, {s(sT0)}, {s(sT1)}
    s_mul_i32 {s(sRow0)}, {s(sBlk)}, 112
    s_lshl_b32 {s(sT0)}, {s(sW)}, 5
    s_add_u32 {s(sRow0)}, {s(sRow0)}, {s(sT0)}
    s_sub_u32 {s(sRow0)}, {s(sRow0)}, 16        ; first row of this wave''')
    G.srd(R0, P_AX, 2048 * 640 * 2); G.srd(R1, P_AW, 640 * 1920 * 2); G.srd(R2, P_AWO, 640 * 640 * 2)
    G.lanes()
    for rt in range(2):
        A(f'''s_add_u32 {s(sT0)}, {s(sRow0)}, {16*rt}
        v_add_u32 v3, {s(sT0)}, v1
        v_cmp_gt_u32 vcc, 2048, v3
        v_mul_u32_u24 v3, 1280, v3
        v_lshl_add_u32 v3, v2, 4, v3
        v_mov_b32 v4, {OOB}
        v_cndmask_b32 v3, v4, v3, vcc''')
        for ks in range(20):
            A(f'buffer_load_dwordx4 {xfrag(rt, ks)}, v3, {s(R0,4)}, 0 offen offset:{64*ks}')
    def dma_addr(stride):
        for n in range(5):
            A(f'''v_add_u32 v3, {64*n}, v0
            v_mul_u32_u24 v4, 6554, v3
            v_lshrrev_b32 v4, 16, v4
            v_mul_u32_u24 v5, 10, v4
            v_sub_u32 v5, v3, v5
            v_and_b32 v6, 19, v4
            v_and_b32 v7, 4, v4
            v_lshl_or_b32 v6, v7, 1, v6
            v_and_b32 v7, 8, v4
            v_lshrrev_b32 v7, 1, v7
            v_or_b32 v6, v6, v7
            s_lshl_b32 {s(sT0)}, {s(sW)}, 5
            v_add_u32 v6, {s(sT0)}, v6
            v_mul_u32_u24 v6, {stride}, v6
            v_lshl_add_u32 {v(vD+n)}, v5, 4, v6''')
    dma_addr(3840)
    A(f'''v_lshrrev_b32 v3, 2, v1                 ; r
    v_and_b32 v4, 3, v1                           ; cc
    v_and_b32 v5, 1, v2
    v_lshl_add_u32 v3, v5, 2, v3
    v_lshrrev_b32 v6, 1, v2
    v_lshl_add_u32 v3, v6, 4, v3
    v_mul_u32_u24 v3, 160, v3
    v_lshl_add_u32 {v(vRd)}, v4, 3, v3
    s_lshl_b32 {s(sT0)}, {s(sW)}, 5
    v_add_u32 v3, {s(sT0)}, v1
    v_mul_u32_u24 v3, {RS}, v3
    v_add_u32 v3, {LQ}, v3
    v_lshl_add_u32 {v(vWq)}, v2, 3, v3
    v_lshl_add_u32 {v(vOr)}, v2, 4, v3
    v_add_u32 {v(vOr)}, -32, {v(vOr)}
    v_lshl_add_u32 v3, v5, 4, v1
    v_add_u32 v4, {s(sT0)}, v3
    v_add_u32 v3, {s(sRow0)}, v3
    v_cmp_le_u32 {s(sT2,2)}, 16, v4
    v_cmp_gt_u32 vcc, 2048, v3
    s_and_b64 vcc, vcc, {s(sT2,2)}
    v_mul_u32_u24 v3, 2560, v3
    v_lshl_add_u32 v3, v6, 4, v3
    v_mov_b32 v4, {OOB}
    v_cndmask_b32 {v(vOst)}, v4, v3, vcc
    v_and_b32 v3, 31, v0
    v_add_u32 {v(vPos)}, {s(sRow0)}, v3
    v_add_u32 v3, {s(sT0)}, v3
    v_mul_u32_u24 v3, {RS}, v3
    v_lshrrev_b32 v4, 5, v0
    v_mul_u32_u24 v4, 40, v4
    v_add_u32 v3, v3, v4
    v_add_u32 {v(vAq)}, {LQ}, v3
    v_add_u32 {v(vAk)}, {LK - 14*RS}, v3
    v_mov_b32 {v(vBig)}, {f32(-1e9 * 20 ** 0.5)}
    s_mov_b32 {s(sC)}, {f32(CA)}''')

    def rot(reg):
        return [f's_add_u32 {s(reg)}, {s(reg)}, {CH}', f's_cmp_eq_u32 {s(reg)}, {NB*CH}', f's_cselect_b32 {s(reg)}, 0, {s(reg)}']
    def dma(srd, stride, qkv, lds=True):
        x = [f's_mul_i32 {s(sT0)}, {s(sW)}, 5120', f's_add_u32 m0, {s(sT0)}, {s(sBufW)}',
             f's_mul_i32 {s(sT1)}, {s(sNkc)}, {128*stride}', f's_add_u32 {s(sT1)}, {s(sT1)}, {s(sNcol) if not G.o.x & 4096 else 0}']
        for n in range(5):
            x.append(f'buffer_load_dwordx4 {v(vD+n)}, {s(srd,4)}, {s(sT1)} offen{" sc1" if G.o.nt & 64 else ""}{" nt" if G.o.nt & 8 else ""} lds' if lds else f'buffer_load_dwordx4 v[248:251], {v(vD+n)}, {s(srd,4)}, {s(sT1)} offen')
            if n < 4: x.append('s_add_u32 m0, m0, 1024')
        y = x; x = []
        x += rot(sBufW)
        x += [f's_cmp_lg_u32 {s(sLeft)}, 0', f's_cselect_b32 {s(sT0)}, 1, 0', f's_sub_u32 {s(sLeft)}, {s(sLeft)}, {s(sT0)}',
              f's_add_u32 {s(sNkc)}, {s(sNkc)}, {s(sT0)}', f's_cmp_eq_u32 {s(sNkc)}, 5', f's_cselect_b32 {s(sNkc)}, 0, {s(sNkc)}']
        if qkv:
            x += [f's_cselect_b32 {s(sT0)}, 1280, 0', f's_addc_u32 {s(sNm)}, {s(sNm)}, 0', f's_add_u32 {s(sNcol)}, {s(sNcol)}, {s(sT0)}',
                  f's_cmp_eq_u32 {s(sNm)}, 3', f's_cselect_b32 {s(sNm)}, 0, {s(sNm)}', f's_cselect_b32 {s(sT0)}, {3840 - 160}, 0',
                  f's_cmp_eq_u32 {s(sNcol)}, {3840 + 1120}', f's_cselect_b32 {s(sT0)}, {s(sNcol)}, {s(sT0)}',
                  f's_sub_u32 {s(sNcol)}, {s(sNcol)}, {s(sT0)}']
        else:
            x += [f's_cselect_b32 {s(sT0)}, 160, 0', f's_add_u32 {s(sNcol)}, {s(sNcol)}, {s(sT0)}',
                  f's_cmp_eq_u32 {s(sNcol)}, 1280', f's_cselect_b32 {s(sNcol)}, 0, {s(sNcol)}']
        return y[:5] + x + y[5:]
    def rd(ks, ct):
        b = bf + 20*(ks & 1) + 4*ct
        return [f'ds_read_b64_tr_b16 {v(b + 2*eh, 2)}, {v(vRds)} offset:{ks*5120 + eh*1280 + ct*32}' for eh in range(2)]
    def next_chunk():
        A(f'v_add_u32 {v(vRds)}, {s(sBufR)}, {v(vRd)}\ns_waitcnt vmcnt(10) lgkmcnt(0)\ns_barrier')
        return [x for ct in range(5) for x in rd(0, ct)]
    def block(srd, stride, qkv, frag):
        for kc in range(5):
            fl = rot(sBufR) + dma(srd, stride, qkv)
            first = []; n = 0; last = -9
            for ks in range(4):
                for ct in range(5):
                    if ks == 3 and ct == 2:
                        assert not fl
                        first = next_chunk()
                    if ks < 3 or ct < 2: A(f's_waitcnt lgkmcnt({8 if ks < 3 else 8 - 2*ct})')
                    nx = rd(ks + 1, ct) if ks < 3 else []
                    for rt in range(2):
                        d = v(acc + 8*ct + 4*rt, 4); K = 4*kc + ks
                        A(f'v_mfma_f32_16x16x32_bf16 {d}, {v(bf + 20*(ks & 1) + 4*ct, 4)}, {frag(rt, K)}, {d if K else 0}' if not (G.o.x & 8192 and K) else 's_nop 1')
                        n += 1
                        if nx: A(nx[rt])
                        for _ in range(2):
                            if first: A(first.pop(0))
                        for _ in range(2):
                            if fl and (not fl[0].startswith('buffer') or n - last >= 5):
                                if fl[0].startswith('buffer'): last = n
                                A(fl.pop(0))
    def stream_start(nchunks):
        A(f'''s_mov_b32 {s(sBufR)}, 0
        s_mov_b32 {s(sBufW)}, 0
        s_mul_i32 {s(sNcol)}, {s(sG0)}, 160
        s_mov_b32 {s(sNkc)}, 0
        s_mov_b32 {s(sNm)}, 0
        s_mov_b32 {s(sLeft)}, {nchunks - 1}
        s_mov_b32 {s(sHG)}, {s(sG0)}
        s_mov_b32 {s(sCnt)}, 0''')
    def phase_start(srd, stride, qkv, nchunks):
        if not qkv: A('s_waitcnt vmcnt(0) lgkmcnt(0)\ns_barrier')
        stream_start(nchunks)
        for _ in range(3):
            for x in dma(srd, stride, qkv): A(x)
        for x in next_chunk(): A(x)
    A(f's_cmp_lt_u32 {s(sBlk)}, 19\ns_cbranch_scc1 L_pa_rows')
    if G.o.xwarm:
        G.srd(g.R3, g.P_BX, 2048 * 640 * 2)
        A(f'''s_sub_u32 {s(sT0)}, {s(sBlk)}, 19
        s_lshl_b32 {s(sT0)}, {s(sT0)}, 2
        s_add_u32 {s(sT0)}, {s(sT0)}, {s(sW)}
        s_lshl_b32 {s(sT0)}, {s(sT0)}, 11
        v_lshl_add_u32 v3, v0, 4, {s(sT0)}
        s_mov_b32 {s(sT1)}, {6*40960}
        L_pa_xw:
        buffer_load_dwordx4 v[248:251], v3, {s(g.R3,4)}, {s(sT1)} offen{" nt" if G.o.xwarm == 2 else ""}
        buffer_load_dwordx4 v[248:251], v3, {s(g.R3,4)}, {s(sT1)} offen offset:1024{" nt" if G.o.xwarm == 2 else ""}
        s_add_u32 {s(sT1)}, {s(sT1)}, 40960
        s_waitcnt vmcnt(20)
        s_cmp_lt_u32 {s(sT1)}, {64*40960}
        s_cbranch_scc1 L_pa_xw''')
        if G.o.partA == 2 or G.o.nt & 16: A('s_branch L_pa_end')
    for srd, stride, qkv, n in ((R1, 3840, True, 46), (R2, 1280, False, 41)):
        if not qkv: dma_addr(1280)
        stream_start(n)
        L = A.uid('L_pa_pf'); A.label(L)
        for x in dma(srd, stride, qkv, False): A(x)
        A(f's_waitcnt vmcnt(20)\ns_cmp_lg_u32 {s(sLeft)}, 0\ns_cbranch_scc1 {L}')
    A('s_branch L_pa_end\nL_pa_rows:')
    if G.o.partA == 2: A('s_branch L_pa_end')
    def cvt(ct):
        for rt in range(2):
            for i in range(2):
                b = acc + 8*ct + 4*rt + 2*i
                A(f'v_cvt_pk_bf16_f32 {v(pk + 2*rt + i)}, {v(b)}, {v(b+1)}')

    phase_start(R1, 3840, True, 120)
    G.tl(4)
    A.label('L_pa_grp')
    G.tl(8)
    A(f's_mov_b32 {s(sM)}, 0')
    A.label('L_pa_blk')
    block(R1, 3840, True, xfrag)
    A(f'v_add_u32 {v(vWs)}, {s(sM)}, {v(vWq)}')
    for ct in range(5):
        cvt(ct)
        A(f'ds_write_b64 {v(vWs)}, {v(pk,2)} offset:{32*ct}\nds_write_b64 {v(vWs)}, {v(pk+2,2)} offset:{32*ct + 16*RS}')
    A(f'''s_waitcnt lgkmcnt(0)
    s_add_u32 {s(sM)}, {s(sM)}, {128*RS}
    s_cmp_lt_u32 {s(sM)}, {3*128*RS}
    s_cbranch_scc1 L_pa_blk
    s_barrier
    s_mov_b32 {s(sIt)}, 0''')
    G.tl(9)
    A.label('L_pa_att')
    A(f'v_add_u32 {v(vAks)}, {s(sIt)}, {v(vAk)}\nv_add_u32 {v(vAqs)}, {s(sIt)}, {v(vAq)}')
    for i in range(5): A(f'ds_read_b64 {v(q+2*i,2)}, {v(vAqs)} offset:{8*i}')
    def rdk(j, base):
        for i in range(5): A(f'ds_read_b64 {v(kk + 10*(j&1) + 2*i, 2)}, {v(vAks)} offset:{base + (14-2*j)*RS + 8*i}')
    rdk(0, 0)
    for j in range(8):
        if j < 7: rdk(j + 1, 0)
        else: rdk(0, LV - LK)
        A('s_waitcnt lgkmcnt(5)')
        for i in range(10):
            A(f'v_dot2_f32_bf16 {v(lg+j)}, {v(q+i)}, {v(kk + 10*(j&1) + i)}, {v(lg+j) if i else 0}')
    for j in range(1, 8):
        A(f'v_cmp_le_i32 vcc, {2*j}, {v(vPos)}\nv_cndmask_b32 {v(lg+j)}, {v(vBig)}, {v(lg+j)}, vcc')
    A(f'v_max_f32 {v(vMx)}, {v(lg)}, {v(lg+1)}')
    for j in range(2, 8, 2): A(f'v_max3_f32 {v(vMx)}, {v(vMx)}, {v(lg+j)}, {v(lg+j+1)}')
    for j in range(8): A(f'v_sub_f32 {v(lg+j)}, {v(lg+j)}, {v(vMx)}')
    for j in range(8): A(f'v_mul_f32 {v(lg+j)}, {s(sC)}, {v(lg+j)}')
    for j in range(8): A(f'v_exp_f32 {v(lg+j)}, {v(lg+j)}')
    A(f'v_add_f32 {v(vSum)}, {v(lg)}, {v(lg+1)}')
    for j in range(2, 8): A(f'v_add_f32 {v(vSum)}, {v(vSum)}, {v(lg+j)}')
    A(f'v_rcp_f32 {v(vSum)}, {v(vSum)}')
    for j in range(8):
        A(f'''v_mul_f32 {v(lg+j)}, {v(lg+j)}, {v(vSum)}
        v_cvt_pk_bf16_f32 {v(pp+2*j)}, {v(lg+j)}, 0
        v_cvt_pk_bf16_f32 {v(pp+2*j+1)}, 0, {v(lg+j)}''')
    for j in range(8):
        if j < 7: rdk(j + 1, LV - LK)
        A(f's_waitcnt lgkmcnt({5 if j < 7 else 0})')
        for i in range(10):
            for h in range(2):
                A(f'v_dot2_f32_bf16 {v(o+2*i+h)}, {v(kk + 10*(j&1) + i)}, {v(pp+2*j+h)}, {v(o+2*i+h) if j else 0}')
    for i in range(10): A(f'v_cvt_pk_bf16_f32 {v(q+i)}, {v(o+2*i)}, {v(o+2*i+1)}')
    for i in range(5): A(f'ds_write_b64 {v(vAqs)}, {v(q+2*i,2)} offset:{8*i}')
    A(f'''s_waitcnt lgkmcnt(0)
    s_add_u32 {s(sIt)}, {s(sIt)}, 80
    s_cmp_lt_u32 {s(sIt)}, 160
    s_cbranch_scc1 L_pa_att''')
    G.tl(10)
    for hg in range(8):
        if hg < 7: A(f's_cmp_lg_u32 {s(sHG)}, {hg}\ns_cbranch_scc1 L_pa_o{hg+1}')
        K0 = 5 * (hg // 2)
        steps = [(K0, 32, None), (K0 + 1, 96, None), (K0 + 2, 160, 'lo')] if hg % 2 == 0 else [(K0 + 2, 0, 'hi'), (K0 + 3, 64, None), (K0 + 4, 128, None)]
        for K, off, part in steps:
            if part == 'lo': A('s_mov_b32 exec_hi, 0')
            if part == 'hi': A('s_mov_b32 exec_lo, 0')
            for rt in range(2):
                for half in range(2):
                    A(f'ds_read_b64 {oreg(rt, K, half)}, {v(vOr)} offset:{off + rt*16*RS + 8*half}')
            if part: A('s_mov_b64 exec, -1')
        if hg < 7: A(f's_branch L_pa_oe\nL_pa_o{hg+1}:')
    A(f'''L_pa_oe:
    s_waitcnt lgkmcnt(0)
    s_add_u32 {s(sHG)}, {s(sHG)}, 1
    s_and_b32 {s(sHG)}, {s(sHG)}, 7
    s_cmp_lg_u32 {s(sHG)}, {s(sG0)}
    s_cbranch_scc1 L_pa_grp''')
    dma_addr(1280)
    phase_start(R2, 1280, False, 40)
    A(f's_mul_i32 {s(sCol)}, {s(sG0)}, 160')
    G.tl(11)
    A.label('L_pa_oblk')
    block(R2, 1280, False, oreg)
    for ct in range(5):
        cvt(ct)
        A(f'''v_permlane16_swap_b32 {v(pk)}, {v(pk+2)}
        v_permlane16_swap_b32 {v(pk+1)}, {v(pk+3)}
        buffer_store_dwordx4 {v(pk,4)}, {v(vOst)}, {s(OUT,4)}, {s(sCol)} offen offset:{32*ct}{' sc1' if G.o.osc & 2 else ''}''')
    A(f'''s_add_u32 {s(sCol)}, {s(sCol)}, 160
    s_cmp_eq_u32 {s(sCol)}, 1280
    s_cselect_b32 {s(sCol)}, 0, {s(sCol)}
    s_add_u32 {s(sCnt)}, {s(sCnt)}, 1
    s_cmp_lt_u32 {s(sCnt)}, 8
    s_cbranch_scc1 L_pa_oblk''')
    A.label('L_pa_end')
    A('s_waitcnt vmcnt(0)')
    if G.o.wb & 1: A('buffer_wbl2 sc1\ns_waitcnt vmcnt(0)')
    G.hd(13); G.tl(7, True)
    A('s_endpgm')
```

```python
from asmlib import v, a, s
from gen import *

def proj(self, QK):
    A = self.A; t = self.tag; ST = self.st; o = self.o
    role = 'qkv' if QK else 'v'
    LA = 2 if QK else 3
    LX0, LX1, LS2, LMISC = 0, 40960, 81920, 122880
    LMEM = LMISC; LT = LMEM + 10240; LKX = LT + 2048
    r = RA(10, 240)
    vXdma, vXb0, vXb1, vMd4, vMd1, vProbe, vA0, vIdx, vPr, vXst, vFl, vBF, vNeg, vTW, vTR0, vPrA = [r() for _ in range(16)]
    Aop = r(40, 4); acc = r(8, 4); Z = r(8, 4); xf = r(24, 4); xacc = r(16, 4); pk = r(8, 4); tq = r(2, 2)
    if QK:
        (vTR1, vSCst, vKMst, vKxW, vKxR, vKF, vKxWs, vKxRs, vPl0, vPl1, vPl2, vPl3, vTrig, vTrD, vMst, vMclr, vSclr, vMx, vMy) = [r() for _ in range(19)]
        Kx = r(8, 4); S = r(4, 4); PB = r(16, 4); racc = r(8, 4); rp = r(4, 4); SELB = r(6, 2); SELA = SELB + 2
    else:
        vVMst, vVclr, vXF, vXp, vTrig, vTrD, vEf, vEn, vBa, vOst, vOl, vOut, vOloc, vEo = [r() for _ in range(14)]
        fw = r(8, 4); fin = r(8, 4); ft = r(8, 4); SEL2 = 160
    sB, sCur, sClr, sKmOff, sX0, sX1, sXSeg, sXbuf, sMm0, sDelta, sF0, sF1, sMark, sPart, sThr, sW0, sD1, sXp = range(40, 58)
    sLo8 = 58; sFwL, sFwS, sFinL, sFinR = sKmOff, sPart, sThr, 60
    A.label(f'L_{role}{t}')
    if QK:
        self.srd(R0, P_WQ, 640 * 6144 * 2); self.srd(R1, P_WK, 640 * 6144 * 2)
        A(f's_mov_b32 {s(sB)}, {s(sR)}')
    else:
        self.srd(R0, P_WV, 640 * 6144 * 2)
        A(f's_sub_u32 {s(sB)}, {s(sR)}, {R_V}\ns_lshl_b32 {s(sB)}, {s(sB)}, 1')
    self.srd(R3, P_BX, 2048 * 640 * 2)
    self.lanes()
    vWdma = pk; vWr = pk + 1
    A(f'''v_lshrrev_b32 v3, 3, v0              ; r8
    v_and_b32 v4, 7, v0                        ; pp
    s_lshl_b32 {s(sT0)}, {s(sW)}, 3
    v_add_u32 v5, {s(sT0)}, v3
    s_and_b32 {s(sT1)}, {s(sW)}, 1
    s_lshl_b32 {s(sT1)}, {s(sT1)}, 2
    v_and_b32 v6, 2, v3
    v_or_b32 v6, {s(sT1)}, v6
    v_xor_b32 v6, v6, v4
    v_lshlrev_b32 v6, 4, v6
    v_mul_u32_u24 v7, 12288, v5
    s_mul_i32 {s(sT2)}, {s(sG)}, 1536
    s_lshl_b32 {s(sT3)}, {s(sB)}, 7
    s_add_u32 {s(sT2)}, {s(sT2)}, {s(sT3)}
    v_add3_u32 {v(vWdma)}, v6, v7, {s(sT2)}
    v_lshrrev_b32 v6, 1, v3
    v_or_b32 v6, {s(sT1)}, v6
    v_xor_b32 v6, v6, v4
    v_lshlrev_b32 v6, 4, v6
    v_mul_u32_u24 v7, 1280, v5
    v_add_u32 {v(vXdma)}, v6, v7''')
    def xdma_begin(buf_s_or_imm):
        A(f's_lshl_b32 {s(sT0)}, {s(sW)}, 10\ns_add_u32 m0, {s(sT0)}, {buf_s_or_imm}')
    def xdma(ln):
        A(f'buffer_load_dwordx4 {v(vXdma)}, {s(R3,4)}, {s(sXSeg)} offen offset:{ln*128}{" nt" if QK and o.nt & 32 else (" sc1" if o.nt & 128 else "")} lds')
        if ln < 9: A('s_add_u32 m0, m0, 3968')
    stages = [(1, 0), (0, 0), (1, 1), (0, 1)]
    bufs = [LS2, LX1, LMISC]
    def wdma(i):
        m, half = stages[i]
        srd = (R0, R1)[m] if QK else R0
        A(f's_lshl_b32 {s(sT0)}, {s(sW)}, 10\ns_add_u32 m0, {s(sT0)}, {bufs[i%3]}\ns_mov_b32 {s(sT1)}, {half*320*12288 + (0 if QK else 128*m)}')
        for k in range(10):
            A(f'buffer_load_dwordx4 {v(vWdma)}, {s(srd,4)}, {s(sT1)} offen{" nt" if o.nt & 2 else ""} lds')
            if k < 9: A(f's_add_u32 m0, m0, 4096\ns_add_u32 {s(sT1)}, {s(sT1)}, {32*12288}')
    self.tl(4)
    wdma(0)

    def head_part(b, hl, p):
        A(f's_mul_i32 {s(hl)}, {s(b)}, 86\ns_lshr_b32 {s(hl)}, {s(hl)}, 8\ns_mul_i32 {s(p)}, {s(hl)}, 3\ns_sub_u32 {s(p)}, {s(b)}, {s(p)}')
    sHl, sP, sHl1, sP1 = 60, 61, 62, 63
    head_part(sB, sHl, sP)
    A(f's_add_u32 {s(sT0)}, {s(sB)}, 1'); head_part(sT0, sHl1, sP1)
    A(f'''v_lshrrev_b32 v3, 1, v2
    v_and_b32 v5, 1, v2
    s_lshl_b32 {s(sT0)}, {s(sW)}, 9
    v_lshlrev_b32 v6, 4, v1
    v_lshl_add_u32 v6, v3, 8, v6
    v_add_u32 v6, {s(sT0)}, v6
    s_mul_i32 {s(sT0)}, {s(sHl)}, 12288
    s_lshl_b32 {s(sT1)}, {s(sP)}, 11
    s_add_u32 {s(sT0)}, {s(sT0)}, {s(sT1)}
    v_mul_u32_u24 v7, 6144, v5
    v_add3_u32 {v(vXst)}, v6, v7, {s(sT0)}
    v_mov_b32 {v(vNeg)}, -1''')
    if QK:
        A(f'''s_mov_b32 {s(sD1)}, {KX - QX}
        v_lshl_add_u32 {v(vKxW)}, v5, 11, v6
        v_add_u32 {v(vKxW)}, {LKX}, {v(vKxW)}''')
        A(f'''s_mul_i32 {s(sT0)}, {s(sB)}, 1280
        s_add_u32 {s(sT0)}, {s(sT0)}, {SC}
        v_lshlrev_b32 v6, 1, v5
        v_or_b32 v7, v6, v3                        ; bitswap(g)
        v_lshl_add_u32 v7, v7, 4, v1
        v_lshlrev_b32 v7, 2, v7
        v_add_u32 v7, 1024, v7
        v_or_b32 v6, v6, v1
        v_lshl_add_u32 v6, v3, 4, v6
        v_lshlrev_b32 v6, 4, v6
        s_sub_u32 {s(sT1)}, {s(sW)}, 1
        s_lshl_b32 {s(sT1)}, {s(sT1)}, 9
        v_add_u32 v6, {s(sT1)}, v6
        s_cmp_eq_u32 {s(sW)}, 0
        s_cselect_b64 vcc, -1, 0
        v_cndmask_b32 v6, v6, v7, vcc
        v_add_u32 {v(vSCst)}, {s(sT0)}, v6
        s_lshl_b32 {s(sT1)}, {s(sW)}, 8
        s_add_u32 {s(sT1)}, {s(sT1)}, {s(sT0)}
        v_lshl_add_u32 {v(vSclr)}, v0, 2, {s(sT1)}
        v_and_b32 v4, 2, v1''')
        self.oob_unless(vSCst, 'v_cmp_eq_u32 vcc, 0, v4')
        A(f'''s_lshl_b32 {s(sT0)}, {s(sB)}, 10
        v_lshrrev_b32 v3, 2, v1
        v_lshlrev_b32 v3, 1, v3
        v_and_b32 v6, 1, v1
        v_or_b32 v3, v3, v6
        v_lshl_add_u32 v3, v2, 3, v3
        v_lshl_add_u32 {v(vKMst)}, v3, 4, {s(sT0)}''')
        self.oob_unless(vKMst, 'v_cmp_ne_u32 vcc, 0, v4')
        A(f'''v_and_b32 v6, 9, v1
        v_lshl_or_b32 v6, v4, 1, v6
        v_and_b32 v7, 4, v1
        v_lshrrev_b32 v7, 1, v7
        v_or_b32 v6, v6, v7
        v_lshlrev_b32 v6, 4, v6
        v_lshl_add_u32 v6, v2, 8, v6
        s_cmp_eq_u32 {s(sW)}, 2
        s_cselect_b32 {s(sT0)}, 2048, 0
        s_add_u32 {s(sT0)}, {s(sT0)}, {LKX}
        v_add_u32 {v(vKxR)}, {s(sT0)}, v6''')
        A(f'''s_lshl_b32 {s(sT0)}, {s(sHl)}, 7
        s_lshl_b32 {s(sT1)}, {s(sP)}, 2
        s_add_u32 {s(sT1)}, {s(sT1)}, {s(sT0)}
        s_add_u32 {s(sT1)}, {s(sT1)}, {KF}
        s_cmp_eq_u32 {s(sW)}, 3
        s_cselect_b32 {s(sT1)}, {s(sT1)}, {OOB}
        s_cselect_b32 {s(sW0)}, -1, {0 if o.onep else -1}
        v_mov_b32 {v(vKF)}, {s(sT1)}''')
        self.oob_unless(vKF, 'v_cmp_eq_u32 vcc, 0, v0')
        A(f'v_add_u32 {v(vBF)}, {BF - KF}, {v(vKF)}')
        A(f'''s_mul_i32 {s(sT0)}, {s(sR)}, {PBLK}
        {'s_lshl_b32 %s, %s, 11' % (s(sT1), s(sW)) if not o.lay else 's_and_b32 %s, %s, 1' % (s(sT1), s(sW)) + chr(10) + 's_mul_i32 %s, %s, %d' % (s(sT1), s(sT1), o.lay & 0xffff) + chr(10) + 's_add_u32 %s, %s, %s' % (s(sT0), s(sT0), s(sT1)) + chr(10) + 's_lshr_b32 %s, %s, 1' % (s(sT1), s(sW)) + chr(10) + 's_mul_i32 %s, %s, %d' % (s(sT1), s(sT1), o.lay >> 16)}
        s_add_u32 {s(sT0)}, {s(sT0)}, {s(sT1)}
        s_lshl_b32 {s(sT2)}, {s(sR)}, 10
        s_lshl_b32 {s(sT1)}, {s(sW)}, 8
        s_add_u32 {s(sT2)}, {s(sT2)}, {s(sT1)}
        s_cmp_lt_u32 {s(sR)}, 10
        s_cselect_b32 {s(sT0)}, {s(sT0)}, {OOB}
        s_cselect_b32 {s(sT2)}, {s(sT2)}, {OOB}
        s_lshl_b32 {s(sT1)}, {s(sG)}, 8
        v_lshlrev_b32 v3, 4, v0
        v_xor_b32 v3, {s(sT1)}, v3
        v_add_u32 {v(vPl0)}, {s(sT0)}, v3
        v_xor_b32 v3, 1024, v3
        v_add_u32 {v(vPl1)}, {s(sT0)}, v3
        s_min_u32 {s(sT0)}, {s(sR)}, 9
        s_lshl_b32 {s(sT0)}, {s(sT0)}, 7
        s_add_u32 {s(sT0)}, {s(sT0)}, {TF}
        s_add_u32 {s(sT0)}, {s(sT0)}, {s(sXB)}
        v_and_b32 v3, {0 if o.tone else 3}, v0
        v_lshl_add_u32 {v(vTrig)}, v3, 2, {s(sT0)}
        {f's_add_u32 {s(sT0)}, {s(sXB)}, {GF}' + chr(10) + f'v_mov_b32 {v(vTrig)}, {s(sT0)}' if o.eown else ''}
        v_lshl_add_u32 {v(vMclr)}, v0, 2, {s(sT2)}
        v_lshlrev_b32 v3, 3, v1
        v_lshl_add_u32 v3, v2, 6, v3
        v_add_u32 {v(vMst)}, {s(sT2)}, v3''')
        self.oob_unless(vMst, 'v_cmp_gt_u32 vcc, 8, v1')
        self.sel_consts(SELB, 1 if o.w1 & 2 else 0)
        A(f's_mov_b32 s58, 0xaaaaaaaa\ns_mov_b32 s59, 0xaaaaaaaa')
    else:
        A(f'''s_mul_i32 {s(sD1)}, {s(sHl1)}, 12288
        s_lshl_b32 {s(sT1)}, {s(sP1)}, 11
        s_add_u32 {s(sD1)}, {s(sD1)}, {s(sT1)}
        s_sub_u32 {s(sD1)}, {s(sD1)}, {s(sT0)}
        s_lshl_b32 {s(sT0)}, {s(sB)}, 10
        s_lshl_b32 {s(sT1)}, {s(sW)}, 8
        s_add_u32 {s(sT1)}, {s(sT1)}, {s(sT0)}
        s_add_u32 {s(sT1)}, {s(sT1)}, {VM}
        v_lshl_add_u32 {v(vVclr)}, v0, 2, {s(sT1)}
        v_and_b32 v6, 60, v0
        v_bfe_u32 v7, v0, 1, 1
        v_or_b32 v6, v6, v7
        v_and_b32 v7, 1, v0
        v_lshl_or_b32 v6, v7, 1, v6
        s_and_b32 {s(sT0)}, {s(sW)}, 1
        s_lshl_b32 {s(sT0)}, {s(sT0)}, 3
        v_xor_b32 v6, {s(sT0)}, v6
        v_lshl_add_u32 {v(vVMst)}, v6, 2, {s(sT1)}''')
        A(f'''s_lshl_b32 {s(sT0)}, {s(sHl)}, 5
        s_lshl_b32 {s(sT1)}, {s(sHl1)}, 5
        v_mov_b32 v3, {s(sT0)}
        v_mov_b32 v4, {s(sT1)}
        v_mov_b32 v6, {s(sP)}
        v_mov_b32 v7, {s(sP1)}
        v_cmp_eq_u32 vcc, 0, v0
        v_cndmask_b32 v3, v4, v3, vcc
        v_cndmask_b32 v6, v7, v6, vcc
        v_add_u32 v4, v3, v6
        s_cmp_eq_u32 {s(sW)}, 3
        s_cselect_b32 {s(sT1)}, 0, {OOB}
        s_add_u32 {s(sT1)}, {s(sT1)}, {BF + 12}
        v_lshl_add_u32 {v(vBF)}, v4, 2, {s(sT1)}
        v_lshl_add_u32 v4, v6, 2, v3
        s_lshl_b32 {s(sT1)}, {s(sW)}, 2
        s_add_u32 {s(sT1)}, {s(sT1)}, {XF}
        v_lshl_add_u32 {v(vXF)}, v4, 2, {s(sT1)}''')
        self.oob_unless(vBF, 'v_cmp_gt_u32 vcc, 2, v0')
        A(f'''v_cndmask_b32 {v(vXF)}, v9, {v(vXF)}, vcc
        s_lshl_b32 {s(sT0)}, {s(sB)}, 1
        s_add_u32 {s(sT0)}, {s(sT0)}, {s(sW)}
        s_sub_u32 {s(sT0)}, {s(sT0)}, 4
        s_lshl_b32 {s(sT0)}, {s(sT0)}, 11
        s_cmp_eq_u32 {s(sB)}, 0
        s_cselect_b32 {s(sT0)}, {OOB}, {s(sT0)}
        v_lshl_add_u32 {v(vXp)}, v0, 4, {s(sT0)}
        v_mov_b32 {v(vTrig)}, {GF if o.eown else TF}''')
    A(f'''v_lshrrev_b32 v3, 2, v1              ; r = c>>2
    v_and_b32 v4, 3, v1                        ; cc
    v_and_b32 v5, 1, v2                        ; g&1
    v_lshl_add_u32 v6, v2, 3, v3
    v_lshlrev_b32 v6, 7, v6                    ; (8g+r)*128
    v_and_b32 v7, 2, v3
    v_lshl_or_b32 v7, v5, 2, v7                ; f
    v_lshrrev_b32 v8, 1, v4
    s_lshl_b32 {s(sT0)}, {s(sW)}, 1
    v_or_b32 v8, {s(sT0)}, v8
    v_xor_b32 v7, v7, v8
    v_lshl_add_u32 v6, v7, 4, v6
    v_and_b32 v7, 1, v4
    v_lshl_add_u32 v6, v7, 3, v6''')
    for i in range(3): A(f'v_add_u32 {v(vWr+i)}, {bufs[i]}, v6')
    A(f's_lshl_b32 {s(sT0)}, {s(sW)}, 9\ns_add_u32 {s(sT0)}, {s(sT0)}, {LT}')
    if QK:
        for eh, reg in ((0, vTR0), (1, vTR1)):
            A(f'''v_xor_b32 v6, {eh}, v5
            v_lshl_add_u32 v6, v6, 2, v3
            v_lshl_add_u32 v6, v2, 3, v6
            v_lshlrev_b32 v6, 5, v6
            v_lshl_or_b32 v7, v5, 1, {eh}
            v_xor_b32 v7, v7, v4
            v_lshl_add_u32 v6, v7, 3, v6
            v_add_u32 {v(reg)}, {LT}, v6''')
        A(f'''v_lshrrev_b32 v6, 3, v1
        v_lshlrev_b32 v6, 2, v6
        v_xor_b32 v6, v6, v1
        v_lshlrev_b32 v6, 5, v6
        v_xor_b32 v7, v2, v3
        v_lshl_add_u32 v6, v7, 3, v6
        v_add_u32 {v(vTW)}, {s(sT0)}, v6''')
    A(f'''v_and_b32 v7, 2, v1
    v_cmp_ne_u32 vcc, 0, v7
    v_mov_b32 v6, 0x4444
    v_mov_b32 v8, 0xeeee
    v_cndmask_b32 {v(vIdx)}, v6, v8, vcc
    v_lshlrev_b32 v6, 4, v0
    v_add_u32 {v(vA0)}, {LMEM}, v6
    s_mul_i32 {s(sT0)}, {s(sW)}, 2560
    v_lshl_add_u32 {v(vMd4)}, v0, 4, {s(sT0)}
    v_lshl_add_u32 {v(vMd1)}, v0, 2, {s(sT0)}
    s_add_u32 {s(sMm0)}, {s(sT0)}, {LMEM}
    v_mul_u32_u24 v6, {0 if o.noprobe else 40}, v0
    v_add_u32 {v(vProbe)}, {s(sMm0)}, v6
    v_mul_u32_u24 v6, {0 if o.noprobe else 164}, v0
    v_min_u32 v6, 10236, v6
    v_add_u32 {v(vPrA)}, {LMEM}, v6
    v_lshrrev_b32 v6, 3, v1
    v_lshlrev_b32 v6, 10, v6
    v_and_b32 v7, 7, v1
    v_lshl_add_u32 v6, v7, 7, v6
    v_lshrrev_b32 v7, 1, v1
    v_xor_b32 v7, v7, v2
    v_lshl_add_u32 {v(vXb0)}, v7, 4, v6
    v_xor_b32 {v(vXb1)}, 64, {v(vXb0)}''')
    if QK:
        A(f'''s_and_b32 {s(sT1)}, {s(sG)}, 1
        s_lshl_b32 {s(sT1)}, {s(sT1)}, 12
        s_lshr_b32 {s(sT2)}, {s(sG)}, 2
        s_lshl_b32 {s(sT2)}, {s(sT2)}, 13
        s_add_u32 {s(sT1)}, {s(sT1)}, {s(sT2)}
        s_and_b32 {s(sT2)}, {s(sG)}, 2
        s_lshl_b32 {s(sT2)}, {s(sT2)}, 13
        s_add_u32 {s(sT1)}, {s(sT1)}, {s(sT2)}
        s_add_u32 {s(sT1)}, {s(sT1)}, {EF}
        v_lshrrev_b32 v4, 2, v0
        v_lshl_add_u32 v3, v4, 9, {s(sT1)}
        v_cmp_ne_u32 {s(sT2,2)}, {s(sG)}, v4
        v_cmp_gt_u32 vcc, 32, v0
        s_and_b64 vcc, vcc, {s(sT2,2)}
        s_and_b32 vcc_lo, vcc_lo, {s(sW0)}
        v_cndmask_b32 {v(vTrig)}, {v(vTrig)}, v3, vcc
        v_cndmask_b32 {v(vMy)}, 0, -1, vcc''')
    else:
        A(f'''v_and_b32 v3, 1, v0
        v_lshlrev_b32 v3, 12, v3
        v_bfe_u32 v5, v0, 2, 1
        v_lshl_add_u32 v3, v5, 13, v3
        v_bfe_u32 v4, v0, 1, 1
        v_lshl_add_u32 v3, v4, 14, v3
        s_lshl_b32 {s(sT1)}, {s(sG)}, 9
        s_add_u32 {s(sT1)}, {s(sT1)}, {EF}
        s_xor_b32 {s(sW0)}, {s(sW)}, 3
        s_or_b32 {s(sW0)}, {s(sW0)}, {s(sB)}
        s_cselect_b32 {s(sT1)}, {OOB}, {s(sT1)}
        s_cselect_b32 {s(sT2)}, {OOB}, 0
        s_add_u32 {s(sT2)}, {s(sT2)}, {GF}
        v_mov_b32 {v(vEo)}, {s(sT2)}
        v_add_u32 {v(vEf)}, {s(sT1)}, v3''')
        self.oob_unless(vEo, 'v_cmp_eq_u32 vcc, 0, v0')
        self.oob_unless(vEf, 'v_cmp_gt_u32 vcc, 8, v0')
        self.oob_unless(vEf, f'v_cmp_ne_u32 vcc, {s(sG)}, v0')
        A(f'''s_lshr_b32 {s(sT1)}, {s(sG)}, 2
        v_cmp_eq_u32 vcc, {s(sT1)}, v5
        v_cndmask_b32 {v(vEn)}, v9, {v(vEf)}, vcc
        v_cndmask_b32 {v(vEf)}, {v(vEf)}, v9, vcc
        v_and_b32 v3, 7, v0
        v_min_u32 v3, 5, v3
        v_bfe_u32 v4, v0, 3, 2
        v_lshlrev_b32 v4, 7, v4
        v_lshl_add_u32 v3, v3, 2, v4
        v_add_u32 {v(vBa)}, {BF + 32}, v3
        {'v_min_u32 v3, 39, v0' + chr(10) + 'v_lshlrev_b32 v3, 2, v3' + chr(10) + f'v_add_u32 {v(vBa)}, {AF}, v3' if o.af else ''}
        s_lshl_b32 {s(sT3)}, {s(sB)}, 1
        s_add_u32 {s(sT3)}, {s(sT3)}, {s(sW)}
        s_lshl_b32 {s(sT3)}, {s(sT3)}, 1
        s_sub_u32 {s(sT3)}, {s(sT3)}, 8''')
        self.out_addr(sT3, vOst, vOl, vOut, vOloc, sLo8, SEL2)
        A(f's_cmp_lg_u32 {s(sB)}, 0\ns_cselect_b64 vcc, -1, 0')
        for reg in (vOst, vOl, vOut, vOloc): A(f'v_cndmask_b32 {v(reg)}, v9, {v(reg)}, vcc')
    def sides():
        if QK:
            Lpf = A.uid('L_pf')
            A(f'v_mov_b32 v5, {PARF}')
            A.label(Lpf)
            A(f'buffer_load_dword v6, v5, {s(WS,4)}, {s(sXB)} offen sc1')
            self.side0()
            A(f'''v_readfirstlane_b32 {s(sT1)}, v6
            s_cmp_eq_u32 {s(sT1)}, 0
            s_cbranch_scc1 {Lpf}
            s_and_b32 {s(sT1)}, {s(sT1)}, 2
            s_lshl_b32 {s(sT1)}, {s(sT1)}, 12
            v_add_u32 {v(vPl0)}, {s(sT1)}, {v(vPl0)}
            v_add_u32 {v(vPl1)}, {s(sT1)}, {v(vPl1)}
            v_and_b32 v3, {s(sT0)}, {v(vMy)}
            v_xor_b32 {v(vTrig)}, v3, {v(vTrig)}''')
            if o.tl: A(f'v_writelane_b32 v255, {s(sT1)}, 20')
        else:
            self.side0()
            for reg in (vEf, vEn, vOst, vOl): A(f'v_xor_b32 {v(reg)}, {s(sT0)}, {v(reg)}')
    wdma(1); wdma(2)
    A(f's_mov_b32 {s(sXSeg)}, 0'); xdma_begin(LX0)
    for ln in range(10): xdma(ln)
    self.tl(5)
    waits = [30, 30, 30, 10]
    self.tl(6)
    for i in range(4):
        m, half = stages[i]
        A(f's_waitcnt vmcnt({waits[i]})\ns_barrier')
        for ks in range(10):
            for eh in range(2):
                A(f'ds_read_b64_tr_b16 {a(80*m + 4*(half*10+ks) + 2*eh, 2)}, {v(vWr + i%3)} offset:{ks*4096 + eh*512}')
        A('s_waitcnt lgkmcnt(0)')
        if i < 2: A('s_barrier')
        if i == 0: wdma(3)
        if i == 1:
            A(f's_mov_b32 {s(sXSeg)}, 40960'); xdma_begin(LX1)
            for ln in range(10): xdma(ln)
        self.tl(8 + i)

    XD = 3
    TD = o.edep if o.epos else 4
    def xrd1(ks, rt):
        A(f'ds_read_b128 {v(xf + 8*(ks%XD) + 4*rt, 4)}, {v(vXb1 if ks & 1 else vXb0)} offset:{(ks>>1)*4096 + rt*2048}')
    def xrd(ks):
        for rt in range(2): xrd1(ks, rt)
    def xstores():
        if o.x & 16: return
        for m in range(2): A(f'buffer_store_dwordx4 {v(pk+4*m,4)}, {v(vXst)}, {s(WS,4)}, {s((sX0, sX1)[m])} offen{ST}')
    def mem_dma():
        A(f'''buffer_load_dwordx4 {v(vMd4)}, {s(WS,4)}, {s(sCur)} offen sc1 lds
        buffer_load_dwordx4 {v(vMd4)}, {s(WS,4)}, {s(sCur)} offen offset:1024 sc1 lds
        buffer_load_dword {v(vMd1)}, {s(WS,4)}, {s(sCur)} offen offset:2048 sc1 lds
        buffer_load_dword {v(vMd1)}, {s(WS,4)}, {s(sCur)} offen offset:2304 sc1 lds''')
    trig = f'buffer_load_dword {v(vTrD)}, {v(vTrig)}, {s(WS,4)}, 0 offen sc1'
    def trig_load(): A(trig)
    def part_loads(cp, dst):
        A(f'''buffer_load_dwordx4 {v(PB+8*dst,4)}, {v(vPl0)}, {s(WS,4)}, {s(sPart)} offen sc1
        buffer_load_dwordx4 {v(PB+8*dst+4,4)}, {v(vPl1)}, {s(WS,4)}, {s(sPart)} offen sc1''')
    def red_wait():
        self.stamp(role, 't0')
        self.spin(trig, f'v_cmp_gt_u32 vcc, {s(sThr)}, {v(vTrD)}', TD, True, fast=o.fpoll & 2)
        A('s_barrier')
    def red_try(b, younger, Lfail):
        A(f'''s_waitcnt vmcnt({younger + 1})
        v_mfma_f32_16x16x32_bf16 {v(racc,4)}, {v(b,4)}, {v(SELB,4)}, 0
        s_waitcnt vmcnt({younger})
        v_mfma_f32_16x16x32_bf16 {v(racc,4)}, {v(b+4,4)}, {v(SELB,4)}, {v(racc,4)}
        v_pk_add_f32 {v(racc+4,2)}, {v(racc,2)}, {v(racc+2,2)}
        v_cmp_u_f32 vcc, {v(racc+4)}, {v(racc+5)}''')
        for q in range(2): A(f'v_cvt_pk_bf16_f32 {v(rp+q)}, {v(racc+2*q)}, {v(racc+2*q+1)}')
        if o.w1 & 2: A(f'v_cndmask_b32 {v(rp)}, {v(rp)}, {v(rp+1)}, s[58:59]')
        A(f's_cbranch_vccnz {Lfail}')
    def red_sum(order):
        Lp, Lc = A.uid('L_pp'), A.uid('L_pc')
        self.stamp(role, 'gi')
        red_try(PB, sum({'X': 2, 'g': 1}.get(x, 0) for x in order), Lp)
        A.label(Lc)
        A(f'buffer_store_dword {v(rp)}, {v(vMclr)}, {s(WS,4)}, {s(sCur)} offen{ST}' if o.w1 & 2 else f'buffer_store_dwordx2 {v(rp,2)}, {v(vMst)}, {s(WS,4)}, {s(sCur)} offen{ST}')
        self.stamp(role, 'mp')
        if o.dump:
            A(f'''s_and_b32 {s(sT1)}, {s(sG)}, 6
            s_mul_i32 {s(sT0)}, {s(sS)}, {2*MEM_SLOT}
            s_and_b32 {s(sT2)}, {s(sG)}, 1
            s_mul_i32 {s(sT2)}, {s(sT2)}, {MEM_SLOT}
            s_add_u32 {s(sT0)}, {s(sT0)}, {s(sT2)}
            s_add_u32 {s(sT0)}, {s(sT0)}, {DUMP + (2<<20) - 2*MEM_SLOT}
            s_cmp_eq_u32 {s(sT1)}, 0
            s_cselect_b32 {s(sT0)}, {s(sT0)}, {DUMP}
            buffer_store_dwordx2 {v(rp,2)}, {v(vMst)}, {s(WS,4)}, {s(sT0)} offen''')
        def cold():
            for k in range(2):
                b = PB + 8*k
                if k: A.label(f'{Lp}_1')
                part_loads(k ^ 1, k ^ 1)
                self.count(1 if k == 0 else 1000); self.budget()
                A(f'v_max_u32 {v(vMx)}, {v(b)}, {v(b+1)}')
                for i in range(1, 4): A(f'v_max3_u32 {v(vMx)}, {v(vMx)}, {v(b+2*i)}, {v(b+2*i+1)}')
                A(f'v_cmp_eq_u32 vcc, -1, {v(vMx)}\ns_cbranch_vccz {Lc}')
                red_try(PB + 8*(k ^ 1), 0, f'{Lp}_1' if k == 0 else Lp)
                A(f's_branch {Lc}')
        self.cold.append((Lp, cold))

    def fin_loads():
        A(f's_cmp_lt_i32 {s(sFinR)}, 0\ns_cselect_b32 {s(sFinL)}, {s(sXB)}, {s(sFinL)}')
        for k in range(2): A(f'buffer_load_dwordx4 {v(fin+4*k,4)}, {v(vOl)}, {s(WS,4)}, {s(sFinL)} offen offset:{1024*k} sc1')
    def fin_out():
        Lf = A.uid('L_fin')
        A(f's_cmp_lt_i32 {s(sFinR)}, 0\ns_cbranch_scc1 {Lf}')
        a0, a1 = [self.fin_rows(fin + 4*k, ft + 4*k, vOut, sFinR, sLo8, SEL2, 32*k) for k in range(2)]
        for x, y in zip(a0, a1): A(x); A(y)
        A.label(Lf)
    def forward(younger):
        Lf = A.uid('L_fw')
        A(f's_waitcnt vmcnt({younger})\ns_cmp_lt_i32 {s(sFinR)}, {-3*32*2560}\ns_cbranch_scc1 {Lf}c')
        A.label(Lf)
        for k in range(2): A(f'buffer_store_dwordx4 {v(fw+4*k,4)}, {v(vOst)}, {s(WS,4)}, {s(sFwS)} offen offset:{1024*k} sc1')
        def cold():
            for i in range(8): A(f'v_mov_b32 {v(fw+i)}, -1')
            A(f's_add_u32 {s(sFwS)}, {s(sFwS)}, {7*OUTP_SLOT}')
            for k in range(2): A(f'buffer_store_dwordx4 {v(fw+4*k,4)}, {v(vOst)}, {s(WS,4)}, {s(sFwS)} offen offset:{1024*k} sc1')
            A(f's_sub_u32 {s(sFwS)}, {s(sFwS)}, {3*OUTP_SLOT}\ns_branch {Lf}')
        self.cold.append((Lf + 'c', cold))

    def gemm(dma, fill=(), loop=False, xflag=False, ann=False):
        fill = list(fill)
        if not loop: xrd(0); xrd(1)
        vm = []
        st = {'flag': not (loop and QK), 'ta': (200 if QK else 64) if loop else 0, 'n': 0, 'clr': 0}
        def clr(reg, off):
            A(f'buffer_store_dword {v(vNeg)}, {v(reg)}, {s(WS,4)}, {s(sClr)} offen offset:{off}{ST}'); st['clr'] -= 1
        if loop and not QK and not ann:
            vm.append((128, lambda: [A(f'buffer_load_dwordx4 {v(fw+4*k,4)}, {v(vOloc)}, {s(WS,4)}, {s(sFwL)} offen offset:{1024*k} sc1') for k in range(2)]))
            vm.append((128, fin_loads))
            vm.append((128, lambda: [A(f'buffer_load_dwordx4 v[248:251], {v(vXp)}, {s(R3,4)}, {s(sXp)} offen offset:{1024*k}') for k in range(2)]))
            vm.append((128, lambda: forward(4)))
        if loop:
            for reg, off in (((vSclr, 0), (vMclr, 0), (vSclr, 256)) if QK else ((vVclr, 0), (vVclr, 1024))):
                vm.append((24, lambda reg=reg, off=off: clr(reg, off))); st['clr'] += 1
        if dma:
            xdma_begin(s(sXbuf))
            vm += [(64, lambda k=k: xdma(k) if not (loop and o.x & 256) else None) for k in range(10)]
        if xflag: vm.insert(5, (24, lambda: A(f's_waitcnt vmcnt(5)\nbuffer_store_dword {v(vFl)}, {v(vXF)}, {s(WS,4)}, {s(sXB)} offen{ST}')))
        if loop and QK:
            vm.insert(o.fp, (24, lambda: (A(f's_waitcnt vmcnt({o.fp})\nbuffer_store_dword {v(vFl)}, {v(vKF)}, {s(WS,4)}, {s(sXB)} offen{ST}'), st.update(flag=True))))
        ev = []; order = []
        if loop and QK:
            ev = [(o.k1 - d, trig_load) for d in range(o.esp*(TD - 1), 0, -o.esp)] + [(o.k1, red_wait)]
            half = lambda h: A(f'buffer_load_dwordx4 {v(PB+4*h,4)}, {v((vPl0, vPl1)[h])}, {s(WS,4)}, {s(sPart)} offen sc1')
            ev.append((o.k1 + o.ka, lambda: half(0)))
            ev.append((o.k1 + o.ka + o.ksplit, lambda: (half(1), self.stamp(role, 't1'), order.append('A'))))
            assert [e[0] for e in ev] == sorted(e[0] for e in ev)
        if ann:
            ev = [(o.epos + d, lambda reg=reg: A(f'buffer_store_dword {v(vFl)}, {v(reg)}, {s(WS,4)}, 0 offen sc1')) for reg, d in ((vEf, 0), (vEn, o.enear))]
            if o.eown: ev.append((o.epos + o.eown, lambda: A(f'buffer_store_dword {v(vFl)}, {v(vEo)}, {s(WS,4)}, {s(sXB)} offen{ST}')))
        def events(n):
            k = 0
            while ev and ev[0][0] <= n:
                if ev[0][1] is red_wait: assert not vm and not fill, (len(vm), len(fill))
                ev.pop(0)[1](); k += 1
            return k
        def mf(m, ks, rt):
            d = v(xacc + 8*m + 4*rt, 4)
            A('s_nop 3' if (loop and o.x & 64 and ks) else f'v_mfma_f32_16x16x32_bf16 {d}, {a(80*m + 4*ks, 4)}, {v(xf + 8*(ks%XD) + 4*rt, 4)}, {d if ks else 0}')
            st['n'] += 1
            return 2 * events(st['n'])
        A('s_waitcnt lgkmcnt(2)')
        for ks in range(18):
            for n in range(4):
                used = mf(n // 2, ks, n & 1)
                if n < 2 and not (loop and o.x & 128 and ks > 0): xrd1(ks + 2, n); used += 1
                if n == 2 and vm and not (ann and o.eown and ev) and st['ta'] <= 16 * st['n'] + ((o.tslack if QK else o.tslackv) if loop else 0):
                    c, f = vm.pop(0); f(); st['ta'] += c; used += 2
                    if c < 64 and vm and vm[0][0] < 64 and st['clr']: c, f = vm.pop(0); f(); st['ta'] += c
                if n == 3: A(f's_waitcnt lgkmcnt({2 if ks < 17 else 0})'); used += 1
                for _ in range(o.fd - used):
                    if fill: A(fill.pop(0))
        assert not fill and (not QK or not vm)
        while vm: vm.pop(0)[1]()
        def epi(m):
            x = []
            for rt in range(2):
                for i in range(2):
                    b = xacc + 8*m + 4*rt + 2*i
                    x.append(f'v_cvt_pk_bf16_f32 {v(pk + 4*m + 2*rt + i)}, {v(b)}, {v(b+1)}')
            x.append(f'v_permlane16_swap_b32 {v(pk+4*m)}, {v(pk+4*m+2)}')
            x.append(f'v_permlane16_swap_b32 {v(pk+4*m+1)}, {v(pk+4*m+3)}')
            if m == 1 and QK: x.append(f'ds_write_b128 {v(vKxWs)}, {v(pk+4,4)}')
            return x
        tog = [f'v_add_u32 {v(vXb0)}, {s(sDelta)}, {v(vXb0)}', f'v_add_u32 {v(vXb1)}, {s(sDelta)}, {v(vXb1)}',
               f's_sub_u32 {s(sXbuf)}, {s(sXbuf)}, {s(sDelta)}', f's_sub_u32 {s(sDelta)}, 0, {s(sDelta)}']
        for m in range(2):
            for ks in (18, 19):
                for rt in range(2):
                    mf(m, ks, rt)
                    if tog: A(tog.pop(0))
        for x in epi(0) + epi(1): A(x)
        if loop and QK:
            while 'A' not in order: ev.pop(0)[1]()
            events(81)
            xstores(); order.append('X')
            A(f's_mov_b32 m0, {s(sMm0)}')
            events(999)
            red_sum(order)
            A('s_barrier')
        else:
            xstores()
            if loop and not ann: A('s_waitcnt vmcnt(18)'); fin_out()
    def set_x(seg):
        A(f'''s_add_u32 {s(sX0)}, {s(sXB)}, {S8B + seg*S8 + QX if QK else seg*S4 + VX}
        s_add_u32 {s(sX1)}, {s(sX0)}, {s(sD1)}
        s_mov_b32 {s(sXSeg)}, {40960*(seg+1)}''')
        if QK: A(f'v_add_u32 {v(vKxWs)}, {4096*seg}, {v(vKxW)}')
    L = lambda txt: [x.strip() for x in txt.split('\n') if x.strip()]
    setup = L(f'''s_and_b32 {s(sF0)}, {s(sS)}, 3
    s_mul_i32 {s(sPart)}, {s(sF0)}, {PART_SLOT}''') if QK else []
    setup += L(f'''s_add_u32 {s(sF1)}, {s(sS)}, {LA}
    s_and_b32 {s(sF0)}, {s(sF1)}, 3
    s_mul_i32 {s(sF0)}, {s(sF0)}, {S8 if QK else S4}
    s_add_u32 {s(sF0)}, {s(sF0)}, {S8B + QX if QK else VX}
    s_add_u32 {s(sX0)}, {s(sXB)}, {s(sF0)}
    s_add_u32 {s(sX1)}, {s(sX0)}, {s(sD1)}''')
    if QK: setup += L(f'''s_and_b32 {s(sF0)}, {s(sF1)}, 3
    s_lshl_b32 {s(sF0)}, {s(sF0)}, 12
    v_add_u32 {v(vKxWs)}, {s(sF0)}, {v(vKxW)}''')
    setup += L(f'''s_add_u32 {s(sS)}, {s(sS)}, 1
    s_mov_b32 {s(sMark)}, 0
    s_and_b32 {s(sF0)}, {s(sS)}, 3
    s_mul_i32 {s(sF1)}, {s(sF0)}, {S4}
    s_add_u32 {s(sCur)}, {s(sXB)}, {s(sF1)}
''')
    if QK: setup += L(f'''s_and_b32 {s(sThr)}, {s(sS)}, {s(sW0)}
    s_lshl_b32 {s(sF0)}, {s(sF0)}, 12
    v_add_u32 {v(vKxRs)}, {s(sF0)}, {v(vKxR)}
    s_add_u32 {s(sKmOff)}, {s(sCur)}, {KM}''')
    late = L(f'''s_add_u32 {s(sF0)}, {s(sS)}, 2
    s_and_b32 {s(sF0)}, {s(sF0)}, 3
    s_mul_i32 {s(sF0)}, {s(sF0)}, {S4}
    s_add_u32 {s(sClr)}, {s(sXB)}, {s(sF0)}
    s_add_u32 {s(sF0)}, {s(sS)}, {LA + 1}
    s_min_u32 {s(sF0)}, {s(sF0)}, 63
    s_mul_i32 {s(sXSeg)}, {s(sF0)}, 40960
    s_add_u32 {s(sF1)}, {s(sS)}, 1
    v_mov_b32 {v(vFl)}, {s(sF1)}
    s_mov_b32 m0, {s(sMm0)}''') + [f'v_mov_b32 {v(acc+i)}, 0' for i in range(8)]
    if not QK: late += L(f'''s_add_u32 {s(sF0)}, {s(sS)}, 6
    s_min_u32 {s(sF0)}, {s(sF0)}, 63
    s_mul_i32 {s(sXp)}, {s(sF0)}, 40960
    s_and_b32 {s(sF0)}, {s(sS)}, 3
    s_mul_i32 {s(sF1)}, {s(sF0)}, {OL_SLOT}
    s_add_u32 {s(sFwL)}, {s(sF1)}, {s(sXB)}
    s_mul_i32 {s(sF1)}, {s(sF0)}, {OUTP_SLOT}
    s_add_u32 {s(sFwS)}, {s(sF1)}, {OUTP}
    s_xor_b32 {s(sF0)}, {s(sF0)}, 2
    s_mul_i32 {s(sF1)}, {s(sF0)}, {OUTP_SLOT}
    s_add_u32 {s(sFinL)}, {s(sF1)}, {OUTP}
    s_sub_u32 {s(sF1)}, {s(sS)}, 6
    s_mul_i32 {s(sFinR)}, {s(sF1)}, {32*2560}''')

    A(f's_mov_b32 {s(sDelta)}, 40960\ns_mov_b32 {s(sXbuf)}, {LX1}\ns_mov_b32 {s(sS)}, -1')
    set_x(0)
    A(f'v_mov_b32 v1, {self.GO + (4 if self.slow else 0)}\nbuffer_load_dword v2, v1, {s(DBG,4)}, 0 offen sc1')
    gemm(False)
    self.tl(2); self.hd(8)
    self.gwait(2)
    self.tl(3)
    for seg in range(1, LA):
        A('s_waitcnt vmcnt(2) lgkmcnt(0)\ns_barrier')
        set_x(seg)
        if not QK: A(f'v_mov_b32 {v(vFl)}, {seg}')
        gemm(True, setup if seg == LA - 1 else (), xflag=not QK)
    if not QK:
        for x in late: A(x)
        A(f's_branch L_{role}_first{t}')
    if QK: A(f's_mov_b32 m0, {s(sMm0)}'); self.hd(9)
    self.tl(13)
    LP = f'L_{role}_loop{t}'
    A.label(LP)
    if not QK:
        for x in late: A(x)
        if o.vgate:
            Lv = A.uid('L_vg')
            A.label(Lv); A(f'buffer_load_dword {v(vTrD)}, {v(vTrig)}, {s(WS,4)}, {s(sXB)} offen sc1'); self.budget()
            A(f's_waitcnt vmcnt(0)\nv_cmp_gt_u32 vcc, {s(sS)}, {v(vTrD)}\ns_cbranch_vccnz {Lv}')
    if not QK: A.label(f'L_{role}_first{t}')
    Lredo, Lpoll, Lnan, Lcont = A.uid('L_redo'), A.uid('L_poll'), A.uid('L_nan'), A.uid('L_cont')
    if QK:
        late += [f'ds_read_b128 {v(Kx,4)}, {v(vKxRs)}', f'ds_read_b128 {v(Kx+4,4)}, {v(vKxRs)} offset:1024']
        for x in late[:o.nl]: A(x)
        for _ in range(o.dly): A('s_nop 3')
    mem_dma()
    if QK:
        for x in late[o.nl:]: A(x)
    self.stamp(role, 'p0')
    md = o.mq if QK else o.mv
    chk = lambda n, tgt: A(f'''s_waitcnt vmcnt({n})
    ds_read_b32 {v(vPr)}, {v(vProbe)}
    s_waitcnt lgkmcnt(0)
    v_cmp_eq_u32 vcc, -1, {v(vPr)}
    s_cbranch_vccnz {tgt}''')
    def ploop(n):
        A.label(Lpoll); mem_dma(); self.budget(); self.count(1, 'mem'); chk(n, Lpoll)
    if md == 2: ploop(4)
    else:
        chk(0, Lpoll + 'c'); A.label(Lpoll + 'x')
        self.cold.append((Lpoll + 'c', lambda: (mem_dma() if md == 3 else None, ploop(4 if md == 3 else 0), A(f's_branch {Lpoll}x'))))
    self.stamp(role, 'p1')
    A('s_barrier')
    self.stamp(role, 'b1'); self.tl0(14); self.tl0(15, 1)
    def rdA(tt):
        A(f'ds_read_b128 {v(Aop+4*tt,4)}, {v(vA0)} offset:{tt*1024}')
    def sm(m, tt):
        A(f'v_smfmac_f32_16x16x64_bf16 {v(acc+4*m,4)}, {v(Aop+4*tt,4)}, {a(80*m+8*tt,8)}, {v(vIdx)}')
    NI = o.ni if QK else 5
    seq = [(m, tt) for tt in range(NI) for m in range(2)] + [(0, tt) for tt in range(NI, 10)] + [(1, tt) for tt in range(NI, 10)]
    e0 = 10 + NI
    PRE = o.pre0 if QK else 4; issued = PRE; waited = -1
    for tt in range(PRE): rdA(tt)
    bpos = o.bpos if QK else o.bposv
    bfl = lambda off=0: A(f'buffer_store_dword {v(vFl)}, {v(vBF)}, {s(WS,4)}, {s(sXB)} offen offset:{off}{ST}')
    def zrd(u): A(f'ds_read_b64_tr_b16 {v(Z+4*u,2)}, {v(vTR0)} offset:{u*1024}\nds_read_b64_tr_b16 {v(Z+4*u+2,2)}, {v(vTR1)} offset:{u*1024}')
    def scores(src, y=0):
        A(f'''s_waitcnt lgkmcnt({2+y})
        v_mfma_f32_16x16x32_bf16 {v(S,4)}, {v(src,4)}, {v(Z,4)}, 0
        s_waitcnt lgkmcnt({y})
        v_mfma_f32_16x16x32_bf16 {v(S,4)}, {v(src+4,4)}, {v(Z+4,4)}, {v(S,4)}''')
    vst = lambda m: A(f'buffer_store_dword {v(tq+m)}, {v(vVMst)}, {s(WS,4)}, {s(sCur)} offen offset:{1024*m}{ST}')
    cvt = lambda m: A(f'v_cvt_pk_bf16_f32 {v(tq+m)}, {v(acc+4*m)}, {v(acc+4*m+1)}')
    cmpu = lambda: A(f'v_cmp_u_f32 vcc, {v(acc)}, {v(acc+1)}')
    brn = lambda: A(f's_cbranch_vccnz {Lnan}\n{Lcont}:')
    side = {e0 + 2: [lambda: A(f'v_add_f32 {v(acc)}, {v(acc)}, {v(acc+2)}\nv_add_f32 {v(acc+1)}, {v(acc+1)}, {v(acc+3)}')]}
    if QK:
        side.update({e0 + 3: [lambda: cvt(0), lambda: A(f'ds_write_b32 {v(vTW)}, {v(tq)}')], e0 + 4: [cmpu], e0 + 6: [brn],
                     e0 + 7: [lambda: A('s_waitcnt lgkmcnt(0)\ns_barrier'), lambda: self.stamp(role, 'ba'), lambda: zrd(0)], e0 + 8: [lambda: zrd(1)]})
    else:
        side.update({e0 + 3: [cmpu, lambda: cvt(0)], e0 + 5: [brn, lambda: vst(0)]})
    for n, (m, tt) in enumerate(seq):
        if n == e0: self.stamp(role, 'qe'); A.label(Lredo)
        if n == 1: self.stamp(role, 's1')
        if tt > waited: A(f's_waitcnt lgkmcnt({issued - 1 - tt})'); waited = tt
        sm(m, tt)
        if issued < 10: rdA(issued); issued += 1
        if n == bpos: bfl()
        for f in side.pop(n, []): f()
    for n in sorted(side):
        for f in side[n]: f()
    def post1():
        A(f'v_pk_add_f32 {v(acc+4,2)}, {v(acc+4,2)}, {v(acc+6,2)}')
        cvt(1)
    if QK:
        Lw0, Lw3, Ljoin = A.uid('L_w0'), A.uid('L_w3'), A.uid('L_join')
        A(f'''s_cmp_eq_u32 {s(sW)}, 0
        s_cbranch_scc1 {Lw0}
        s_cmp_eq_u32 {s(sW)}, 3
        s_cbranch_scc1 {Lw3}''')
        def tphase(wave):
            xs = lambda: (A(f'buffer_store_dwordx4 {v(S,4)}, {v(vSCst)}, {s(WS,4)}, {s(sCur)} offen{ST}'), self.stamp(role, 'sc'))
            if wave == 1 and o.xo == 2: scores(Kx)
            post1()
            A(f'ds_write_b32 {v(vTW)}, {v(tq+1)} offset:4')
            if wave == 1 and o.xo < 2: scores(Kx, 1)
            if wave == 1 and o.xo: xs()
            A('s_waitcnt lgkmcnt(0)\ns_barrier')
            if wave == 1 and not o.xo: xs()
            self.stamp(role, 'b2')
            if wave != 1: zrd(0); zrd(1)
            if wave == 3:
                if not o.af: bfl(32)
                A('s_waitcnt lgkmcnt(0)')
                xrd(0); xrd(1)
                A(f'''s_waitcnt lgkmcnt(0)
                buffer_store_dwordx4 {v(Z,4)}, {v(vKMst)}, {s(WS,4)}, {s(sKmOff)} offen{ST}
                buffer_store_dwordx4 {v(Z+4,4)}, {v(vKMst)}, {s(WS,4)}, {s(sKmOff)} offen offset:512{ST}''')
            else:
                if wave == 0: scores(Z)
                xrd(0); xrd(1)
                if wave == 0:
                    A(f'buffer_store_dword {v(S+2)}, {v(vSCst)}, {s(WS,4)}, {s(sCur)} offen{ST}')
                    A(f'buffer_store_dword {v(S+3)}, {v(vSCst)}, {s(WS,4)}, {s(sCur)} offen offset:8{ST}')
            if wave != 1: self.stamp(role, 'sc')
        tphase(1); A(f's_branch {Ljoin}')
        A.label(Lw0); tphase(0); A(f's_branch {Ljoin}')
        A.label(Lw3); tphase(3)
        A.label(Ljoin)
    else:
        post1(); vst(1)
        self.stamp(role, 'vm')
        if not o.af: bfl(32)
        xrd(0); xrd(1)
    Lend = A.uid('L_end')
    A(f's_cmp_eq_u32 {s(sS)}, {o.nsteps - 1}\ns_cbranch_scc1 {Lend}')
    Ls = A.uid('L_sd')
    A(f's_cmp_eq_u32 {s(sS)}, 0\ns_cbranch_scc1 {Ls}c\n{Ls}:')
    self.cold.append((Ls + 'c', lambda: (sides(), A(f's_branch {Ls}'))))
    if QK: self.tr_flush(role, 1)
    if QK and o.hd >= 14 and not self.slow:
        Lh = A.uid('L_h'); A(f's_cmp_lg_u32 {s(sS)}, {o.hd - 14}\ns_cbranch_scc1 {Lh}'); self.hd(o.hd); A.label(Lh)
    if not QK:
        La = A.uid('L_an'); bl = f'buffer_load_dword {v(vTrD)}, {v(vBa)}, {s(WS,4)}, {s(sXB)} offen sc1'
        A(f's_cmp_eq_u32 {s(sB)}, 0\ns_cbranch_scc1 {La}\ns_barrier')
        def announcer():
            A(f's_cmp_lg_u32 {s(sW0)}, 0\ns_cbranch_scc1 {La}x')
            self.spin(bl, f'v_cmp_ge_u32 vcc, {s(sS)}, {v(vTrD)}', 7 if o.fpoll & 4 else 4, fast=o.fpoll & 4)
            A.label(La + 'x')
            A('s_barrier')
            gemm(True, setup, True, ann=True)
            self.stamp(role, 'ge'); self.tr_flush(role)
            A(f's_branch {LP}')
        self.cold.append((La, announcer))
    gemm(True, setup, True)
    self.stamp(role, 'ge')
    if not QK: self.tr_flush(role)
    A(f's_branch {LP}')
    A.label(Lend)
    if not QK: fin_loads()
    A('s_waitcnt vmcnt(0) lgkmcnt(0)')
    if not QK: fin_out(); A('s_waitcnt vmcnt(0)')
    if QK:
        A(f'buffer_store_dword {v(vFl)}, {v(vKF)}, {s(WS,4)}, {s(sXB)} offen{ST}')
        self.hd(10)
    if not QK and o.wb & 2:
        Lw = A.uid('L_wb')
        A(f's_cmp_lg_u32 {s(sW0)}, 0\ns_cbranch_scc1 {Lw}\nbuffer_wbl2 sc1\ns_waitcnt vmcnt(0)\n{Lw}:')
    self.stamp_out(role); self.tl(7, True)
    A('s_endpgm')
    A.label(Lnan)
    A(f's_cmp_eq_u32 {s(sMark)}, 1\ns_cbranch_scc1 {Lcont}\nv_lshlrev_b32 v1, 4, v0')
    A.label(Lnan + 'r')
    A(f's_mov_b32 {s(sT0)}, {s(sCur)}\nv_mov_b32 v2, 0')
    for k in range(10):
        A(f'buffer_load_dwordx4 {v(Aop+4*k,4)}, v1, {s(WS,4)}, {s(sT0)} offen sc1\ns_add_u32 {s(sT0)}, {s(sT0)}, 1024')
    self.budget()
    A('s_waitcnt vmcnt(0) lgkmcnt(0)')
    for k in range(20): A(f'v_max3_u32 v2, v2, {v(Aop+2*k)}, {v(Aop+2*k+1)}')
    A(f'v_cmp_eq_u32 vcc, -1, v2\ns_cbranch_vccnz {Lnan}r\ns_mov_b32 {s(sMark)}, 1')
    for i in range(8): A(f'v_mov_b32 {v(acc+i)}, 0')
    for m, tt in seq[:e0]: sm(m, tt)
    A(f's_branch {Lredo}')
```

```python
from asmlib import v, a, s
from gen import *

def wo(self):
    A = self.A; t = self.tag; ST = self.st; o = self.o
    LY = 0; YS = 24576; LPX = 98304; LE = 122880; ES = 1152; LVM = LE + 8192
    r = RA(10, 248)
    (vIdxU, vIdxP, vL16, vL4, vPst0, vOloc, vVr0, vMst, vEW, vER, vYW, vYW2, vYR, vYR2, vYWs, vYW2s, vYRs, vYR2s,
     vPXR, vPXRs, vOst, vOl, vOut, vFlA, vFlT, vFlTs, vFlD, vH16, vHsc, vHscm, vHvx, vMx, vMy, vPk, vHvm, vEf, vPclr, vYUs) = [r() for _ in range(38)]
    Y = r(32, 4); PA = r(4, 4); ONES = r(8, 4); SX = r(12, 4); SM = r(4, 2); SELB = r(6, 2); SELA = SELB + 2; vTfD = SM + 3; Dsum = r(4, 4); D = r(16, 4)
    VMo = r(12, 4); Yacc = r(16, 4); PB = r(8, 4); acc = r(8, 4); vM0 = PB; vN4 = PB + 4
    Pop = r(24, 4); Yop = r(16, 4); oacc = r(8, 4); fin = r(8, 4); ep = r(4, 2); Eop = PA; cc2 = r(2, 2); mm2 = r(2, 2); vTf = r(); vBFa = r(); vVr1 = vL4
    Uacc = Yacc
    WOr = 0; VXs = 96
    sJ, sPartOff, sPartClr, sCur, sNext, sVx0, sVx1, sVx2, sPxOff, sOst, sOst2, sOl, sOutRow, sVmM0, sPxM0, sF0, sF1, sMk = range(40, 58); sLo8 = 58; sCl = 60; SEL2 = 144
    A.label(f'L_wo{t}')
    self.srd(R0, P_WO, 6144 * 640 * 2); self.srd(R1, P_M0, 8 * 640 * 2)
    A(f's_sub_u32 {s(sJ)}, {s(sR)}, {R_WO}')
    self.lanes()
    vWdma0, vWdma1, vWr = Pop, Pop + 1, Pop + 2
    A(f'''v_lshrrev_b32 v3, 3, v0
    v_and_b32 v4, 7, v0
    v_and_b32 v6, 2, v3
    v_xor_b32 v6, v6, v4
    v_lshlrev_b32 v6, 4, v6
    v_mul_u32_u24 v7, 1280, v3
    s_lshl_b32 {s(sT0)}, {s(sG)}, 2
    s_add_u32 {s(sT0)}, {s(sT0)}, {s(sW)}
    s_mul_i32 {s(sT0)}, {s(sT0)}, {192*1280}
    s_lshl_b32 {s(sT1)}, {s(sJ)}, 7
    s_add_u32 {s(sT0)}, {s(sT0)}, {s(sT1)}
    v_add3_u32 {v(vWdma0)}, v6, v7, {s(sT0)}
    v_xor_b32 {v(vWdma1)}, 64, {v(vWdma0)}''')
    A(f'''s_mul_i32 {s(sT0)}, {s(sJ)}, {PBLK}
    {'s_lshl_b32 %s, %s, 11' % (s(sT1), s(sW)) if not o.lay else 's_and_b32 %s, %s, 1' % (s(sT1), s(sW)) + chr(10) + 's_mul_i32 %s, %s, %d' % (s(sT1), s(sT1), o.lay & 0xffff) + chr(10) + 's_add_u32 %s, %s, %s' % (s(sT0), s(sT0), s(sT1)) + chr(10) + 's_lshr_b32 %s, %s, 1' % (s(sT1), s(sW)) + chr(10) + 's_mul_i32 %s, %s, %d' % (s(sT1), s(sT1), o.lay >> 16)}
    s_add_u32 {s(sT0)}, {s(sT0)}, {s(sT1)}
    s_lshl_b32 {s(sT1)}, {s(sG)}, 8
    s_add_u32 {s(sT0)}, {s(sT0)}, {s(sT1)}
    v_and_b32 v7, 7, v1
    v_lshlrev_b32 v7, 3, v7
    v_lshl_add_u32 v7, v2, 6, v7
    v_lshrrev_b32 v6, 3, v1
    v_lshl_add_u32 v7, v6, 13, v7
    v_add_u32 {v(vPst0)}, {s(sT0)}, v7
    v_lshlrev_b32 v6, 4, v1
    v_lshlrev_b32 {v(vL16)}, 4, v0
    v_lshlrev_b32 {v(vL4)}, 2, v0
    v_add_u32 {v(vPclr)}, {s(sT0)}, {v(vL4)}''')
    A(f'''s_lshl_b32 {s(sT2)}, {s(sJ)}, 7
    s_lshl_b32 {s(sT3)}, {s(sW)}, 2
    s_add_u32 {s(sT2)}, {s(sT2)}, {s(sT3)}
    s_add_u32 {s(sT2)}, {s(sT2)}, {TF}
    v_mov_b32 {v(vTf)}, {s(sT2)}''')
    self.oob_unless(vTf, 'v_cmp_eq_u32 vcc, 0, v0')
    A(f'''s_lshl_b32 {s(sT2)}, {s(sJ)}, 4
    s_add_u32 {s(sT2)}, {s(sT2)}, {s(sT3)}
    s_add_u32 {s(sT2)}, {s(sT2)}, {AF}
    v_mov_b32 {v(vEf)}, {s(sT2)}
    v_cndmask_b32 {v(vEf)}, v9, {v(vEf)}, vcc''')
    A(f'''s_lshl_b32 {s(sT2)}, {s(sW)}, 7
    s_add_u32 {s(sT2)}, {s(sT2)}, {BF}
    v_min_u32 v3, 5, v0
    v_lshl_add_u32 {v(vBFa)}, v3, 2, {s(sT2)}''')
    A(f'''s_lshl_b32 {s(sT0)}, {s(sJ)}, 2
    s_add_u32 {s(sT0)}, {s(sT0)}, {s(sW)}     ; tile
    s_lshl_b32 {s(sT1)}, {s(sT0)}, 8
    v_add_u32 {v(vMst)}, {s(sT1)}, v6''')
    self.oob_unless(vMst, 'v_cmp_eq_u32 vcc, 0, v2')
    A(f'''v_lshrrev_b32 v3, 2, v1
    v_and_b32 v7, 1, v1
    v_lshl_or_b32 v4, v3, 1, v7                ; row
    v_mul_u32_u24 v4, 1280, v4
    v_and_b32 v5, 2, v1
    v_lshl_add_u32 v4, v5, 1, v4
    s_lshl_b32 {s(sT1)}, {s(sT0)}, 5
    v_add_u32 v4, {s(sT1)}, v4
    v_lshlrev_b32 v6, 6, v3
    v_lshl_add_u32 v6, v7, 5, v6
    v_lshl_add_u32 v6, v2, 3, v6
    v_lshl_add_u32 v6, v5, 1, v6               ; Q*64 + j*32 + g*8 + kh*4
    s_mul_i32 {s(sT2)}, {s(sW)}, {ES}
    s_add_u32 {s(sT2)}, {s(sT2)}, {LE}
    v_add_u32 {v(vEW)}, {s(sT2)}, v6''')
    for q in range(4):
        A(f'buffer_load_dword {v(vM0+q)}, v4, {s(R1,4)}, 0 offen offset:{8*q}')
    for q in range(4): A(f'v_mov_b32 {v(vN4+q)}, -1')
    A(f's_mul_i32 {s(sT0)}, {s(sW)}, {YS}\ns_mov_b32 m0, {s(sT0)}\ns_mov_b32 {s(sT1)}, 0')
    for k in range(24):
        A(f'buffer_load_dwordx4 {v(vWdma1 if k & 1 else vWdma0)}, {s(R0,4)}, {s(sT1)} offen{" nt" if o.nt & 4 else ""} lds')
        if k < 23: A(f's_add_u32 m0, m0, 1024\ns_add_u32 {s(sT1)}, {s(sT1)}, {8*1280}')
    A('s_waitcnt vmcnt(24)')
    for q in range(4): A(f'v_min_u32 {v(vM0+q)}, -2, {v(vM0+q)}')
    A(f'''v_and_b32 v7, 2, v1
    v_cmp_ne_u32 vcc, 0, v7                    ; half
    v_mov_b32 v5, 0x4444
    v_mov_b32 v6, 0xeeee
    v_cndmask_b32 {v(vIdxU)}, v5, v6, vcc
    v_mov_b32 v5, 0xe484
    v_mov_b32 v6, 0xee9e
    v_cndmask_b32 v7, v5, v6, vcc
    v_mov_b32 v5, 0x84e4
    v_mov_b32 v6, 0x9eee
    v_cndmask_b32 v8, v5, v6, vcc
    v_cmp_gt_u32 vcc, 2, v2
    v_cndmask_b32 {v(vIdxP)}, v8, v7, vcc''')
    for i in range(8): A(f'v_mov_b32 {v(ONES+i)}, {0 if i in (3,7) else 0x3f803f80}')
    for ct in range(4): A(f'v_mov_b32 {v(Y+8*ct+3)}, 0\nv_mov_b32 {v(Y+8*ct+7)}, 0')
    for hb in range(2): A(f'v_mov_b32 {v(Yop+8*hb+6)}, 0\nv_mov_b32 {v(Yop+8*hb+7)}, 0')
    self.sel_consts(SELB, 1 if o.w1 & 1 else 0)
    A(f's_mov_b32 s60, 0xaaaaaaaa\ns_mov_b32 s61, 0xaaaaaaaa')
    if o.w1 & 1: A(f'v_add_u32 {v(vPst0)}, 8192, {v(vPclr)}')
    A(f'''v_mov_b32 {v(cc2)}, {f32(CSM)}
    v_mov_b32 {v(cc2+1)}, {f32(CSM)}
    s_lshl_b32 {s(sT0)}, {s(sW)}, 8
    s_add_u32 {s(sT0)}, {s(sT0)}, {LE}
    v_mul_u32_u24 v6, {ES}, v2
    v_lshl_add_u32 v6, v1, 3, v6
    v_add_u32 {v(vER)}, {s(sT0)}, v6
    s_mul_i32 {s(sT0)}, {s(sW)}, 1536
    v_add_u32 {v(vYW)}, {s(sT0)}, {v(vL16)}
    s_add_u32 {s(sT0)}, {s(sT0)}, 1024
    v_lshl_add_u32 {v(vYW2)}, v0, 3, {s(sT0)}
    s_mul_i32 {s(sT0)}, {s(sW)}, 6144
    v_add_u32 {v(vYR)}, {s(sT0)}, {v(vL16)}
    s_add_u32 {s(sT0)}, {s(sT0)}, 1024
    v_lshl_add_u32 {v(vYR2)}, v0, 3, {s(sT0)}
    v_add_u32 {v(vPXR)}, {LPX}, {v(vL16)}
    s_mul_i32 {s(sT0)}, {s(sW)}, 3072
    v_add_u32 {v(vH16)}, {s(sT0)}, {v(vL16)}
    v_add_u32 {v(vHvm)}, {VM}, {v(vH16)}
    s_add_u32 {s(sPxM0)}, {s(sT0)}, {LPX}
    s_mul_i32 {s(sT0)}, {s(sW)}, 3840
    s_add_u32 {s(sT0)}, {s(sT0)}, {SC}
    v_add_u32 {v(vHsc)}, {s(sT0)}, {v(vL16)}
    s_add_u32 {s(sT0)}, {s(sT0)}, 1024
    v_add_u32 {v(vHscm)}, {s(sT0)}, {v(vL4)}
    s_mul_i32 {s(sT0)}, {s(sW)}, 12288
    v_add_u32 {v(vHvx)}, {s(sT0)}, {v(vL16)}
    s_lshl_b32 {s(sT3)}, {s(sJ)}, 2
    s_add_u32 {s(sT3)}, {s(sT3)}, {s(sW)}''')
    self.out_addr(sT3, vOst, vOl, vOut, vOloc, sLo8, SEL2)
    A(f'''s_lshl_b32 {s(sT0)}, {s(sW)}, 7
    v_add_u32 v5, {s(sT0)}, {v(vL4)}
    v_add_u32 v6, {XF}, v5
    v_add_u32 v7, {PF - 48}, v5
    v_cmp_gt_u32 vcc, 12, v0
    v_cndmask_b32 {v(vFlA)}, v7, v6, vcc
    v_mov_b32 v5, -2
    v_cndmask_b32 {v(vFlT)}, v5, 3, vcc''')
    self.oob_unless(vFlA, 'v_cmp_gt_u32 vcc, 14, v0')
    A(f'v_mov_b32 v5, -1000\nv_cndmask_b32 {v(vFlT)}, v5, {v(vFlT)}, vcc')
    A(f'''v_and_b32 v4, 3, v1
    v_lshlrev_b32 v6, 6, v4
    v_lshl_add_u32 v6, v3, 3, v6
    v_lshl_add_u32 v6, v2, 8, v6
    v_and_b32 v5, 1, v2
    v_lshl_add_u32 v6, v5, 5, v6
    s_mul_i32 {s(sT0)}, {s(sW)}, 3072
    s_add_u32 {s(sVmM0)}, {s(sT0)}, {LVM}
    v_add_u32 {v(vVr0)}, {s(sVmM0)}, v6
    v_xor_b32 {v(vVr1)}, 32, {v(vVr0)}''')
    A(f'''v_and_b32 v4, 3, v1
    v_and_b32 v5, 1, v2
    v_lshl_add_u32 v6, v2, 3, v3
    v_lshlrev_b32 v6, 7, v6
    v_and_b32 v7, 2, v3
    v_lshl_or_b32 v7, v5, 2, v7
    v_lshrrev_b32 v8, 1, v4
    v_xor_b32 v7, v7, v8
    v_lshl_add_u32 v6, v7, 4, v6
    v_and_b32 v7, 1, v4
    v_lshl_add_u32 v6, v7, 3, v6
    s_mul_i32 {s(sT0)}, {s(sW)}, {YS}
    v_add_u32 v6, {s(sT0)}, v6''')
    for ct in range(4): A(f'v_xor_b32 {v(vWr+ct)}, {32*ct}, v6')
    A('s_waitcnt vmcnt(0)')
    for ct in range(4):
        for ks in range(6):
            for eh in range(2):
                A(f'ds_read_b64_tr_b16 {a(WOr + 24*ct + 4*ks + 2*eh, 2)}, {v(vWr+ct)} offset:{ks*4096 + eh*512}')
    A('s_waitcnt lgkmcnt(0)\ns_barrier')
    self.tl(8)
    self.tl(2)
    self.gwait()
    self.tl(3)
    A(f'buffer_store_dwordx4 {v(vM0,4)}, {v(vMst)}, {s(WS,4)}, {s(sXB)} offen{ST}')
    if o.touch in (1, 2) and not self.slow:
        self.srd(R3, P_BX, 2048 * 640 * 2)
        A(f'''s_lshl_b32 {s(sT3)}, {s(sJ)}, 2
        s_add_u32 {s(sT3)}, {s(sT3)}, {s(sW)}
        s_lshl_b32 {s(sT3)}, {s(sT3)}, 10
        s_add_u32 {s(sT2)}, {s(sT3)}, 81920
        s_add_u32 {s(sT3)}, {s(sT3)}, {s(sXB)}''')
        for k in range(4):
            A(f'buffer_load_dwordx4 v[248:251], {v(vL16)}, {s(R3,4)}, {s(sT2)} offen\ns_add_u32 {s(sT2)}, {s(sT2)}, 40960')
        if o.loc:
            for k in range(4): A(f's_mov_b32 {s(sT2)}, {k*PART_SLOT}\nbuffer_load_dwordx4 v[248:251], {v(vEf)}, {s(WS,4)}, {s(sT2)} offen sc1')
        for k in range(12 if o.touch == 1 else 22):
            A(f'buffer_load_dwordx4 v[248:251], {v(vL16)}, {s(WS,4)}, {s(sT3)} offen sc1\ns_add_u32 {s(sT3)}, {s(sT3)}, 40960')

    def flag_issue():
        A(f'buffer_load_dword {v(vFlD)}, {v(vFlA)}, {s(WS,4)}, {s(sXB)} offen sc1')
    def flag_wait(cnt):
        Lw, Lok = A.uid('L_fw'), A.uid('L_fok')
        if cnt is not None: A(f's_waitcnt vmcnt({cnt})')
        A(f'v_cmp_lt_i32 vcc, {v(vFlD)}, {v(vFlTs)}\ns_cbranch_vccz {Lok}')
        A.label(Lw); flag_issue(); self.budget()
        A(f's_waitcnt vmcnt(0)\nv_cmp_lt_i32 vcc, {v(vFlD)}, {v(vFlTs)}\ns_cbranch_vccnz {Lw}')
        A.label(Lok)
    def vx_loads(k0=0, k1=12):
        for k in range(k0, k1):
            A(f'buffer_load_dwordx4 {a(VXs+4*k,4)}, {v(vHvx)}, {s(WS,4)}, {s((sVx0, sVx1, sVx2)[k//4])} offen offset:{(k%4)*1024} {o.vxf}')
    def px_dma():
        for k in range(3):
            A(f'buffer_load_dwordx4 {v(vH16)}, {s(WS,4)}, {s(sPxOff)} offen offset:{k*1024} sc1 lds')
    def yx(hook=None):
        ya = lambda ct: (Yacc + 8*ct) if ct < 2 else (Pop + 8*(ct - 2))
        n = 0
        for ks in range(6):
            for ct in range(4):
                for rt in range(2):
                    d = v(ya(ct) + 4*rt, 4)
                    A(f'v_mfma_f32_16x16x32_bf16 {d}, {a(VXs + 24*rt + 4*ks, 4)}, {a(WOr + 24*ct + 4*ks, 4)}, {d if ks else 0}')
                    n += 1
                    if hook: hook(n)
        post = []
        for ct in (2, 3, 0, 1):
            b = ya(ct); y = Y + 8*ct
            post += [f'v_cvt_pk_bf16_f32 {v(y)}, {v(b)}, {v(b+1)}', f'v_cvt_pk_bf16_f32 {v(y+1)}, {v(b+2)}, {v(b+3)}',
                     f'ds_write_b64 {v(vYWs)}, {v(y,2)} offset:{ct*6144}',
                     f'v_cvt_pk_bf16_f32 {v(y+4)}, {v(b+4)}, {v(b+5)}', f'v_cvt_pk_bf16_f32 {v(y+5)}, {v(b+6)}, {v(b+7)}',
                     f'ds_write_b64 {v(vYW2s)}, {v(y+4,2)} offset:{ct*6144}']
        return post
    def out_store(src=None):
        A(f'buffer_store_dwordx4 {v(oacc if src is None else src,4)}, {v(vOst)}, {s(WS,4)}, {s(sOst)} offen sc1')
    opack = [f'v_cvt_pk_bf16_f32 {v(oacc+q)}, {v(oacc+2*q)}, {v(oacc+2*q+1)}' for q in range(4)]
    opack += [f'v_mov_b32 {v(oacc+4+i)}, {v(oacc+i)}' for i in range(2)]
    opack += [f'v_mov_b32_dpp {v(oacc+i)}, {v(oacc+2+i)} row_ror:8 row_mask:0xf bank_mask:0xc' for i in range(2)]
    opack += [f'v_mov_b32_dpp {v(oacc+2+i)}, {v(oacc+4+i)} row_ror:8 row_mask:0xf bank_mask:0x3' for i in range(2)]
    def outpart(hook=None):
        def rd(h):
            pb = Pop + 12*(h & 1); yb = Yop + 8*(h & 1)
            A(f'ds_read_b128 {v(yb,4)}, {v(vYRs)} offset:{h*1536}')
            for k in range(2): A(f'ds_read_b128 {v(pb+4*k,4)}, {v(vPXRs)} offset:{h*3072 + k*1024}')
            A(f'ds_read_b64 {v(yb+4,2)}, {v(vYR2s)} offset:{h*1536}')
            A(f'ds_read_b128 {v(pb+8,4)}, {v(vPXRs)} offset:{h*3072 + 2048}')
        rd(0); rd(1)
        for h in range(4):
            pb = Pop + 12*(h & 1); yb = Yop + 8*(h & 1)
            if hook: hook(h)
            A(f's_waitcnt lgkmcnt({5 if h < 3 else 0})')
            A(f'''v_mfma_f32_16x16x32_bf16 {v(oacc,4)}, {v(pb,4)}, {v(yb,4)}, {v(oacc,4) if h else 0}
            v_mfma_f32_16x16x32_bf16 {v(oacc+4,4)}, {v(pb+4,4)}, {v(yb,4)}, {v(oacc+4,4) if h else 0}
            v_mfma_f32_16x16x32_bf16 {v(oacc+4,4)}, {v(pb+8,4)}, {v(yb+4,4)}, {v(oacc+4,4)}''')
            if h + 2 < 4: rd(h + 2)
    def L(txt): return [x.strip() for x in txt.split('\n') if x.strip()]
    def set_outpart(d):
        return L(f'''s_add_u32 {s(sF1)}, {s(sS)}, {d}
        s_and_b32 {s(sF0)}, {s(sF1)}, 3
        s_mul_i32 {s(sF0)}, {s(sF0)}, {YS}
        v_add_u32 {v(vYRs)}, {s(sF0)}, {v(vYR)}
        v_add_u32 {v(vYR2s)}, {s(sF0)}, {v(vYR2)}
        s_and_b32 {s(sF0)}, {s(sF1)}, 1
        s_mul_i32 {s(sF0)}, {s(sF0)}, 12288
        v_add_u32 {v(vPXRs)}, {s(sF0)}, {v(vPXR)}''')
    def set_ost(d):
        return L(f'''s_add_u32 {s(sF1)}, {s(sS)}, {d}
        s_and_b32 {s(sF0)}, {s(sF1)}, 3
        s_mul_i32 {s(sF0)}, {s(sF0)}, {OL_SLOT}
        s_add_u32 {s(sOst)}, {s(sF0)}, {s(sXB)}''')
    def set_px(d, xf=False):
        return L(f'''s_add_u32 {s(sF1)}, {s(sS)}, {d}
        s_and_b32 {s(sF0)}, {s(sF1)}, 3
        s_mul_i32 {s(sF0)}, {s(sF0)}, {S4}
        s_add_u32 {s(sF0)}, {s(sF0)}, {PXB}
        s_add_u32 {s(sPxOff)}, {s(sXB)}, {s(sF0)}
        s_and_b32 {s(sF0)}, {s(sF1)}, 1
        s_add_u32 {s(sF1)}, {s(sF1)}, 1
        {f'v_add_u32 {v(vFlTs)}, {s(sS)}, {v(vFlT)}' if xf else f'v_mov_b32 {v(vFlTs)}, -16'}
        v_writelane_b32 {v(vFlTs)}, {s(sF1)}, 12
        s_mul_i32 {s(sF0)}, {s(sF0)}, 12288
        s_add_u32 m0, {s(sPxM0)}, {s(sF0)}''')
    def fin_issue(dst=None):
        A(f'buffer_load_dwordx4 {v(fin if dst is None else dst,4)}, {v(vOl)}, {s(WS,4)}, {s(sOl)} offen sc1')
    def fin_done(src):
        for x in self.fin_rows(src, fin + 4, vOut, sOutRow, sLo8, SEL2): A(x)
    assert PART == 0
    nxtA = L(f'''s_mov_b32 {s(sOst2)}, {s(sPartClr)}
    s_add_u32 {s(sF1)}, {s(sS)}, 1
    v_mov_b32 {v(vYUs)}, {v(vYWs)}
    s_and_b32 {s(sF0)}, {s(sF1)}, 3
    s_mul_i32 {s(sPartOff)}, {s(sF0)}, {PART_SLOT}
    s_mul_i32 {s(sF1)}, {s(sF0)}, {S4}
    s_add_u32 {s(sCur)}, {s(sXB)}, {s(sF1)}
    s_xor_b32 {s(sF0)}, {s(sF0)}, 2
    s_mul_i32 {s(sPartClr)}, {s(sF0)}, {PART_SLOT}
    s_add_u32 {s(sF1)}, {s(sS)}, 2
    v_mov_b32 {v(vTfD)}, {s(sF1)}
    s_and_b32 {s(sF0)}, {s(sF1)}, 3
    s_mul_i32 {s(sNext)}, {s(sF0)}, {YS}''') + set_ost(-1) + set_outpart(-1)
    nxtB = L(f'''s_add_u32 {s(sS)}, {s(sS)}, 1
    s_mov_b32 m0, {s(sVmM0)}
    v_add_u32 {v(vYWs)}, {s(sNext)}, {v(vYW)}
    v_add_u32 {v(vYW2s)}, {s(sNext)}, {v(vYW2)}''')
    nxt2 = L(f'''s_add_u32 {s(sF1)}, {s(sS)}, 2
    s_and_b32 {s(sF0)}, {s(sF1)}, 3
    s_mul_i32 {s(sF0)}, {s(sF0)}, {S4}
    s_add_u32 {s(sF0)}, {s(sF0)}, {VX}
    s_add_u32 {s(sVx0)}, {s(sXB)}, {s(sF0)}
    s_add_u32 {s(sVx1)}, {s(sVx0)}, 4096
    s_add_u32 {s(sVx2)}, {s(sVx0)}, 8192''') + set_px(-1)
    nxtB += [f'v_pk_mul_f32 {v(x,2)}, {v(Yop+6,2)}, {v(Yop+6,2)}' for x in range(Uacc, Uacc+16, 2)]

    A(f's_mov_b32 {s(sMk)}, -1')
    A(f'''s_mov_b32 {s(sS)}, -1
    v_add_u32 {v(vFlTs)}, -2, {v(vFlT)}
    s_add_u32 {s(sVx0)}, {s(sXB)}, {VX}
    s_add_u32 {s(sVx1)}, {s(sVx0)}, 4096
    s_add_u32 {s(sVx2)}, {s(sVx0)}, 8192
    v_mov_b32 {v(vYWs)}, {v(vYW)}
    v_mov_b32 {v(vYW2s)}, {v(vYW2)}''')
    flag_issue(); flag_wait(0); self.tl(14); vx_loads(); A('s_waitcnt vmcnt(0)'); self.tl(15)
    for x in yx() + nxt2: A(x)
    A(f'v_add_u32 {v(vFlTs)}, -1, {v(vFlT)}')
    flag_issue(); flag_wait(0); vx_loads()
    for x in nxtA + nxtB: A(x)
    for x in list(range(D, D+16)) + list(range(Dsum, Dsum+4)): A(f'v_mov_b32 {v(x)}, 0')
    self.tl(4)

    if o.x & 1024: A(f'v_mov_b32 {v(vHvx)}, {OOB}')
    if o.x & 2048: A(f'v_mov_b32 {v(vH16)}, {OOB}')
    LP = f'L_wo_loop{t}'
    A.label(LP)
    Lb, Lv, Lu = A.uid('L_bf'), A.uid('L_vm'), A.uid('L_u')
    bfl = f'buffer_load_dword {v(vMx)}, {v(vBFa)}, {s(WS,4)}, {s(sXB)} offen sc1'
    if o.tr or 'dr' in o.stamp: A(bfl + '\ns_waitcnt vmcnt(0)'); self.stamp('wo', 'dr')
    self.spin(bfl, f'v_cmp_ge_u32 vcc, {s(sS)}, {v(vMx)}', 7 if o.fpoll & 1 else o.wdep, fast=o.fpoll & 1)
    def vm_loads():
        for k in range(3):
            A(f'buffer_load_dwordx4 {v(vHvm)}, {s(WS,4)}, {s(sCur)} offen offset:{k*1024} sc1 lds')
    afl = f'buffer_store_dword {v(vTfD)}, {v(vEf)}, {s(WS,4)}, {s(sXB)} offen{ST}'
    if o.af == 1: A(afl)
    vm_loads()
    if o.af == 2: A(afl)
    self.stamp('wo', 'bf'); self.tl0(10); self.tl0(12, 1)
    sxl = [f'buffer_load_dwordx4 {v(SX+4*p,4)}, {v(vHsc)}, {s(WS,4)}, {s(sCur)} offen offset:{p*1280} sc1' for p in range(3)]
    sml = [f'buffer_load_dword {v(SM+p)}, {v(vHscm)}, {s(WS,4)}, {s(sCur)} offen offset:{p*1280} sc1' for p in range(3)]
    vrd = lambda tt: f'ds_read_b64_tr_b16 {v(VMo+4*tt,2)}, {v(vVr0)} offset:{tt*1024}\nds_read_b64_tr_b16 {v(VMo+4*tt+2,2)}, {v(vVr1)} offset:{tt*1024}'
    usm = [f'v_smfmac_f32_16x16x64_bf16 {v(Uacc+4*ct,4)}, {v(VMo+4*tt,4)}, {a(WOr+24*ct+8*tt,8)}, {v(vIdxU)}' for tt in range(3) for ct in range(4)]
    upost = []
    for ct in range(4):
        u = Uacc + 4*ct
        upost += [f'v_pk_add_f32 {v(u,2)}, {v(u,2)}, {v(u+2,2)}',
                  f'v_cvt_pk_bf16_f32 {v(Y+8*ct+2)}, {v(u)}, {v(u+1)}', f'v_cvt_pk_bf16_f32 {v(Y+8*ct+6)}, {v(u)}, {v(u+1)}']
    uw = [f'ds_write_b32 {v(vYUs)}, {v(Y+8*ct+2)} offset:{ct*6144 + 8}' for ct in range(4)]
    Ltail = f'L_wo_tail{t}'
    A(f's_cmp_eq_u32 {s(sS)}, {o.nsteps-1}\ns_cbranch_scc1 {Ltail}')
    y = 1 if o.af == 2 else 0
    for tt in range(3):
        A(f's_waitcnt vmcnt({2 - tt + y})'); A(vrd(tt))
        if tt == 0 and o.af == 3: A(afl); y += 1
        if tt == o.spos:
            for x in sxl: A(x)
            y += 3
            if o.af == 4: A(afl); y += 1
    if o.mpos < 0:
        for x in sml: A(x)
    self.stamp('wo', 'vm')
    for n, x in enumerate(usm):
        if n in (0, 4, 8): A(f's_waitcnt lgkmcnt({4 - n//2})')
        A(x)
        if o.mpos >= 0 and 0 <= n - o.mpos < 3: A(sml[n - o.mpos])
    def vm_exact(L_):
        A.label(L_)
        vm_loads(); self.budget()
        A(f'v_add_u32 v5, {s(sVmM0)}, {v(vL16)}\ns_waitcnt vmcnt(0)')
        for k in range(3): A(f'ds_read_b128 {v(VMo+4*k,4)}, v5 offset:{1024*k}')
        A(f's_waitcnt lgkmcnt(0)\nv_max_u32 v4, {v(VMo)}, {v(VMo+1)}')
        for i in range(1, 6): A(f'v_max3_u32 v4, v4, {v(VMo+2*i)}, {v(VMo+2*i+1)}')
        A(f'v_cmp_eq_u32 vcc, -1, v4\ns_cbranch_vccnz {L_}')
        for tt in range(3): A(vrd(tt))
        for i in range(16): A(f'v_mov_b32 {v(Uacc+i)}, 0')
        A('s_waitcnt lgkmcnt(0)')
        for x in usm: A(x)
    self.stamp('wo', 'u')
    Lsc, Lsp, Lsg = A.uid('L_sc'), A.uid('L_sp'), A.uid('L_sg')
    s0 = ep
    A.label(Lsc)
    up = list(upost)
    def U(n=2): return '\n'.join(up.pop(0) for _ in range(min(n, len(up))))
    ya = 1 if o.af == 4 else 0
    A(f'''{U(o.un)}
    s_waitcnt vmcnt({4 + ya})
    v_pk_add_f32 {v(s0,2)}, {v(SX,2)}, {v(SX+4,2)}
    v_pk_add_f32 {v(s0+2,2)}, {v(SX+2,2)}, {v(SX+6,2)}
    s_waitcnt vmcnt({3 + ya})
    v_pk_add_f32 {v(s0,2)}, {v(s0,2)}, {v(SX+8,2)}
    v_pk_add_f32 {v(s0+2,2)}, {v(s0+2,2)}, {v(SX+10,2)}
    v_pk_mul_f32 {v(s0,2)}, {v(s0,2)}, {v(cc2,2)}
    v_pk_mul_f32 {v(s0+2,2)}, {v(s0+2,2)}, {v(cc2,2)}
    v_max3_f32 {v(vMx)}, {v(s0)}, {v(s0+1)}, {v(s0+2)}
    s_waitcnt vmcnt(0)
    v_add_f32 {v(vPk)}, {v(SM)}, {v(SM+1)}
    v_add_f32 {v(vPk)}, {v(vPk)}, {v(SM+2)}
    v_mul_f32 {v(vPk)}, {v(vPk)}, {v(cc2)}
    v_max3_f32 {v(vMx)}, {v(vMx)}, {v(s0+3)}, {v(vPk)}
    {U()}
    v_max_f32_dpp {v(vMy)}, {v(vMx)}, {v(vMx)} quad_perm:[2,3,0,1] row_mask:0xf bank_mask:0xf
    v_max_f32_dpp {v(vMx)}, {v(vMx)}, {v(vMx)} quad_perm:[2,3,0,1] row_mask:0xf bank_mask:0xf
    {U()}
    v_permlane16_swap_b32 {v(vMx)}, {v(vMy)}
    v_max_f32 {v(vMx)}, {v(vMx)}, {v(vMy)}
    v_mov_b32 {v(vMy)}, {v(vMx)}
    {U()}''')
    self.stamp('wo', 'sc')
    lq = [0, 6, 1, 7, 2, 8, 3, 9, 4, 10, 5, 11]
    A(f'''v_permlane32_swap_b32 {v(vMx)}, {v(vMy)}
    v_max_f32 {v(mm2)}, {v(vMx)}, {v(vMy)}
    v_pk_add_f32 {v(s0,2)}, {v(s0,2)}, {v(mm2,2)} op_sel_hi:[1,0] neg_lo:[0,1] neg_hi:[0,1]
    v_pk_add_f32 {v(s0+2,2)}, {v(s0+2,2)}, {v(mm2,2)} op_sel_hi:[1,0] neg_lo:[0,1] neg_hi:[0,1]
    v_sub_f32 {v(vPk)}, {v(vPk)}, {v(mm2)}
    v_exp_f32 {v(s0)}, {v(s0)}
    v_exp_f32 {v(s0+1)}, {v(s0+1)}
    v_exp_f32 {v(s0+2)}, {v(s0+2)}
    v_exp_f32 {v(s0+3)}, {v(s0+3)}
    v_exp_f32 {v(vPk)}, {v(vPk)}
    v_cvt_pk_bf16_f32 {v(PA)}, {v(s0)}, {v(s0+1)}
    v_cvt_pk_bf16_f32 {v(PA+2)}, {v(s0+2)}, {v(s0+3)}
    v_cvt_pk_bf16_f32 {v(PA+1)}, {v(vPk)}, 0
    v_cvt_pk_bf16_f32 {v(PA+3)}, {v(vPk)}, 0
    {U()}
    v_smfmac_f32_16x16x64_bf16 {v(Dsum,4)}, {v(PA,4)}, {v(ONES,8)}, {v(vIdxP)}
    {U()}''')
    for ct in range(4):
        A(f'v_smfmac_f32_16x16x64_bf16 {v(D+4*ct,4)}, {v(PA,4)}, {v(Y+8*ct,8)}, {v(vIdxP)}')
        if ct == 0: A(U())
        if ct == 2: A(f'v_add_f32 {v(Dsum)}, {v(Dsum)}, {v(Dsum+2)}\nv_add_f32 {v(Dsum+1)}, {v(Dsum+1)}, {v(Dsum+3)}')
    assert not up
    A(f'''v_rcp_f32 {v(Dsum)}, {v(Dsum)}
    v_rcp_f32 {v(Dsum+1)}, {v(Dsum+1)}''')
    for ct in range(4):
        A(f'v_pk_add_f32 {v(D+4*ct,2)}, {v(D+4*ct,2)}, {v(D+4*ct+2,2)}')
        A(f'v_pk_mul_f32 {v(D+4*ct,2)}, {v(D+4*ct,2)}, {v(Dsum,2)}')
        A(f'v_cvt_pk_bf16_f32 {v(ep+ct)}, {v(D+4*ct)}, {v(D+4*ct+1)}')
        if ct & 1: A(f'ds_write2st64_b32 {v(vEW)}, {v(ep+ct-1)}, {v(ep+ct)} offset0:{ct-1} offset1:{ct}')
    self.stamp('wo', 'e')
    A(f'v_cmp_u_f32 vcc, {v(D)}, {v(D+1)}')
    if o.flpos == 'e': flag_issue()
    zr = [f'v_mov_b32 {v(x)}, 0' for x in list(range(D, D+16)) + list(range(Dsum, Dsum+4))]
    for x in zr[:9]: A(x)
    A(f's_cbranch_vccnz {Lsp}')
    A.label(Lsg)
    A(f'''s_waitcnt lgkmcnt(0)
    s_barrier
    ds_read_b64_tr_b16 {v(Eop,2)}, {v(vER)}
    ds_read_b64_tr_b16 {v(Eop+2,2)}, {v(vER)} offset:128''')
    for x in zr[9:]: A(x)
    A(f'''s_waitcnt lgkmcnt(0)
    v_mfma_f32_16x16x32_bf16 {v(acc,4)}, {v(Eop,4)}, {v(SELB,4)}, 0''')
    if o.flpos == 'r': flag_issue()
    for q in range(2): A(f'v_cvt_pk_bf16_f32 {v(ep+q)}, {v(acc+2*q)}, {v(acc+2*q+1)}')
    if o.w1 & 1:
        A(f'''v_cndmask_b32 {v(ep)}, {v(ep)}, {v(ep+1)}, s[60:61]
        buffer_store_dword {v(ep)}, {v(vPclr)}, {s(WS,4)}, {s(sPartOff)} offen sc1
        buffer_store_dword {v(ep)}, {v(vPst0)}, {s(WS,4)}, {s(sPartOff)} offen sc1''')
    else: A(f'buffer_store_dwordx2 {v(ep,2)}, {v(vPst0)}, {s(WS,4)}, {s(sPartOff)} offen sc1')
    self.stamp('wo', 'pp'); self.tl0(11); self.tl0(13, 1)
    def cold_sc():
        A(f's_cmp_eq_u32 {s(sMk)}, {s(sS)}\ns_cbranch_scc1 {Lsg}\ns_mov_b32 {s(sMk)}, {s(sS)}')
        self.count(1, 'wo')
        A.label(Lsp + 's')
        for x in sxl + sml: A(x)
        self.budget()
        A(f's_waitcnt vmcnt(0)\nv_max3_u32 v4, {v(SM)}, {v(SM+1)}, {v(SM+2)}')
        for i in range(6): A(f'v_max3_u32 v4, v4, {v(SX+2*i)}, {v(SX+2*i+1)}')
        A(f'v_cmp_eq_u32 vcc, -1, v4\ns_cbranch_vccnz {Lsp}s')
        for x in zr[9:]: A(x)
        vm_exact(Lsp + 'v')
        A(f's_branch {Lsc}')
    self.cold.append((Lsp, cold_sc))
    b = o.slowpos
    def clr(k):
        return lambda: A(f's_add_u32 {s(sF0)}, {s(sOst2 if o.clate else sPartClr)}, {8192*k}\nbuffer_store_dword {v(vN4)}, {v(vPclr)}, {s(WS,4)}, {s(sF0)} offen{" sc1" if k < o.ncopy else ST}')
    ncl = o.ncopy + (1 if o.loc else 0)
    clears = [clr(k) for k in range(ncl)]
    slow = clears if o.clate else []
    ny = 1 + (o.w1 & 1) + (0 if o.clate else ncl)
    L1 = A.uid('L_g')
    def ohook(h):
        if h == 0 and not o.clate:
            for f in clears: f()
        if h == 1:
            for x in nxt2: A(x)
    for x in uw: A(x)
    outpart(ohook)
    flag_wait(ny)
    if not o.x & 1: px_dma()
    for x in opack: A(x)
    A(f'buffer_store_dwordx4 {v(oacc,4)}, {v(vOloc)}, {s(WS,4)}, {s(sOst)} offen{ST}')
    self.stamp('wo', 'op')
    fl = list(nxtA)
    st = {'i': 0, 'last': 0}
    def yhook(n):
        if st['i'] < min(o.nvx, len(lq)) and n >= 8 * (st['i'] // 2 + 1) and n >= o.vx0 and n - st['last'] >= 2:
            if not o.x & 1: vx_loads(lq[st['i']], lq[st['i']] + 1)
            st['i'] += 1; st['last'] = n
            return
        if not fl and slow and n >= o.slowpos: slow.pop(0)(); return
        for _ in range(3):
            if fl: A(fl.pop(0))
    post = yx(yhook)
    if not o.x & 1:
        for k in lq[st['i']:o.nvx]: vx_loads(k, k + 1)
    for f in slow: f()
    self.stamp('wo', 'yx')
    for x in post + nxtB: A(x)
    if not o.x & 1:
        for k in lq[o.nvx:]: vx_loads(k, k + 1)
    self.stamp('wo', 'g1'); self.tr_flush('wo')
    A(f's_branch {LP}')
    A.label(Ltail)
    self.tl(5)
    vm_exact(A.uid('L_tv'))
    for x in upost + uw: A(x)
    n = o.nsteps
    tslot = lambda d: 4 - d
    for k, d in enumerate((-5, -4)):
        A(f's_add_u32 {s(sT1)}, {s(sXB)}, {((n - 1 + d) & 3) * OL_SLOT}\nbuffer_load_dwordx4 {v(D+4*k,4)}, {v(vOloc)}, {s(WS,4)}, {s(sT1)} offen sc1')
    for x in set_px(-1): A(x)
    flag_issue()
    self.side0()
    A(f'v_xor_b32 {v(vOst)}, {s(sT0)}, {v(vOst)}\nv_xor_b32 {v(vOl)}, {s(sT0)}, {v(vOl)}\ns_waitcnt lgkmcnt(0)\ns_barrier')
    flag_wait(None); px_dma()
    def keep(dst):
        for i in range(4): A(f'v_mov_b32 {v(dst+i)}, {v(oacc+i)}')
    def part(d):
        for x in set_outpart(d): A(x)
        outpart()
        for x in opack: A(x)
    keep(D + 8); part(-2); keep(D + 12)
    A('s_waitcnt vmcnt(0)\ns_barrier')
    part(-1); keep(PA)
    older = ((-5, D), (-4, D + 4), (-3, D + 8), (-2, D + 12), (-1, PA))
    def stores(lst):
        for d, src in lst:
            A(f's_mov_b32 {s(sOst)}, {OUTP + tslot(d)*OUTP_SLOT}'); out_store(src)
    def loads(lst):
        for d, r_ in lst:
            A(f's_mov_b32 {s(sOl)}, {OUTP + tslot(d)*OUTP_SLOT}'); fin_issue(r_)
    def gather(lst, younger=None):
        Lc = A.uid('L_fp')
        if younger is not None: A(f's_waitcnt vmcnt({younger})\ns_branch {Lc}c')
        A.label(Lc)
        loads(lst); self.budget()
        A('s_waitcnt vmcnt(0)')
        A.label(Lc + 'c')
        A(f'v_mov_b32 {v(vMx)}, 0')
        for _, r_ in lst:
            for i in (0, 2): A(f'v_max3_u32 {v(vMx)}, {v(vMx)}, {v(r_+i)}, {v(r_+i+1)}')
        A(f'v_cmp_eq_u32 vcc, -1, {v(vMx)}\ns_cbranch_vccnz {Lc}')
        for d, r_ in lst:
            A(f's_mov_b32 {s(sOutRow)}, {(n-1+d)*32*2560}'); fin_done(r_)
    got = ((-5, Yacc), (-4, Yacc + 4), (-3, Yacc + 8), (-2, Yacc + 12), (-1, SX))
    if o.tw: stores(older)
    self.tl(9)
    for x in set_px(0) + set_outpart(0): A(x)
    self.spin(f'buffer_load_dword {v(vFlD)}, {v(vFlA)}, {s(WS,4)}, {s(sXB)} offen sc1', f'v_cmp_lt_i32 vcc, {v(vFlD)}, {v(vFlTs)}', 6, fast=True)
    px_dma()
    self.tl(6)
    A('s_waitcnt vmcnt(0)\ns_barrier')
    if o.tw: loads(got)
    else: stores(older)
    outpart()
    for x in opack: A(x)
    stores(((0, oacc),))
    if o.tw:
        gather(got, 1)
        A('s_waitcnt vmcnt(5)')
        gather(((0, SX + 4),))
    elif o.tg:
        loads(got)
        A('s_waitcnt vmcnt(5)')
        loads(((0, SX + 4),))
        gather(got, 1)
        gather(((0, SX + 4),), 5)
    else:
        A('s_waitcnt vmcnt(0)')
        gather(((0, SX + 4),) + got)
    self.hd(11); self.stamp_out('wo'); self.tl(7, True)
    A('s_endpgm')
```
